```python
import torch

def _softmax(x, axis=-1):
    return torch.softmax(x, dim=axis)
def _gelu(x):
    return torch.nn.functional.gelu(x, approximate="tanh")
def _silu(x):
    return torch.nn.functional.silu(x)
def _sigmoid(x):
    return torch.sigmoid(x)
def _layernorm(x, axis=-1, eps=1e-5):
    m = x.mean(dim=axis, keepdim=True)
    v = x.var(dim=axis, keepdim=True, unbiased=False)
    return (x - m) / torch.sqrt(v + eps)
def _scatter_add(tgt, idx, src, axis=0):
    return tgt.clone().index_add_(axis, idx, src)
def _segment_sum(src, seg, n):
    out = torch.zeros((n,) + src.shape[1:], dtype=src.dtype)
    return out.index_add_(0, seg, src)
def _pad(x, pw):
    flat = tuple(v for pair in reversed(pw) for v in pair)
    return torch.nn.functional.pad(x, flat)

kernel_name = 'recurrent_scan__ssm_conv_s5__dense_activation_gelu__prompt'

def setup_inputs():

    _w = (lambda a: (lambda t: t.to(torch.bfloat16) if t.is_floating_point() else t)(torch.as_tensor(a)))
    def _A_setup():
        B, S, D = 1, 2048, 640
        P = D
        Lambda_re = -0.5 * (lambda _x: torch.exp(torch.as_tensor(_x)))((lambda *s: torch.randn(*s, dtype=torch.bfloat16) * 0.4)(P))
        Lambda_im = (lambda *s: torch.randn(*s, dtype=torch.bfloat16) * 0.8)(P) * 1.0
        B_re = (lambda *s: torch.randn(*s, dtype=torch.bfloat16) * 0.8)(P, D) * (D ** -0.5)
        B_im = (lambda *s: torch.randn(*s, dtype=torch.bfloat16) * 0.8)(P, D) * (D ** -0.5)
        C_re = (lambda *s: torch.randn(*s, dtype=torch.bfloat16) * 0.4)(D, P) * (P ** -0.5)
        C_im = (lambda *s: torch.randn(*s, dtype=torch.bfloat16) * 0.8)(D, P) * (P ** -0.5)
        log_dt = (lambda *s: torch.randn(*s, dtype=torch.bfloat16) * 0.4)(P) * 0.3 - 2.0
        Dskip = (lambda *s: torch.randn(*s, dtype=torch.bfloat16) * 0.2)(D)
        return {
            "x": _w((lambda *s: torch.randn(*s, dtype=torch.bfloat16) * 0.05)(B, S, D)),
            "Lambda_re": _w(Lambda_re),
            "Lambda_im": _w(Lambda_im),
            "B_re": _w(B_re),
            "B_im": _w(B_im),
            "C_re": _w(C_re),
            "C_im": _w(C_im),
            "log_dt": _w(log_dt),
            "Dskip": _w(Dskip),
        }
    _A_in = _A_setup()

    def _B_setup():
        B, S, D, F = 1, 2048, 640, 1536
        return {
            "x": _w((lambda *s: torch.randn(*s, dtype=torch.bfloat16) * 0.05)(B, S, D)),
            "w1": _w((lambda *s: torch.randn(*s, dtype=torch.bfloat16) * 0.8)(D, F) * (D ** -0.5)),
            "b1": _w((lambda *s: torch.randn(*s, dtype=torch.bfloat16) * 12.8)(F) * 0.01),
            "w2": _w((lambda *s: torch.randn(*s, dtype=torch.bfloat16) * 1.6)(F, D) * (F ** -0.5)),
            "b2": _w((lambda *s: torch.randn(*s, dtype=torch.bfloat16) * 12.8)(D) * 0.01),
        }
    _B_in = _B_setup()

    return {
        "A_x": _A_in["x"],
        "A_Lambda_re": _A_in["Lambda_re"],
        "A_Lambda_im": _A_in["Lambda_im"],
        "A_B_re": _A_in["B_re"],
        "A_B_im": _A_in["B_im"],
        "A_C_re": _A_in["C_re"],
        "A_C_im": _A_in["C_im"],
        "A_log_dt": _A_in["log_dt"],
        "A_Dskip": _A_in["Dskip"],
        "B_x": _B_in["x"],
        "B_w1": _B_in["w1"],
        "B_b1": _B_in["b1"],
        "B_w2": _B_in["w2"],
        "B_b2": _B_in["b2"],
    }

def reference(A_x, A_Lambda_re, A_Lambda_im, A_B_re, A_B_im, A_C_re, A_C_im, A_log_dt, A_Dskip, B_x, B_w1, B_b1, B_w2, B_b2):
    def _A_ref(x, Lambda_re, Lambda_im, B_re, B_im, C_re, C_im, log_dt, Dskip):
        Bsz, L, H = x.shape
        Lam = Lambda_re + 1j * Lambda_im
        Bmat = B_re + 1j * B_im
        Cmat = C_re + 1j * C_im
        dt = torch.exp(log_dt)
        Lam_bar = torch.exp(dt * Lam)
        B_bar = ((Lam_bar - 1.0) / Lam)[:, None] * Bmat
        Bu = torch.einsum("bld,pd->blp", x + 0j, B_bar)
        h = torch.zeros_like(Bu[:, 0, :])
        hs = []
        for t in range(L):
            h = Lam_bar[None, :] * h + Bu[:, t, :]
            hs.append(h)
        hseq = torch.stack(hs, 1)
        y = 2.0 * torch.einsum("blp,dp->bld", hseq, Cmat).real + x * Dskip[None, None, :]
        return y

    def _B_ref(x, w1, b1, w2, b2):
        h = torch.einsum("bsd,df->bsf", x, w1) + b1
        h = _gelu(h)
        return torch.einsum("bsf,fd->bsd", h, w2) + b2

    x = A_x
    xn = _layernorm(x, axis=-1)
    s = _A_ref(xn, A_Lambda_re, A_Lambda_im, A_B_re, A_B_im, A_C_re, A_C_im, A_log_dt, A_Dskip)
    g = _silu(_B_ref(xn, B_w1, B_b1, B_w2, B_b2))
    return x + s * g
```

```python
from gen import *

SUB = 18432
SLOT23 = 36864


def common_23(a, Lend):
    a("s_cmp_ge_u32 s2, 256")
    a("s_cbranch_scc1 %s" % Lend)
    a("s_load_dwordx2 s[10:11], s[0:1], %d" % KA["ws"])
    a("v_lshrrev_b32 v2, 6, v0")
    a("v_and_b32 v1, 63, v0")
    a("s_nop 0")
    a("v_readfirstlane_b32 s12, v2")
    a("s_and_b32 s13, s2, 3")
    a("s_lshl_b32 s13, s13, 3")
    a("s_lshr_b32 s14, s2, 3")
    a("s_and_b32 s15, s14, 7")
    a("s_add_u32 s13, s13, s15")
    a("s_lshr_b32 s14, s14, 3")
    a("s_lshr_b32 s15, s2, 2")
    a("s_and_b32 s15, s15, 1")
    a("s_lshl_b32 s15, s15, 2")
    a("s_add_u32 s14, s14, s15")
    a("s_and_b32 s17, s12, 3")
    a("s_and_b32 s18, s17, 1")
    a("s_lshr_b32 s19, s17, 1")
    a("v_lshrrev_b32 v2, 3, v1")
    a("v_and_b32 v3, 7, v1")
    a("v_lshrrev_b32 v6, 4, v1")
    a("v_and_b32 v7, 15, v1")
    a("v_xor_b32 v4, v6, v3")
    a("v_lshlrev_b32 v8, 7, v7")
    a("v_lshl_add_u32 v8, v4, 4, v8")
    a("v_xor_b32 v9, 64, v8")
    a("v_xor_b32 v4, v2, v3")


def cmul_add(a, items):
    for (d, lr, li, s, ad) in items:
        if ad is None:
            a("v_mul_f32 v%d, v%d, v%d" % (d, lr, s))
        else:
            a("v_fma_f32 v%d, v%d, v%d, v%d" % (d, lr, s, ad))
    if len(items) < 2:
        a("s_nop 1")
    for (d, lr, li, s, ad) in items:
        a("v_fmac_f32_dpp v%d, v%d, v%d %s" % (d, s, li, DPP8))


def exchange(a, ACC, vx):
    a("s_nop 7")
    a("s_nop 7")
    a("s_mul_i32 s40, s17, 5120")
    a("s_xor_b32 s41, s17, 2")
    a("s_mul_i32 s41, s41, 5120")
    a("v_add_u32 v12, s40, v%d" % vx)
    a("v_add_u32 v13, s41, v%d" % vx)
    for dt in range(5):
        r = ACC + (5 + dt) * 4
        a("ds_write_b128 v12, v[%d:%d] offset:%d" % (r, r + 3, dt * 1024))
    a("s_waitcnt lgkmcnt(0)")
    a("s_barrier")
    for dt in range(5):
        r = ACC + (5 + dt) * 4
        a("ds_read_b128 v[%d:%d], v13 offset:%d" % (r, r + 3, dt * 1024))
    a("s_waitcnt lgkmcnt(0)")
    for i in range(20):
        a("v_add_f32 v%d, v%d, v%d" % (ACC + i, ACC + i, ACC + 20 + i))


def gen_k2(a):
    name = "gemm2_kernel"
    kernel_header(a, name)
    S = 12
    Lend = a.newlabel("K2_end")
    Lld = a.newlabel("K2_ld")
    a("s_load_dwordx2 s[8:9], s[0:1], %d" % KA["b2"])
    common_23(a, Lend)
    a("s_waitcnt lgkmcnt(0)")
    a("s_cmp_ge_u32 s12, 4")
    a("s_cbranch_scc1 %s" % Lld)
    ACC = 16
    FR = 56
    ADR = 112
    U0 = 140
    VE = 236
    B2 = 244
    a("s_lshr_b32 s20, s2, 3")
    a("s_and_b32 s21, s2, 7")
    a("s_mul_i32 s21, s21, 10")
    a("s_add_u32 s21, s21, s17")
    srd_off(a, 24, 10, 11, WS_TAB, 10 * 5120)
    srd_off(a, 28, 10, 11, WS_E64, 32 * 5120)
    a("s_mul_i32 s22, s20, %d" % (80 * 4096))
    a("s_add_u32 s22, s22, %d" % WS_G32)
    srd_off(a, 32, 10, 11, "s22", 80 * 4096)
    a("s_mul_i32 s22, s20, %d" % (1280 * 128))
    a("s_add_u32 s22, s22, %d" % WS_HT)
    srd_off(a, 36, 10, 11, "s22", 1280 * 128)
    srd(a, 44, 8, 9, 1280)
    a("v_lshlrev_b32 v10, 2, v7")
    a("v_lshlrev_b32 v11, 4, v1")
    a("s_sub_u32 s22, s20, 32")
    a("v_lshl_add_u32 v12, v6, 3, s22")
    a("s_mov_b32 s23, 5120")
    a("v_mul_lo_u32 v12, v12, s23")
    a("v_add_u32 v%d, v12, v10" % VE)
    for i in range(1, 8):
        a("v_add_u32 v%d, 5120, v%d" % (VE + i, VE + i - 1))
    TABK = [0, 1, 4, 5, 6, 7, 8, 9]

    def unit_loads(i):
        b = U0 + 32 * i
        a("s_add_u32 s40, s21, %d" % (4 * i))
        a("s_lshl_b32 s41, s40, 6")
        a("s_lshl_b32 s42, s40, 12")
        for e in range(8):
            a("buffer_load_dword v%d, v%d, s[28:31], s41 offen" % (b + 24 + e, VE + e))
        for j in range(4):
            a("buffer_load_dwordx4 v[%d:%d], v11, s[32:35], s42 offen offset:%d" % (b + 4 * j, b + 4 * j + 3, j * 1024))
        for k in range(8):
            a("s_add_u32 s43, s41, %d" % (TABK[k] * 5120))
            a("buffer_load_dword v%d, v10, s[24:27], s43 offen" % (b + 16 + k))
    unit_loads(0)
    unit_loads(1)
    Lskip = a.newlabel("K2_skipl")
    a("s_cmp_ge_u32 s17, 2")
    a("s_cbranch_scc1 %s" % Lskip)
    unit_loads(2)
    a.label(Lskip)
    a("s_mul_i32 s40, s14, 160")
    a("v_lshlrev_b32 v12, 3, v6")
    for dt in range(5):
        a("buffer_load_dwordx2 v[%d:%d], v12, s[44:47], s40 offen offset:%d" % (B2 + 2 * dt, B2 + 2 * dt + 1, dt * 32))
    a("s_mul_i32 s40, s19, %d" % SUB)
    a("s_lshl_b32 s41, s18, 12")
    a("s_add_u32 s41, s41, s40")
    a("s_lshl_b32 s42, s19, 11")
    a("s_xor_b32 s43, s42, 2048")
    a("s_add_u32 s42, s41, s42")
    a("s_add_u32 s43, s41, s43")
    a("s_add_u32 s48, s40, 8192")
    for sl in range(NS):
        for k, sr in enumerate((42, 43, 48)):
            a("s_add_u32 s49, s%d, %d" % (sr, sl * SLOT23))
            a("v_add_u32 v%d, s49, v8" % (ADR + 6 * sl + 2 * k))
            a("v_add_u32 v%d, s49, v9" % (ADR + 6 * sl + 2 * k + 1))
    a("v_lshrrev_b32 v12, 3, v7")
    a("v_mul_u32_u24 v13, 640, v12")
    a("v_add_u32 v13, v13, v3")
    a("v_lshlrev_b32 v13, 7, v13")
    a("v_lshl_add_u32 v14, v6, 5, v13")
    a("v_mul_u32_u24 v15, 0x8000, v12")
    a("v_lshl_add_u32 v15, v15, 16, v15")
    a("v_cmp_eq_u32 s[50:51], 1, v6")
    a("v_cmp_eq_u32 s[52:53], 2, v6")
    a("v_cmp_eq_u32 s[54:55], 3, v6")
    for q in range(4):
        a("v_add_u32 v%d, %d, v10" % (16 + q, 64 * q))
    a("s_waitcnt vmcnt(0)")

    def unit_process(units):
        bs = [U0 + 32 * i for i in units]
        T = lambda n: 20 + 12 * n
        for e in range(1, 8):
            cmul_add(a, [(b + 24 + e, b + 20, b + 21, b + 24 + e - 1, b + 24 + e) for b in bs])
        a("s_nop 1")
        for n, b in enumerate(bs):
            for q in range(4):
                a("ds_bpermute_b32 v%d, v%d, v%d" % (T(n) + q, 16 + q, b + 31))
            for q in range(3):
                a("ds_bpermute_b32 v%d, v%d, v%d" % (T(n) + 4 + q, 16 + q, b + 15))
        a("s_waitcnt lgkmcnt(0)")
        for q in range(1, 4):
            cmul_add(a, [(T(n) + q, b + 22, b + 23, T(n) + q - 1, T(n) + q) for n, b in enumerate(bs)])
        for q in range(3):
            cmul_add(a, [(T(n) + 4 + q, b + 18, b + 19, T(n) + 3 + q, T(n) + 4 + q) for n, b in enumerate(bs)])
        for n, b in enumerate(bs):
            a("v_cndmask_b32 v%d, v%d, v%d, s[50:51]" % (T(n) + 8, T(n) + 3, T(n) + 4))
            a("v_cndmask_b32 v%d, v%d, v%d, s[52:53]" % (T(n) + 8, T(n) + 8, T(n) + 5))
            a("v_cndmask_b32 v%d, v%d, v%d, s[54:55]" % (T(n) + 8, T(n) + 8, T(n) + 6))
        a("s_nop 1")
        for i in range(16):
            src = 8 + (i & 1)
            dst = 8 + ((i + 1) & 1)
            cmul_add(a, [(T(n) + dst, b + 16, b + 17, T(n) + src, None) for n, b in enumerate(bs)])
            for n, b in enumerate(bs):
                a("v_add_f32 v%d, v%d, v%d" % (b + i, b + i, T(n) + dst))
        for n, b in enumerate(bs):
            for j in range(8):
                a("v_cvt_pk_bf16_f32 v%d, v%d, v%d" % (b + 16 + j, b + 2 * j, b + 2 * j + 1))
            for j in range(8):
                a("v_xor_b32 v%d, v15, v%d" % (b + 16 + j, b + 16 + j))
        for n, i in enumerate(units):
            b = bs[n]
            a("s_add_u32 s40, s21, %d" % (4 * i))
            a("s_lshl_b32 s40, s40, 10")
            a("buffer_store_dwordx4 v[%d:%d], v14, s[36:39], s40 offen" % (b + 16, b + 19))
            a("buffer_store_dwordx4 v[%d:%d], v14, s[36:39], s40 offen offset:16" % (b + 20, b + 23))
    unit_process([0, 1])
    Lskip2 = a.newlabel("K2_skipp")
    a("s_cmp_ge_u32 s17, 2")
    a("s_cbranch_scc1 %s" % Lskip2)
    unit_process([2])
    a.label(Lskip2)

    def reads(s, sub, st):
        sl = s % NS
        b = FR + 28 * st
        out = []
        order = [("D", 0), ("T", 0), ("T", 1), ("D", 1), ("D", 2), ("D", 3), ("D", 4)]
        for k, i in order:
            if k == "T":
                out.append("ds_read_b128 v[%d:%d], v%d" % (b + 4 * i, b + 4 * i + 3, ADR + 6 * sl + 2 * i + sub))
            else:
                out.append("ds_read_b128 v[%d:%d], v%d offset:%d" % (b + 8 + 4 * i, b + 11 + 4 * i, ADR + 6 * sl + 4 + sub, i * 2048))
        return out

    def mfmas(st, first):
        b = FR + 28 * st
        out = []
        for dt in range(5):
            for t2 in range(2):
                d = ACC + (t2 * 5 + dt) * 4
                c = "0" if first else "v[%d:%d]" % (d, d + 3)
                out.append("v_mfma_f32_16x16x32_bf16 v[%d:%d], v[%d:%d], v[%d:%d], %s" % (
                    d, d + 3, b + 8 + 4 * dt, b + 11 + 4 * dt, b + 4 * t2, b + 4 * t2 + 3, c))
        return out
    compute_loop(a, S, reads, mfmas)
    exchange(a, ACC, 11)
    a("s_mov_b32 s40, 0xffff0000")
    BF = 60
    PK = 84
    TM = 96
    for i in range(10):
        a("v_lshlrev_b32 v%d, 16, v%d" % (BF + 2 * i, B2 + i))
        a("v_and_b32 v%d, s40, v%d" % (BF + 2 * i + 1, B2 + i))
    for i in range(10):
        a("v_cvt_pk_bf16_f32 v%d, v%d, v%d" % (PK + i, ACC + 2 * i, ACC + 2 * i + 1))
    for i in range(10):
        a("v_lshlrev_b32 v%d, 16, v%d" % (ACC + 2 * i, PK + i))
        a("v_and_b32 v%d, s40, v%d" % (ACC + 2 * i + 1, PK + i))
    for i in range(20):
        a("v_add_f32 v%d, v%d, v%d" % (ACC + i, ACC + i, BF + i))
    for i in range(10):
        a("v_cvt_pk_bf16_f32 v%d, v%d, v%d" % (PK + i, ACC + 2 * i, ACC + 2 * i + 1))
    for i in range(10):
        a("v_lshlrev_b32 v%d, 16, v%d" % (ACC + 2 * i, PK + i))
        a("v_and_b32 v%d, s40, v%d" % (ACC + 2 * i + 1, PK + i))
    for i in range(20):
        a("v_mul_f32 v%d, %s, v%d" % (TM + i, fh(-LOG2E), ACC + i))
    for i in range(20):
        a("v_exp_f32 v%d, v%d" % (TM + i, TM + i))
    for i in range(20):
        a("v_add_f32 v%d, 1.0, v%d" % (TM + i, TM + i))
    for i in range(20):
        a("v_rcp_f32 v%d, v%d" % (TM + i, TM + i))
    for i in range(20):
        a("v_mul_f32 v%d, v%d, v%d" % (ACC + i, ACC + i, TM + i))
    for i in range(10):
        a("v_cvt_pk_bf16_f32 v%d, v%d, v%d" % (PK + i, ACC + 2 * i, ACC + 2 * i + 1))
    a("s_lshl_b32 s40, s2, 2")
    a("s_add_u32 s40, s40, s17")
    a("s_mul_i32 s40, s40, 2560")
    a("s_add_u32 s40, s40, %d" % WS_GATE)
    srd_off(a, 24, 10, 11, "s40", 2560)
    a("v_lshlrev_b32 v12, 3, v1")
    for dt in range(5):
        a("buffer_store_dwordx2 v[%d:%d], v12, s[24:27], 0 offen offset:%d" % (PK + 2 * dt, PK + 2 * dt + 1, dt * 512))
    a("s_endpgm")

    a.label(Lld)
    a("s_mul_i32 s20, s13, %d" % (64 * 3072))
    a("s_add_u32 s20, s20, %d" % WS_H1)
    srd_off(a, 24, 10, 11, "s20", 64 * 3072)
    a("s_mul_i32 s20, s14, %d" % (80 * 3072))
    a("s_add_u32 s20, s20, %d" % WS_W2T)
    srd_off(a, 28, 10, 11, "s20", 80 * 3072)
    a("v_mul_u32_u24 v5, 3072, v2")
    a("v_lshl_add_u32 v5, v4, 4, v5")
    a("s_mul_i32 s42, s18, %d" % (8 * 3072))
    a("s_lshl_b32 s43, s19, 7")
    a("s_add_u32 s42, s42, s43")
    a("s_mul_i32 s43, s19, %d" % SUB)
    a("s_lshl_b32 s44, s18, 10")
    a("s_add_u32 s43, s43, s44")

    def dma(s):
        sl = s % NS
        for i in range(4):
            a("s_add_u32 m0, s43, %d" % (sl * SLOT23 + i * 2048))
            a("s_add_u32 s44, s42, %d" % (i * 16 * 3072 + s * 256))
            a("buffer_load_dwordx4 v5, s[24:27], s44 offen lds")
        for i in range(5):
            a("s_add_u32 m0, s43, %d" % (sl * SLOT23 + 8192 + i * 2048))
            a("s_add_u32 s44, s42, %d" % (i * 16 * 3072 + s * 256))
            a("buffer_load_dwordx4 v5, s[28:31], s44 offen lds")
    loader_loop(a, S, SLOT23, dma, 9)
    a("s_barrier")
    a.label(Lend)
    a("s_endpgm")
    return name, 256


def gen_k3(a):
    name = "gemm3_kernel"
    kernel_header(a, name)
    S = 10
    Lend = a.newlabel("K3_end")
    Lld = a.newlabel("K3_ld")
    a("s_load_dwordx2 s[4:5], s[0:1], %d" % KA["Cre"])
    a("s_load_dwordx2 s[6:7], s[0:1], %d" % KA["Cim"])
    a("s_load_dwordx2 s[8:9], s[0:1], %d" % KA["x"])
    a("s_load_dwordx2 s[20:21], s[0:1], %d" % KA["Dskip"])
    a("s_load_dwordx2 s[22:23], s[0:1], %d" % KA["out"])
    common_23(a, Lend)
    a("s_waitcnt lgkmcnt(0)")
    a("s_cmp_ge_u32 s12, 4")
    a("s_cbranch_scc1 %s" % Lld)
    ACC = 16
    FR = 56
    ADR = 112
    XR, XNR, DS, GT = 140, 150, 160, 170
    a("s_lshl_b32 s40, s18, 1")
    a("s_add_u32 s40, s40, s19")
    a("s_lshl_b32 s41, s13, 6")
    a("s_lshl_b32 s42, s40, 4")
    a("s_add_u32 s41, s41, s42")
    a("s_mul_i32 s42, s41, 1280")
    a("s_mul_i32 s43, s14, 160")
    a("s_add_u32 s42, s42, s43")
    srd(a, 24, 8, 9, 2048 * 1280)
    srd_off(a, 28, 10, 11, WS_XN, 2048 * 1280)
    srd(a, 32, 20, 21, 1280)
    a("s_lshl_b32 s44, s2, 2")
    a("s_add_u32 s44, s44, s17")
    a("s_mul_i32 s44, s44, 2560")
    a("s_add_u32 s44, s44, %d" % WS_GATE)
    srd_off(a, 36, 10, 11, "s44", 2560)
    srd(a, 44, 22, 23, 2048 * 2560)
    a("v_mul_u32_u24 v12, 1280, v7")
    a("v_lshl_add_u32 v12, v6, 3, v12")
    for dt in range(5):
        a("buffer_load_dwordx2 v[%d:%d], v12, s[24:27], s42 offen offset:%d" % (XR + 2 * dt, XR + 2 * dt + 1, dt * 32))
    a("v_lshrrev_b32 v13, 2, v7")
    a("v_and_b32 v14, 3, v7")
    a("v_lshl_add_u32 v13, v13, 4, v14")
    a("v_mul_u32_u24 v13, 1280, v13")
    a("v_lshl_add_u32 v13, v6, 3, v13")
    a("s_lshl_b32 s48, s13, 6")
    a("s_lshl_b32 s49, s40, 2")
    a("s_add_u32 s48, s48, s49")
    a("s_mul_i32 s48, s48, 1280")
    a("s_add_u32 s48, s48, s43")
    for dt in range(5):
        a("buffer_load_dwordx2 v[%d:%d], v13, s[28:31], s48 offen offset:%d" % (XNR + 2 * dt, XNR + 2 * dt + 1, dt * 32))
    a("v_lshlrev_b32 v14, 3, v6")
    for dt in range(5):
        a("buffer_load_dwordx2 v[%d:%d], v14, s[32:35], s43 offen offset:%d" % (DS + 2 * dt, DS + 2 * dt + 1, dt * 32))
    a("v_lshlrev_b32 v14, 3, v1")
    for dt in range(5):
        a("buffer_load_dwordx2 v[%d:%d], v14, s[36:39], 0 offen offset:%d" % (GT + 2 * dt, GT + 2 * dt + 1, dt * 512))
    a("v_mul_u32_u24 v15, 2560, v7")
    a("v_lshl_add_u32 v15, v6, 4, v15")
    a("s_lshl_b32 s50, s42, 1")
    a("v_lshlrev_b32 v11, 4, v1")
    a("v_lshrrev_b32 v12, 2, v7")
    a("v_and_b32 v13, 3, v7")
    a("v_lshl_add_u32 v14, v6, 3, v12")
    a("v_lshlrev_b32 v14, 7, v14")
    a("v_lshl_add_u32 v14, v13, 3, v14")
    a("v_lshrrev_b32 v12, 1, v12")
    a("v_and_b32 v13, 1, v6")
    a("v_lshl_add_u32 v12, v13, 1, v12")
    a("v_xor_b32 v13, s40, v12")
    a("v_lshl_add_u32 v16, v13, 5, v14")
    a("v_xor_b32 v17, 32, v16")
    a("s_mul_i32 s41, s19, %d" % SUB)
    a("s_add_u32 s48, s41, 8192")
    for sl in range(NS):
        a("s_add_u32 s49, s41, %d" % (sl * SLOT23))
        a("v_add_u32 v%d, s49, v16" % (ADR + 4 * sl))
        a("v_add_u32 v%d, s49, v17" % (ADR + 4 * sl + 1))
        a("s_add_u32 s49, s48, %d" % (sl * SLOT23))
        a("v_add_u32 v%d, s49, v8" % (ADR + 4 * sl + 2))
        a("v_add_u32 v%d, s49, v9" % (ADR + 4 * sl + 3))

    def reads(s, sub, st):
        sl = s % NS
        b = FR + 28 * st
        out = []
        order = [("D", 0), ("T", 0), ("T", 1), ("D", 1), ("D", 2), ("D", 3), ("D", 4)]
        for k, i in order:
            if k == "T":
                out.append("ds_read_b64_tr_b16 v[%d:%d], v%d offset:%d" % (b + 4 * i, b + 4 * i + 1, ADR + 4 * sl + i, sub * 4096))
                out.append("ds_read_b64_tr_b16 v[%d:%d], v%d offset:%d" % (b + 4 * i + 2, b + 4 * i + 3, ADR + 4 * sl + i, sub * 4096 + 512))
            else:
                out.append("ds_read_b128 v[%d:%d], v%d offset:%d" % (b + 8 + 4 * i, b + 11 + 4 * i, ADR + 4 * sl + 2 + sub, i * 2048))
        return out

    def mfmas(st, first):
        b = FR + 28 * st
        out = []
        for dt in range(5):
            for t2 in range(2):
                d = ACC + (t2 * 5 + dt) * 4
                c = "0" if first else "v[%d:%d]" % (d, d + 3)
                out.append("v_mfma_f32_16x16x32_bf16 v[%d:%d], v[%d:%d], v[%d:%d], %s" % (
                    d, d + 3, b + 8 + 4 * dt, b + 11 + 4 * dt, b + 4 * t2, b + 4 * t2 + 3, c))
        return out
    compute_loop(a, S, reads, mfmas)
    exchange(a, ACC, 11)
    a("s_waitcnt vmcnt(0)")
    a("s_mov_b32 s40, 0xffff0000")
    T0, T1 = 60, 84
    for i in range(10):
        a("v_lshlrev_b32 v%d, 16, v%d" % (T0 + 2 * i, XNR + i))
        a("v_and_b32 v%d, s40, v%d" % (T0 + 2 * i + 1, XNR + i))
        a("v_lshlrev_b32 v%d, 16, v%d" % (T1 + 2 * i, DS + i))
        a("v_and_b32 v%d, s40, v%d" % (T1 + 2 * i + 1, DS + i))
    for i in range(20):
        a("v_mul_f32 v%d, v%d, v%d" % (T0 + i, T0 + i, T1 + i))
    for i in range(10):
        a("v_cvt_pk_bf16_f32 v%d, v%d, v%d" % (XNR + i, T0 + 2 * i, T0 + 2 * i + 1))
    for i in range(10):
        a("v_lshlrev_b32 v%d, 16, v%d" % (T0 + 2 * i, XNR + i))
        a("v_and_b32 v%d, s40, v%d" % (T0 + 2 * i + 1, XNR + i))
    for i in range(20):
        a("v_fma_f32 v%d, 2.0, v%d, v%d" % (ACC + i, ACC + i, T0 + i))
    for i in range(10):
        a("v_lshlrev_b32 v%d, 16, v%d" % (T0 + 2 * i, GT + i))
        a("v_and_b32 v%d, s40, v%d" % (T0 + 2 * i + 1, GT + i))
        a("v_lshlrev_b32 v%d, 16, v%d" % (T1 + 2 * i, XR + i))
        a("v_and_b32 v%d, s40, v%d" % (T1 + 2 * i + 1, XR + i))
    for i in range(20):
        a("v_mul_f32 v%d, v%d, v%d" % (ACC + i, ACC + i, T0 + i))
    for i in range(20):
        a("v_add_f32 v%d, v%d, v%d" % (ACC + i, ACC + i, T1 + i))
    for dt in range(5):
        a("buffer_store_dwordx4 v[%d:%d], v15, s[44:47], s50 offen offset:%d" % (ACC + 4 * dt, ACC + 4 * dt + 3, dt * 64))
    a("s_endpgm")

    a.label(Lld)
    a("s_mul_i32 s40, s13, %d" % (1280 * 128))
    a("s_add_u32 s40, s40, %d" % WS_HT)
    srd_off(a, 24, 10, 11, "s40", 1280 * 128)
    a("s_mul_i32 s40, s14, %d" % (80 * 1280))
    srd_off(a, 28, 4, 5, "s40", 80 * 1280)
    srd_off(a, 32, 6, 7, "s40", 80 * 1280)
    a("v_mul_u32_u24 v5, 1280, v2")
    a("v_lshl_add_u32 v5, v4, 4, v5")
    a("v_and_b32 v10, 1, v6")
    a("s_lshl_b32 s40, s18, 1")
    a("v_or_b32 v10, s40, v10")
    a("v_lshrrev_b32 v11, 1, v3")
    a("v_xor_b32 v10, v10, v11")
    a("v_lshlrev_b32 v10, 5, v10")
    a("v_lshl_add_u32 v10, v2, 7, v10")
    a("v_and_b32 v11, 1, v1")
    a("v_lshl_add_u32 v10, v11, 4, v10")
    a("s_lshl_b32 s41, s19, 13")
    a("s_lshl_b32 s42, s18, 10")
    a("s_add_u32 s41, s41, s42")
    a("s_mul_i32 s42, s18, %d" % (8 * 1280))
    a("s_lshl_b32 s43, s19, 7")
    a("s_add_u32 s42, s42, s43")
    a("s_mul_i32 s43, s19, %d" % SUB)
    a("s_lshl_b32 s44, s18, 10")
    a("s_add_u32 s43, s43, s44")

    def dma(s):
        sl = s % NS
        for i in range(4):
            a("s_add_u32 m0, s43, %d" % (sl * SLOT23 + i * 2048))
            a("s_add_u32 s44, s41, %d" % (i * 2048 + s * 128 * 128))
            a("buffer_load_dwordx4 v10, s[24:27], s44 offen lds")
        sr = 28 if s < 5 else 32
        for i in range(5):
            a("s_add_u32 m0, s43, %d" % (sl * SLOT23 + 8192 + i * 2048))
            a("s_add_u32 s44, s42, %d" % (i * 16 * 1280 + (s % 5) * 256))
            a("buffer_load_dwordx4 v5, s[%d:%d], s44 offen lds" % (sr, sr + 3))
    loader_loop(a, S, SLOT23, dma, 9)
    a("s_barrier")
    a.label(Lend)
    a("s_endpgm")
    return name, 256
```

```python
import sys, struct, math

NAME = "recurrent_scan__ssm_conv_s5__dense_activation_gelu__prompt"

WS_XN = 0x0000000
WS_W1T = 0x0300000
WS_W2T = 0x0500000
WS_TAB = 0x0700000
WS_H1 = 0x0800000
WS_E64 = 0x0F00000
WS_G32 = 0x1000000
WS_HT = 0x2000000
WS_GATE = 0x2800000

KA = dict(x=0, Lre=8, Lim=16, Bre=24, Bim=32, Cre=40, Cim=48, logdt=56, Dskip=64, Bx=72,
          w1=80, b1=88, w2=96, b2=104, out=112, dbg=120, ws=128)

LOG2E = 1.4426950408889634


def f2u(x):
    return struct.unpack("<I", struct.pack("<f", x))[0]


def fh(x):
    return "0x%08x" % f2u(x)


class Asm:
    def __init__(self):
        self.lines = []
        self.nlabel = 0

    def __call__(self, s):
        self.lines.append("    " + s)

    def label(self, name):
        self.lines.append(name + ":")

    def newlabel(self, p="L"):
        self.nlabel += 1
        return "%s_%d" % (p, self.nlabel)

    def raw(self, s):
        self.lines.append(s)

    def text(self):
        return "\n".join(self.lines) + "\n"


def srd(a, d, base_lo, base_hi, size):
    a("s_mov_b32 s%d, s%d" % (d, base_lo))
    a("s_and_b32 s%d, s%d, 0xffff" % (d + 1, base_hi))
    a("s_mov_b32 s%d, 0x%x" % (d + 2, size))
    a("s_mov_b32 s%d, 0x00020000" % (d + 3))


def srd_off(a, d, base_lo, base_hi, off, size):
    o = off if isinstance(off, str) else "0x%x" % off
    a("s_add_u32 s%d, s%d, %s" % (d, base_lo, o))
    a("s_addc_u32 s%d, s%d, 0" % (d + 1, base_hi))
    a("s_and_b32 s%d, s%d, 0xffff" % (d + 1, d + 1))
    a("s_mov_b32 s%d, 0x%x" % (d + 2, size))
    a("s_mov_b32 s%d, 0x00020000" % (d + 3))


def kernel_header(a, name):
    a.raw(".globl %s" % name)
    a.raw(".p2align 8")
    a.raw(".type %s,@function" % name)
    a.label(name)


def kernel_desc(name, vgpr, sgpr=102):
    acc = (vgpr + 3) // 4 * 4
    return """.amdhsa_kernel %s
  .amdhsa_next_free_vgpr %d
  .amdhsa_next_free_sgpr %d
  .amdhsa_accum_offset %d
  .amdhsa_group_segment_fixed_size 0
  .amdhsa_kernarg_size 136
  .amdhsa_user_sgpr_count 2
  .amdhsa_user_sgpr_kernarg_segment_ptr 1
  .amdhsa_system_sgpr_workgroup_id_x 1
.end_amdhsa_kernel
""" % (name, vgpr, sgpr, acc)


DPP8 = "row_ror:8 row_mask:0xf bank_mask:0xf"


def gen_k0(a):
    name = "prep_kernel"
    kernel_header(a, name)
    Lend = a.newlabel("K0_end")
    Ltr = a.newlabel("K0_tr")
    Ltab = a.newlabel("K0_tab")
    a("s_cmp_ge_u32 s2, 253")
    a("s_cbranch_scc1 %s" % Lend)
    a("s_load_dwordx2 s[10:11], s[0:1], %d" % KA["ws"])
    a("v_lshrrev_b32 v2, 6, v0")
    a("v_and_b32 v1, 63, v0")
    a("s_nop 0")
    a("v_readfirstlane_b32 s12, v2")
    a("s_cmp_ge_u32 s2, 248")
    a("s_cbranch_scc1 %s" % Ltab)
    a("s_cmp_ge_u32 s2, 128")
    a("s_cbranch_scc1 %s" % Ltr)
    a("s_load_dwordx2 s[4:5], s[0:1], %d" % KA["x"])
    a("s_lshl_b32 s13, s2, 4")
    a("s_lshl_b32 s14, s12, 2")
    a("s_add_u32 s13, s13, s14")
    a("s_mul_i32 s13, s13, 1280")
    a("v_lshrrev_b32 v2, 4, v1")
    a("v_and_b32 v3, 15, v1")
    a("v_mul_u32_u24 v4, 1280, v2")
    a("v_lshl_add_u32 v4, v3, 4, v4")
    a("s_lshr_b32 s14, s2, 2")
    a("s_lshl_b32 s14, s14, 6")
    a("s_lshl_b32 s15, s12, 4")
    a("s_add_u32 s14, s14, s15")
    a("s_and_b32 s15, s2, 3")
    a("s_lshl_b32 s15, s15, 2")
    a("s_add_u32 s14, s14, s15")
    a("s_mul_i32 s14, s14, 1280")
    a("s_waitcnt lgkmcnt(0)")
    srd(a, 16, 4, 5, 2048 * 1280)
    srd_off(a, 20, 10, 11, WS_XN, 2048 * 1280)
    for m in range(5):
        a("buffer_load_dwordx4 v[%d:%d], v4, s[16:19], s13 offen offset:%d" % (8 + 4 * m, 11 + 4 * m, 256 * m))
    a("s_mov_b32 s24, 0xffff0000")
    a("s_waitcnt vmcnt(0)")
    for i in range(20):
        a("v_lshlrev_b32 v%d, 16, v%d" % (32 + 2 * i, 8 + i))
        a("v_and_b32 v%d, s24, v%d" % (33 + 2 * i, 8 + i))
    for c in range(4):
        a("v_add_f32 v%d, v%d, v%d" % (72 + c, 32 + c, 36 + c))
    for i in range(2, 10):
        for c in range(4):
            a("v_add_f32 v%d, v%d, v%d" % (72 + c, 72 + c, 32 + 4 * i + c))
    a("v_add_f32 v72, v72, v73")
    a("v_add_f32 v74, v74, v75")
    a("v_add_f32 v72, v72, v74")

    def allreduce16(r):
        for sh in (8, 4, 2, 1):
            a("s_nop 1")
            a("v_add_f32_dpp v%d, v%d, v%d row_ror:%d row_mask:0xf bank_mask:0xf" % (r, r, r, sh))
    allreduce16(72)
    a("v_mul_f32 v72, %s, v72" % fh(1.0 / 640))
    for c in range(4):
        a("v_sub_f32 v%d, v%d, v72" % (76 + c, 32 + c))
        a("v_mul_f32 v%d, v%d, v%d" % (80 + c, 76 + c, 76 + c))
    for i in range(1, 10):
        for c in range(4):
            a("v_sub_f32 v%d, v%d, v72" % (76 + c, 32 + 4 * i + c))
            a("v_fmac_f32 v%d, v%d, v%d" % (80 + c, 76 + c, 76 + c))
    a("v_add_f32 v80, v80, v81")
    a("v_add_f32 v82, v82, v83")
    a("v_add_f32 v80, v80, v82")
    allreduce16(80)
    a("v_mul_f32 v80, %s, v80" % fh(1.0 / 640))
    a("v_cvt_pk_bf16_f32 v73, v72, v80")
    a("v_lshlrev_b32 v72, 16, v73")
    a("v_and_b32 v80, s24, v73")
    a("v_add_f32 v80, %s, v80" % fh(1e-5))
    a("v_cvt_pk_bf16_f32 v80, v80, v80")
    a("v_and_b32 v80, s24, v80")
    a("v_sqrt_f32 v80, v80")
    a("s_nop 0")
    a("v_cvt_pk_bf16_f32 v80, v80, v80")
    a("v_and_b32 v80, s24, v80")
    a("v_rcp_f32 v81, v80")
    a("s_nop 0")
    a("v_fma_f32 v82, -v80, v81, 1.0")
    a("v_fma_f32 v81, v82, v81, v81")
    for i in range(20):
        a("v_sub_f32 v%d, v%d, v72" % (32 + 2 * i, 32 + 2 * i))
        a("v_sub_f32 v%d, v%d, v72" % (33 + 2 * i, 33 + 2 * i))
        a("v_cvt_pk_bf16_f32 v%d, v%d, v%d" % (8 + i, 32 + 2 * i, 33 + 2 * i))
    for i in range(20):
        a("v_lshlrev_b32 v%d, 16, v%d" % (32 + 2 * i, 8 + i))
        a("v_and_b32 v%d, s24, v%d" % (33 + 2 * i, 8 + i))
        a("v_mul_f32 v84, v%d, v81" % (32 + 2 * i))
        a("v_mul_f32 v85, v%d, v81" % (33 + 2 * i))
        a("v_fma_f32 v86, -v84, v80, v%d" % (32 + 2 * i))
        a("v_fma_f32 v87, -v85, v80, v%d" % (33 + 2 * i))
        a("v_fma_f32 v84, v86, v81, v84")
        a("v_fma_f32 v85, v87, v81, v85")
        a("v_cvt_pk_bf16_f32 v%d, v84, v85" % (8 + i))
    for m in range(5):
        a("buffer_store_dwordx4 v[%d:%d], v4, s[20:23], s14 offen offset:%d" % (8 + 4 * m, 11 + 4 * m, 256 * m))
    a("s_endpgm")

    a.label(Ltr)
    Lw2 = a.newlabel("K0_w2")
    Lgo = a.newlabel("K0_trgo")
    a("v_and_b32 v2, 7, v1")
    a("v_lshrrev_b32 v3, 3, v1")
    a("s_cmp_ge_u32 s2, 188")
    a("s_cbranch_scc1 %s" % Lw2)
    a("s_load_dwordx2 s[4:5], s[0:1], %d" % KA["w1"])
    a("s_sub_u32 s13, s2, 128")
    a("s_lshl_b32 s13, s13, 2")
    a("s_add_u32 s13, s13, s12")
    a("s_mul_hi_u32 s14, s13, 0x%x" % ((1 << 32) // 10 + 1))
    a("s_mul_i32 s15, s14, 10")
    a("s_sub_u32 s15, s13, s15")
    a("s_mul_i32 s26, s15, %d" % (64 * 3072))
    a("s_lshl_b32 s27, s14, 7")
    a("s_add_u32 s26, s26, s27")
    a("v_mul_u32_u24 v4, %d, v2" % (8 * 3072))
    a("v_lshl_add_u32 v4, v3, 4, v4")
    a("s_mov_b32 s28, 3072")
    a("v_lshrrev_b32 v5, 2, v3")
    a("v_and_b32 v6, 3, v3")
    a("v_lshlrev_b32 v5, 5, v5")
    a("v_lshl_add_u32 v5, v6, 2, v5")
    a("v_mul_u32_u24 v5, 1280, v5")
    a("v_lshl_add_u32 v5, v2, 4, v5")
    a("s_mul_i32 s27, s14, %d" % (64 * 1280))
    a("s_lshl_b32 s29, s15, 7")
    a("s_add_u32 s27, s27, s29")
    for i in range(8):
        a("s_add_u32 s%d, s27, %d" % (32 + i, ((i >> 2) * 16 + (i & 3)) * 1280))
    a("s_waitcnt lgkmcnt(0)")
    srd(a, 16, 4, 5, 640 * 3072)
    srd_off(a, 20, 10, 11, WS_W1T, 1536 * 1280)
    a("s_branch %s" % Lgo)
    a.label(Lw2)
    a("s_load_dwordx2 s[4:5], s[0:1], %d" % KA["w2"])
    a("s_sub_u32 s13, s2, 188")
    a("s_lshl_b32 s13, s13, 2")
    a("s_add_u32 s13, s13, s12")
    a("s_mul_hi_u32 s14, s13, 0x%x" % ((1 << 32) // 24 + 1))
    a("s_mul_i32 s15, s14, 24")
    a("s_sub_u32 s15, s13, s15")
    a("s_mul_i32 s26, s15, %d" % (64 * 1280))
    a("s_lshl_b32 s27, s14, 7")
    a("s_add_u32 s26, s26, s27")
    a("v_mul_u32_u24 v4, %d, v2" % (8 * 1280))
    a("v_lshl_add_u32 v4, v3, 4, v4")
    a("s_mov_b32 s28, 1280")
    a("v_mul_u32_u24 v5, %d, v3" % (8 * 3072))
    a("v_lshl_add_u32 v5, v2, 4, v5")
    a("s_mul_i32 s27, s14, %d" % (64 * 3072))
    a("s_lshl_b32 s29, s15, 7")
    a("s_add_u32 s27, s27, s29")
    for i in range(8):
        a("s_add_u32 s%d, s27, %d" % (32 + i, i * 3072))
    a("s_waitcnt lgkmcnt(0)")
    srd(a, 16, 4, 5, 1536 * 1280)
    srd_off(a, 20, 10, 11, WS_W2T, 640 * 3072)
    a.label(Lgo)
    for j in range(8):
        a("buffer_load_dwordx4 v[%d:%d], v4, s[16:19], s26 offen" % (8 + 4 * j, 11 + 4 * j))
        if j < 7:
            a("s_add_u32 s26, s26, s28")
    a("s_mov_b32 s30, 0x05040100")
    a("s_mov_b32 s31, 0x07060302")
    a("s_waitcnt vmcnt(0)")
    for i in range(8):
        for m in range(4):
            a("v_perm_b32 v%d, v%d, v%d, s%d" % (40 + 4 * i + m, 8 + 4 * (2 * m + 1) + (i >> 1),
                                               8 + 4 * (2 * m) + (i >> 1), 30 + (i & 1)))
    for i in range(8):
        a("buffer_store_dwordx4 v[%d:%d], v5, s[20:23], s%d offen" % (40 + 4 * i, 43 + 4 * i, 32 + i))
    a("s_endpgm")

    a.label(Ltab)
    a("s_load_dwordx2 s[4:5], s[0:1], %d" % KA["Lre"])
    a("s_load_dwordx2 s[6:7], s[0:1], %d" % KA["Lim"])
    a("s_load_dwordx2 s[8:9], s[0:1], %d" % KA["logdt"])
    a("s_sub_u32 s13, s2, 248")
    a("s_lshl_b32 s13, s13, 8")
    a("v_add_u32 v2, s13, v0")
    a("v_lshrrev_b32 v3, 4, v2")
    a("v_and_b32 v4, 7, v2")
    a("v_lshl_add_u32 v3, v3, 3, v4")
    a("v_lshlrev_b32 v3, 1, v3")
    a("v_lshlrev_b32 v5, 2, v2")
    a("v_and_b32 v6, 8, v2")
    a("v_lshlrev_b32 v6, 28, v6")
    a("v_xor_b32 v6, 0x80000000, v6")
    a("s_waitcnt lgkmcnt(0)")
    srd(a, 16, 4, 5, 1280)
    srd(a, 20, 6, 7, 1280)
    srd(a, 24, 8, 9, 1280)
    srd_off(a, 28, 10, 11, WS_TAB, 10 * 5120)
    a("buffer_load_ushort v8, v3, s[16:19], 0 offen")
    a("buffer_load_ushort v9, v3, s[20:23], 0 offen")
    a("buffer_load_ushort v10, v3, s[24:27], 0 offen")
    a("s_waitcnt vmcnt(0)")
    a("v_lshlrev_b32 v8, 16, v8")
    a("v_lshlrev_b32 v9, 16, v9")
    a("v_lshlrev_b32 v10, 16, v10")
    a("v_mul_f32 v10, %s, v10" % fh(LOG2E))
    a("v_exp_f32 v10, v10")
    a("s_nop 0")
    a("v_cvt_pk_bf16_f32 v10, v10, v10")
    a("v_and_b32 v10, 0xffff0000, v10")
    a("v_mul_f32 v11, v10, v8")
    a("v_mul_f32 v12, v10, v9")
    a("v_mul_f32 v11, %s, v11" % fh(LOG2E))
    a("v_exp_f32 v11, v11")
    a("v_mul_f32 v12, 0.15915494, v12")
    a("v_fract_f32 v12, v12")
    a("v_cos_f32 v13, v12")
    a("v_sin_f32 v14, v12")
    a("s_nop 0")
    a("v_mul_f32 v13, v11, v13")
    a("v_mul_f32 v14, v11, v14")
    a("v_add_f32 v15, -1.0, v13")
    a("v_mul_f32 v16, v8, v8")
    a("v_fmac_f32 v16, v9, v9")
    a("v_rcp_f32 v17, v16")
    a("s_nop 0")
    a("v_fma_f32 v18, -v16, v17, 1.0")
    a("v_fma_f32 v17, v18, v17, v17")
    a("v_mul_f32 v18, v15, v8")
    a("v_fmac_f32 v18, v14, v9")
    a("v_mul_f32 v19, v14, v8")
    a("v_fma_f32 v19, -v15, v9, v19")
    a("v_mul_f32 v18, v18, v17")
    a("v_mul_f32 v19, v19, v17")

    def st(k, r, signed):
        if signed:
            a("v_xor_b32 v30, v6, v%d" % r)
            r = 30
        a("s_mov_b32 s13, %d" % (k * 5120))
        a("buffer_store_dword v%d, v5, s[28:31], s13 offen" % r)
        a("s_nop 1")
    st(0, 13, False)
    st(1, 14, True)
    st(2, 18, False)
    st(3, 19, True)
    a("v_mov_b32 v20, v13")
    a("v_mov_b32 v21, v14")

    def sq():
        a("v_mul_f32 v22, v21, v21")
        a("v_mul_f32 v23, v20, v21")
        a("v_fma_f32 v20, v20, v20, -v22")
        a("v_add_f32 v21, v23, v23")
    for _ in range(4):
        sq()
    st(4, 20, False)
    st(5, 21, True)
    for _ in range(2):
        sq()
    st(6, 20, False)
    st(7, 21, True)
    for _ in range(3):
        sq()
    st(8, 20, False)
    st(9, 21, True)
    a.label(Lend)
    a("s_endpgm")
    return name, 96


NS = 4


def loader_loop(a, S, slot_bytes, dma, n):
    for s in range(min(NS, S)):
        dma(s)
    a("s_waitcnt vmcnt(%d)" % ((min(NS, S) - 1) * n))
    a("s_barrier")
    for s in range(S):
        last_issued = min(s + NS - 1, S - 1)
        pend = max(0, last_issued - (s + 1))
        if s + 1 <= S - 1:
            a("s_waitcnt vmcnt(%d)" % (pend * n))
        a("s_barrier")
        if s + NS < S:
            dma(s + NS)


def compute_loop(a, S, reads, mfmas):
    a("s_barrier")
    for r in reads(0, 0, 0):
        a(r)

    def interleave(ms, rs):
        out = []
        ri = 0
        for i, m in enumerate(ms):
            out.append(m)
            if ri < len(rs):
                out.append(rs[ri])
                ri += 1
        out += rs[ri:]
        return out
    for s in range(S):
        a("s_waitcnt lgkmcnt(0)")
        for x in interleave(mfmas(0, s == 0), reads(s, 1, 1)):
            a(x)
        a("s_waitcnt lgkmcnt(0)")
        a("s_barrier")
        rs = reads(s + 1, 0, 0) if s + 1 < S else []
        for x in interleave(mfmas(1, False), rs):
            a(x)


def emit_gelu_pairs(a, pairs, tmp, sC1, sC2, sMask):
    for (r0, r1, b0, b1, d) in pairs:
        a("v_cvt_pk_bf16_f32 v%d, v%d, v%d" % (d, r0, r1))
    for (r0, r1, b0, b1, d) in pairs:
        a("v_lshlrev_b32 v%d, 16, v%d" % (r0, d))
        a("v_and_b32 v%d, s%d, v%d" % (r1, sMask, d))
    for (r0, r1, b0, b1, d) in pairs:
        a("v_add_f32 v%d, v%d, v%d" % (r0, r0, b0))
        a("v_add_f32 v%d, v%d, v%d" % (r1, r1, b1))
    for (r0, r1, b0, b1, d) in pairs:
        a("v_cvt_pk_bf16_f32 v%d, v%d, v%d" % (d, r0, r1))
    for (r0, r1, b0, b1, d) in pairs:
        a("v_lshlrev_b32 v%d, 16, v%d" % (r0, d))
        a("v_and_b32 v%d, s%d, v%d" % (r1, sMask, d))
    regs = []
    for i, (r0, r1, b0, b1, d) in enumerate(pairs):
        regs += [(r0, tmp + 2 * i), (r1, tmp + 2 * i + 1)]
    for (r, t) in regs:
        a("v_mul_f32 v%d, v%d, v%d" % (t, r, r))
    for (r, t) in regs:
        a("v_fma_f32 v%d, v%d, s%d, v%d" % (t, t, sC2, sC1))
    for (r, t) in regs:
        a("v_mul_f32 v%d, v%d, v%d" % (t, t, r))
    for (r, t) in regs:
        a("v_exp_f32 v%d, -v%d" % (t, t))
    for (r, t) in regs:
        a("v_add_f32 v%d, 1.0, v%d" % (t, t))
    for (r, t) in regs:
        a("v_rcp_f32 v%d, v%d" % (t, t))
    for (r, t) in regs:
        a("v_mul_f32 v%d, v%d, v%d" % (r, r, t))
    for (r0, r1, b0, b1, d) in pairs:
        a("v_cvt_pk_bf16_f32 v%d, v%d, v%d" % (d, r0, r1))


def gen_k1(a):
    name = "gemm1_kernel"
    kernel_header(a, name)
    S = 10
    Lend = a.newlabel("K1_end")
    Lssm = a.newlabel("K1_ssm")
    Lffn_ld = a.newlabel("K1_ffn_ld")
    Lssm_ld = a.newlabel("K1_ssm_ld")
    Lffn_epi = a.newlabel("K1_ffn_epi")
    a("s_cmp_ge_u32 s2, 256")
    a("s_cbranch_scc1 %s" % Lend)
    a("s_load_dwordx2 s[4:5], s[0:1], %d" % KA["Bre"])
    a("s_load_dwordx2 s[6:7], s[0:1], %d" % KA["Bim"])
    a("s_load_dwordx2 s[8:9], s[0:1], %d" % KA["b1"])
    a("s_load_dwordx2 s[10:11], s[0:1], %d" % KA["ws"])
    a("v_lshrrev_b32 v2, 6, v0")
    a("v_and_b32 v1, 63, v0")
    a("s_nop 0")
    a("v_readfirstlane_b32 s12, v2")
    a("s_and_b32 s13, s2, 1")
    a("s_lshl_b32 s13, s13, 3")
    a("s_lshr_b32 s14, s2, 3")
    a("s_and_b32 s15, s14, 7")
    a("s_add_u32 s13, s13, s15")
    a("s_lshr_b32 s14, s14, 3")
    a("s_lshr_b32 s15, s2, 1")
    a("s_and_b32 s15, s15, 3")
    a("s_lshl_b32 s15, s15, 1")
    a("s_and_b32 s16, s14, 1")
    a("s_add_u32 s15, s15, s16")
    a("s_and_b32 s17, s12, 3")
    a("v_lshrrev_b32 v2, 3, v1")
    a("v_and_b32 v3, 7, v1")
    a("v_xor_b32 v4, v2, v3")
    a("v_mul_u32_u24 v5, 1280, v2")
    a("v_lshl_add_u32 v5, v4, 4, v5")
    a("v_lshrrev_b32 v6, 4, v1")
    a("v_and_b32 v7, 15, v1")
    a("v_xor_b32 v4, v6, v3")
    a("v_lshlrev_b32 v8, 7, v7")
    a("v_lshl_add_u32 v8, v4, 4, v8")
    a("v_xor_b32 v9, 64, v8")
    a("s_mul_i32 s18, s13, %d" % (128 * 1280))
    a("s_waitcnt lgkmcnt(0)")
    a("s_add_u32 s18, s18, %d" % WS_XN)
    srd_off(a, 20, 10, 11, "s18", 128 * 1280)
    a("s_cmp_lt_u32 s14, 2")
    a("s_cbranch_scc1 %s" % Lssm)

    SLOT = 40960
    a("s_mul_i32 s18, s15, %d" % (192 * 1280))
    a("s_add_u32 s18, s18, %d" % WS_W1T)
    srd_off(a, 24, 10, 11, "s18", 192 * 1280)
    a("s_and_b32 s18, s17, 1")
    a("s_lshl_b32 s18, s18, 6")
    a("s_lshl_b32 s19, s13, 7")
    a("s_add_u32 s18, s18, s19")
    a("s_mul_i32 s18, s18, 3072")
    a("s_lshr_b32 s19, s17, 1")
    a("s_mul_i32 s19, s19, 192")
    a("s_mul_i32 s28, s15, 384")
    a("s_add_u32 s19, s19, s28")
    a("s_add_u32 s18, s18, s19")
    a("s_add_u32 s18, s18, %d" % WS_H1)
    srd_off(a, 28, 10, 11, "s18", 64 * 3072)
    srd(a, 32, 8, 9, 3072)
    BIAS = 200
    a("v_lshlrev_b32 v10, 4, v6")
    for aa in range(3):
        a("buffer_load_dwordx4 v[%d:%d], v10, s[32:35], s19 offen offset:%d" % (224 + 4 * aa, 227 + 4 * aa, 64 * aa))
    a("v_lshrrev_b32 v11, 2, v7")
    a("v_and_b32 v12, 3, v7")
    a("v_lshl_add_u32 v11, v11, 4, v12")
    a("v_mul_u32_u24 v11, 3072, v11")
    a("v_lshl_add_u32 v11, v6, 4, v11")
    a("s_mov_b32 s36, 0xffff0000")
    a("s_mov_b32 s37, %s" % fh(2 * math.sqrt(2 / math.pi) * LOG2E * 0.044715))
    a("v_mov_b32 v13, %s" % fh(2 * math.sqrt(2 / math.pi) * LOG2E))
    a("v_lshlrev_b32 v14, 4, v1")
    a("s_lshl_b32 s38, s17, 12")
    a("s_mul_i32 s38, s38, 3")
    a("v_add_u32 v14, s38, v14")
    a("s_waitcnt vmcnt(0)")
    for i in range(12):
        a("v_lshlrev_b32 v%d, 16, v%d" % (BIAS + 2 * i, 224 + i))
        a("v_and_b32 v%d, s36, v%d" % (BIAS + 2 * i + 1, 224 + i))
    a("s_cmp_ge_u32 s12, 4")
    a("s_cbranch_scc1 %s" % Lffn_ld)
    ACC = 16
    FR = 112
    AD = 192
    ADR = 236
    a("s_and_b32 s18, s17, 1")
    a("s_lshl_b32 s18, s18, 13")
    a("s_lshr_b32 s19, s17, 1")
    a("s_mul_i32 s19, s19, 12288")
    a("s_add_u32 s19, s19, 16384")
    for sl in range(NS):
        a("s_add_u32 s39, s18, %d" % (sl * SLOT))
        a("s_add_u32 s40, s19, %d" % (sl * SLOT))
        a("v_add_u32 v%d, s39, v8" % (ADR + 4 * sl))
        a("v_add_u32 v%d, s39, v9" % (ADR + 4 * sl + 1))
        a("v_add_u32 v%d, s40, v8" % (ADR + 4 * sl + 2))
        a("v_add_u32 v%d, s40, v9" % (ADR + 4 * sl + 3))

    def reads_f(s, sub, st):
        sl = s % NS
        b = FR + 40 * st
        out = []
        order = [("N", 0), ("T", 0), ("T", 1), ("T", 2), ("T", 3), ("N", 1), ("N", 2), ("N", 3), ("N", 4), ("N", 5)]
        for k, i in order:
            if k == "T":
                out.append("ds_read_b128 v[%d:%d], v%d offset:%d" % (b + 4 * i, b + 4 * i + 3, ADR + 4 * sl + sub, i * 2048))
            else:
                out.append("ds_read_b128 v[%d:%d], v%d offset:%d" % (b + 16 + 4 * i, b + 19 + 4 * i, ADR + 4 * sl + 2 + sub, i * 2048))
        return out

    def mfmas_f(st, first):
        b = FR + 40 * st
        out = []
        for nt in range(6):
            for tt in range(4):
                d = ACC + (tt * 6 + nt) * 4
                c = "0" if first else "v[%d:%d]" % (d, d + 3)
                out.append("v_mfma_f32_16x16x32_bf16 v[%d:%d], v[%d:%d], v[%d:%d], %s" % (
                    d, d + 3, b + 16 + 4 * nt, b + 19 + 4 * nt, b + 4 * tt, b + 4 * tt + 3, c))
        return out
    compute_loop(a, S, reads_f, mfmas_f)
    a("s_nop 7")
    a("s_nop 7")
    for i in range(12):
        a("ds_write_b128 v14, v[%d:%d] offset:%d" % (ACC + 48 + 4 * i, ACC + 51 + 4 * i, i * 1024))
    a("s_waitcnt lgkmcnt(0)")
    a("s_barrier")
    a("s_mov_b32 s41, 0")
    a("s_branch %s" % Lffn_epi)

    a.label(Lffn_ld)
    a("s_mul_i32 s42, s17, 10240")
    a("s_lshl_b32 s43, s17, 10")

    def dma_f(s):
        sl = s % NS
        for i in range(4):
            a("s_add_u32 m0, s43, %d" % (sl * SLOT + i * 4096))
            a("s_add_u32 s44, s42, %d" % (i * 40960 + s * 128))
            a("buffer_load_dwordx4 v5, s[20:23], s44 offen lds")
        for i in range(6):
            a("s_add_u32 m0, s43, %d" % (sl * SLOT + 16384 + i * 4096))
            a("s_add_u32 s44, s42, %d" % (i * 40960 + s * 128))
            a("buffer_load_dwordx4 v5, s[24:27], s44 offen lds")
    loader_loop(a, S, SLOT, dma_f, 10)
    a("s_barrier")
    for i in range(12):
        a("ds_read_b128 v[%d:%d], v14 offset:%d" % (ACC + 4 * i, ACC + 3 + 4 * i, i * 1024))
    a("s_mov_b32 s41, %d" % (8 * 3072))
    a("s_waitcnt lgkmcnt(0)")

    a.label(Lffn_epi)
    for tt in range(2):
        for aa in range(3):
            pairs = []
            for h in range(2):
                nt = 2 * aa + h
                r = ACC + (tt * 6 + nt) * 4
                b = BIAS + aa * 8 + h * 4
                d = 112 + (tt * 3 + aa) * 4 + 2 * h
                pairs.append((r, r + 1, b, b + 1, d))
                pairs.append((r + 2, r + 3, b + 2, b + 3, d + 1))
            emit_gelu_pairs(a, pairs, 160, 13, 37, 36)
            d = 112 + (tt * 3 + aa) * 4
            a("s_add_u32 s44, s41, %d" % (tt * 4 * 3072))
            a("buffer_store_dwordx4 v[%d:%d], v11, s[28:31], s44 offen offset:%d" % (d, d + 3, aa * 64))
    a("s_endpgm")

    a.label(Lssm)
    SLOT = 36864
    a("s_cmp_ge_u32 s12, 4")
    a("s_cbranch_scc1 %s" % Lssm_ld)
    ACC = 16
    FR = 96
    CON = 170
    ADR = 236
    srd_off(a, 24, 10, 11, WS_TAB, 10 * 5120)
    a("s_lshr_b32 s19, s17, 1")
    a("s_mul_i32 s19, s19, 5")
    a("s_mul_i32 s28, s15, 10")
    a("s_add_u32 s19, s19, s28")
    a("s_lshl_b32 s28, s19, 6")
    a("v_lshlrev_b32 v10, 2, v7")
    for k in range(6):
        a("s_add_u32 s29, s28, %d" % (k * 5120))
        for c in range(5):
            a("buffer_load_dword v%d, v10, s[24:27], s29 offen offset:%d" % (CON + c * 6 + k, c * 64))
    a("s_and_b32 s18, s17, 1")
    a("s_lshl_b32 s29, s13, 1")
    a("s_add_u32 s29, s29, s18")
    a("s_mul_i32 s30, s29, 80")
    a("s_add_u32 s30, s30, s19")
    a("s_lshl_b32 s30, s30, 12")
    a("s_add_u32 s30, s30, %d" % WS_G32)
    srd_off(a, 32, 10, 11, "s30", 5 * 4096)
    a("s_mul_i32 s30, s29, 5120")
    a("s_add_u32 s30, s30, s28")
    a("s_add_u32 s30, s30, %d" % WS_E64)
    srd_off(a, 36, 10, 11, "s30", 5 * 64)
    a("s_lshl_b32 s18, s18, 13")
    a("s_lshr_b32 s19, s17, 1")
    a("s_mul_i32 s19, s19, 10240")
    a("s_add_u32 s19, s19, 16384")
    for sl in range(NS):
        a("s_add_u32 s40, s18, %d" % (sl * SLOT))
        a("s_add_u32 s41, s19, %d" % (sl * SLOT))
        a("v_add_u32 v%d, s40, v8" % (ADR + 4 * sl))
        a("v_add_u32 v%d, s40, v9" % (ADR + 4 * sl + 1))
        a("v_add_u32 v%d, s41, v8" % (ADR + 4 * sl + 2))
        a("v_add_u32 v%d, s41, v9" % (ADR + 4 * sl + 3))

    def reads_s(s, sub, st):
        sl = s % NS
        b = FR + 36 * st
        out = []
        order = [("N", 0), ("T", 0), ("T", 1), ("T", 2), ("T", 3), ("N", 1), ("N", 2), ("N", 3), ("N", 4)]
        for k, i in order:
            if k == "T":
                out.append("ds_read_b128 v[%d:%d], v%d offset:%d" % (b + 4 * i, b + 4 * i + 3, ADR + 4 * sl + sub, i * 2048))
            else:
                out.append("ds_read_b128 v[%d:%d], v%d offset:%d" % (b + 16 + 4 * i, b + 19 + 4 * i, ADR + 4 * sl + 2 + sub, i * 2048))
        return out

    def mfmas_s(st, first):
        b = FR + 36 * st
        out = []
        for c in range(5):
            for j in range(4):
                d = ACC + (c * 4 + j) * 4
                cc = "0" if first else "v[%d:%d]" % (d, d + 3)
                out.append("v_mfma_f32_16x16x32_bf16 v[%d:%d], v[%d:%d], v[%d:%d], %s" % (
                    d, d + 3, b + 4 * j, b + 4 * j + 3, b + 16 + 4 * c, b + 19 + 4 * c, cc))
        return out
    compute_loop(a, S, reads_s, mfmas_s)
    a("s_waitcnt vmcnt(0)")
    a("s_nop 7")
    a("s_nop 7")
    TMP = 96
    for i in range(16):
        for c in range(5):
            u = ACC + c * 16 + i
            a("v_mul_f32 v%d, v%d, v%d" % (TMP + c, CON + c * 6 + 2, u))
        for c in range(5):
            u = ACC + c * 16 + i
            a("v_fmac_f32_dpp v%d, v%d, v%d %s" % (TMP + c, u, CON + c * 6 + 3, DPP8))
        if i == 0:
            for c in range(5):
                a("v_mov_b32 v%d, v%d" % (ACC + c * 16, TMP + c))
        else:
            for c in range(5):
                u = ACC + c * 16 + i
                a("v_fma_f32 v%d, v%d, v%d, v%d" % (u, CON + c * 6, u - 1, TMP + c))
            for c in range(5):
                u = ACC + c * 16 + i
                a("v_fmac_f32_dpp v%d, v%d, v%d %s" % (u, u - 1, CON + c * 6 + 1, DPP8))
    a("v_lshlrev_b32 v11, 4, v1")
    for c in range(5):
        a("s_mov_b32 s40, %d" % (c * 4096))
        for j in range(4):
            r = ACC + (c * 4 + j) * 4
            a("buffer_store_dwordx4 v[%d:%d], v11, s[32:35], s40 offen offset:%d" % (r, r + 3, j * 1024))
    EQ = 104
    for q in range(4):
        a("v_add_u32 v12, %d, v10" % (q * 64))
        for c in range(5):
            a("ds_bpermute_b32 v%d, v12, v%d" % (EQ + c * 4 + q, ACC + c * 16 + 15))
    a("s_waitcnt lgkmcnt(0)")
    for q in range(1, 4):
        for c in range(5):
            a("v_fma_f32 v%d, v%d, v%d, v%d" % (EQ + c * 4 + q, CON + c * 6 + 4, EQ + c * 4 + q - 1, EQ + c * 4 + q))
        for c in range(5):
            a("v_fmac_f32_dpp v%d, v%d, v%d %s" % (EQ + c * 4 + q, EQ + c * 4 + q - 1, CON + c * 6 + 5, DPP8))
    a("v_cmp_gt_u32 vcc, 16, v1")
    a("s_and_saveexec_b64 s[42:43], vcc")
    for c in range(5):
        a("buffer_store_dword v%d, v10, s[36:39], 0 offen offset:%d" % (EQ + c * 4 + 3, c * 64))
    a("s_endpgm")

    a.label(Lssm_ld)
    a("s_and_b32 s18, s17, 1")
    a("s_cmp_eq_u32 s18, 0")
    a("s_cselect_b32 s28, s4, s6")
    a("s_cselect_b32 s29, s5, s7")
    a("s_mul_i32 s18, s15, %d" % (80 * 1280))
    srd_off(a, 24, 28, 29, "s18", 80 * 1280)
    a("s_mul_i32 s42, s17, 10240")
    a("s_lshl_b32 s43, s17, 10")
    a("s_lshr_b32 s45, s17, 1")
    a("s_mul_i32 s45, s45, 10240")

    def dma_s(s):
        sl = s % NS
        for i in range(4):
            a("s_add_u32 m0, s43, %d" % (sl * SLOT + i * 4096))
            a("s_add_u32 s44, s42, %d" % (i * 40960 + s * 128))
            a("buffer_load_dwordx4 v5, s[20:23], s44 offen lds")
        for i in range(5):
            a("s_add_u32 m0, s43, %d" % (sl * SLOT + 16384 + i * 4096))
            a("s_add_u32 s44, s45, %d" % (i * 20480 + s * 128))
            a("buffer_load_dwordx4 v5, s[24:27], s44 offen lds")
    loader_loop(a, S, SLOT, dma_s, 9)
    a.label(Lend)
    a("s_endpgm")
    return name, 256


def build(kernels):
    a = Asm()
    hdr = open("cdna_kernels/%s.s.ref" % NAME).read().split("\n")
    hdr = [l for l in hdr if l.startswith(";") and "@launch" not in l and "Override" not in l and "grid=ceil" not in l]
    launches = []
    descs = []
    body = Asm()
    for gen, grid, block, lds in kernels:
        nm, vg = gen(body)
        launches.append("; @launch kernel=%s grid=(%d,1,1) block=(%d,1,1) lds=%d" % (nm, grid, block, lds))
        descs.append(kernel_desc(nm, vg))
    out = "\n".join(hdr + launches) + "\n"
    out += '.amdgcn_target "amdgcn-amd-amdhsa--gfx950"\n.text\n'
    out += body.text()
    out += '.section .rodata,"a"\n.p2align 6\n' + ".p2align 6\n".join(descs)
    return out


if __name__ == "__main__":
    from gen23 import gen_k2, gen_k3
    ks = [(gen_k0, 256, 256, 0), (gen_k1, 256, 512, 163840), (gen_k2, 256, 512, 147456), (gen_k3, 256, 512, 147456)]
    n = int(sys.argv[2]) if len(sys.argv) > 2 else 4
    txt = build(ks[:n])
    open(sys.argv[1] if len(sys.argv) > 1 else "cdna_kernels/%s.s" % NAME, "w").write(txt)
```

```python
import sys, struct, math, re

NAME = "recurrent_scan__ssm_conv_s5__dense_activation_gelu__prompt"

WS_XN = 0x0000000
WS_W1T = 0x0300000
WS_W2T = 0x0500000
WS_TAB = 0x0700000
WS_H1 = 0x0800000
WS_E64 = 0x0F00000
WS_G32 = 0x1000000
WS_HT = 0x2000000
WS_GATE = 0x2800000

KA = dict(x=0, Lre=8, Lim=16, Bre=24, Bim=32, Cre=40, Cim=48, logdt=56, Dskip=64, Bx=72,
          w1=80, b1=88, w2=96, b2=104, out=112, dbg=120, ws=128)

LOG2E = 1.4426950408889634


def f2u(x):
    return struct.unpack("<I", struct.pack("<f", x))[0]


def fh(x):
    return "0x%08x" % f2u(x)


class Asm:
    def __init__(self):
        self.lines = []
        self.nlabel = 0

    def __call__(self, s):
        m = re.search(r"offset:(\d+)", s)
        if m:
            lim = 4095 if s.startswith("buffer_") else 65535
            assert int(m.group(1)) <= lim, s
        self.lines.append("    " + s)

    def label(self, name):
        self.lines.append(name + ":")

    def newlabel(self, p="L"):
        self.nlabel += 1
        return "%s_%d" % (p, self.nlabel)

    def raw(self, s):
        self.lines.append(s)

    def text(self):
        return "\n".join(self.lines) + "\n"


def srd(a, d, base_lo, base_hi, size):
    a("s_mov_b32 s%d, s%d" % (d, base_lo))
    a("s_and_b32 s%d, s%d, 0xffff" % (d + 1, base_hi))
    a("s_mov_b32 s%d, 0x%x" % (d + 2, size))
    a("s_mov_b32 s%d, 0x00020000" % (d + 3))


def srd_off(a, d, base_lo, base_hi, off, size):
    o = off if isinstance(off, str) else "0x%x" % off
    a("s_add_u32 s%d, s%d, %s" % (d, base_lo, o))
    a("s_addc_u32 s%d, s%d, 0" % (d + 1, base_hi))
    a("s_and_b32 s%d, s%d, 0xffff" % (d + 1, d + 1))
    a("s_mov_b32 s%d, 0x%x" % (d + 2, size))
    a("s_mov_b32 s%d, 0x00020000" % (d + 3))


def kernel_header(a, name):
    a.raw(".globl %s" % name)
    a.raw(".p2align 8")
    a.raw(".type %s,@function" % name)
    a.label(name)


def kernel_desc(name, vgpr, sgpr=102):
    acc = (vgpr + 3) // 4 * 4
    return """.amdhsa_kernel %s
  .amdhsa_next_free_vgpr %d
  .amdhsa_next_free_sgpr %d
  .amdhsa_accum_offset %d
  .amdhsa_group_segment_fixed_size 0
  .amdhsa_kernarg_size 136
  .amdhsa_user_sgpr_count 2
  .amdhsa_user_sgpr_kernarg_segment_ptr 1
  .amdhsa_system_sgpr_workgroup_id_x 1
.end_amdhsa_kernel
""" % (name, vgpr, sgpr, acc)


DPP8 = "row_ror:8 row_mask:0xf bank_mask:0xf"

import os
STAMP = int(os.environ.get("STAMP", "0"))
WS_DBG = 0x3000000


class Stamper:
    def __init__(self, a, kidx):
        self.a = a
        self.n = 0
        self.kidx = kidx

    def reset(self):
        self.n = 0

    def __call__(self, real=False):
        if not STAMP:
            return
        a = self.a
        assert self.n < 38
        if self.n == 0 and not real:
            self(True)
        a("s_memrealtime s[100:101]" if real else "s_memtime s[100:101]")
        a("s_waitcnt lgkmcnt(0)")
        a("s_mov_b32 s%d, s100" % (60 + self.n))
        self.n += 1

    def flush(self):
        if not STAMP:
            return
        a = self.a
        self()
        self(True)
        a("s_mov_b64 exec, -1")
        a("v_mov_b32 v250, 0")
        for i in range(self.n):
            a("v_writelane_b32 v250, s%d, %d" % (60 + i, i))
        a("s_lshl_b32 s98, s2, 3")
        a("s_add_u32 s98, s98, s12")
        a("s_lshl_b32 s98, s98, 8")
        a("s_add_u32 s98, s98, 0x%x" % (WS_DBG + self.kidx * 0x100000))
        srd_off(a, 56, 10, 11, "s98", 256)
        a("v_and_b32 v251, 63, v0")
        a("v_lshlrev_b32 v251, 2, v251")
        a("buffer_store_dword v250, v251, s[56:59], 0 offen")


def gen_k0(a):
    name = "prep_kernel"
    kernel_header(a, name)
    Lend = a.newlabel("K0_end")
    Ltr = a.newlabel("K0_tr")
    Ltab = a.newlabel("K0_tab")
    a("s_cmp_ge_u32 s2, 253")
    a("s_cbranch_scc1 %s" % Lend)
    a("s_load_dwordx2 s[10:11], s[0:1], %d" % KA["ws"])
    a("v_lshrrev_b32 v2, 6, v0")
    a("v_and_b32 v1, 63, v0")
    a("s_nop 0")
    a("v_readfirstlane_b32 s12, v2")
    a("s_cmp_ge_u32 s2, 248")
    a("s_cbranch_scc1 %s" % Ltab)
    a("s_cmp_ge_u32 s2, 128")
    a("s_cbranch_scc1 %s" % Ltr)
    a("s_load_dwordx2 s[4:5], s[0:1], %d" % KA["x"])
    a("s_lshl_b32 s13, s2, 4")
    a("s_lshl_b32 s14, s12, 2")
    a("s_add_u32 s13, s13, s14")
    a("s_mul_i32 s13, s13, 1280")
    a("v_lshrrev_b32 v2, 4, v1")
    a("v_and_b32 v3, 15, v1")
    a("v_mul_u32_u24 v4, 1280, v2")
    a("v_lshl_add_u32 v4, v3, 4, v4")
    a("s_lshr_b32 s14, s2, 2")
    a("s_lshl_b32 s14, s14, 6")
    a("s_lshl_b32 s15, s12, 4")
    a("s_add_u32 s14, s14, s15")
    a("s_and_b32 s15, s2, 3")
    a("s_lshl_b32 s15, s15, 2")
    a("s_add_u32 s14, s14, s15")
    a("s_mul_i32 s14, s14, 1280")
    a("s_waitcnt lgkmcnt(0)")
    srd(a, 16, 4, 5, 2048 * 1280)
    srd_off(a, 20, 10, 11, WS_XN, 2048 * 1280)
    for m in range(5):
        a("buffer_load_dwordx4 v[%d:%d], v4, s[16:19], s13 offen offset:%d" % (8 + 4 * m, 11 + 4 * m, 256 * m))
    a("s_mov_b32 s24, 0xffff0000")
    a("s_waitcnt vmcnt(0)")
    for i in range(20):
        a("v_lshlrev_b32 v%d, 16, v%d" % (32 + 2 * i, 8 + i))
        a("v_and_b32 v%d, s24, v%d" % (33 + 2 * i, 8 + i))
    for c in range(4):
        a("v_add_f32 v%d, v%d, v%d" % (72 + c, 32 + c, 36 + c))
    for i in range(2, 10):
        for c in range(4):
            a("v_add_f32 v%d, v%d, v%d" % (72 + c, 72 + c, 32 + 4 * i + c))
    a("v_add_f32 v72, v72, v73")
    a("v_add_f32 v74, v74, v75")
    a("v_add_f32 v72, v72, v74")

    def allreduce16(r):
        for sh in (8, 4, 2, 1):
            a("s_nop 1")
            a("v_add_f32_dpp v%d, v%d, v%d row_ror:%d row_mask:0xf bank_mask:0xf" % (r, r, r, sh))
    allreduce16(72)
    a("v_mul_f32 v72, %s, v72" % fh(1.0 / 640))
    for c in range(4):
        a("v_sub_f32 v%d, v%d, v72" % (76 + c, 32 + c))
        a("v_mul_f32 v%d, v%d, v%d" % (80 + c, 76 + c, 76 + c))
    for i in range(1, 10):
        for c in range(4):
            a("v_sub_f32 v%d, v%d, v72" % (76 + c, 32 + 4 * i + c))
            a("v_fmac_f32 v%d, v%d, v%d" % (80 + c, 76 + c, 76 + c))
    a("v_add_f32 v80, v80, v81")
    a("v_add_f32 v82, v82, v83")
    a("v_add_f32 v80, v80, v82")
    allreduce16(80)
    a("v_mul_f32 v80, %s, v80" % fh(1.0 / 640))
    a("v_cvt_pk_bf16_f32 v73, v72, v80")
    a("v_lshlrev_b32 v72, 16, v73")
    a("v_and_b32 v80, s24, v73")
    a("v_add_f32 v80, %s, v80" % fh(1e-5))
    a("v_cvt_pk_bf16_f32 v80, v80, v80")
    a("v_and_b32 v80, s24, v80")
    a("v_sqrt_f32 v80, v80")
    a("s_nop 0")
    a("v_cvt_pk_bf16_f32 v80, v80, v80")
    a("v_and_b32 v80, s24, v80")
    a("v_rcp_f32 v81, v80")
    a("s_nop 0")
    a("v_fma_f32 v82, -v80, v81, 1.0")
    a("v_fma_f32 v81, v82, v81, v81")
    for i in range(20):
        a("v_sub_f32 v%d, v%d, v72" % (32 + 2 * i, 32 + 2 * i))
        a("v_sub_f32 v%d, v%d, v72" % (33 + 2 * i, 33 + 2 * i))
        a("v_cvt_pk_bf16_f32 v%d, v%d, v%d" % (8 + i, 32 + 2 * i, 33 + 2 * i))
    for i in range(20):
        a("v_lshlrev_b32 v%d, 16, v%d" % (32 + 2 * i, 8 + i))
        a("v_and_b32 v%d, s24, v%d" % (33 + 2 * i, 8 + i))
        a("v_mul_f32 v84, v%d, v81" % (32 + 2 * i))
        a("v_mul_f32 v85, v%d, v81" % (33 + 2 * i))
        a("v_fma_f32 v86, -v84, v80, v%d" % (32 + 2 * i))
        a("v_fma_f32 v87, -v85, v80, v%d" % (33 + 2 * i))
        a("v_fma_f32 v84, v86, v81, v84")
        a("v_fma_f32 v85, v87, v81, v85")
        a("v_cvt_pk_bf16_f32 v%d, v84, v85" % (8 + i))
    for m in range(5):
        a("buffer_store_dwordx4 v[%d:%d], v4, s[20:23], s14 offen offset:%d" % (8 + 4 * m, 11 + 4 * m, 256 * m))
    a("s_endpgm")

    a.label(Ltr)
    Lw2 = a.newlabel("K0_w2")
    Lgo = a.newlabel("K0_trgo")
    a("v_and_b32 v2, 7, v1")
    a("v_lshrrev_b32 v3, 3, v1")
    a("s_cmp_ge_u32 s2, 188")
    a("s_cbranch_scc1 %s" % Lw2)
    a("s_load_dwordx2 s[4:5], s[0:1], %d" % KA["w1"])
    a("s_sub_u32 s13, s2, 128")
    a("s_lshl_b32 s13, s13, 2")
    a("s_add_u32 s13, s13, s12")
    a("s_mul_hi_u32 s14, s13, 0x%x" % ((1 << 32) // 10 + 1))
    a("s_mul_i32 s15, s14, 10")
    a("s_sub_u32 s15, s13, s15")
    a("s_mul_i32 s26, s15, %d" % (64 * 3072))
    a("s_lshl_b32 s27, s14, 7")
    a("s_add_u32 s26, s26, s27")
    a("v_mul_u32_u24 v4, %d, v2" % (8 * 3072))
    a("v_lshl_add_u32 v4, v3, 4, v4")
    a("s_mov_b32 s28, 3072")
    a("v_lshrrev_b32 v5, 2, v3")
    a("v_and_b32 v6, 3, v3")
    a("v_lshlrev_b32 v5, 5, v5")
    a("v_lshl_add_u32 v5, v6, 2, v5")
    a("v_mul_u32_u24 v5, 1280, v5")
    a("v_lshl_add_u32 v5, v2, 4, v5")
    a("s_mul_i32 s27, s14, %d" % (64 * 1280))
    a("s_lshl_b32 s29, s15, 7")
    a("s_add_u32 s27, s27, s29")
    for i in range(8):
        a("s_add_u32 s%d, s27, %d" % (32 + i, ((i >> 2) * 16 + (i & 3)) * 1280))
    a("s_waitcnt lgkmcnt(0)")
    srd(a, 16, 4, 5, 640 * 3072)
    srd_off(a, 20, 10, 11, WS_W1T, 1536 * 1280)
    a("s_branch %s" % Lgo)
    a.label(Lw2)
    a("s_load_dwordx2 s[4:5], s[0:1], %d" % KA["w2"])
    a("s_sub_u32 s13, s2, 188")
    a("s_lshl_b32 s13, s13, 2")
    a("s_add_u32 s13, s13, s12")
    a("s_mul_hi_u32 s14, s13, 0x%x" % ((1 << 32) // 24 + 1))
    a("s_mul_i32 s15, s14, 24")
    a("s_sub_u32 s15, s13, s15")
    a("s_mul_i32 s26, s15, %d" % (64 * 1280))
    a("s_lshl_b32 s27, s14, 7")
    a("s_add_u32 s26, s26, s27")
    a("v_mul_u32_u24 v4, %d, v2" % (8 * 1280))
    a("v_lshl_add_u32 v4, v3, 4, v4")
    a("s_mov_b32 s28, 1280")
    a("v_mul_u32_u24 v5, %d, v3" % (8 * 3072))
    a("v_lshl_add_u32 v5, v2, 4, v5")
    a("s_mul_i32 s27, s14, %d" % (64 * 3072))
    a("s_lshl_b32 s29, s15, 7")
    a("s_add_u32 s27, s27, s29")
    for i in range(8):
        a("s_add_u32 s%d, s27, %d" % (32 + i, i * 3072))
    a("s_waitcnt lgkmcnt(0)")
    srd(a, 16, 4, 5, 1536 * 1280)
    srd_off(a, 20, 10, 11, WS_W2T, 640 * 3072)
    a.label(Lgo)
    for j in range(8):
        a("buffer_load_dwordx4 v[%d:%d], v4, s[16:19], s26 offen" % (8 + 4 * j, 11 + 4 * j))
        if j < 7:
            a("s_add_u32 s26, s26, s28")
    a("s_mov_b32 s30, 0x05040100")
    a("s_mov_b32 s31, 0x07060302")
    a("s_waitcnt vmcnt(0)")
    for i in range(8):
        for m in range(4):
            a("v_perm_b32 v%d, v%d, v%d, s%d" % (40 + 4 * i + m, 8 + 4 * (2 * m + 1) + (i >> 1),
                                               8 + 4 * (2 * m) + (i >> 1), 30 + (i & 1)))
    for i in range(8):
        a("buffer_store_dwordx4 v[%d:%d], v5, s[20:23], s%d offen" % (40 + 4 * i, 43 + 4 * i, 32 + i))
    a("s_endpgm")

    a.label(Ltab)
    a("s_load_dwordx2 s[4:5], s[0:1], %d" % KA["Lre"])
    a("s_load_dwordx2 s[6:7], s[0:1], %d" % KA["Lim"])
    a("s_load_dwordx2 s[8:9], s[0:1], %d" % KA["logdt"])
    a("s_sub_u32 s13, s2, 248")
    a("s_lshl_b32 s13, s13, 8")
    a("v_add_u32 v2, s13, v0")
    a("v_lshrrev_b32 v3, 4, v2")
    a("v_and_b32 v4, 7, v2")
    a("v_lshl_add_u32 v3, v3, 3, v4")
    a("v_lshlrev_b32 v3, 1, v3")
    a("v_lshlrev_b32 v5, 2, v2")
    a("v_and_b32 v6, 8, v2")
    a("v_lshlrev_b32 v6, 28, v6")
    a("v_xor_b32 v6, 0x80000000, v6")
    a("s_waitcnt lgkmcnt(0)")
    srd(a, 16, 4, 5, 1280)
    srd(a, 20, 6, 7, 1280)
    srd(a, 24, 8, 9, 1280)
    srd_off(a, 28, 10, 11, WS_TAB, 10 * 5120)
    a("buffer_load_ushort v8, v3, s[16:19], 0 offen")
    a("buffer_load_ushort v9, v3, s[20:23], 0 offen")
    a("buffer_load_ushort v10, v3, s[24:27], 0 offen")
    a("s_waitcnt vmcnt(0)")
    a("v_lshlrev_b32 v8, 16, v8")
    a("v_lshlrev_b32 v9, 16, v9")
    a("v_lshlrev_b32 v10, 16, v10")
    a("v_mul_f32 v10, %s, v10" % fh(LOG2E))
    a("v_exp_f32 v10, v10")
    a("s_nop 0")
    a("v_cvt_pk_bf16_f32 v10, v10, v10")
    a("v_and_b32 v10, 0xffff0000, v10")
    a("v_mul_f32 v11, v10, v8")
    a("v_mul_f32 v12, v10, v9")
    a("v_mul_f32 v11, %s, v11" % fh(LOG2E))
    a("v_exp_f32 v11, v11")
    a("v_mul_f32 v12, 0.15915494, v12")
    a("v_fract_f32 v12, v12")
    a("v_cos_f32 v13, v12")
    a("v_sin_f32 v14, v12")
    a("s_nop 0")
    a("v_mul_f32 v13, v11, v13")
    a("v_mul_f32 v14, v11, v14")
    a("v_add_f32 v15, -1.0, v13")
    a("v_mul_f32 v16, v8, v8")
    a("v_fmac_f32 v16, v9, v9")
    a("v_rcp_f32 v17, v16")
    a("s_nop 0")
    a("v_fma_f32 v18, -v16, v17, 1.0")
    a("v_fma_f32 v17, v18, v17, v17")
    a("v_mul_f32 v18, v15, v8")
    a("v_fmac_f32 v18, v14, v9")
    a("v_mul_f32 v19, v14, v8")
    a("v_fma_f32 v19, -v15, v9, v19")
    a("v_mul_f32 v18, v18, v17")
    a("v_mul_f32 v19, v19, v17")

    def st(k, r, signed):
        if signed:
            a("v_xor_b32 v30, v6, v%d" % r)
            r = 30
        a("s_mov_b32 s13, %d" % (k * 5120))
        a("buffer_store_dword v%d, v5, s[28:31], s13 offen" % r)
        a("s_nop 1")
    st(0, 13, False)
    st(1, 14, True)
    st(2, 18, False)
    st(3, 19, True)
    a("v_mov_b32 v20, v13")
    a("v_mov_b32 v21, v14")

    def sq():
        a("v_mul_f32 v22, v21, v21")
        a("v_mul_f32 v23, v20, v21")
        a("v_fma_f32 v20, v20, v20, -v22")
        a("v_add_f32 v21, v23, v23")
    for _ in range(4):
        sq()
    st(4, 20, False)
    st(5, 21, True)
    for _ in range(2):
        sq()
    st(6, 20, False)
    st(7, 21, True)
    for _ in range(3):
        sq()
    st(8, 20, False)
    st(9, 21, True)
    a.label(Lend)
    a("s_endpgm")
    return name, 96


NS = 4


def loader_loop(a, S, slot_bytes, dma, n, st=lambda: None):
    st()
    issued = 0

    def upto(k):
        nonlocal issued
        while issued <= min(k, S - 1):
            dma(issued)
            issued += 1

    def wait_landed(k):
        a("s_waitcnt vmcnt(%d)" % ((issued - 1 - k) * n))
    upto(1)
    st()
    wait_landed(0)
    st()
    a("s_barrier")
    upto(2)
    for s in range(S):
        if s + 1 <= S - 1:
            wait_landed(s + 1)
        st()
        a("s_barrier")
        st()
        upto(s + NS)


def compute_loop(a, S, reads, mfmas, st=lambda: None):
    st()
    a("s_barrier")
    st()
    for r in reads(0, 0, 0):
        a(r)

    def interleave(ms, rs):
        out = []
        ri = 0
        for i, m in enumerate(ms):
            out.append(m)
            if ri < len(rs):
                out.append(rs[ri])
                ri += 1
        out += rs[ri:]
        return out
    for s in range(S):
        a("s_waitcnt lgkmcnt(0)")
        for x in interleave(mfmas(0, s == 0), reads(s, 1, 1)):
            a(x)
        a("s_waitcnt lgkmcnt(0)")
        st()
        a("s_barrier")
        st()
        rs = reads(s + 1, 0, 0) if s + 1 < S else []
        for x in interleave(mfmas(1, False), rs):
            a(x)


def emit_gelu_pairs(a, pairs, tmp, sC1, sC2, sMask):
    for (r0, r1, b0, b1, d) in pairs:
        a("v_cvt_pk_bf16_f32 v%d, v%d, v%d" % (d, r0, r1))
    for (r0, r1, b0, b1, d) in pairs:
        a("v_lshlrev_b32 v%d, 16, v%d" % (r0, d))
        a("v_and_b32 v%d, s%d, v%d" % (r1, sMask, d))
    for (r0, r1, b0, b1, d) in pairs:
        a("v_add_f32 v%d, v%d, v%d" % (r0, r0, b0))
        a("v_add_f32 v%d, v%d, v%d" % (r1, r1, b1))
    for (r0, r1, b0, b1, d) in pairs:
        a("v_cvt_pk_bf16_f32 v%d, v%d, v%d" % (d, r0, r1))
    for (r0, r1, b0, b1, d) in pairs:
        a("v_lshlrev_b32 v%d, 16, v%d" % (r0, d))
        a("v_and_b32 v%d, s%d, v%d" % (r1, sMask, d))
    regs = []
    for i, (r0, r1, b0, b1, d) in enumerate(pairs):
        regs += [(r0, tmp + 2 * i), (r1, tmp + 2 * i + 1)]
    for (r, t) in regs:
        a("v_mul_f32 v%d, v%d, v%d" % (t, r, r))
    for (r, t) in regs:
        a("v_fma_f32 v%d, v%d, s%d, v%d" % (t, t, sC2, sC1))
    for (r, t) in regs:
        a("v_mul_f32 v%d, v%d, v%d" % (t, t, r))
    for (r, t) in regs:
        a("v_exp_f32 v%d, -v%d" % (t, t))
    for (r, t) in regs:
        a("v_add_f32 v%d, 1.0, v%d" % (t, t))
    for (r, t) in regs:
        a("v_rcp_f32 v%d, v%d" % (t, t))
    for (r, t) in regs:
        a("v_mul_f32 v%d, v%d, v%d" % (r, r, t))
    for (r0, r1, b0, b1, d) in pairs:
        a("v_cvt_pk_bf16_f32 v%d, v%d, v%d" % (d, r0, r1))


def gen_k1(a):
    name = "gemm1_kernel"
    kernel_header(a, name)
    S = 10
    st = Stamper(a, 1)
    Lend = a.newlabel("K1_end")
    Lssm = a.newlabel("K1_ssm")
    Lffn_ld = a.newlabel("K1_ffn_ld")
    Lssm_ld = a.newlabel("K1_ssm_ld")
    Lffn_epi = a.newlabel("K1_ffn_epi")
    a("s_cmp_ge_u32 s2, 256")
    a("s_cbranch_scc1 %s" % Lend)
    a("s_load_dwordx2 s[4:5], s[0:1], %d" % KA["Bre"])
    a("s_load_dwordx2 s[6:7], s[0:1], %d" % KA["Bim"])
    a("s_load_dwordx2 s[8:9], s[0:1], %d" % KA["b1"])
    a("s_load_dwordx2 s[10:11], s[0:1], %d" % KA["ws"])
    a("v_lshrrev_b32 v2, 6, v0")
    a("v_and_b32 v1, 63, v0")
    a("s_nop 0")
    a("v_readfirstlane_b32 s12, v2")
    a("s_and_b32 s13, s2, 1")
    a("s_lshl_b32 s13, s13, 3")
    a("s_lshr_b32 s14, s2, 3")
    a("s_and_b32 s15, s14, 7")
    a("s_add_u32 s13, s13, s15")
    a("s_lshr_b32 s14, s14, 3")
    a("s_lshr_b32 s15, s2, 1")
    a("s_and_b32 s15, s15, 3")
    a("s_lshl_b32 s15, s15, 1")
    a("s_and_b32 s16, s14, 1")
    a("s_add_u32 s15, s15, s16")
    a("s_and_b32 s17, s12, 3")
    a("v_lshrrev_b32 v2, 3, v1")
    a("v_and_b32 v3, 7, v1")
    a("v_xor_b32 v4, v2, v3")
    a("v_mul_u32_u24 v5, 1280, v2")
    a("v_lshl_add_u32 v5, v4, 4, v5")
    a("v_lshrrev_b32 v6, 4, v1")
    a("v_and_b32 v7, 15, v1")
    a("v_xor_b32 v4, v6, v3")
    a("v_lshlrev_b32 v8, 7, v7")
    a("v_lshl_add_u32 v8, v4, 4, v8")
    a("v_xor_b32 v9, 64, v8")
    a("s_mul_i32 s18, s13, %d" % (128 * 1280))
    a("s_waitcnt lgkmcnt(0)")
    st()
    n0 = st.n
    a("s_add_u32 s18, s18, %d" % WS_XN)
    srd_off(a, 20, 10, 11, "s18", 128 * 1280)
    a("s_cmp_lt_u32 s14, 2")
    a("s_cbranch_scc1 %s" % Lssm)

    SLOT = 40960
    a("s_mul_i32 s18, s15, %d" % (192 * 1280))
    a("s_add_u32 s18, s18, %d" % WS_W1T)
    srd_off(a, 24, 10, 11, "s18", 192 * 1280)
    a("s_and_b32 s18, s17, 1")
    a("s_lshl_b32 s18, s18, 6")
    a("s_lshl_b32 s19, s13, 7")
    a("s_add_u32 s18, s18, s19")
    a("s_mul_i32 s18, s18, 3072")
    a("s_lshr_b32 s19, s17, 1")
    a("s_mul_i32 s19, s19, 192")
    a("s_mul_i32 s28, s15, 384")
    a("s_add_u32 s19, s19, s28")
    a("s_add_u32 s18, s18, s19")
    a("s_add_u32 s18, s18, %d" % WS_H1)
    srd_off(a, 28, 10, 11, "s18", 64 * 3072)
    srd(a, 32, 8, 9, 3072)
    BIAS = 200
    a("v_lshlrev_b32 v10, 4, v6")
    for aa in range(3):
        a("buffer_load_dwordx4 v[%d:%d], v10, s[32:35], s19 offen offset:%d" % (224 + 4 * aa, 227 + 4 * aa, 64 * aa))
    a("v_lshrrev_b32 v11, 2, v7")
    a("v_and_b32 v12, 3, v7")
    a("v_lshl_add_u32 v11, v11, 4, v12")
    a("v_mul_u32_u24 v11, 3072, v11")
    a("v_lshl_add_u32 v11, v6, 4, v11")
    a("s_mov_b32 s36, 0xffff0000")
    a("s_mov_b32 s37, %s" % fh(2 * math.sqrt(2 / math.pi) * LOG2E * 0.044715))
    a("v_mov_b32 v13, %s" % fh(2 * math.sqrt(2 / math.pi) * LOG2E))
    a("v_lshlrev_b32 v14, 4, v1")
    a("s_lshl_b32 s38, s17, 12")
    a("s_mul_i32 s38, s38, 3")
    a("v_add_u32 v14, s38, v14")
    a("s_waitcnt vmcnt(0)")
    for i in range(12):
        a("v_lshlrev_b32 v%d, 16, v%d" % (BIAS + 2 * i, 224 + i))
        a("v_and_b32 v%d, s36, v%d" % (BIAS + 2 * i + 1, 224 + i))
    a("s_cmp_ge_u32 s12, 4")
    a("s_cbranch_scc1 %s" % Lffn_ld)
    ACC = 16
    FR = 112
    AD = 192
    ADR = 236
    a("s_and_b32 s18, s17, 1")
    a("s_lshl_b32 s18, s18, 13")
    a("s_lshr_b32 s19, s17, 1")
    a("s_mul_i32 s19, s19, 12288")
    a("s_add_u32 s19, s19, 16384")
    for sl in range(NS):
        a("s_add_u32 s39, s18, %d" % (sl * SLOT))
        a("s_add_u32 s40, s19, %d" % (sl * SLOT))
        a("v_add_u32 v%d, s39, v8" % (ADR + 4 * sl))
        a("v_add_u32 v%d, s39, v9" % (ADR + 4 * sl + 1))
        a("v_add_u32 v%d, s40, v8" % (ADR + 4 * sl + 2))
        a("v_add_u32 v%d, s40, v9" % (ADR + 4 * sl + 3))

    def reads_f(s, sub, st):
        sl = s % NS
        b = FR + 40 * st
        out = []
        order = [("N", 0), ("T", 0), ("T", 1), ("T", 2), ("T", 3), ("N", 1), ("N", 2), ("N", 3), ("N", 4), ("N", 5)]
        for k, i in order:
            if k == "T":
                out.append("ds_read_b128 v[%d:%d], v%d offset:%d" % (b + 4 * i, b + 4 * i + 3, ADR + 4 * sl + sub, i * 2048))
            else:
                out.append("ds_read_b128 v[%d:%d], v%d offset:%d" % (b + 16 + 4 * i, b + 19 + 4 * i, ADR + 4 * sl + 2 + sub, i * 2048))
        return out

    def mfmas_f(st, first):
        b = FR + 40 * st
        out = []
        for nt in range(6):
            for tt in range(4):
                d = ACC + (tt * 6 + nt) * 4
                c = "0" if first else "v[%d:%d]" % (d, d + 3)
                out.append("v_mfma_f32_16x16x32_bf16 v[%d:%d], v[%d:%d], v[%d:%d], %s" % (
                    d, d + 3, b + 16 + 4 * nt, b + 19 + 4 * nt, b + 4 * tt, b + 4 * tt + 3, c))
        return out
    compute_loop(a, S, reads_f, mfmas_f, st)
    st()
    st()
    nepi = st.n
    a("s_nop 7")
    a("s_nop 7")
    for i in range(12):
        a("ds_write_b128 v14, v[%d:%d] offset:%d" % (ACC + 48 + 4 * i, ACC + 51 + 4 * i, i * 1024))
    a("s_waitcnt lgkmcnt(0)")
    a("s_barrier")
    a("s_mov_b32 s41, 0")
    a("s_branch %s" % Lffn_epi)

    a.label(Lffn_ld)
    a("s_mul_i32 s42, s17, 10240")
    a("s_lshl_b32 s43, s17, 10")

    def dma_f(s):
        sl = s % NS
        for i in range(4):
            a("s_add_u32 m0, s43, %d" % (sl * SLOT + i * 4096))
            a("s_add_u32 s44, s42, %d" % (i * 40960 + s * 128))
            a("buffer_load_dwordx4 v5, s[20:23], s44 offen lds")
        for i in range(6):
            a("s_add_u32 m0, s43, %d" % (sl * SLOT + 16384 + i * 4096))
            a("s_add_u32 s44, s42, %d" % (i * 40960 + s * 128))
            a("buffer_load_dwordx4 v5, s[24:27], s44 offen lds")
    st.n = n0
    loader_loop(a, S, SLOT, dma_f, 10, st)
    while st.n < nepi:
        st()
    a("s_barrier")
    for i in range(12):
        a("ds_read_b128 v[%d:%d], v14 offset:%d" % (ACC + 4 * i, ACC + 3 + 4 * i, i * 1024))
    a("s_mov_b32 s41, %d" % (8 * 3072))
    a("s_waitcnt lgkmcnt(0)")

    a.label(Lffn_epi)
    for tt in range(2):
        for aa in range(3):
            pairs = []
            for h in range(2):
                nt = 2 * aa + h
                r = ACC + (tt * 6 + nt) * 4
                b = BIAS + aa * 8 + h * 4
                d = 112 + (tt * 3 + aa) * 4 + 2 * h
                pairs.append((r, r + 1, b, b + 1, d))
                pairs.append((r + 2, r + 3, b + 2, b + 3, d + 1))
            emit_gelu_pairs(a, pairs, 160, 13, 37, 36)
            d = 112 + (tt * 3 + aa) * 4
            a("s_add_u32 s44, s41, %d" % (tt * 4 * 3072))
            a("buffer_store_dwordx4 v[%d:%d], v11, s[28:31], s44 offen offset:%d" % (d, d + 3, aa * 64))
    st.flush()
    a("s_endpgm")

    a.label(Lssm)
    SLOT = 36864
    a("s_cmp_ge_u32 s12, 4")
    a("s_cbranch_scc1 %s" % Lssm_ld)
    ACC = 16
    FR = 96
    CON = 170
    ADR = 236
    srd_off(a, 24, 10, 11, WS_TAB, 10 * 5120)
    a("s_lshr_b32 s19, s17, 1")
    a("s_mul_i32 s19, s19, 5")
    a("s_mul_i32 s28, s15, 10")
    a("s_add_u32 s19, s19, s28")
    a("s_lshl_b32 s28, s19, 6")
    a("v_lshlrev_b32 v10, 2, v7")
    for k in range(6):
        a("s_add_u32 s29, s28, %d" % (k * 5120))
        for c in range(5):
            a("buffer_load_dword v%d, v10, s[24:27], s29 offen offset:%d" % (CON + c * 6 + k, c * 64))
    a("s_and_b32 s18, s17, 1")
    a("s_lshl_b32 s29, s13, 1")
    a("s_add_u32 s29, s29, s18")
    a("s_mul_i32 s30, s29, 80")
    a("s_add_u32 s30, s30, s19")
    a("s_lshl_b32 s30, s30, 12")
    a("s_add_u32 s30, s30, %d" % WS_G32)
    srd_off(a, 32, 10, 11, "s30", 5 * 4096)
    a("s_mul_i32 s30, s29, 5120")
    a("s_add_u32 s30, s30, s28")
    a("s_add_u32 s30, s30, %d" % WS_E64)
    srd_off(a, 36, 10, 11, "s30", 5 * 64)
    a("s_lshl_b32 s18, s18, 13")
    a("s_lshr_b32 s19, s17, 1")
    a("s_mul_i32 s19, s19, 10240")
    a("s_add_u32 s19, s19, 16384")
    for sl in range(NS):
        a("s_add_u32 s40, s18, %d" % (sl * SLOT))
        a("s_add_u32 s41, s19, %d" % (sl * SLOT))
        a("v_add_u32 v%d, s40, v8" % (ADR + 4 * sl))
        a("v_add_u32 v%d, s40, v9" % (ADR + 4 * sl + 1))
        a("v_add_u32 v%d, s41, v8" % (ADR + 4 * sl + 2))
        a("v_add_u32 v%d, s41, v9" % (ADR + 4 * sl + 3))

    def reads_s(s, sub, st):
        sl = s % NS
        b = FR + 36 * st
        out = []
        order = [("N", 0), ("T", 0), ("T", 1), ("T", 2), ("T", 3), ("N", 1), ("N", 2), ("N", 3), ("N", 4)]
        for k, i in order:
            if k == "T":
                out.append("ds_read_b128 v[%d:%d], v%d offset:%d" % (b + 4 * i, b + 4 * i + 3, ADR + 4 * sl + sub, i * 2048))
            else:
                out.append("ds_read_b128 v[%d:%d], v%d offset:%d" % (b + 16 + 4 * i, b + 19 + 4 * i, ADR + 4 * sl + 2 + sub, i * 2048))
        return out

    def mfmas_s(st, first):
        b = FR + 36 * st
        out = []
        for c in range(5):
            for j in range(4):
                d = ACC + (c * 4 + j) * 4
                cc = "0" if first else "v[%d:%d]" % (d, d + 3)
                out.append("v_mfma_f32_16x16x32_bf16 v[%d:%d], v[%d:%d], v[%d:%d], %s" % (
                    d, d + 3, b + 4 * j, b + 4 * j + 3, b + 16 + 4 * c, b + 19 + 4 * c, cc))
        return out
    st.n = n0
    compute_loop(a, S, reads_s, mfmas_s, st)
    st()
    a("s_waitcnt vmcnt(0)")
    a("s_nop 7")
    a("s_nop 7")
    TMP = 96
    for i in range(16):
        for c in range(5):
            u = ACC + c * 16 + i
            a("v_mul_f32 v%d, v%d, v%d" % (TMP + c, CON + c * 6 + 2, u))
        for c in range(5):
            u = ACC + c * 16 + i
            a("v_fmac_f32_dpp v%d, v%d, v%d %s" % (TMP + c, u, CON + c * 6 + 3, DPP8))
        if i == 0:
            for c in range(5):
                a("v_mov_b32 v%d, v%d" % (ACC + c * 16, TMP + c))
        else:
            for c in range(5):
                u = ACC + c * 16 + i
                a("v_fma_f32 v%d, v%d, v%d, v%d" % (u, CON + c * 6, u - 1, TMP + c))
            for c in range(5):
                u = ACC + c * 16 + i
                a("v_fmac_f32_dpp v%d, v%d, v%d %s" % (u, u - 1, CON + c * 6 + 1, DPP8))
    a("v_lshlrev_b32 v11, 4, v1")
    for c in range(5):
        a("s_mov_b32 s40, %d" % (c * 4096))
        for j in range(4):
            r = ACC + (c * 4 + j) * 4
            a("buffer_store_dwordx4 v[%d:%d], v11, s[32:35], s40 offen offset:%d" % (r, r + 3, j * 1024))
    EQ = 104
    for q in range(4):
        a("v_add_u32 v12, %d, v10" % (q * 64))
        for c in range(5):
            a("ds_bpermute_b32 v%d, v12, v%d" % (EQ + c * 4 + q, ACC + c * 16 + 15))
    a("s_waitcnt lgkmcnt(0)")
    for q in range(1, 4):
        for c in range(5):
            a("v_fma_f32 v%d, v%d, v%d, v%d" % (EQ + c * 4 + q, CON + c * 6 + 4, EQ + c * 4 + q - 1, EQ + c * 4 + q))
        for c in range(5):
            a("v_fmac_f32_dpp v%d, v%d, v%d %s" % (EQ + c * 4 + q, EQ + c * 4 + q - 1, CON + c * 6 + 5, DPP8))
    a("v_cmp_gt_u32 vcc, 16, v1")
    a("s_and_saveexec_b64 s[42:43], vcc")
    for c in range(5):
        a("buffer_store_dword v%d, v10, s[36:39], 0 offen offset:%d" % (EQ + c * 4 + 3, c * 64))
    st.flush()
    a("s_endpgm")

    a.label(Lssm_ld)
    a("s_and_b32 s18, s17, 1")
    a("s_cmp_eq_u32 s18, 0")
    a("s_cselect_b32 s28, s4, s6")
    a("s_cselect_b32 s29, s5, s7")
    a("s_mul_i32 s18, s15, %d" % (80 * 1280))
    srd_off(a, 24, 28, 29, "s18", 80 * 1280)
    a("s_mul_i32 s42, s17, 10240")
    a("s_lshl_b32 s43, s17, 10")
    a("s_lshr_b32 s45, s17, 1")
    a("s_mul_i32 s45, s45, 10240")

    def dma_s(s):
        sl = s % NS
        for i in range(4):
            a("s_add_u32 m0, s43, %d" % (sl * SLOT + i * 4096))
            a("s_add_u32 s44, s42, %d" % (i * 40960 + s * 128))
            a("buffer_load_dwordx4 v5, s[20:23], s44 offen lds")
        for i in range(5):
            a("s_add_u32 m0, s43, %d" % (sl * SLOT + 16384 + i * 4096))
            a("s_add_u32 s44, s45, %d" % (i * 20480 + s * 128))
            a("buffer_load_dwordx4 v5, s[24:27], s44 offen lds")
    st.n = n0
    loader_loop(a, S, SLOT, dma_s, 9, st)
    st.flush()
    a.label(Lend)
    a("s_endpgm")
    return name, 256


def build(kernels):
    a = Asm()
    hdr = open("cdna_kernels/%s.s.ref" % NAME).read().split("\n")
    hdr = [l for l in hdr if l.startswith(";") and "@launch" not in l and "Override" not in l and "grid=ceil" not in l]
    launches = []
    descs = []
    body = Asm()
    for gen, grid, block, lds in kernels:
        nm, vg = gen(body)
        launches.append("; @launch kernel=%s grid=(%d,1,1) block=(%d,1,1) lds=%d" % (nm, grid, block, lds))
        descs.append(kernel_desc(nm, vg))
    out = "\n".join(hdr + launches) + "\n"
    out += '.amdgcn_target "amdgcn-amd-amdhsa--gfx950"\n.text\n'
    out += body.text()
    out += '.section .rodata,"a"\n.p2align 6\n' + ".p2align 6\n".join(descs)
    return out


if __name__ == "__main__":
    from gen23 import gen_k2, gen_k3
    ks = [(gen_k0, 256, 256, 0), (gen_k1, 256, 512, 163840), (gen_k2, 256, 512, 147456), (gen_k3, 256, 512, 147456)]
    n = int(sys.argv[2]) if len(sys.argv) > 2 else 4
    txt = build(ks[:n])
    open(sys.argv[1] if len(sys.argv) > 1 else "cdna_kernels/%s.s" % NAME, "w").write(txt)
```

```python
from gen import *

SUB = 18432
SLOT23 = 36864


def common_23(a, Lend):
    a("s_cmp_ge_u32 s2, 256")
    a("s_cbranch_scc1 %s" % Lend)
    a("s_load_dwordx2 s[10:11], s[0:1], %d" % KA["ws"])
    a("v_lshrrev_b32 v2, 6, v0")
    a("v_and_b32 v1, 63, v0")
    a("s_nop 0")
    a("v_readfirstlane_b32 s12, v2")
    a("s_and_b32 s13, s2, 3")
    a("s_lshl_b32 s13, s13, 3")
    a("s_lshr_b32 s14, s2, 3")
    a("s_and_b32 s15, s14, 7")
    a("s_add_u32 s13, s13, s15")
    a("s_lshr_b32 s14, s14, 3")
    a("s_lshr_b32 s15, s2, 2")
    a("s_and_b32 s15, s15, 1")
    a("s_lshl_b32 s15, s15, 2")
    a("s_add_u32 s14, s14, s15")
    a("s_and_b32 s17, s12, 3")
    a("s_and_b32 s18, s17, 1")
    a("s_lshr_b32 s19, s17, 1")
    a("v_lshrrev_b32 v2, 3, v1")
    a("v_and_b32 v3, 7, v1")
    a("v_lshrrev_b32 v6, 4, v1")
    a("v_and_b32 v7, 15, v1")
    a("v_xor_b32 v4, v6, v3")
    a("v_lshlrev_b32 v8, 7, v7")
    a("v_lshl_add_u32 v8, v4, 4, v8")
    a("v_xor_b32 v9, 64, v8")
    a("v_xor_b32 v4, v2, v3")


def cmul_add(a, items):
    for (d, lr, li, s, ad) in items:
        if ad is None:
            a("v_mul_f32 v%d, v%d, v%d" % (d, lr, s))
        else:
            a("v_fma_f32 v%d, v%d, v%d, v%d" % (d, lr, s, ad))
    if len(items) < 2:
        a("s_nop 1")
    for (d, lr, li, s, ad) in items:
        a("v_fmac_f32_dpp v%d, v%d, v%d %s" % (d, s, li, DPP8))


def exchange(a, ACC, vx):
    a("s_nop 7")
    a("s_nop 7")
    a("s_mul_i32 s40, s17, 5120")
    a("s_xor_b32 s41, s17, 2")
    a("s_mul_i32 s41, s41, 5120")
    a("v_add_u32 v12, s40, v%d" % vx)
    a("v_add_u32 v13, s41, v%d" % vx)
    for dt in range(5):
        r = ACC + (5 + dt) * 4
        a("ds_write_b128 v12, v[%d:%d] offset:%d" % (r, r + 3, dt * 1024))
    a("s_waitcnt lgkmcnt(0)")
    a("s_barrier")
    for dt in range(5):
        r = ACC + (5 + dt) * 4
        a("ds_read_b128 v[%d:%d], v13 offset:%d" % (r, r + 3, dt * 1024))
    a("s_waitcnt lgkmcnt(0)")
    for i in range(20):
        a("v_add_f32 v%d, v%d, v%d" % (ACC + i, ACC + i, ACC + 20 + i))


def gen_k2(a):
    name = "gemm2_kernel"
    kernel_header(a, name)
    S = 12
    st = Stamper(a, 2)
    Lend = a.newlabel("K2_end")
    Lld = a.newlabel("K2_ld")
    a("s_load_dwordx2 s[8:9], s[0:1], %d" % KA["b2"])
    common_23(a, Lend)
    a("s_waitcnt lgkmcnt(0)")
    st()
    n0 = st.n
    a("s_cmp_ge_u32 s12, 4")
    a("s_cbranch_scc1 %s" % Lld)
    ACC = 16
    FR = 56
    ADR = 112
    U0 = 140
    VE = 236
    B2 = 244
    a("s_lshr_b32 s20, s2, 3")
    a("s_and_b32 s21, s2, 7")
    a("s_mul_i32 s21, s21, 10")
    a("s_add_u32 s21, s21, s17")
    srd_off(a, 24, 10, 11, WS_TAB, 10 * 5120)
    srd_off(a, 28, 10, 11, WS_E64, 32 * 5120)
    a("s_mul_i32 s22, s20, %d" % (80 * 4096))
    a("s_add_u32 s22, s22, %d" % WS_G32)
    srd_off(a, 32, 10, 11, "s22", 80 * 4096)
    a("s_mul_i32 s22, s20, %d" % (1280 * 128))
    a("s_add_u32 s22, s22, %d" % WS_HT)
    srd_off(a, 36, 10, 11, "s22", 1280 * 128)
    srd(a, 44, 8, 9, 1280)
    a("v_lshlrev_b32 v10, 2, v7")
    a("v_lshlrev_b32 v11, 4, v1")
    a("s_sub_u32 s22, s20, 32")
    a("v_lshl_add_u32 v12, v6, 3, s22")
    a("s_mov_b32 s23, 5120")
    a("v_mul_lo_u32 v12, v12, s23")
    a("v_add_u32 v%d, v12, v10" % VE)
    for i in range(1, 8):
        a("v_add_u32 v%d, 5120, v%d" % (VE + i, VE + i - 1))
    TABK = [0, 1, 4, 5, 6, 7, 8, 9]

    def unit_loads(i):
        b = U0 + 32 * i
        a("s_add_u32 s40, s21, %d" % (4 * i))
        a("s_lshl_b32 s41, s40, 6")
        a("s_lshl_b32 s42, s40, 12")
        for e in range(8):
            a("buffer_load_dword v%d, v%d, s[28:31], s41 offen" % (b + 24 + e, VE + e))
        for j in range(4):
            a("buffer_load_dwordx4 v[%d:%d], v11, s[32:35], s42 offen offset:%d" % (b + 4 * j, b + 4 * j + 3, j * 1024))
        for k in range(8):
            a("s_add_u32 s43, s41, %d" % (TABK[k] * 5120))
            a("buffer_load_dword v%d, v10, s[24:27], s43 offen" % (b + 16 + k))
    unit_loads(0)
    unit_loads(1)
    Lskip = a.newlabel("K2_skipl")
    a("s_cmp_ge_u32 s17, 2")
    a("s_cbranch_scc1 %s" % Lskip)
    unit_loads(2)
    a.label(Lskip)
    a("s_mul_i32 s40, s14, 160")
    a("v_lshlrev_b32 v12, 3, v6")
    for dt in range(5):
        a("buffer_load_dwordx2 v[%d:%d], v12, s[44:47], s40 offen offset:%d" % (B2 + 2 * dt, B2 + 2 * dt + 1, dt * 32))
    a("s_mul_i32 s40, s19, %d" % SUB)
    a("s_lshl_b32 s41, s18, 12")
    a("s_add_u32 s41, s41, s40")
    a("s_lshl_b32 s42, s19, 11")
    a("s_xor_b32 s43, s42, 2048")
    a("s_add_u32 s42, s41, s42")
    a("s_add_u32 s43, s41, s43")
    a("s_add_u32 s48, s40, 8192")
    for sl in range(NS):
        for k, sr in enumerate((42, 43, 48)):
            a("s_add_u32 s49, s%d, %d" % (sr, sl * SLOT23))
            a("v_add_u32 v%d, s49, v8" % (ADR + 6 * sl + 2 * k))
            a("v_add_u32 v%d, s49, v9" % (ADR + 6 * sl + 2 * k + 1))
    a("v_lshrrev_b32 v12, 3, v7")
    a("v_mul_u32_u24 v13, 640, v12")
    a("v_add_u32 v13, v13, v3")
    a("v_lshlrev_b32 v13, 7, v13")
    a("v_lshl_add_u32 v14, v6, 5, v13")
    a("v_mul_u32_u24 v15, 0x8000, v12")
    a("v_lshl_add_u32 v15, v15, 16, v15")
    a("v_cmp_eq_u32 s[50:51], 1, v6")
    a("v_cmp_eq_u32 s[52:53], 2, v6")
    a("v_cmp_eq_u32 s[54:55], 3, v6")
    for q in range(4):
        a("v_add_u32 v%d, %d, v10" % (16 + q, 64 * q))
    st()
    a("s_waitcnt vmcnt(0)")
    st()

    def unit_process(units):
        bs = [U0 + 32 * i for i in units]
        T = lambda n: 20 + 12 * n
        for e in range(1, 8):
            cmul_add(a, [(b + 24 + e, b + 20, b + 21, b + 24 + e - 1, b + 24 + e) for b in bs])
        a("s_nop 1")
        for n, b in enumerate(bs):
            for q in range(4):
                a("ds_bpermute_b32 v%d, v%d, v%d" % (T(n) + q, 16 + q, b + 31))
            for q in range(3):
                a("ds_bpermute_b32 v%d, v%d, v%d" % (T(n) + 4 + q, 16 + q, b + 15))
        a("s_waitcnt lgkmcnt(0)")
        for q in range(1, 4):
            cmul_add(a, [(T(n) + q, b + 22, b + 23, T(n) + q - 1, T(n) + q) for n, b in enumerate(bs)])
        for q in range(3):
            cmul_add(a, [(T(n) + 4 + q, b + 18, b + 19, T(n) + 3 + q, T(n) + 4 + q) for n, b in enumerate(bs)])
        for n, b in enumerate(bs):
            a("v_cndmask_b32 v%d, v%d, v%d, s[50:51]" % (T(n) + 8, T(n) + 3, T(n) + 4))
            a("v_cndmask_b32 v%d, v%d, v%d, s[52:53]" % (T(n) + 8, T(n) + 8, T(n) + 5))
            a("v_cndmask_b32 v%d, v%d, v%d, s[54:55]" % (T(n) + 8, T(n) + 8, T(n) + 6))
        a("s_nop 1")
        for i in range(16):
            src = 8 + (i & 1)
            dst = 8 + ((i + 1) & 1)
            cmul_add(a, [(T(n) + dst, b + 16, b + 17, T(n) + src, None) for n, b in enumerate(bs)])
            for n, b in enumerate(bs):
                a("v_add_f32 v%d, v%d, v%d" % (b + i, b + i, T(n) + dst))
        for n, b in enumerate(bs):
            for j in range(8):
                a("v_cvt_pk_bf16_f32 v%d, v%d, v%d" % (b + 16 + j, b + 2 * j, b + 2 * j + 1))
            for j in range(8):
                a("v_xor_b32 v%d, v15, v%d" % (b + 16 + j, b + 16 + j))
        for n, i in enumerate(units):
            b = bs[n]
            a("s_add_u32 s40, s21, %d" % (4 * i))
            a("s_lshl_b32 s40, s40, 10")
            a("buffer_store_dwordx4 v[%d:%d], v14, s[36:39], s40 offen" % (b + 16, b + 19))
            a("buffer_store_dwordx4 v[%d:%d], v14, s[36:39], s40 offen offset:16" % (b + 20, b + 23))
    unit_process([0, 1])
    Lskip2 = a.newlabel("K2_skipp")
    a("s_cmp_ge_u32 s17, 2")
    a("s_cbranch_scc1 %s" % Lskip2)
    unit_process([2])
    a.label(Lskip2)

    def reads(s, sub, st):
        sl = s % NS
        b = FR + 28 * st
        out = []
        order = [("D", 0), ("T", 0), ("T", 1), ("D", 1), ("D", 2), ("D", 3), ("D", 4)]
        for k, i in order:
            if k == "T":
                out.append("ds_read_b128 v[%d:%d], v%d" % (b + 4 * i, b + 4 * i + 3, ADR + 6 * sl + 2 * i + sub))
            else:
                out.append("ds_read_b128 v[%d:%d], v%d offset:%d" % (b + 8 + 4 * i, b + 11 + 4 * i, ADR + 6 * sl + 4 + sub, i * 2048))
        return out

    def mfmas(st, first):
        b = FR + 28 * st
        out = []
        for dt in range(5):
            for t2 in range(2):
                d = ACC + (t2 * 5 + dt) * 4
                c = "0" if first else "v[%d:%d]" % (d, d + 3)
                out.append("v_mfma_f32_16x16x32_bf16 v[%d:%d], v[%d:%d], v[%d:%d], %s" % (
                    d, d + 3, b + 8 + 4 * dt, b + 11 + 4 * dt, b + 4 * t2, b + 4 * t2 + 3, c))
        return out
    compute_loop(a, S, reads, mfmas, st)
    st()
    exchange(a, ACC, 11)
    st()
    a("s_mov_b32 s40, 0xffff0000")
    BF = 60
    PK = 84
    TM = 96
    for i in range(10):
        a("v_lshlrev_b32 v%d, 16, v%d" % (BF + 2 * i, B2 + i))
        a("v_and_b32 v%d, s40, v%d" % (BF + 2 * i + 1, B2 + i))
    for i in range(10):
        a("v_cvt_pk_bf16_f32 v%d, v%d, v%d" % (PK + i, ACC + 2 * i, ACC + 2 * i + 1))
    for i in range(10):
        a("v_lshlrev_b32 v%d, 16, v%d" % (ACC + 2 * i, PK + i))
        a("v_and_b32 v%d, s40, v%d" % (ACC + 2 * i + 1, PK + i))
    for i in range(20):
        a("v_add_f32 v%d, v%d, v%d" % (ACC + i, ACC + i, BF + i))
    for i in range(10):
        a("v_cvt_pk_bf16_f32 v%d, v%d, v%d" % (PK + i, ACC + 2 * i, ACC + 2 * i + 1))
    for i in range(10):
        a("v_lshlrev_b32 v%d, 16, v%d" % (ACC + 2 * i, PK + i))
        a("v_and_b32 v%d, s40, v%d" % (ACC + 2 * i + 1, PK + i))
    for i in range(20):
        a("v_mul_f32 v%d, %s, v%d" % (TM + i, fh(-LOG2E), ACC + i))
    for i in range(20):
        a("v_exp_f32 v%d, v%d" % (TM + i, TM + i))
    for i in range(20):
        a("v_add_f32 v%d, 1.0, v%d" % (TM + i, TM + i))
    for i in range(20):
        a("v_rcp_f32 v%d, v%d" % (TM + i, TM + i))
    for i in range(20):
        a("v_mul_f32 v%d, v%d, v%d" % (ACC + i, ACC + i, TM + i))
    for i in range(10):
        a("v_cvt_pk_bf16_f32 v%d, v%d, v%d" % (PK + i, ACC + 2 * i, ACC + 2 * i + 1))
    a("s_lshl_b32 s40, s2, 2")
    a("s_add_u32 s40, s40, s17")
    a("s_mul_i32 s40, s40, 2560")
    a("s_add_u32 s40, s40, %d" % WS_GATE)
    srd_off(a, 24, 10, 11, "s40", 2560)
    a("v_lshlrev_b32 v12, 3, v1")
    for dt in range(5):
        a("buffer_store_dwordx2 v[%d:%d], v12, s[24:27], 0 offen offset:%d" % (PK + 2 * dt, PK + 2 * dt + 1, dt * 512))
    st.flush()
    a("s_endpgm")

    a.label(Lld)
    a("s_mul_i32 s20, s13, %d" % (64 * 3072))
    a("s_add_u32 s20, s20, %d" % WS_H1)
    srd_off(a, 24, 10, 11, "s20", 64 * 3072)
    a("s_mul_i32 s20, s14, %d" % (80 * 3072))
    a("s_add_u32 s20, s20, %d" % WS_W2T)
    srd_off(a, 28, 10, 11, "s20", 80 * 3072)
    a("v_mul_u32_u24 v5, 3072, v2")
    a("v_lshl_add_u32 v5, v4, 4, v5")
    a("s_mul_i32 s42, s18, %d" % (8 * 3072))
    a("s_lshl_b32 s43, s19, 7")
    a("s_add_u32 s42, s42, s43")
    a("s_mul_i32 s43, s19, %d" % SUB)
    a("s_lshl_b32 s44, s18, 10")
    a("s_add_u32 s43, s43, s44")

    def dma(s):
        sl = s % NS
        for i in range(4):
            a("s_add_u32 m0, s43, %d" % (sl * SLOT23 + i * 2048))
            a("s_add_u32 s44, s42, %d" % (i * 16 * 3072 + s * 256))
            a("buffer_load_dwordx4 v5, s[24:27], s44 offen lds")
        for i in range(5):
            a("s_add_u32 m0, s43, %d" % (sl * SLOT23 + 8192 + i * 2048))
            a("s_add_u32 s44, s42, %d" % (i * 16 * 3072 + s * 256))
            a("buffer_load_dwordx4 v5, s[28:31], s44 offen lds")
    st.n = n0
    loader_loop(a, S, SLOT23, dma, 9, st)
    a("s_barrier")
    st.flush()
    a.label(Lend)
    a("s_endpgm")
    return name, 256


def gen_k3(a):
    name = "gemm3_kernel"
    kernel_header(a, name)
    S = 10
    st = Stamper(a, 3)
    Lend = a.newlabel("K3_end")
    Lld = a.newlabel("K3_ld")
    a("s_load_dwordx2 s[4:5], s[0:1], %d" % KA["Cre"])
    a("s_load_dwordx2 s[6:7], s[0:1], %d" % KA["Cim"])
    a("s_load_dwordx2 s[8:9], s[0:1], %d" % KA["x"])
    a("s_load_dwordx2 s[20:21], s[0:1], %d" % KA["Dskip"])
    a("s_load_dwordx2 s[22:23], s[0:1], %d" % KA["out"])
    common_23(a, Lend)
    a("s_waitcnt lgkmcnt(0)")
    st()
    n0 = st.n
    a("s_cmp_ge_u32 s12, 4")
    a("s_cbranch_scc1 %s" % Lld)
    ACC = 16
    FR = 56
    ADR = 112
    XR, XNR, DS, GT = 140, 150, 160, 170
    a("s_lshl_b32 s40, s18, 1")
    a("s_add_u32 s40, s40, s19")
    a("s_lshl_b32 s41, s13, 6")
    a("s_lshl_b32 s42, s40, 4")
    a("s_add_u32 s41, s41, s42")
    a("s_mul_i32 s42, s41, 1280")
    a("s_mul_i32 s43, s14, 160")
    a("s_add_u32 s42, s42, s43")
    srd(a, 24, 8, 9, 2048 * 1280)
    srd_off(a, 28, 10, 11, WS_XN, 2048 * 1280)
    srd(a, 32, 20, 21, 1280)
    a("s_lshl_b32 s44, s2, 2")
    a("s_add_u32 s44, s44, s17")
    a("s_mul_i32 s44, s44, 2560")
    a("s_add_u32 s44, s44, %d" % WS_GATE)
    srd_off(a, 36, 10, 11, "s44", 2560)
    srd(a, 44, 22, 23, 2048 * 2560)
    a("v_mul_u32_u24 v12, 1280, v7")
    a("v_lshl_add_u32 v12, v6, 3, v12")
    for dt in range(5):
        a("buffer_load_dwordx2 v[%d:%d], v12, s[24:27], s42 offen offset:%d" % (XR + 2 * dt, XR + 2 * dt + 1, dt * 32))
    a("v_lshrrev_b32 v13, 2, v7")
    a("v_and_b32 v14, 3, v7")
    a("v_lshl_add_u32 v13, v13, 4, v14")
    a("v_mul_u32_u24 v13, 1280, v13")
    a("v_lshl_add_u32 v13, v6, 3, v13")
    a("s_lshl_b32 s48, s13, 6")
    a("s_lshl_b32 s49, s40, 2")
    a("s_add_u32 s48, s48, s49")
    a("s_mul_i32 s48, s48, 1280")
    a("s_add_u32 s48, s48, s43")
    for dt in range(5):
        a("buffer_load_dwordx2 v[%d:%d], v13, s[28:31], s48 offen offset:%d" % (XNR + 2 * dt, XNR + 2 * dt + 1, dt * 32))
    a("v_lshlrev_b32 v14, 3, v6")
    for dt in range(5):
        a("buffer_load_dwordx2 v[%d:%d], v14, s[32:35], s43 offen offset:%d" % (DS + 2 * dt, DS + 2 * dt + 1, dt * 32))
    a("v_lshlrev_b32 v14, 3, v1")
    for dt in range(5):
        a("buffer_load_dwordx2 v[%d:%d], v14, s[36:39], 0 offen offset:%d" % (GT + 2 * dt, GT + 2 * dt + 1, dt * 512))
    a("v_mul_u32_u24 v15, 2560, v7")
    a("v_lshl_add_u32 v15, v6, 4, v15")
    a("s_lshl_b32 s50, s42, 1")
    a("v_lshlrev_b32 v11, 4, v1")
    a("v_lshrrev_b32 v12, 2, v7")
    a("v_and_b32 v13, 3, v7")
    a("v_lshl_add_u32 v14, v6, 3, v12")
    a("v_lshlrev_b32 v14, 7, v14")
    a("v_lshl_add_u32 v14, v13, 3, v14")
    a("v_lshrrev_b32 v12, 1, v12")
    a("v_and_b32 v13, 1, v6")
    a("v_lshl_add_u32 v12, v13, 1, v12")
    a("v_xor_b32 v13, s40, v12")
    a("v_lshl_add_u32 v16, v13, 5, v14")
    a("v_xor_b32 v17, 32, v16")
    a("s_mul_i32 s41, s19, %d" % SUB)
    a("s_add_u32 s48, s41, 8192")
    for sl in range(NS):
        a("s_add_u32 s49, s41, %d" % (sl * SLOT23))
        a("v_add_u32 v%d, s49, v16" % (ADR + 4 * sl))
        a("v_add_u32 v%d, s49, v17" % (ADR + 4 * sl + 1))
        a("s_add_u32 s49, s48, %d" % (sl * SLOT23))
        a("v_add_u32 v%d, s49, v8" % (ADR + 4 * sl + 2))
        a("v_add_u32 v%d, s49, v9" % (ADR + 4 * sl + 3))

    def reads(s, sub, st):
        sl = s % NS
        b = FR + 28 * st
        out = []
        order = [("D", 0), ("T", 0), ("T", 1), ("D", 1), ("D", 2), ("D", 3), ("D", 4)]
        for k, i in order:
            if k == "T":
                out.append("ds_read_b64_tr_b16 v[%d:%d], v%d offset:%d" % (b + 4 * i, b + 4 * i + 1, ADR + 4 * sl + i, sub * 4096))
                out.append("ds_read_b64_tr_b16 v[%d:%d], v%d offset:%d" % (b + 4 * i + 2, b + 4 * i + 3, ADR + 4 * sl + i, sub * 4096 + 512))
            else:
                out.append("ds_read_b128 v[%d:%d], v%d offset:%d" % (b + 8 + 4 * i, b + 11 + 4 * i, ADR + 4 * sl + 2 + sub, i * 2048))
        return out

    def mfmas(st, first):
        b = FR + 28 * st
        out = []
        for dt in range(5):
            for t2 in range(2):
                d = ACC + (t2 * 5 + dt) * 4
                c = "0" if first else "v[%d:%d]" % (d, d + 3)
                out.append("v_mfma_f32_16x16x32_bf16 v[%d:%d], v[%d:%d], v[%d:%d], %s" % (
                    d, d + 3, b + 8 + 4 * dt, b + 11 + 4 * dt, b + 4 * t2, b + 4 * t2 + 3, c))
        return out
    compute_loop(a, S, reads, mfmas, st)
    st()
    exchange(a, ACC, 11)
    st()
    a("s_waitcnt vmcnt(0)")
    a("s_mov_b32 s40, 0xffff0000")
    T0, T1 = 60, 84
    for i in range(10):
        a("v_lshlrev_b32 v%d, 16, v%d" % (T0 + 2 * i, XNR + i))
        a("v_and_b32 v%d, s40, v%d" % (T0 + 2 * i + 1, XNR + i))
        a("v_lshlrev_b32 v%d, 16, v%d" % (T1 + 2 * i, DS + i))
        a("v_and_b32 v%d, s40, v%d" % (T1 + 2 * i + 1, DS + i))
    for i in range(20):
        a("v_mul_f32 v%d, v%d, v%d" % (T0 + i, T0 + i, T1 + i))
    for i in range(10):
        a("v_cvt_pk_bf16_f32 v%d, v%d, v%d" % (XNR + i, T0 + 2 * i, T0 + 2 * i + 1))
    for i in range(10):
        a("v_lshlrev_b32 v%d, 16, v%d" % (T0 + 2 * i, XNR + i))
        a("v_and_b32 v%d, s40, v%d" % (T0 + 2 * i + 1, XNR + i))
    for i in range(20):
        a("v_fma_f32 v%d, 2.0, v%d, v%d" % (ACC + i, ACC + i, T0 + i))
    for i in range(10):
        a("v_lshlrev_b32 v%d, 16, v%d" % (T0 + 2 * i, GT + i))
        a("v_and_b32 v%d, s40, v%d" % (T0 + 2 * i + 1, GT + i))
        a("v_lshlrev_b32 v%d, 16, v%d" % (T1 + 2 * i, XR + i))
        a("v_and_b32 v%d, s40, v%d" % (T1 + 2 * i + 1, XR + i))
    for i in range(20):
        a("v_mul_f32 v%d, v%d, v%d" % (ACC + i, ACC + i, T0 + i))
    for i in range(20):
        a("v_add_f32 v%d, v%d, v%d" % (ACC + i, ACC + i, T1 + i))
    for dt in range(5):
        a("buffer_store_dwordx4 v[%d:%d], v15, s[44:47], s50 offen offset:%d" % (ACC + 4 * dt, ACC + 4 * dt + 3, dt * 64))
    st.flush()
    a("s_endpgm")

    a.label(Lld)
    a("s_mul_i32 s40, s13, %d" % (1280 * 128))
    a("s_add_u32 s40, s40, %d" % WS_HT)
    srd_off(a, 24, 10, 11, "s40", 1280 * 128)
    a("s_mul_i32 s40, s14, %d" % (80 * 1280))
    srd_off(a, 28, 4, 5, "s40", 80 * 1280)
    srd_off(a, 32, 6, 7, "s40", 80 * 1280)
    a("v_mul_u32_u24 v5, 1280, v2")
    a("v_lshl_add_u32 v5, v4, 4, v5")
    a("v_and_b32 v10, 1, v6")
    a("s_lshl_b32 s40, s18, 1")
    a("v_or_b32 v10, s40, v10")
    a("v_lshrrev_b32 v11, 1, v3")
    a("v_xor_b32 v10, v10, v11")
    a("v_lshlrev_b32 v10, 5, v10")
    a("v_lshl_add_u32 v10, v2, 7, v10")
    a("v_and_b32 v11, 1, v1")
    a("v_lshl_add_u32 v10, v11, 4, v10")
    a("s_lshl_b32 s41, s19, 13")
    a("s_lshl_b32 s42, s18, 10")
    a("s_add_u32 s41, s41, s42")
    a("s_mul_i32 s42, s18, %d" % (8 * 1280))
    a("s_lshl_b32 s43, s19, 7")
    a("s_add_u32 s42, s42, s43")
    a("s_mul_i32 s43, s19, %d" % SUB)
    a("s_lshl_b32 s44, s18, 10")
    a("s_add_u32 s43, s43, s44")

    def dma(s):
        sl = s % NS
        for i in range(4):
            a("s_add_u32 m0, s43, %d" % (sl * SLOT23 + i * 2048))
            a("s_add_u32 s44, s41, %d" % (i * 2048 + s * 128 * 128))
            a("buffer_load_dwordx4 v10, s[24:27], s44 offen lds")
        sr = 28 if s < 5 else 32
        for i in range(5):
            a("s_add_u32 m0, s43, %d" % (sl * SLOT23 + 8192 + i * 2048))
            a("s_add_u32 s44, s42, %d" % (i * 16 * 1280 + (s % 5) * 256))
            a("buffer_load_dwordx4 v5, s[%d:%d], s44 offen lds" % (sr, sr + 3))
    st.n = n0
    loader_loop(a, S, SLOT23, dma, 9, st)
    a("s_barrier")
    st.flush()
    a.label(Lend)
    a("s_endpgm")
    return name, 256
```

```python
import sys, os, math
from gen import Asm, srd, srd_off, kernel_header, kernel_desc, fh, KA, LOG2E, DPP8, NAME
import gen

WS_XN = 0x0000000
WS_W1T = 0x0300000
WS_W2T = 0x0500000
WS_TAB = 0x0700000
WS_FLG = 0x0780000
WS_H1 = 0x0800000
WS_ET = 0x0F00000
WS_HT = 0x2000000
WS_DBG = 0x3000000

STAMP = int(os.environ.get("STAMP", "0"))
NS = 4
WPRE = int(os.environ.get("WPRE", "1"))
SLOT1 = 38912
SUB = 18432
SLOT23 = 36864
HAND = 147456
SC = " sc1"


class Stamper:
    def __init__(self, a):
        self.a = a
        self.n = 0

    def __call__(self, real=False):
        if not STAMP:
            return
        a = self.a
        assert self.n < 64
        if self.n == 0 and not real:
            a("v_mov_b32 v255, 0")
            self(True)
        a("s_memrealtime s[100:101]" if real else "s_memtime s[100:101]")
        a("s_waitcnt lgkmcnt(0)")
        a("v_writelane_b32 v255, s100, %d" % self.n)
        self.n += 1

    def flush(self):
        if not STAMP:
            return
        a = self.a
        self()
        self(True)
        a("s_mov_b64 exec, -1")
        a("s_lshl_b32 s100, s2, 3")
        a("s_add_u32 s100, s100, s12")
        a("s_lshl_b32 s100, s100, 8")
        a("s_add_u32 s100, s100, 0x%x" % (WS_DBG + 0x100000))
        srd_off(a, 96, 10, 11, "s100", 256)
        a("v_and_b32 v254, 63, v0")
        a("v_lshlrev_b32 v254, 2, v254")
        a("buffer_store_dword v255, v254, s[96:99], 0 offen")


class VM:
    def __init__(self, a):
        self.a = a
        self.q = []

    def issue(self, tag, n):
        self.q.append((tag, n))

    def wait(self, tag):
        idx = max(i for i, (t, n) in enumerate(self.q) if t == tag) if any(t == tag for t, n in self.q) else None
        if idx is None:
            return
        rest = sum(n for t, n in self.q[idx + 1:])
        assert rest <= 63, rest
        self.a("s_waitcnt vmcnt(%d)" % rest)
        self.q = self.q[idx + 1:]

    def drain(self):
        self.a("s_waitcnt vmcnt(0)")
        self.q = []


def interleave(ms, rs):
    out = []
    ri = 0
    for m in ms:
        out.append(m)
        if ri < len(rs):
            out.append(rs[ri])
            ri += 1
    return out + rs[ri:]


def compute_loop(a, S, reads, mfmas, st, hooks=None, nsub=2):
    st()
    a("s_barrier")
    st()
    for r in reads(0, 0, 0):
        a(r)
    for s in range(S):
        for sub in range(nsub):
            cur = sub & 1
            a("s_waitcnt lgkmcnt(0)")
            if sub == nsub - 1:
                a("s_barrier")
                if STAMP and (s % 2 == 1 or S <= 10):
                    st()
                rs = reads(s + 1, 0, 1 - cur) if s + 1 < S else []
            else:
                rs = reads(s, sub + 1, 1 - cur)
            for x in interleave(mfmas(s, sub, cur), rs):
                a(x)
        if hooks and s in hooks:
            hooks[s]()


def poll(a, vreg, vzero, sflg, soff, check, lbl, slp=4):
    Lp = a.newlabel(lbl + "_poll")
    Ld = a.newlabel(lbl + "_done")
    a("s_mov_b32 s31, 0x100000")
    a.label(Lp)
    a("buffer_load_dword v%d, v%d, s[%d:%d], %s offen sc1" % (vreg, vzero, sflg, sflg + 3, soff))
    a("s_waitcnt vmcnt(0)")
    a("v_readfirstlane_b32 s30, v%d" % vreg)
    a("s_nop 3")
    check(30)
    a("s_cbranch_scc1 %s" % Ld)
    a("s_sleep %d" % slp)
    a("s_sub_u32 s31, s31, 1")
    a("s_cmp_lg_u32 s31, 0")
    a("s_cbranch_scc1 %s" % Lp)
    a.label(Ld)


def lds_wait(a, vtmp, vaddr, off, val, lbl, slp=1):
    Lw = a.newlabel(lbl)
    Ld = a.newlabel(lbl + "d")
    a.label(Lw)
    a("ds_read_b32 v%d, v%d offset:%d" % (vtmp, vaddr, off))
    a("s_waitcnt lgkmcnt(0)")
    a("v_readfirstlane_b32 s30, v%d" % vtmp)
    a("s_nop 3")
    a("s_cmp_ge_u32 s30, %d" % val)
    a("s_cbranch_scc1 %s" % Ld)
    if slp:
        a("s_sleep %d" % slp)
    a("s_branch %s" % Lw)
    a.label(Ld)


def cmul_add(a, items):
    for (d, lr, li, s, ad) in items:
        if ad is None:
            a("v_mul_f32 v%d, v%d, v%d" % (d, lr, s))
        else:
            a("v_fma_f32 v%d, v%d, v%d, v%d" % (d, lr, s, ad))
    if len(items) < 2:
        a("s_nop 1")
    for (d, lr, li, s, ad) in items:
        a("v_fmac_f32_dpp v%d, v%d, v%d %s" % (d, s, li, DPP8))


def gelu_units(a, units, tmp, vK1, sK2, sLO, sHI, sMask):
    P = []
    for ui, (rA, rB, b, d) in enumerate(units):
        for h, r in enumerate((rA, rA + 2, rB, rB + 2)):
            P.append((r, b + 2 * h, d + h, tmp + 8 * ui + 2 * h))
    for (r, b, d, t) in P:
        a("v_cvt_pk_bf16_f32 v%d, v%d, v%d" % (d, r, r + 1))
    for (r, b, d, t) in P:
        a("v_dot2_f32_bf16 v%d, v%d, s%d, v%d" % (r, d, sLO, b))
        a("v_dot2_f32_bf16 v%d, v%d, s%d, v%d" % (r + 1, d, sHI, b + 1))
    a("s_nop 1")
    for (r, b, d, t) in P:
        a("v_cvt_pk_bf16_f32 v%d, v%d, v%d" % (d, r, r + 1))
    for (r, b, d, t) in P:
        a("v_lshlrev_b32 v%d, 16, v%d" % (r, d))
        a("v_and_b32 v%d, s%d, v%d" % (r + 1, sMask, d))
    for (r, b, d, t) in P:
        a("v_pk_mul_f32 v[%d:%d], v[%d:%d], v[%d:%d]" % (t, t + 1, r, r + 1, r, r + 1))
    for (r, b, d, t) in P:
        a("v_pk_fma_f32 v[%d:%d], v[%d:%d], s[%d:%d], v[%d:%d]" % (t, t + 1, t, t + 1, sK2, sK2 + 1, vK1, vK1 + 1))
    for (r, b, d, t) in P:
        a("v_pk_mul_f32 v[%d:%d], v[%d:%d], v[%d:%d]" % (t, t + 1, t, t + 1, r, r + 1))
    for (r, b, d, t) in P:
        a("v_exp_f32 v%d, v%d" % (t, t))
        a("v_exp_f32 v%d, v%d" % (t + 1, t + 1))
    a("s_nop 0")
    for (r, b, d, t) in P:
        a("v_pk_add_f32 v[%d:%d], v[%d:%d], 1.0" % (t, t + 1, t, t + 1))
    for (r, b, d, t) in P:
        a("v_rcp_f32 v%d, v%d" % (t, t))
        a("v_rcp_f32 v%d, v%d" % (t + 1, t + 1))
    a("s_nop 0")
    for (r, b, d, t) in P:
        a("v_pk_mul_f32 v[%d:%d], v[%d:%d], v[%d:%d]" % (r, r + 1, r, r + 1, t, t + 1))
    for (r, b, d, t) in P:
        a("v_cvt_pk_bf16_f32 v%d, v%d, v%d" % (d, r, r + 1))


P_X, P_BRE, P_BIM, P_CRE, P_CIM, P_DSK, P_B1, P_B2, P_OUT = 32, 38, 40, 42, 44, 48, 54, 58, 60


def gen_mega(a):
    name = "mega_kernel"
    kernel_header(a, name)
    st = Stamper(a)
    Lend = a.newlabel("M_end")
    Lffn = a.newlabel("M_ffn")
    Lld = a.newlabel("M_ld")
    Lp23 = a.newlabel("M_p23")
    a("s_cmp_ge_u32 s2, 256")
    a("s_cbranch_scc1 %s" % Lend)
    a("s_load_dwordx16 s[32:47], s[0:1], 0")
    a("s_load_dwordx16 s[48:63], s[0:1], 64")
    a("s_load_dwordx2 s[10:11], s[0:1], 128")
    a("v_lshrrev_b32 v2, 6, v0")
    a("v_and_b32 v1, 63, v0")
    a("s_nop 0")
    a("v_readfirstlane_b32 s12, v2")
    a("s_lshr_b32 s20, s2, 3")
    a("s_and_b32 s21, s20, 7")
    a("s_lshr_b32 s20, s20, 3")
    a("s_and_b32 s13, s2, 1")
    a("s_lshl_b32 s13, s13, 3")
    a("s_add_u32 s13, s13, s21")
    a("s_lshr_b32 s14, s2, 1")
    a("s_and_b32 s14, s14, 3")
    a("s_lshl_b32 s14, s14, 2")
    a("s_add_u32 s14, s14, s20")
    a("s_and_b32 s15, s2, 3")
    a("s_lshl_b32 s15, s15, 3")
    a("s_add_u32 s15, s15, s21")
    a("s_lshr_b32 s16, s2, 2")
    a("s_and_b32 s16, s16, 1")
    a("s_lshl_b32 s16, s16, 2")
    a("s_add_u32 s16, s16, s20")
    a("s_and_b32 s17, s12, 3")
    a("s_and_b32 s18, s17, 1")
    a("s_lshr_b32 s19, s17, 1")
    a("v_lshrrev_b32 v2, 3, v1")
    a("v_and_b32 v3, 7, v1")
    a("v_lshrrev_b32 v6, 4, v1")
    a("v_and_b32 v7, 15, v1")
    a("v_xor_b32 v4, v6, v3")
    a("v_lshlrev_b32 v8, 7, v7")
    a("v_lshl_add_u32 v8, v4, 4, v8")
    a("v_xor_b32 v9, 64, v8")
    a("v_xor_b32 v4, v2, v3")
    a("s_waitcnt lgkmcnt(0)")
    st()
    n0 = st.n
    a("s_cmp_ge_u32 s12, 4")
    a("s_cbranch_scc1 %s" % Lld)
    a("s_cmp_ge_u32 s12, 2")
    a("s_cbranch_scc1 %s" % Lffn)

    ADR = 236

    def p1_addr(regoff):
        a("s_lshl_b32 s20, s18, 13")
        for sl in range(NS):
            a("s_add_u32 s21, s20, %d" % (sl * SLOT1))
            a("v_add_u32 v%d, s21, v8" % (ADR + 4 * sl))
            a("v_add_u32 v%d, s21, v9" % (ADR + 4 * sl + 1))
            a("v_add_u32 v%d, %d, v8" % (ADR + 4 * sl + 2, sl * SLOT1 + regoff))
            a("v_add_u32 v%d, %d, v9" % (ADR + 4 * sl + 3, sl * SLOT1 + regoff))

    ACC, FR, CON = 16, 96, 168
    p1_addr(16384)
    srd_off(a, 64, 10, 11, WS_TAB, 1280 * 64)
    a("s_mul_i32 s22, s14, 10240")
    a("s_add_u32 s22, s22, %d" % WS_ET)
    srd_off(a, 68, 10, 11, "s22", 10240)
    srd_off(a, 28, 10, 11, WS_FLG, 20480)
    a("s_lshl_b32 s22, s13, 1")
    a("s_add_u32 s22, s22, s18")
    a("s_mul_i32 s23, s22, %d" % (1280 * 128))
    a("s_add_u32 s23, s23, %d" % WS_HT)
    srd_off(a, 72, 10, 11, "s23", 1280 * 128)
    a("s_mul_i32 s23, s14, 5")
    a("v_lshlrev_b32 v10, 6, v7")

    def ssm_const_loads():
        a("s_lshl_b32 s24, s23, 10")
        for c in range(5):
            if c == 4:
                a("s_add_u32 s24, s24, 4096")
            for k in range(3):
                a("buffer_load_dwordx4 v[%d:%d], v10, s[64:67], s24 offen offset:%d" % (
                    CON + 12 * c + 4 * k, CON + 12 * c + 4 * k + 3, (c % 4) * 1024 + k * 16))

    def reads_s(s, sub, sset):
        sl = s % NS
        b = FR + 36 * sset
        out = []
        for k, i in [("N", 0), ("T", 0), ("T", 1), ("T", 2), ("T", 3), ("N", 1), ("N", 2), ("N", 3), ("N", 4)]:
            if k == "T":
                out.append("ds_read_b128 v[%d:%d], v%d offset:%d" % (b + 4 * i, b + 4 * i + 3, ADR + 4 * sl + sub, i * 2048))
            else:
                out.append("ds_read_b128 v[%d:%d], v%d offset:%d" % (b + 16 + 4 * i, b + 19 + 4 * i, ADR + 4 * sl + 2 + sub, i * 2048))
        return out

    def mfmas_s(s, sub, sset):
        b = FR + 36 * sset
        out = []
        for c in range(5):
            for j in range(4):
                d = ACC + (c * 4 + j) * 4
                cc = "0" if (s == 0 and sub == 0) else "v[%d:%d]" % (d, d + 3)
                out.append("v_mfma_f32_16x16x32_bf16 v[%d:%d], v[%d:%d], v[%d:%d], %s" % (
                    d, d + 3, b + 4 * j, b + 4 * j + 3, b + 16 + 4 * c, b + 19 + 4 * c, cc))
        return out
    ssm_const_loads()
    compute_loop(a, 10, reads_s, mfmas_s, st)
    a("s_setprio 2")
    st()
    a("s_waitcnt vmcnt(0)")
    a("s_nop 7")
    K = lambda c, k: CON + 12 * c + k
    TMP = 96
    for i in range(16):
        for c in range(5):
            a("v_mul_f32 v%d, v%d, v%d" % (TMP + c, K(c, 2), ACC + c * 16 + i))
        for c in range(5):
            a("v_fmac_f32_dpp v%d, v%d, v%d %s" % (TMP + c, ACC + c * 16 + i, K(c, 3), DPP8))
        if i == 0:
            for c in range(5):
                a("v_mov_b32 v%d, v%d" % (ACC + c * 16, TMP + c))
        else:
            for c in range(5):
                u = ACC + c * 16 + i
                a("v_fma_f32 v%d, v%d, v%d, v%d" % (u, K(c, 0), u - 1, TMP + c))
            for c in range(5):
                u = ACC + c * 16 + i
                a("v_fmac_f32_dpp v%d, v%d, v%d %s" % (u, u - 1, K(c, 1), DPP8))
    EQ, EH = 104, 124
    a("v_lshlrev_b32 v11, 2, v7")
    for q in range(4):
        a("v_add_u32 v%d, %d, v11" % (12 + q, q * 64))
    for q in range(4):
        for c in range(5):
            a("ds_bpermute_b32 v%d, v%d, v%d" % (EQ + c * 4 + q, 12 + q, ACC + c * 16 + 15))
    a("s_waitcnt lgkmcnt(0)")
    cmul_add(a, [(EH + c * 4 + 1, K(c, 4), K(c, 5), EQ + c * 4, EQ + c * 4 + 1) for c in range(5)])
    for q in range(2, 4):
        cmul_add(a, [(EH + c * 4 + q, K(c, 4), K(c, 5), EH + c * 4 + q - 1, EQ + c * 4 + q) for c in range(5)])
    a("s_mul_i32 s25, s22, 320")
    a("v_cmp_gt_u32 vcc, 16, v1")
    a("s_and_saveexec_b64 s[26:27], vcc")
    for c in range(5):
        a("buffer_store_dword v%d, v11, s[68:71], s25 offen offset:%d sc1" % (EH + c * 4 + 3, c * 64))
    a("s_waitcnt vmcnt(0)")
    a("v_cmp_eq_u32 vcc, 0, v1")
    a("s_and_b64 exec, exec, vcc")
    a("s_lshl_b32 s20, 1, s22")
    a("v_mov_b32 v228, s20")
    a("v_mov_b32 v229, 0")
    a("s_lshl_b32 s21, s14, 8")
    a("s_add_u32 s21, s21, 8192")
    a("buffer_atomic_or v228, v229, s[28:31], s21 offen")
    a("s_mov_b64 exec, -1")
    st()
    a("v_mov_b32 v229, 0")
    a("s_sub_u32 s20, s20, 1")
    srd_off(a, 76, 10, 11, WS_FLG, 20480)

    def chkE(sr):
        a("s_and_b32 s%d, s%d, s20" % (sr, sr))
        a("s_cmp_eq_u32 s%d, s20" % sr)
    poll(a, 228, 229, 76, "s21", chkE, "M_e")
    st()
    EV = 124
    a("s_sub_u32 s25, s22, 32")
    a("v_lshl_add_u32 v230, v6, 3, s25")
    a("s_movk_i32 s25, 320")
    a("v_mul_lo_u32 v230, v230, s25")
    a("v_add_u32 v230, v230, v11")
    for e in range(8):
        for c in range(5):
            a("buffer_load_dword v%d, v230, s[68:71], 0 offen offset:%d sc1" % (EV + 8 * c + e, c * 64))
        if e < 7:
            a("v_add_u32 v230, 320, v230")
    a("v_lshrrev_b32 v10, 3, v7")
    a("v_mul_u32_u24 v11, 640, v10")
    a("v_add_u32 v11, v11, v3")
    a("v_lshlrev_b32 v11, 6, v11")
    a("v_lshl_add_u32 v11, v6, 4, v11")
    a("v_mul_u32_u24 v10, 0x8000, v10")
    a("v_lshl_add_u32 v10, v10, 16, v10")
    a("v_cmp_eq_u32 s[80:81], 1, v6")
    a("v_cmp_eq_u32 s[82:83], 2, v6")
    a("v_cmp_eq_u32 s[84:85], 3, v6")
    a("s_waitcnt vmcnt(0)")
    st()
    for e in range(1, 8):
        cmul_add(a, [(EV + 8 * c + e, K(c, 6), K(c, 7), EV + 8 * c + e - 1, EV + 8 * c + e) for c in range(5)])
    PQ = 228
    PQ = 96
    a("s_nop 1")
    for c in range(5):
        for q in range(4):
            a("ds_bpermute_b32 v%d, v%d, v%d" % (EV + 8 * c + q, 12 + q, EV + 8 * c + 7))
    a("s_waitcnt lgkmcnt(0)")
    for q in range(1, 4):
        cmul_add(a, [(EV + 8 * c + q, K(c, 8), K(c, 9), EV + 8 * c + q - 1, EV + 8 * c + q) for c in range(5)])
    for q in range(3):
        cmul_add(a, [(EV + 8 * c + 4 + q, K(c, 4), K(c, 5), EV + 8 * c + 3 + q, EQ + 4 * c + q) for c in range(5)])
    for c in range(5):
        a("v_cndmask_b32 v%d, v%d, v%d, s[80:81]" % (EV + 8 * c + 7, EV + 8 * c + 3, EV + 8 * c + 4))
    for c in range(5):
        a("v_cndmask_b32 v%d, v%d, v%d, s[82:83]" % (EV + 8 * c + 7, EV + 8 * c + 7, EV + 8 * c + 5))
    for c in range(5):
        a("v_cndmask_b32 v%d, v%d, v%d, s[84:85]" % (EV + 8 * c + 7, EV + 8 * c + 7, EV + 8 * c + 6))
    for i in range(16):
        src = 7 if i == 0 else ((i - 1) & 1)
        cmul_add(a, [(EV + 8 * c + (i & 1), K(c, 0), K(c, 1), EV + 8 * c + src, None) for c in range(5)])
        if i & 1:
            for c in range(5):
                u = ACC + c * 16 + i - 1
                a("v_pk_add_f32 v[%d:%d], v[%d:%d], v[%d:%d]" % (u, u + 1, u, u + 1, EV + 8 * c, EV + 8 * c + 1))
    PK = 96
    for c in range(5):
        for j in range(8):
            a("v_cvt_pk_bf16_f32 v%d, v%d, v%d" % (PK + 8 * c + j, ACC + c * 16 + 2 * j, ACC + c * 16 + 2 * j + 1))
    for c in range(5):
        for j in range(8):
            a("v_xor_b32 v%d, v10, v%d" % (PK + 8 * c + j, PK + 8 * c + j))
        a("s_add_u32 s20, s23, %d" % c)
        a("s_lshl_b32 s20, s20, 9")
        a("s_add_u32 s21, s20, 81920")
        a("buffer_store_dwordx4 v[%d:%d], v11, s[72:75], s20 offen sc1" % (PK + 8 * c, PK + 8 * c + 3))
        a("buffer_store_dwordx4 v[%d:%d], v11, s[72:75], s21 offen sc1" % (PK + 8 * c + 4, PK + 8 * c + 7))
    a("s_lshl_b32 s29, s22, 8")
    a("s_add_u32 s29, s29, 12288")
    a("s_setprio 0")
    nssm = st.n
    a("s_branch %s" % Lp23)

    BIAS = 200

    def signal(vd, vz, sflg, soff, done=False):
        a("v_cmp_eq_u32 vcc, 0, v1")
        a("s_and_saveexec_b64 s[30:31], vcc")
        a("v_mov_b32 v%d, 1" % vd)
        a("v_mov_b32 v%d, 0" % vz)
        a("buffer_atomic_add v%d, v%d, s[%d:%d], %s offen" % (vd, vz, sflg, sflg + 3, soff))
        if done:
            a("v_mov_b32 v%d, %d" % (vz, HAND + 12288 + 8))
            a("ds_add_u32 v%d, v%d" % (vz, vd))
        a("s_mov_b64 exec, -1")

    def ffn_setup():
        a("s_lshl_b32 s24, s13, 1")
        a("s_add_u32 s24, s24, s18")
        a("s_mul_i32 s24, s24, 196608")
        a("s_mul_i32 s25, s14, 12288")
        a("s_add_u32 s24, s24, s25")
        a("s_add_u32 s24, s24, %d" % WS_H1)
        srd_off(a, 20, 10, 11, "s24", 12288)
        srd(a, 24, P_B1, P_B1 + 1, 3072)
        a("s_mul_i32 s28, s14, 192")
        a("v_lshlrev_b32 v12, 4, v6")
        for aa in range(3):
            a("buffer_load_dwordx4 v[%d:%d], v12, s[24:27], s28 offen offset:%d" % (224 + 4 * aa, 227 + 4 * aa, 64 * aa))
        a("v_lshrrev_b32 v13, 2, v7")
        a("v_and_b32 v12, 3, v7")
        a("v_lshl_add_u32 v13, v13, 4, v12")
        a("v_lshlrev_b32 v13, 6, v13")
        a("v_lshl_add_u32 v13, v6, 4, v13")
        a("v_lshlrev_b32 v14, 4, v1")
        a("s_mul_i32 s28, s18, 6144")
        a("s_add_u32 s28, s28, %d" % HAND)
        a("v_add_u32 v14, s28, v14")
        a("s_lshl_b32 s28, s18, 2")
        a("s_add_u32 s28, s28, %d" % (HAND + 12288))
        a("v_mov_b32 v15, s28")

    def ffn_consts():
        a("s_mov_b32 s24, 0xffff0000")
        a("s_mov_b32 s25, 0x00003f80")
        a("s_mov_b32 s26, %s" % fh(-2 * math.sqrt(2 / math.pi) * LOG2E * 0.044715))
        a("s_mov_b32 s27, s26")
        a("s_mov_b32 s28, 0x3f800000")
        a("v_mov_b32 v196, %s" % fh(-2 * math.sqrt(2 / math.pi) * LOG2E))
        a("v_mov_b32 v197, v196")
        for i in range(12):
            a("v_lshlrev_b32 v%d, 16, v%d" % (BIAS + 2 * i, 224 + i))
            a("v_and_b32 v%d, s24, v%d" % (BIAS + 2 * i + 1, 224 + i))

    def ffn_epi(acc0, tts):
        n = 0
        for ti, tt in enumerate(tts):
            units = []
            for aa in range(3):
                r = acc0 + (ti * 6 + 2 * aa) * 4
                units.append((r, r + 4, BIAS + aa * 8, 112 + (ti * 3 + aa) * 4))
            gelu_units(a, units, 160, 196, 26, 25, 28, 24)
            for aa in range(3):
                d = 112 + (ti * 3 + aa) * 4
                a("s_mov_b32 s29, %d" % (aa * 4096))
                a("buffer_store_dwordx4 v[%d:%d], v13, s[20:23], s29 offen offset:%d sc1" % (d, d + 3, tt * 256))
                n += 1
        return n

    a.label(Lffn)
    st.n = n0
    ACC, FR = 16, 112
    p1_addr(26624)

    def reads_f(s, sub, sset):
        sl = s % NS
        b = FR + 40 * sset
        out = []
        for k, i in [("N", 0), ("T", 0), ("T", 1), ("T", 2), ("T", 3), ("N", 1), ("N", 2), ("N", 3), ("N", 4), ("N", 5)]:
            if k == "T":
                out.append("ds_read_b128 v[%d:%d], v%d offset:%d" % (b + 4 * i, b + 4 * i + 3, ADR + 4 * sl + sub, i * 2048))
            else:
                out.append("ds_read_b128 v[%d:%d], v%d offset:%d" % (b + 16 + 4 * i, b + 19 + 4 * i, ADR + 4 * sl + 2 + sub, i * 2048))
        return out

    def mfmas_f(s, sub, sset):
        b = FR + 40 * sset
        out = []
        for nt in range(6):
            for tt in range(4):
                d = ACC + (tt * 6 + nt) * 4
                c = "0" if (s == 0 and sub == 0) else "v[%d:%d]" % (d, d + 3)
                out.append("v_mfma_f32_16x16x32_bf16 v[%d:%d], v[%d:%d], v[%d:%d], %s" % (
                    d, d + 3, b + 16 + 4 * nt, b + 19 + 4 * nt, b + 4 * tt, b + 4 * tt + 3, c))
        return out
    ffn_setup()
    a("v_mov_b32 v12, %d" % (HAND + 12288))
    for i in range(4):
        a("v_mov_b32 v%d, 0" % (16 + i))
    a("ds_write_b128 v12, v[16:19]")
    a("s_waitcnt vmcnt(0)")
    ffn_consts()
    a("s_waitcnt lgkmcnt(0)")
    compute_loop(a, 10, reads_f, mfmas_f, st)
    a("s_nop 7")
    a("v_mov_b32 v12, 1")
    for i in range(6):
        a("ds_write_b128 v14, v[%d:%d] offset:%d" % (ACC + 72 + 4 * i, ACC + 75 + 4 * i, i * 1024))
    a("s_waitcnt lgkmcnt(0)")
    a("ds_write_b32 v15, v12")
    st()
    ffn_epi(ACC, [0, 1, 2])
    srd_off(a, 76, 10, 11, WS_FLG, 20480)
    a("s_lshl_b32 s29, s13, 1")
    a("s_add_u32 s29, s29, s18")
    a("s_lshl_b32 s29, s29, 8")
    a("s_waitcnt vmcnt(0)")
    st()
    signal(228, 229, 76, "s29", True)
    while st.n < nssm:
        st()
    Lp23b = a.newlabel("M_p23b")
    a("s_mov_b32 s29, -1")

    a.label(Lp23)
    ACC2, ACC3, FR = 16, 36, 56
    AD2, AD3 = 152, 168
    XR, XNR, DS, B2 = 172, 182, 192, 202
    T0, T1, PK = 212, 232, 192
    a("s_lshl_b32 s20, s17, 11")
    for sl in range(NS):
        a("s_add_u32 s21, s20, %d" % (sl * SLOT23))
        a("v_add_u32 v%d, s21, v8" % (AD2 + 4 * sl))
        a("v_add_u32 v%d, s21, v9" % (AD2 + 4 * sl + 1))
        a("v_add_u32 v%d, %d, v8" % (AD2 + 4 * sl + 2, sl * SLOT23 + 8192))
        a("v_add_u32 v%d, %d, v9" % (AD2 + 4 * sl + 3, sl * SLOT23 + 8192))
    a("v_lshrrev_b32 v12, 2, v7")
    a("v_and_b32 v13, 3, v7")
    a("v_lshl_add_u32 v14, v6, 3, v12")
    a("v_lshlrev_b32 v14, 7, v14")
    a("v_lshl_add_u32 v14, v13, 3, v14")
    a("v_lshrrev_b32 v12, 1, v12")
    a("v_and_b32 v13, 1, v6")
    a("v_lshl_add_u32 v12, v13, 1, v12")
    a("v_xor_b32 v13, s17, v12")
    a("v_lshl_add_u32 v12, v13, 5, v14")
    for sl in range(NS):
        a("v_add_u32 v%d, %d, v12" % (AD3 + sl, sl * SLOT23))
    a("s_lshl_b32 s21, s15, 6")
    a("s_lshl_b32 s22, s17, 4")
    a("s_add_u32 s21, s21, s22")
    a("s_mul_i32 s22, s21, 1280")
    a("s_mul_i32 s23, s16, 160")
    a("s_add_u32 s22, s22, s23")
    srd(a, 64, P_X, P_X + 1, 2048 * 1280)
    srd_off(a, 68, 10, 11, WS_XN, 2048 * 1280)
    srd(a, 72, P_DSK, P_DSK + 1, 1280)
    srd(a, 84, P_B2, P_B2 + 1, 1280)
    srd(a, 80, P_OUT, P_OUT + 1, 2048 * 2560)
    a("v_mul_u32_u24 v10, 1280, v7")
    a("v_lshl_add_u32 v10, v6, 3, v10")
    a("v_lshrrev_b32 v13, 2, v7")
    a("v_and_b32 v14, 3, v7")
    a("v_lshl_add_u32 v13, v13, 4, v14")
    a("v_mul_u32_u24 v13, 1280, v13")
    a("v_lshl_add_u32 v13, v6, 3, v13")
    a("s_lshl_b32 s24, s15, 6")
    a("s_lshl_b32 s25, s17, 2")
    a("s_add_u32 s24, s24, s25")
    a("s_mul_i32 s24, s24, 1280")
    a("s_add_u32 s24, s24, s23")
    a("v_lshlrev_b32 v14, 3, v6")
    a("v_mul_u32_u24 v15, 2560, v7")
    a("v_lshl_add_u32 v15, v6, 4, v15")
    a("s_lshl_b32 s27, s22, 1")
    a("s_mov_b32 s20, 0xffff0000")
    a("s_mov_b32 s21, 0x00003f80")
    a("s_mov_b32 s26, 0x3f800000")
    a("s_mov_b32 s88, %s" % fh(-LOG2E))
    a("s_mov_b32 s89, s88")

    def ht_signal():
        Lsk = a.newlabel("M_nohts")
        a("s_cmp_eq_u32 s29, -1")
        a("s_cbranch_scc1 %s" % Lsk)
        a("s_waitcnt vmcnt(20)")
        signal(228, 229, 76, "s29")
        a.label(Lsk)

    def mk_loads(dt):
        def f():
            a("buffer_load_dwordx2 v[%d:%d], v14, s[84:87], s23 offen offset:%d" % (B2 + 2 * dt, B2 + 2 * dt + 1, dt * 32))
            a("buffer_load_dwordx2 v[%d:%d], v14, s[72:75], s23 offen offset:%d" % (DS + 2 * dt, DS + 2 * dt + 1, dt * 32))
            a("buffer_load_dwordx2 v[%d:%d], v10, s[64:67], s22 offen offset:%d" % (XR + 2 * dt, XR + 2 * dt + 1, dt * 32))
            a("buffer_load_dwordx2 v[%d:%d], v13, s[68:71], s24 offen offset:%d" % (XNR + 2 * dt, XNR + 2 * dt + 1, dt * 32))
        return f

    def h_sk():
        a("s_waitcnt vmcnt(0)")
        for i in range(10):
            a("v_lshlrev_b32 v%d, 16, v%d" % (T0 + 2 * i, XNR + i))
            a("v_and_b32 v%d, s20, v%d" % (T0 + 2 * i + 1, XNR + i))
            a("v_lshlrev_b32 v%d, 16, v%d" % (T1 + 2 * i, DS + i))
            a("v_and_b32 v%d, s20, v%d" % (T1 + 2 * i + 1, DS + i))
        for i in range(10):
            a("v_pk_mul_f32 v[%d:%d], v[%d:%d], v[%d:%d]" % (T0 + 2 * i, T0 + 2 * i + 1, T0 + 2 * i, T0 + 2 * i + 1, T1 + 2 * i, T1 + 2 * i + 1))
        for i in range(10):
            a("v_cvt_pk_bf16_f32 v%d, v%d, v%d" % (XNR + i, T0 + 2 * i, T0 + 2 * i + 1))
        for i in range(10):
            a("v_lshlrev_b32 v%d, 16, v%d" % (T1 + 2 * i, B2 + i))
            a("v_and_b32 v%d, s20, v%d" % (T1 + 2 * i + 1, B2 + i))

    def h_gate1():
        for i in range(10):
            a("v_cvt_pk_bf16_f32 v%d, v%d, v%d" % (PK + i, ACC2 + 2 * i, ACC2 + 2 * i + 1))
        for i in range(10):
            a("v_dot2_f32_bf16 v%d, v%d, s21, v%d" % (ACC2 + 2 * i, PK + i, T1 + 2 * i))
            a("v_dot2_f32_bf16 v%d, v%d, s26, v%d" % (ACC2 + 2 * i + 1, PK + i, T1 + 2 * i + 1))
        a("s_nop 1")
        for i in range(10):
            a("v_cvt_pk_bf16_f32 v%d, v%d, v%d" % (PK + i, ACC2 + 2 * i, ACC2 + 2 * i + 1))
        for i in range(10):
            a("v_lshlrev_b32 v%d, 16, v%d" % (ACC2 + 2 * i, PK + i))
            a("v_and_b32 v%d, s20, v%d" % (ACC2 + 2 * i + 1, PK + i))
        for i in range(10):
            a("v_pk_mul_f32 v[%d:%d], v[%d:%d], s[88:89]" % (T0 + 2 * i, T0 + 2 * i + 1, ACC2 + 2 * i, ACC2 + 2 * i + 1))

    def h_gate2():
        for i in range(20):
            a("v_exp_f32 v%d, v%d" % (T0 + i, T0 + i))
        a("s_nop 0")
        for i in range(10):
            a("v_pk_add_f32 v[%d:%d], v[%d:%d], 1.0" % (T0 + 2 * i, T0 + 2 * i + 1, T0 + 2 * i, T0 + 2 * i + 1))
        for i in range(20):
            a("v_rcp_f32 v%d, v%d" % (T0 + i, T0 + i))
        a("s_nop 0")

    def h_gate3():
        for i in range(10):
            a("v_pk_mul_f32 v[%d:%d], v[%d:%d], v[%d:%d]" % (ACC2 + 2 * i, ACC2 + 2 * i + 1, ACC2 + 2 * i, ACC2 + 2 * i + 1, T0 + 2 * i, T0 + 2 * i + 1))
        for i in range(10):
            a("v_cvt_pk_bf16_f32 v%d, v%d, v%d" % (PK + i, ACC2 + 2 * i, ACC2 + 2 * i + 1))
        for i in range(10):
            a("v_lshlrev_b32 v%d, 16, v%d" % (T0 + 2 * i, PK + i))
            a("v_and_b32 v%d, s20, v%d" % (T0 + 2 * i + 1, PK + i))
            a("v_lshlrev_b32 v%d, 16, v%d" % (T1 + 2 * i, XR + i))
            a("v_and_b32 v%d, s20, v%d" % (T1 + 2 * i + 1, XR + i))
            a("v_lshlrev_b32 v%d, 16, v%d" % (ACC2 + 2 * i, XNR + i))
            a("v_and_b32 v%d, s20, v%d" % (ACC2 + 2 * i + 1, XNR + i))

    def reads23(s, sub, sset):
        sl = (s + 2) % NS
        so = sub * SUB
        out = []
        for ks in range(2):
            b = FR + 48 * sset + 24 * ks
            for k, i in [("D", 0), ("T", 0), ("D", 1), ("D", 2), ("D", 3), ("D", 4)]:
                if k == "T":
                    if s < 12:
                        out.append("ds_read_b128 v[%d:%d], v%d offset:%d" % (b, b + 3, AD2 + 4 * sl + ks, so))
                    else:
                        out.append("ds_read_b64_tr_b16 v[%d:%d], v%d offset:%d" % (b, b + 1, AD3 + sl, so + ks * 4096))
                        out.append("ds_read_b64_tr_b16 v[%d:%d], v%d offset:%d" % (b + 2, b + 3, AD3 + sl, so + ks * 4096 + 512))
                else:
                    out.append("ds_read_b128 v[%d:%d], v%d offset:%d" % (b + 4 + 4 * i, b + 7 + 4 * i, AD2 + 4 * sl + 2 + ks, so + i * 2048))
        return out

    def mfmas23(s, sub, sset):
        acc = ACC2 if s < 12 else ACC3
        out = []
        for ks in range(2):
            b = FR + 48 * sset + 24 * ks
            first = (s in (0, 12)) and sub == 0 and ks == 0
            for dt in range(5):
                d = acc + dt * 4
                c = "0" if first else "v[%d:%d]" % (d, d + 3)
                out.append("v_mfma_f32_16x16x32_bf16 v[%d:%d], v[%d:%d], v[%d:%d], %s" % (
                    d, d + 3, b + 4 + 4 * dt, b + 7 + 4 * dt, b, b + 3, c))
        return out
    hooks = {0: ht_signal, 11: h_sk, 13: h_gate1, 15: h_gate2, 17: h_gate3}
    for dt in range(5):
        mk_loads(dt)()
    compute_loop(a, 22, reads23, mfmas23, st, hooks, nsub=2)
    st()
    a("s_nop 7")
    for i in range(10):
        r = ACC3 + 2 * i
        a("v_pk_fma_f32 v[%d:%d], v[%d:%d], 2.0, v[%d:%d]" % (r, r + 1, r, r + 1, ACC2 + 2 * i, ACC2 + 2 * i + 1))
    for i in range(10):
        r = ACC3 + 2 * i
        a("v_pk_mul_f32 v[%d:%d], v[%d:%d], v[%d:%d]" % (r, r + 1, r, r + 1, T0 + 2 * i, T0 + 2 * i + 1))
    for i in range(10):
        r = ACC3 + 2 * i
        a("v_pk_add_f32 v[%d:%d], v[%d:%d], v[%d:%d]" % (r, r + 1, r, r + 1, T1 + 2 * i, T1 + 2 * i + 1))
    for dt in range(5):
        a("buffer_store_dwordx4 v[%d:%d], v15, s[80:83], s27 offen offset:%d" % (ACC3 + 4 * dt, ACC3 + 4 * dt + 3, dt * 64))
    st.flush()
    a("s_endpgm")

    a.label(Lld)
    a("s_mul_i32 s20, s13, %d" % (128 * 1280))
    a("s_add_u32 s20, s20, %d" % WS_XN)
    srd_off(a, 64, 10, 11, "s20", 128 * 1280)
    a("s_cmp_eq_u32 s18, 0")
    a("s_cselect_b32 s20, s%d, s%d" % (P_BRE, P_BIM))
    a("s_cselect_b32 s21, s%d, s%d" % (P_BRE + 1, P_BIM + 1))
    a("s_mul_i32 s22, s14, %d" % (40 * 1280))
    srd_off(a, 68, 20, 21, "s22", 40 * 1280)
    a("s_mul_i32 s20, s14, %d" % (96 * 1280))
    a("s_add_u32 s20, s20, %d" % WS_W1T)
    srd_off(a, 72, 10, 11, "s20", 96 * 1280)
    a("v_mul_u32_u24 v5, 1280, v2")
    a("v_lshl_add_u32 v5, v4, 4, v5")
    a("s_mul_i32 s3, s17, 10240")
    a("s_lshl_b32 s4, s17, 10")
    a("s_mul_i32 s5, s19, 10240")
    Lld2 = a.newlabel("M_ld2")
    a("s_cmp_ge_u32 s17, 2")
    a("s_cbranch_scc1 %s" % Lld2)

    def loader(helper):
        vm = VM(a)
        st.n = n0
        nC = 3 if helper else 2

        def dma1(s):
            sl = s % NS
            for i in range(4):
                a("s_add_u32 m0, s4, %d" % (sl * SLOT1 + i * 4096))
                a("s_add_u32 s6, s3, %d" % (i * 40960 + s * 128))
                a("buffer_load_dwordx4 v5, s[64:67], s6 offen lds")
            for i in range(nC):
                a("s_add_u32 m0, s4, %d" % (sl * SLOT1 + 16384 + i * 4096))
                a("s_add_u32 s6, s5, %d" % (i * 20480 + s * 128))
                a("buffer_load_dwordx4 v5, s[68:71], s6 offen lds")
            for i in range(3):
                a("s_add_u32 m0, s4, %d" % (sl * SLOT1 + 26624 + i * 4096))
                a("s_add_u32 s6, s3, %d" % (i * 40960 + s * 128))
                a("buffer_load_dwordx4 v5, s[72:75], s6 offen lds")
            vm.issue(("P1", s), 7 + nC)

        st()
        dma1(0)
        dma1(1)
        a("s_mul_i32 s20, s15, %d" % (64 * 3072))
        a("s_add_u32 s20, s20, %d" % WS_H1)
        srd_off(a, 76, 10, 11, "s20", 64 * 3072)
        a("s_mul_i32 s20, s16, %d" % (80 * 3072))
        a("s_add_u32 s20, s20, %d" % WS_W2T)
        srd_off(a, 80, 10, 11, "s20", 80 * 3072)
        a("s_mul_i32 s20, s15, %d" % (1280 * 128))
        a("s_add_u32 s20, s20, %d" % WS_HT)
        srd_off(a, 84, 10, 11, "s20", 1280 * 128)
        a("s_mul_i32 s20, s16, %d" % (80 * 1280))
        srd_off(a, 88, P_CRE, P_CRE + 1, "s20", 80 * 1280)
        srd_off(a, 92, P_CIM, P_CIM + 1, "s20", 80 * 1280)
        a("v_mul_u32_u24 v16, 3072, v2")
        a("v_lshl_add_u32 v16, v4, 4, v16")
        a("v_and_b32 v10, 1, v6")
        a("s_lshl_b32 s20, s18, 1")
        a("v_or_b32 v10, s20, v10")
        a("v_lshrrev_b32 v11, 1, v3")
        a("v_xor_b32 v10, v10, v11")
        a("v_lshlrev_b32 v10, 4, v10")
        a("v_lshl_add_u32 v10, v2, 6, v10")
        a("v_and_b32 v11, 1, v1")
        a("v_mul_u32_u24 v11, 81920, v11")
        a("v_add_u32 v10, v11, v10")
        a("v_mov_b32 v17, 0")
        a("v_lshrrev_b32 v21, 2, v4")
        a("v_lshlrev_b32 v21, 12, v21")
        a("v_lshl_add_u32 v21, v2, 6, v21")
        a("v_and_b32 v11, 3, v4")
        a("v_lshl_add_u32 v21, v11, 4, v21")
        a("s_lshl_b32 s47, s19, 13")
        a("s_lshl_b32 s20, s18, 9")
        a("s_add_u32 s47, s47, s20")
        a("s_mul_i32 s7, s18, %d" % (8 * 3072))
        a("s_lshl_b32 s20, s19, 7")
        a("s_add_u32 s7, s7, s20")
        a("s_mul_i32 s8, s18, %d" % (8 * 1280))
        a("s_add_u32 s8, s8, s20")
        a("s_lshl_b32 s9, s19, 12")
        a("s_lshl_b32 s20, s18, 9")
        a("s_add_u32 s9, s9, s20")
        a("s_lshl_b32 s20, s18, 10")
        a("s_mul_i32 s46, s19, %d" % SUB)
        a("s_add_u32 s46, s46, s20")
        if helper:
            ffn_setup()
            vm.issue("bias", 3)
        st()
        vm.wait(("P1", 0))
        st()
        def dmaW(s):
            sl = (s + 2) % NS
            for i in range(5):
                a("s_add_u32 m0, s46, %d" % (sl * SLOT23 + 8192 + i * 2048))
                if s < 12:
                    a("s_add_u32 s6, s7, %d" % (i * 16 * 3072 + s * 256))
                    a("buffer_load_dwordx4 v16, s[80:83], s6 offen lds")
                else:
                    s3 = s - 12
                    sr = 88 if s3 < 5 else 92
                    a("s_add_u32 s6, s8, %d" % (i * 16 * 1280 + (s3 % 5) * 256))
                    a("buffer_load_dwordx4 v5, s[%d:%d], s6 offen lds" % (sr, sr + 3))
            vm.issue(("W", s), 5)

        def dmaA(s):
            sl = (s + 2) % NS
            for i in range(4):
                a("s_add_u32 m0, s46, %d" % (sl * SLOT23 + i * 2048))
                if s < 12:
                    a("s_add_u32 s6, s47, %d" % (i * 1024 + s * 16384))
                    a("buffer_load_dwordx4 v21, s[76:79], s6 offen sc1 lds")
                else:
                    a("s_add_u32 s6, s9, %d" % (i * 1024 + (s - 12) * 8192))
                    a("buffer_load_dwordx4 v10, s[84:87], s6 offen sc1 lds")
            vm.issue(("A", s), 4)
        a("s_barrier")
        dma1(2)
        issued = 3
        for s in range(10):
            if s + 1 <= 9:
                vm.wait(("P1", s + 1))
            a("s_barrier")
            st()
            while issued <= min(s + NS, 9):
                dma1(issued)
                issued += 1
            if s >= 6:
                dmaW(s - 6)

        srd_off(a, 64, 10, 11, WS_FLG, 20480)
        if helper:
            ffn_consts()
            lds_wait(a, 18, 15, 0, 1, "M_hw", 0)
            st()
            for i in range(6):
                a("ds_read_b128 v[%d:%d], v14 offset:%d" % (24 + 4 * i, 27 + 4 * i, i * 1024))
            a("s_waitcnt lgkmcnt(0)")
            n = ffn_epi(24, [3])
            vm.issue("st", n)
            a("s_lshl_b32 s29, s13, 1")
            a("s_add_u32 s29, s29, s18")
            a("s_lshl_b32 s29, s29, 8")
            vm.wait("st")
            signal(18, 17, 64, "s29", True)
            a("v_mov_b32 v17, 0")
            st()
        else:
            st()
            st()
        a("s_lshl_b32 s20, s15, 8")

        def chkH(sr):
            a("s_cmp_ge_u32 s%d, 16" % sr)

        def chkH32(sr):
            a("s_cmp_ge_u32 s%d, 32" % sr)
        a("v_mov_b32 v20, %d" % (HAND + 12288))
        if helper:
            lds_wait(a, 18, 20, 12, 1, "M_go")
        else:
            Lnp = a.newlabel("M_np")
            Lgo = a.newlabel("M_go2")
            a("s_cmp_lg_u32 s17, 2")
            a("s_cbranch_scc1 %s" % Lnp)
            lds_wait(a, 18, 20, 8, 4, "M_dn", 2)
            poll(a, 18, 17, 64, "s20", chkH32, "M_h", 4)
            a("v_mov_b32 v18, 1")
            a("ds_write_b32 v20, v18 offset:12")
            a("s_branch %s" % Lgo)
            a.label(Lnp)
            lds_wait(a, 18, 20, 12, 1, "M_go")
            a.label(Lgo)
        vm.drain()
        st()
        for s in range(2):
            dmaA(s)
        vm.wait(("A", 0))
        st()
        a("s_barrier")
        for s in range(2, 4):
            dmaA(s)
        issued = 4
        S = 22
        a("s_lshl_b32 s21, s15, 8")
        a("s_add_u32 s21, s21, 12288")
        for s in range(S):
            if s + 1 <= S - 1:
                vm.wait(("A", s + 1))
            a("s_barrier")
            if STAMP and s % 2 == 1:
                st()
            while issued <= min(s + NS, S - 1):
                if issued == 11:
                    a("buffer_load_dword v19, v17, s[64:67], s21 offen sc1")
                    vm.issue("pollHT", 1)
                dmaW(issued)
                if issued == 12:
                    vm.wait("pollHT")
                    Lok = a.newlabel("M_htok")
                    a("v_readfirstlane_b32 s30, v19")
                    a("s_nop 3")
                    a("s_cmp_ge_u32 s30, 16")
                    a("s_cbranch_scc1 %s" % Lok)
                    poll(a, 19, 17, 64, "s21", chkH, "M_ht")
                    a.label(Lok)
                dmaA(issued)
                issued += 1
        st.flush()
        a("s_endpgm")

    loader(True)
    a.label(Lld2)
    loader(False)
    a.label(Lend)
    a("s_endpgm")
    return name, 256


def gen_k0(a):
    body = Asm()
    body.nlabel = 1000
    nm, vg = gen.gen_k0(body)
    txt = body.lines
    out = []
    for l in txt:
        out.append(l)
    s = "\n".join(out)
    s = s.replace("s_cmp_ge_u32 s2, 253\n", "s_cmp_ge_u32 s2, 256\n")
    s = s.replace("    s_cmp_ge_u32 s2, 248\n", "    s_cmp_ge_u32 s2, 253\n    s_cbranch_scc1 K0_zero\n    s_cmp_ge_u32 s2, 248\n", 1)
    s = s.replace("v_lshlrev_b32 v5, 2, v2", "v_lshlrev_b32 v5, 6, v2")
    for k in range(10):
        s = s.replace("s_mov_b32 s13, %d\n" % (k * 5120), "s_mov_b32 s13, %d\n" % (k * 4))
    s = s.replace("s_mov_b32 s30, 0x%x\n    s_mov_b32 s31, 0x00020000" % (10 * 5120), "s_mov_b32 s30, 0x%x\n    s_mov_b32 s31, 0x00020000" % (1280 * 64))
    a.lines += s.split("\n")
    a.label("K0_zero")
    a("s_waitcnt lgkmcnt(0)")
    srd_off(a, 16, 10, 11, WS_ET, 1280 * 256)
    srd_off(a, 20, 10, 11, WS_FLG, 20480)
    a("s_sub_u32 s13, s2, 253")
    a("s_lshl_b32 s13, s13, 8")
    a("v_add_u32 v2, s13, v0")
    a("v_mov_b32 v8, 0")
    a("v_mov_b32 v9, 0")
    a("v_mov_b32 v10, 0")
    a("v_mov_b32 v11, 0")
    for i in range(14):
        a("v_add_u32 v3, %d, v2" % (i * 768))
        a("v_lshrrev_b32 v4, 3, v3")
        a("v_and_b32 v5, 7, v3")
        a("v_lshlrev_b32 v4, 8, v4")
        a("v_lshl_add_u32 v4, v5, 4, v4")
        a("buffer_store_dwordx4 v[8:11], v4, s[16:19], 0 offen")
    a("v_lshlrev_b32 v4, 8, v2")
    a("buffer_store_dword v8, v4, s[20:23], 0 offen")
    a("s_endpgm")
    return nm, vg


if __name__ == "__main__":
    gen.WS_TAB = WS_TAB
    ks = [(gen_k0, 256, 256, 0), (gen_mega, 256, 512, 163840)]
    txt = gen.build(ks)
    open(sys.argv[1] if len(sys.argv) > 1 else "cdna_kernels/%s.s" % NAME, "w").write(txt)
```

```python
import sys, os, math
from gen import Asm, srd, srd_off, kernel_header, kernel_desc, fh, KA, LOG2E, DPP8, NAME
import gen

WS_XN = 0x0000000
WS_W1T = 0x0300000
WS_W2T = 0x0500000
WS_TAB = 0x0700000
WS_FLG = 0x0780000
WS_H1 = 0x0800000
WS_ET = 0x0F00000
WS_HT = 0x2000000
WS_DBG = 0x3000000

STAMP = int(os.environ.get("STAMP", "0"))
NS = 4
WPRE = int(os.environ.get("WPRE", "1"))
SLOT1 = 38912
SUB = 18432
SLOT23 = 36864
HAND = 147456
SC = " sc1"


class Stamper:
    def __init__(self, a):
        self.a = a
        self.n = 0

    def __call__(self, real=False):
        if not STAMP:
            return
        a = self.a
        assert self.n < 64
        if self.n == 0 and not real:
            a("v_mov_b32 v255, 0")
            self(True)
        a("s_memrealtime s[100:101]" if real else "s_memtime s[100:101]")
        a("s_waitcnt lgkmcnt(0)")
        a("v_writelane_b32 v255, s100, %d" % self.n)
        self.n += 1

    def flush(self):
        if not STAMP:
            return
        a = self.a
        self()
        self(True)
        a("s_mov_b64 exec, -1")
        a("s_lshl_b32 s100, s2, 3")
        a("s_add_u32 s100, s100, s12")
        a("s_lshl_b32 s100, s100, 8")
        a("s_add_u32 s100, s100, 0x%x" % (WS_DBG + 0x100000))
        srd_off(a, 96, 10, 11, "s100", 256)
        a("v_and_b32 v254, 63, v0")
        a("v_lshlrev_b32 v254, 2, v254")
        a("buffer_store_dword v255, v254, s[96:99], 0 offen")


class VM:
    def __init__(self, a):
        self.a = a
        self.q = []

    def issue(self, tag, n):
        self.q.append((tag, n))

    def wait(self, tag):
        idx = max(i for i, (t, n) in enumerate(self.q) if t == tag) if any(t == tag for t, n in self.q) else None
        if idx is None:
            return
        rest = sum(n for t, n in self.q[idx + 1:])
        assert rest <= 63, rest
        self.a("s_waitcnt vmcnt(%d)" % rest)
        self.q = self.q[idx + 1:]

    def drain(self):
        self.a("s_waitcnt vmcnt(0)")
        self.q = []


def interleave(ms, rs):
    out = []
    ri = 0
    for m in ms:
        out.append(m)
        if ri < len(rs):
            out.append(rs[ri])
            ri += 1
    return out + rs[ri:]


def compute_loop(a, S, reads, mfmas, st, hooks=None, nsub=2):
    st()
    a("s_barrier")
    st()
    for r in reads(0, 0, 0):
        a(r)
    for s in range(S):
        for sub in range(nsub):
            cur = sub & 1
            a("s_waitcnt lgkmcnt(0)")
            if sub == nsub - 1:
                a("s_barrier")
                if STAMP and (s % 2 == 1 or S <= 10):
                    st()
                rs = reads(s + 1, 0, 1 - cur) if s + 1 < S else []
            else:
                rs = reads(s, sub + 1, 1 - cur)
            for x in interleave(mfmas(s, sub, cur), rs):
                a(x)
        if hooks and s in hooks:
            hooks[s]()


def poll(a, vreg, vzero, sflg, soff, check, lbl, slp=4):
    Lp = a.newlabel(lbl + "_poll")
    Ld = a.newlabel(lbl + "_done")
    a("s_mov_b32 s31, 0x100000")
    a.label(Lp)
    a("buffer_load_dword v%d, v%d, s[%d:%d], %s offen sc1" % (vreg, vzero, sflg, sflg + 3, soff))
    a("s_waitcnt vmcnt(0)")
    a("v_readfirstlane_b32 s30, v%d" % vreg)
    a("s_nop 3")
    check(30)
    a("s_cbranch_scc1 %s" % Ld)
    a("s_sleep %d" % slp)
    a("s_sub_u32 s31, s31, 1")
    a("s_cmp_lg_u32 s31, 0")
    a("s_cbranch_scc1 %s" % Lp)
    a.label(Ld)


def lds_wait(a, vtmp, vaddr, off, val, lbl, slp=1):
    Lw = a.newlabel(lbl)
    Ld = a.newlabel(lbl + "d")
    a.label(Lw)
    a("ds_read_b32 v%d, v%d offset:%d" % (vtmp, vaddr, off))
    a("s_waitcnt lgkmcnt(0)")
    a("v_readfirstlane_b32 s30, v%d" % vtmp)
    a("s_nop 3")
    a("s_cmp_ge_u32 s30, %d" % val)
    a("s_cbranch_scc1 %s" % Ld)
    if slp:
        a("s_sleep %d" % slp)
    a("s_branch %s" % Lw)
    a.label(Ld)


def cmul_add(a, items):
    for (d, lr, li, s, ad) in items:
        if ad is None:
            a("v_mul_f32 v%d, v%d, v%d" % (d, lr, s))
        else:
            a("v_fma_f32 v%d, v%d, v%d, v%d" % (d, lr, s, ad))
    if len(items) < 2:
        a("s_nop 1")
    for (d, lr, li, s, ad) in items:
        a("v_fmac_f32_dpp v%d, v%d, v%d %s" % (d, s, li, DPP8))


def gelu_units(a, units, tmp, vK1, sK2, sLO, sHI, sMask):
    P = []
    for ui, (rA, rB, b, d) in enumerate(units):
        for h, r in enumerate((rA, rA + 2, rB, rB + 2)):
            P.append((r, b + 2 * h, d + h, tmp + 8 * ui + 2 * h))
    for (r, b, d, t) in P:
        a("v_cvt_pk_bf16_f32 v%d, v%d, v%d" % (d, r, r + 1))
    for (r, b, d, t) in P:
        a("v_dot2_f32_bf16 v%d, v%d, s%d, v%d" % (r, d, sLO, b))
        a("v_dot2_f32_bf16 v%d, v%d, s%d, v%d" % (r + 1, d, sHI, b + 1))
    a("s_nop 1")
    for (r, b, d, t) in P:
        a("v_cvt_pk_bf16_f32 v%d, v%d, v%d" % (d, r, r + 1))
    for (r, b, d, t) in P:
        a("v_lshlrev_b32 v%d, 16, v%d" % (r, d))
        a("v_and_b32 v%d, s%d, v%d" % (r + 1, sMask, d))
    for (r, b, d, t) in P:
        a("v_pk_mul_f32 v[%d:%d], v[%d:%d], v[%d:%d]" % (t, t + 1, r, r + 1, r, r + 1))
    for (r, b, d, t) in P:
        a("v_pk_fma_f32 v[%d:%d], v[%d:%d], s[%d:%d], v[%d:%d]" % (t, t + 1, t, t + 1, sK2, sK2 + 1, vK1, vK1 + 1))
    for (r, b, d, t) in P:
        a("v_pk_mul_f32 v[%d:%d], v[%d:%d], v[%d:%d]" % (t, t + 1, t, t + 1, r, r + 1))
    for (r, b, d, t) in P:
        a("v_exp_f32 v%d, v%d" % (t, t))
        a("v_exp_f32 v%d, v%d" % (t + 1, t + 1))
    a("s_nop 0")
    for (r, b, d, t) in P:
        a("v_pk_add_f32 v[%d:%d], v[%d:%d], 1.0" % (t, t + 1, t, t + 1))
    for (r, b, d, t) in P:
        a("v_rcp_f32 v%d, v%d" % (t, t))
        a("v_rcp_f32 v%d, v%d" % (t + 1, t + 1))
    a("s_nop 0")
    for (r, b, d, t) in P:
        a("v_pk_mul_f32 v[%d:%d], v[%d:%d], v[%d:%d]" % (r, r + 1, r, r + 1, t, t + 1))
    for (r, b, d, t) in P:
        a("v_cvt_pk_bf16_f32 v%d, v%d, v%d" % (d, r, r + 1))


P_X, P_BRE, P_BIM, P_CRE, P_CIM, P_DSK, P_B1, P_B2, P_OUT = 32, 38, 40, 42, 44, 48, 54, 58, 60


def gen_mega(a):
    name = "mega_kernel"
    kernel_header(a, name)
    st = Stamper(a)
    Lend = a.newlabel("M_end")
    Lffn = a.newlabel("M_ffn")
    Lld = a.newlabel("M_ld")
    Lp23 = a.newlabel("M_p23")
    a("s_cmp_ge_u32 s2, 256")
    a("s_cbranch_scc1 %s" % Lend)
    a("s_load_dwordx16 s[32:47], s[0:1], 0")
    a("s_load_dwordx16 s[48:63], s[0:1], 64")
    a("s_load_dwordx2 s[10:11], s[0:1], 128")
    a("v_lshrrev_b32 v2, 6, v0")
    a("v_and_b32 v1, 63, v0")
    a("s_nop 0")
    a("v_readfirstlane_b32 s12, v2")
    a("s_lshr_b32 s20, s2, 3")
    a("s_and_b32 s21, s20, 7")
    a("s_lshr_b32 s20, s20, 3")
    a("s_and_b32 s13, s2, 1")
    a("s_lshl_b32 s13, s13, 3")
    a("s_add_u32 s13, s13, s21")
    a("s_lshr_b32 s14, s2, 1")
    a("s_and_b32 s14, s14, 3")
    a("s_lshl_b32 s14, s14, 2")
    a("s_add_u32 s14, s14, s20")
    a("s_and_b32 s15, s2, 3")
    a("s_lshl_b32 s15, s15, 3")
    a("s_add_u32 s15, s15, s21")
    a("s_lshr_b32 s16, s2, 2")
    a("s_and_b32 s16, s16, 1")
    a("s_lshl_b32 s16, s16, 2")
    a("s_add_u32 s16, s16, s20")
    a("s_and_b32 s17, s12, 3")
    a("s_and_b32 s18, s17, 1")
    a("s_lshr_b32 s19, s17, 1")
    a("v_lshrrev_b32 v2, 3, v1")
    a("v_and_b32 v3, 7, v1")
    a("v_lshrrev_b32 v6, 4, v1")
    a("v_and_b32 v7, 15, v1")
    a("v_xor_b32 v4, v6, v3")
    a("v_lshlrev_b32 v8, 7, v7")
    a("v_lshl_add_u32 v8, v4, 4, v8")
    a("v_xor_b32 v9, 64, v8")
    a("v_xor_b32 v4, v2, v3")
    a("s_waitcnt lgkmcnt(0)")
    st()
    n0 = st.n
    a("s_cmp_ge_u32 s12, 4")
    a("s_cbranch_scc1 %s" % Lld)
    a("s_cmp_ge_u32 s12, 2")
    a("s_cbranch_scc1 %s" % Lffn)

    ADR = 236

    def p1_addr(regoff):
        a("s_lshl_b32 s20, s18, 13")
        for sl in range(NS):
            a("s_add_u32 s21, s20, %d" % (sl * SLOT1))
            a("v_add_u32 v%d, s21, v8" % (ADR + 4 * sl))
            a("v_add_u32 v%d, s21, v9" % (ADR + 4 * sl + 1))
            a("v_add_u32 v%d, %d, v8" % (ADR + 4 * sl + 2, sl * SLOT1 + regoff))
            a("v_add_u32 v%d, %d, v9" % (ADR + 4 * sl + 3, sl * SLOT1 + regoff))

    ACC, FR, CON = 16, 96, 168
    p1_addr(16384)
    srd_off(a, 64, 10, 11, WS_TAB, 1280 * 64)
    a("s_mul_i32 s22, s14, 10240")
    a("s_add_u32 s22, s22, %d" % WS_ET)
    srd_off(a, 68, 10, 11, "s22", 10240)
    srd_off(a, 28, 10, 11, WS_FLG, 20480)
    a("s_lshl_b32 s22, s13, 1")
    a("s_add_u32 s22, s22, s18")
    a("s_mul_i32 s23, s22, %d" % (1280 * 128))
    a("s_add_u32 s23, s23, %d" % WS_HT)
    srd_off(a, 72, 10, 11, "s23", 1280 * 128)
    a("s_mul_i32 s23, s14, 5")
    a("v_lshlrev_b32 v10, 6, v7")

    def ssm_const_loads():
        a("s_lshl_b32 s24, s23, 10")
        for c in range(5):
            if c == 4:
                a("s_add_u32 s24, s24, 4096")
            for k in range(3):
                a("buffer_load_dwordx4 v[%d:%d], v10, s[64:67], s24 offen offset:%d" % (
                    CON + 12 * c + 4 * k, CON + 12 * c + 4 * k + 3, (c % 4) * 1024 + k * 16))

    def reads_s(s, sub, sset):
        sl = s % NS
        b = FR + 36 * sset
        out = []
        for k, i in [("N", 0), ("T", 0), ("T", 1), ("T", 2), ("T", 3), ("N", 1), ("N", 2), ("N", 3), ("N", 4)]:
            if k == "T":
                out.append("ds_read_b128 v[%d:%d], v%d offset:%d" % (b + 4 * i, b + 4 * i + 3, ADR + 4 * sl + sub, i * 2048))
            else:
                out.append("ds_read_b128 v[%d:%d], v%d offset:%d" % (b + 16 + 4 * i, b + 19 + 4 * i, ADR + 4 * sl + 2 + sub, i * 2048))
        return out

    def mfmas_s(s, sub, sset):
        b = FR + 36 * sset
        out = []
        for c in range(5):
            for j in range(4):
                d = ACC + (c * 4 + j) * 4
                cc = "0" if (s == 0 and sub == 0) else "v[%d:%d]" % (d, d + 3)
                out.append("v_mfma_f32_16x16x32_bf16 v[%d:%d], v[%d:%d], v[%d:%d], %s" % (
                    d, d + 3, b + 4 * j, b + 4 * j + 3, b + 16 + 4 * c, b + 19 + 4 * c, cc))
        return out
    ssm_const_loads()
    compute_loop(a, 10, reads_s, mfmas_s, st)
    a("s_setprio 2")
    st()
    a("s_waitcnt vmcnt(0)")
    a("s_nop 7")
    K = lambda c, k: CON + 12 * c + k
    TMP = 96
    for i in range(16):
        for c in range(5):
            a("v_mul_f32 v%d, v%d, v%d" % (TMP + c, K(c, 2), ACC + c * 16 + i))
        for c in range(5):
            a("v_fmac_f32_dpp v%d, v%d, v%d %s" % (TMP + c, ACC + c * 16 + i, K(c, 3), DPP8))
        if i == 0:
            for c in range(5):
                a("v_mov_b32 v%d, v%d" % (ACC + c * 16, TMP + c))
        else:
            for c in range(5):
                u = ACC + c * 16 + i
                a("v_fma_f32 v%d, v%d, v%d, v%d" % (u, K(c, 0), u - 1, TMP + c))
            for c in range(5):
                u = ACC + c * 16 + i
                a("v_fmac_f32_dpp v%d, v%d, v%d %s" % (u, u - 1, K(c, 1), DPP8))
    EQ, EH = 104, 124
    a("v_lshlrev_b32 v11, 2, v7")
    for q in range(4):
        a("v_add_u32 v%d, %d, v11" % (12 + q, q * 64))
    for q in range(4):
        for c in range(5):
            a("ds_bpermute_b32 v%d, v%d, v%d" % (EQ + c * 4 + q, 12 + q, ACC + c * 16 + 15))
    a("s_waitcnt lgkmcnt(0)")
    cmul_add(a, [(EH + c * 4 + 1, K(c, 4), K(c, 5), EQ + c * 4, EQ + c * 4 + 1) for c in range(5)])
    for q in range(2, 4):
        cmul_add(a, [(EH + c * 4 + q, K(c, 4), K(c, 5), EH + c * 4 + q - 1, EQ + c * 4 + q) for c in range(5)])
    a("s_mul_i32 s25, s22, 320")
    a("v_cmp_gt_u32 vcc, 16, v1")
    a("s_and_saveexec_b64 s[26:27], vcc")
    for c in range(5):
        a("buffer_store_dword v%d, v11, s[68:71], s25 offen offset:%d sc1" % (EH + c * 4 + 3, c * 64))
    a("s_waitcnt vmcnt(0)")
    a("v_cmp_eq_u32 vcc, 0, v1")
    a("s_and_b64 exec, exec, vcc")
    a("s_lshl_b32 s20, 1, s22")
    a("v_mov_b32 v228, s20")
    a("v_mov_b32 v229, 0")
    a("s_lshl_b32 s21, s14, 8")
    a("s_add_u32 s21, s21, 8192")
    a("buffer_atomic_or v228, v229, s[28:31], s21 offen")
    a("s_mov_b64 exec, -1")
    st()
    a("v_mov_b32 v229, 0")
    a("s_sub_u32 s20, s20, 1")
    srd_off(a, 76, 10, 11, WS_FLG, 20480)

    def chkE(sr):
        a("s_and_b32 s%d, s%d, s20" % (sr, sr))
        a("s_cmp_eq_u32 s%d, s20" % sr)
    poll(a, 228, 229, 76, "s21", chkE, "M_e")
    st()
    EV = 124
    a("s_sub_u32 s25, s22, 32")
    a("v_lshl_add_u32 v230, v6, 3, s25")
    a("s_movk_i32 s25, 320")
    a("v_mul_lo_u32 v230, v230, s25")
    a("v_add_u32 v230, v230, v11")
    for e in range(8):
        for c in range(5):
            a("buffer_load_dword v%d, v230, s[68:71], 0 offen offset:%d sc1" % (EV + 8 * c + e, c * 64))
        if e < 7:
            a("v_add_u32 v230, 320, v230")
    a("v_lshrrev_b32 v10, 3, v7")
    a("v_mul_u32_u24 v11, 640, v10")
    a("v_add_u32 v11, v11, v3")
    a("v_lshlrev_b32 v11, 6, v11")
    a("v_lshl_add_u32 v11, v6, 4, v11")
    a("v_mul_u32_u24 v10, 0x8000, v10")
    a("v_lshl_add_u32 v10, v10, 16, v10")
    a("v_cmp_eq_u32 s[80:81], 1, v6")
    a("v_cmp_eq_u32 s[82:83], 2, v6")
    a("v_cmp_eq_u32 s[84:85], 3, v6")
    a("s_waitcnt vmcnt(0)")
    st()
    for e in range(1, 8):
        cmul_add(a, [(EV + 8 * c + e, K(c, 6), K(c, 7), EV + 8 * c + e - 1, EV + 8 * c + e) for c in range(5)])
    PQ = 228
    PQ = 96
    a("s_nop 1")
    for c in range(5):
        for q in range(4):
            a("ds_bpermute_b32 v%d, v%d, v%d" % (EV + 8 * c + q, 12 + q, EV + 8 * c + 7))
    a("s_waitcnt lgkmcnt(0)")
    for q in range(1, 4):
        cmul_add(a, [(EV + 8 * c + q, K(c, 8), K(c, 9), EV + 8 * c + q - 1, EV + 8 * c + q) for c in range(5)])
    for q in range(3):
        cmul_add(a, [(EV + 8 * c + 4 + q, K(c, 4), K(c, 5), EV + 8 * c + 3 + q, EQ + 4 * c + q) for c in range(5)])
    for c in range(5):
        a("v_cndmask_b32 v%d, v%d, v%d, s[80:81]" % (EV + 8 * c + 7, EV + 8 * c + 3, EV + 8 * c + 4))
    for c in range(5):
        a("v_cndmask_b32 v%d, v%d, v%d, s[82:83]" % (EV + 8 * c + 7, EV + 8 * c + 7, EV + 8 * c + 5))
    for c in range(5):
        a("v_cndmask_b32 v%d, v%d, v%d, s[84:85]" % (EV + 8 * c + 7, EV + 8 * c + 7, EV + 8 * c + 6))
    for i in range(16):
        src = 7 if i == 0 else ((i - 1) & 1)
        cmul_add(a, [(EV + 8 * c + (i & 1), K(c, 0), K(c, 1), EV + 8 * c + src, None) for c in range(5)])
        if i & 1:
            for c in range(5):
                u = ACC + c * 16 + i - 1
                a("v_pk_add_f32 v[%d:%d], v[%d:%d], v[%d:%d]" % (u, u + 1, u, u + 1, EV + 8 * c, EV + 8 * c + 1))
    PK = 96
    for c in range(5):
        for j in range(8):
            a("v_cvt_pk_bf16_f32 v%d, v%d, v%d" % (PK + 8 * c + j, ACC + c * 16 + 2 * j, ACC + c * 16 + 2 * j + 1))
    for c in range(5):
        for j in range(8):
            a("v_xor_b32 v%d, v10, v%d" % (PK + 8 * c + j, PK + 8 * c + j))
        a("s_add_u32 s20, s23, %d" % c)
        a("s_lshl_b32 s20, s20, 9")
        a("s_add_u32 s21, s20, 81920")
        a("buffer_store_dwordx4 v[%d:%d], v11, s[72:75], s20 offen sc1" % (PK + 8 * c, PK + 8 * c + 3))
        a("buffer_store_dwordx4 v[%d:%d], v11, s[72:75], s21 offen sc1" % (PK + 8 * c + 4, PK + 8 * c + 7))
    a("s_lshl_b32 s29, s22, 8")
    a("s_add_u32 s29, s29, 12288")
    a("s_setprio 0")
    nssm = st.n
    a("s_branch %s" % Lp23)

    BIAS = 200

    def signal(vd, vz, sflg, soff, done=False):
        a("v_cmp_eq_u32 vcc, 0, v1")
        a("s_and_saveexec_b64 s[30:31], vcc")
        a("v_mov_b32 v%d, 1" % vd)
        a("v_mov_b32 v%d, 0" % vz)
        a("buffer_atomic_add v%d, v%d, s[%d:%d], %s offen" % (vd, vz, sflg, sflg + 3, soff))
        if done:
            a("v_mov_b32 v%d, %d" % (vz, HAND + 12288 + 8))
            a("ds_add_u32 v%d, v%d" % (vz, vd))
        a("s_mov_b64 exec, -1")

    def ffn_setup():
        a("s_lshl_b32 s24, s13, 1")
        a("s_add_u32 s24, s24, s18")
        a("s_mul_i32 s24, s24, 196608")
        a("s_mul_i32 s25, s14, 12288")
        a("s_add_u32 s24, s24, s25")
        a("s_add_u32 s24, s24, %d" % WS_H1)
        srd_off(a, 20, 10, 11, "s24", 12288)
        srd(a, 24, P_B1, P_B1 + 1, 3072)
        a("s_mul_i32 s28, s14, 192")
        a("v_lshlrev_b32 v12, 4, v6")
        for aa in range(3):
            a("buffer_load_dwordx4 v[%d:%d], v12, s[24:27], s28 offen offset:%d" % (224 + 4 * aa, 227 + 4 * aa, 64 * aa))
        a("v_lshrrev_b32 v13, 2, v7")
        a("v_and_b32 v12, 3, v7")
        a("v_lshl_add_u32 v13, v13, 4, v12")
        a("v_lshlrev_b32 v13, 6, v13")
        a("v_lshl_add_u32 v13, v6, 4, v13")
        a("v_lshlrev_b32 v14, 4, v1")
        a("s_mul_i32 s28, s18, 6144")
        a("s_add_u32 s28, s28, %d" % HAND)
        a("v_add_u32 v14, s28, v14")
        a("s_lshl_b32 s28, s18, 2")
        a("s_add_u32 s28, s28, %d" % (HAND + 12288))
        a("v_mov_b32 v15, s28")

    def ffn_consts():
        a("s_mov_b32 s24, 0xffff0000")
        a("s_mov_b32 s25, 0x00003f80")
        a("s_mov_b32 s26, %s" % fh(-2 * math.sqrt(2 / math.pi) * LOG2E * 0.044715))
        a("s_mov_b32 s27, s26")
        a("s_mov_b32 s28, 0x3f800000")
        a("v_mov_b32 v196, %s" % fh(-2 * math.sqrt(2 / math.pi) * LOG2E))
        a("v_mov_b32 v197, v196")
        for i in range(12):
            a("v_lshlrev_b32 v%d, 16, v%d" % (BIAS + 2 * i, 224 + i))
            a("v_and_b32 v%d, s24, v%d" % (BIAS + 2 * i + 1, 224 + i))

    def ffn_epi(acc0, tts):
        n = 0
        for ti, tt in enumerate(tts):
            units = []
            for aa in range(3):
                r = acc0 + (ti * 6 + 2 * aa) * 4
                units.append((r, r + 4, BIAS + aa * 8, 112 + (ti * 3 + aa) * 4))
            gelu_units(a, units, 160, 196, 26, 25, 28, 24)
            for aa in range(3):
                d = 112 + (ti * 3 + aa) * 4
                a("s_mov_b32 s29, %d" % (aa * 4096))
                a("buffer_store_dwordx4 v[%d:%d], v13, s[20:23], s29 offen offset:%d sc1" % (d, d + 3, tt * 256))
                n += 1
        return n

    a.label(Lffn)
    st.n = n0
    ACC, FR = 16, 112
    p1_addr(26624)

    def reads_f(s, sub, sset):
        sl = s % NS
        b = FR + 40 * sset
        out = []
        for k, i in [("N", 0), ("T", 0), ("T", 1), ("T", 2), ("T", 3), ("N", 1), ("N", 2), ("N", 3), ("N", 4), ("N", 5)]:
            if k == "T":
                out.append("ds_read_b128 v[%d:%d], v%d offset:%d" % (b + 4 * i, b + 4 * i + 3, ADR + 4 * sl + sub, i * 2048))
            else:
                out.append("ds_read_b128 v[%d:%d], v%d offset:%d" % (b + 16 + 4 * i, b + 19 + 4 * i, ADR + 4 * sl + 2 + sub, i * 2048))
        return out

    def mfmas_f(s, sub, sset):
        b = FR + 40 * sset
        out = []
        for nt in range(6):
            for tt in range(4):
                d = ACC + (tt * 6 + nt) * 4
                c = "0" if (s == 0 and sub == 0) else "v[%d:%d]" % (d, d + 3)
                out.append("v_mfma_f32_16x16x32_bf16 v[%d:%d], v[%d:%d], v[%d:%d], %s" % (
                    d, d + 3, b + 16 + 4 * nt, b + 19 + 4 * nt, b + 4 * tt, b + 4 * tt + 3, c))
        return out
    ffn_setup()
    a("v_mov_b32 v12, %d" % (HAND + 12288))
    for i in range(4):
        a("v_mov_b32 v%d, 0" % (16 + i))
    a("ds_write_b128 v12, v[16:19]")
    a("s_waitcnt vmcnt(0)")
    ffn_consts()
    a("s_waitcnt lgkmcnt(0)")
    compute_loop(a, 10, reads_f, mfmas_f, st)
    a("s_nop 7")
    a("v_mov_b32 v12, 1")
    for i in range(6):
        a("ds_write_b128 v14, v[%d:%d] offset:%d" % (ACC + 72 + 4 * i, ACC + 75 + 4 * i, i * 1024))
    a("s_waitcnt lgkmcnt(0)")
    a("ds_write_b32 v15, v12")
    st()
    ffn_epi(ACC, [0, 1, 2])
    srd_off(a, 76, 10, 11, WS_FLG, 20480)
    a("s_lshl_b32 s29, s13, 1")
    a("s_add_u32 s29, s29, s18")
    a("s_lshl_b32 s29, s29, 8")
    a("s_waitcnt vmcnt(0)")
    st()
    signal(228, 229, 76, "s29", True)
    while st.n < nssm:
        st()
    Lp23b = a.newlabel("M_p23b")
    a("s_mov_b32 s29, -1")

    a.label(Lp23)
    ACC2, ACC3, FR = 16, 36, 56
    AD2, AD3 = 152, 168
    XR, XNR, DS, B2 = 172, 182, 192, 202
    T0, T1, PK = 212, 232, 192
    a("s_lshl_b32 s20, s17, 11")
    for sl in range(NS):
        a("s_add_u32 s21, s20, %d" % (sl * SLOT23))
        a("v_add_u32 v%d, s21, v8" % (AD2 + 4 * sl))
        a("v_add_u32 v%d, s21, v9" % (AD2 + 4 * sl + 1))
        a("v_add_u32 v%d, %d, v8" % (AD2 + 4 * sl + 2, sl * SLOT23 + 8192))
        a("v_add_u32 v%d, %d, v9" % (AD2 + 4 * sl + 3, sl * SLOT23 + 8192))
    a("v_lshrrev_b32 v12, 2, v7")
    a("v_and_b32 v13, 3, v7")
    a("v_lshl_add_u32 v14, v6, 3, v12")
    a("v_lshlrev_b32 v14, 7, v14")
    a("v_lshl_add_u32 v14, v13, 3, v14")
    a("v_lshrrev_b32 v12, 1, v12")
    a("v_and_b32 v13, 1, v6")
    a("v_lshl_add_u32 v12, v13, 1, v12")
    a("v_xor_b32 v13, s17, v12")
    a("v_lshl_add_u32 v12, v13, 5, v14")
    for sl in range(NS):
        a("v_add_u32 v%d, %d, v12" % (AD3 + sl, sl * SLOT23))
    a("s_lshl_b32 s21, s15, 6")
    a("s_lshl_b32 s22, s17, 4")
    a("s_add_u32 s21, s21, s22")
    a("s_mul_i32 s22, s21, 1280")
    a("s_mul_i32 s23, s16, 160")
    a("s_add_u32 s22, s22, s23")
    srd(a, 64, P_X, P_X + 1, 2048 * 1280)
    srd_off(a, 68, 10, 11, WS_XN, 2048 * 1280)
    srd(a, 72, P_DSK, P_DSK + 1, 1280)
    srd(a, 84, P_B2, P_B2 + 1, 1280)
    srd(a, 80, P_OUT, P_OUT + 1, 2048 * 2560)
    a("v_mul_u32_u24 v10, 1280, v7")
    a("v_lshl_add_u32 v10, v6, 3, v10")
    a("v_lshrrev_b32 v13, 2, v7")
    a("v_and_b32 v14, 3, v7")
    a("v_lshl_add_u32 v13, v13, 4, v14")
    a("v_mul_u32_u24 v13, 1280, v13")
    a("v_lshl_add_u32 v13, v6, 3, v13")
    a("s_lshl_b32 s24, s15, 6")
    a("s_lshl_b32 s25, s17, 2")
    a("s_add_u32 s24, s24, s25")
    a("s_mul_i32 s24, s24, 1280")
    a("s_add_u32 s24, s24, s23")
    a("v_lshlrev_b32 v14, 3, v6")
    a("v_mul_u32_u24 v15, 2560, v7")
    a("v_lshl_add_u32 v15, v6, 4, v15")
    a("s_lshl_b32 s27, s22, 1")
    a("s_mov_b32 s20, 0xffff0000")
    a("s_mov_b32 s21, 0x00003f80")
    a("s_mov_b32 s26, 0x3f800000")
    a("s_mov_b32 s88, %s" % fh(-LOG2E))
    a("s_mov_b32 s89, s88")

    def ht_signal():
        Lsk = a.newlabel("M_nohts")
        a("s_cmp_eq_u32 s29, -1")
        a("s_cbranch_scc1 %s" % Lsk)
        a("s_waitcnt vmcnt(20)")
        signal(228, 229, 76, "s29")
        a.label(Lsk)

    def mk_loads(dt):
        def f():
            a("buffer_load_dwordx2 v[%d:%d], v14, s[84:87], s23 offen offset:%d" % (B2 + 2 * dt, B2 + 2 * dt + 1, dt * 32))
            a("buffer_load_dwordx2 v[%d:%d], v14, s[72:75], s23 offen offset:%d" % (DS + 2 * dt, DS + 2 * dt + 1, dt * 32))
            a("buffer_load_dwordx2 v[%d:%d], v10, s[64:67], s22 offen offset:%d" % (XR + 2 * dt, XR + 2 * dt + 1, dt * 32))
            a("buffer_load_dwordx2 v[%d:%d], v13, s[68:71], s24 offen offset:%d" % (XNR + 2 * dt, XNR + 2 * dt + 1, dt * 32))
        return f

    def h_sk():
        a("s_waitcnt vmcnt(0)")
        for i in range(10):
            a("v_lshlrev_b32 v%d, 16, v%d" % (T0 + 2 * i, XNR + i))
            a("v_and_b32 v%d, s20, v%d" % (T0 + 2 * i + 1, XNR + i))
            a("v_lshlrev_b32 v%d, 16, v%d" % (T1 + 2 * i, DS + i))
            a("v_and_b32 v%d, s20, v%d" % (T1 + 2 * i + 1, DS + i))
        for i in range(10):
            a("v_pk_mul_f32 v[%d:%d], v[%d:%d], v[%d:%d]" % (T0 + 2 * i, T0 + 2 * i + 1, T0 + 2 * i, T0 + 2 * i + 1, T1 + 2 * i, T1 + 2 * i + 1))
        for i in range(10):
            a("v_cvt_pk_bf16_f32 v%d, v%d, v%d" % (XNR + i, T0 + 2 * i, T0 + 2 * i + 1))
        for i in range(10):
            a("v_lshlrev_b32 v%d, 16, v%d" % (T1 + 2 * i, B2 + i))
            a("v_and_b32 v%d, s20, v%d" % (T1 + 2 * i + 1, B2 + i))

    def h_gate1():
        for i in range(10):
            a("v_cvt_pk_bf16_f32 v%d, v%d, v%d" % (PK + i, ACC2 + 2 * i, ACC2 + 2 * i + 1))
        for i in range(10):
            a("v_dot2_f32_bf16 v%d, v%d, s21, v%d" % (ACC2 + 2 * i, PK + i, T1 + 2 * i))
            a("v_dot2_f32_bf16 v%d, v%d, s26, v%d" % (ACC2 + 2 * i + 1, PK + i, T1 + 2 * i + 1))
        a("s_nop 1")
        for i in range(10):
            a("v_cvt_pk_bf16_f32 v%d, v%d, v%d" % (PK + i, ACC2 + 2 * i, ACC2 + 2 * i + 1))
        for i in range(10):
            a("v_lshlrev_b32 v%d, 16, v%d" % (ACC2 + 2 * i, PK + i))
            a("v_and_b32 v%d, s20, v%d" % (ACC2 + 2 * i + 1, PK + i))
        for i in range(10):
            a("v_pk_mul_f32 v[%d:%d], v[%d:%d], s[88:89]" % (T0 + 2 * i, T0 + 2 * i + 1, ACC2 + 2 * i, ACC2 + 2 * i + 1))

    def h_gate2():
        for i in range(20):
            a("v_exp_f32 v%d, v%d" % (T0 + i, T0 + i))
        a("s_nop 0")
        for i in range(10):
            a("v_pk_add_f32 v[%d:%d], v[%d:%d], 1.0" % (T0 + 2 * i, T0 + 2 * i + 1, T0 + 2 * i, T0 + 2 * i + 1))
        for i in range(20):
            a("v_rcp_f32 v%d, v%d" % (T0 + i, T0 + i))
        a("s_nop 0")

    def h_gate3():
        for i in range(10):
            a("v_pk_mul_f32 v[%d:%d], v[%d:%d], v[%d:%d]" % (ACC2 + 2 * i, ACC2 + 2 * i + 1, ACC2 + 2 * i, ACC2 + 2 * i + 1, T0 + 2 * i, T0 + 2 * i + 1))
        for i in range(10):
            a("v_cvt_pk_bf16_f32 v%d, v%d, v%d" % (PK + i, ACC2 + 2 * i, ACC2 + 2 * i + 1))
        for i in range(10):
            a("v_lshlrev_b32 v%d, 16, v%d" % (T0 + 2 * i, PK + i))
            a("v_and_b32 v%d, s20, v%d" % (T0 + 2 * i + 1, PK + i))
            a("v_lshlrev_b32 v%d, 16, v%d" % (T1 + 2 * i, XR + i))
            a("v_and_b32 v%d, s20, v%d" % (T1 + 2 * i + 1, XR + i))
            a("v_lshlrev_b32 v%d, 16, v%d" % (ACC2 + 2 * i, XNR + i))
            a("v_and_b32 v%d, s20, v%d" % (ACC2 + 2 * i + 1, XNR + i))

    def reads23(s, sub, sset):
        sl = (s + 2) % NS
        so = sub * SUB
        out = []
        for ks in range(2):
            b = FR + 48 * sset + 24 * ks
            for k, i in [("D", 0), ("T", 0), ("D", 1), ("D", 2), ("D", 3), ("D", 4)]:
                if k == "T":
                    if s < 12:
                        out.append("ds_read_b128 v[%d:%d], v%d offset:%d" % (b, b + 3, AD2 + 4 * sl + ks, so))
                    else:
                        out.append("ds_read_b64_tr_b16 v[%d:%d], v%d offset:%d" % (b, b + 1, AD3 + sl, so + ks * 4096))
                        out.append("ds_read_b64_tr_b16 v[%d:%d], v%d offset:%d" % (b + 2, b + 3, AD3 + sl, so + ks * 4096 + 512))
                else:
                    out.append("ds_read_b128 v[%d:%d], v%d offset:%d" % (b + 4 + 4 * i, b + 7 + 4 * i, AD2 + 4 * sl + 2 + ks, so + i * 2048))
        return out

    def mfmas23(s, sub, sset):
        acc = ACC2 if s < 12 else ACC3
        out = []
        for ks in range(2):
            b = FR + 48 * sset + 24 * ks
            first = (s in (0, 12)) and sub == 0 and ks == 0
            for dt in range(5):
                d = acc + dt * 4
                c = "0" if first else "v[%d:%d]" % (d, d + 3)
                out.append("v_mfma_f32_16x16x32_bf16 v[%d:%d], v[%d:%d], v[%d:%d], %s" % (
                    d, d + 3, b + 4 + 4 * dt, b + 7 + 4 * dt, b, b + 3, c))
        return out
    hooks = {0: ht_signal, 11: h_sk, 13: h_gate1, 15: h_gate2, 17: h_gate3}
    for dt in range(5):
        mk_loads(dt)()
    compute_loop(a, 22, reads23, mfmas23, st, hooks, nsub=2)
    st()
    a("s_nop 7")
    for i in range(10):
        r = ACC3 + 2 * i
        a("v_pk_fma_f32 v[%d:%d], v[%d:%d], 2.0, v[%d:%d]" % (r, r + 1, r, r + 1, ACC2 + 2 * i, ACC2 + 2 * i + 1))
    for i in range(10):
        r = ACC3 + 2 * i
        a("v_pk_mul_f32 v[%d:%d], v[%d:%d], v[%d:%d]" % (r, r + 1, r, r + 1, T0 + 2 * i, T0 + 2 * i + 1))
    for i in range(10):
        r = ACC3 + 2 * i
        a("v_pk_add_f32 v[%d:%d], v[%d:%d], v[%d:%d]" % (r, r + 1, r, r + 1, T1 + 2 * i, T1 + 2 * i + 1))
    for dt in range(5):
        a("buffer_store_dwordx4 v[%d:%d], v15, s[80:83], s27 offen offset:%d" % (ACC3 + 4 * dt, ACC3 + 4 * dt + 3, dt * 64))
    st.flush()
    a("s_endpgm")

    a.label(Lld)
    a("s_mul_i32 s20, s13, %d" % (128 * 1280))
    a("s_add_u32 s20, s20, %d" % WS_XN)
    srd_off(a, 64, 10, 11, "s20", 128 * 1280)
    a("s_cmp_eq_u32 s18, 0")
    a("s_cselect_b32 s20, s%d, s%d" % (P_BRE, P_BIM))
    a("s_cselect_b32 s21, s%d, s%d" % (P_BRE + 1, P_BIM + 1))
    a("s_mul_i32 s22, s14, %d" % (40 * 1280))
    srd_off(a, 68, 20, 21, "s22", 40 * 1280)
    a("s_mul_i32 s20, s14, %d" % (96 * 1280))
    a("s_add_u32 s20, s20, %d" % WS_W1T)
    srd_off(a, 72, 10, 11, "s20", 96 * 1280)
    a("v_mul_u32_u24 v5, 1280, v2")
    a("v_lshl_add_u32 v5, v4, 4, v5")
    a("s_mul_i32 s3, s17, 10240")
    a("s_lshl_b32 s4, s17, 10")
    a("s_mul_i32 s5, s19, 10240")
    Lld2 = a.newlabel("M_ld2")
    a("s_cmp_ge_u32 s17, 2")
    a("s_cbranch_scc1 %s" % Lld2)

    def loader(helper):
        vm = VM(a)
        st.n = n0
        nC = 3 if helper else 2

        def dma1(s):
            sl = s % NS
            for i in range(4):
                a("s_add_u32 m0, s4, %d" % (sl * SLOT1 + i * 4096))
                a("s_add_u32 s6, s3, %d" % (i * 40960 + s * 128))
                a("buffer_load_dwordx4 v5, s[64:67], s6 offen lds")
            for i in range(nC):
                a("s_add_u32 m0, s4, %d" % (sl * SLOT1 + 16384 + i * 4096))
                a("s_add_u32 s6, s5, %d" % (i * 20480 + s * 128))
                a("buffer_load_dwordx4 v5, s[68:71], s6 offen lds")
            for i in range(3):
                a("s_add_u32 m0, s4, %d" % (sl * SLOT1 + 26624 + i * 4096))
                a("s_add_u32 s6, s3, %d" % (i * 40960 + s * 128))
                a("buffer_load_dwordx4 v5, s[72:75], s6 offen lds")
            vm.issue(("P1", s), 7 + nC)

        st()
        dma1(0)
        dma1(1)
        a("s_mul_i32 s20, s15, %d" % (64 * 3072))
        a("s_add_u32 s20, s20, %d" % WS_H1)
        srd_off(a, 76, 10, 11, "s20", 64 * 3072)
        a("s_mul_i32 s20, s16, %d" % (80 * 3072))
        a("s_add_u32 s20, s20, %d" % WS_W2T)
        srd_off(a, 80, 10, 11, "s20", 80 * 3072)
        a("s_mul_i32 s20, s15, %d" % (1280 * 128))
        a("s_add_u32 s20, s20, %d" % WS_HT)
        srd_off(a, 84, 10, 11, "s20", 1280 * 128)
        a("s_mul_i32 s20, s16, %d" % (80 * 1280))
        srd_off(a, 88, P_CRE, P_CRE + 1, "s20", 80 * 1280)
        srd_off(a, 92, P_CIM, P_CIM + 1, "s20", 80 * 1280)
        a("v_mul_u32_u24 v16, 3072, v2")
        a("v_lshl_add_u32 v16, v4, 4, v16")
        a("v_and_b32 v10, 1, v6")
        a("s_lshl_b32 s20, s18, 1")
        a("v_or_b32 v10, s20, v10")
        a("v_lshrrev_b32 v11, 1, v3")
        a("v_xor_b32 v10, v10, v11")
        a("v_lshlrev_b32 v10, 4, v10")
        a("v_lshl_add_u32 v10, v2, 6, v10")
        a("v_and_b32 v11, 1, v1")
        a("v_mul_u32_u24 v11, 81920, v11")
        a("v_add_u32 v10, v11, v10")
        a("v_mov_b32 v17, 0")
        a("v_lshrrev_b32 v21, 2, v4")
        a("v_lshlrev_b32 v21, 12, v21")
        a("v_lshl_add_u32 v21, v2, 6, v21")
        a("v_and_b32 v11, 3, v4")
        a("v_lshl_add_u32 v21, v11, 4, v21")
        a("s_lshl_b32 s47, s19, 13")
        a("s_lshl_b32 s20, s18, 9")
        a("s_add_u32 s47, s47, s20")
        a("s_mul_i32 s7, s18, %d" % (8 * 3072))
        a("s_lshl_b32 s20, s19, 7")
        a("s_add_u32 s7, s7, s20")
        a("s_mul_i32 s8, s18, %d" % (8 * 1280))
        a("s_add_u32 s8, s8, s20")
        a("s_lshl_b32 s9, s19, 12")
        a("s_lshl_b32 s20, s18, 9")
        a("s_add_u32 s9, s9, s20")
        a("s_lshl_b32 s20, s18, 10")
        a("s_mul_i32 s46, s19, %d" % SUB)
        a("s_add_u32 s46, s46, s20")
        if helper:
            ffn_setup()
            vm.issue("bias", 3)
        st()
        vm.wait(("P1", 0))
        st()
        def dmaW(s):
            sl = (s + 2) % NS
            for i in range(5):
                a("s_add_u32 m0, s46, %d" % (sl * SLOT23 + 8192 + i * 2048))
                if s < 12:
                    a("s_add_u32 s6, s7, %d" % (i * 16 * 3072 + s * 256))
                    a("buffer_load_dwordx4 v16, s[80:83], s6 offen lds")
                else:
                    s3 = s - 12
                    sr = 88 if s3 < 5 else 92
                    a("s_add_u32 s6, s8, %d" % (i * 16 * 1280 + (s3 % 5) * 256))
                    a("buffer_load_dwordx4 v5, s[%d:%d], s6 offen lds" % (sr, sr + 3))
            vm.issue(("W", s), 5)

        def dmaA(s):
            sl = (s + 2) % NS
            for i in range(4):
                a("s_add_u32 m0, s46, %d" % (sl * SLOT23 + i * 2048))
                if s < 12:
                    a("s_add_u32 s6, s47, %d" % (i * 1024 + s * 16384))
                    a("buffer_load_dwordx4 v21, s[76:79], s6 offen sc1 lds")
                else:
                    a("s_add_u32 s6, s9, %d" % (i * 1024 + (s - 12) * 8192))
                    a("buffer_load_dwordx4 v10, s[84:87], s6 offen sc1 lds")
            vm.issue(("A", s), 4)
        a("s_barrier")
        dma1(2)
        issued = 3
        for s in range(10):
            if s + 1 <= 9:
                vm.wait(("P1", s + 1))
            a("s_barrier")
            st()
            while issued <= min(s + NS, 9):
                dma1(issued)
                issued += 1
            if s >= 6:
                dmaW(s - 6)

        srd_off(a, 64, 10, 11, WS_FLG, 20480)
        if helper:
            ffn_consts()
            lds_wait(a, 18, 15, 0, 1, "M_hw", 0)
            st()
            for i in range(6):
                a("ds_read_b128 v[%d:%d], v14 offset:%d" % (24 + 4 * i, 27 + 4 * i, i * 1024))
            a("s_waitcnt lgkmcnt(0)")
            n = ffn_epi(24, [3])
            vm.issue("st", n)
            a("s_lshl_b32 s29, s13, 1")
            a("s_add_u32 s29, s29, s18")
            a("s_lshl_b32 s29, s29, 8")
            vm.wait("st")
            signal(18, 17, 64, "s29", True)
            a("v_mov_b32 v17, 0")
            st()
        else:
            st()
            st()
        a("s_lshl_b32 s20, s15, 8")

        def chkH(sr):
            a("s_cmp_ge_u32 s%d, 16" % sr)

        def chkH32(sr):
            a("s_cmp_ge_u32 s%d, 32" % sr)
        a("v_mov_b32 v20, %d" % (HAND + 12288))
        if helper:
            lds_wait(a, 18, 20, 12, 1, "M_go")
        else:
            Lnp = a.newlabel("M_np")
            Lgo = a.newlabel("M_go2")
            a("s_cmp_lg_u32 s17, 2")
            a("s_cbranch_scc1 %s" % Lnp)
            lds_wait(a, 18, 20, 8, 4, "M_dn", 2)
            poll(a, 18, 17, 64, "s20", chkH32, "M_h", 4)
            a("v_mov_b32 v18, 1")
            a("ds_write_b32 v20, v18 offset:12")
            a("s_branch %s" % Lgo)
            a.label(Lnp)
            lds_wait(a, 18, 20, 12, 1, "M_go")
            a.label(Lgo)
        vm.drain()
        st()
        for s in range(2):
            dmaA(s)
        vm.wait(("A", 0))
        st()
        a("s_barrier")
        for s in range(2, 4):
            dmaA(s)
        issued = 4
        S = 22
        a("s_lshl_b32 s21, s15, 8")
        a("s_add_u32 s21, s21, 12288")
        for s in range(S):
            if s + 1 <= S - 1:
                vm.wait(("A", s + 1))
            a("s_barrier")
            if STAMP and s % 2 == 1:
                st()
            while issued <= min(s + NS, S - 1):
                if issued == 11:
                    a("buffer_load_dword v19, v17, s[64:67], s21 offen sc1")
                    vm.issue("pollHT", 1)
                dmaW(issued)
                if issued == 12:
                    vm.wait("pollHT")
                    Lok = a.newlabel("M_htok")
                    a("v_readfirstlane_b32 s30, v19")
                    a("s_nop 3")
                    a("s_cmp_ge_u32 s30, 16")
                    a("s_cbranch_scc1 %s" % Lok)
                    poll(a, 19, 17, 64, "s21", chkH, "M_ht")
                    a.label(Lok)
                dmaA(issued)
                issued += 1
        st.flush()
        a("s_endpgm")

    loader(True)
    a.label(Lld2)
    loader(False)
    a.label(Lend)
    a("s_endpgm")
    return name, 256


def gen_k0(a):
    body = Asm()
    body.nlabel = 1000
    nm, vg = gen.gen_k0(body)
    txt = body.lines
    out = []
    for l in txt:
        out.append(l)
    s = "\n".join(out)
    s = s.replace("s_cmp_ge_u32 s2, 253\n", "s_cmp_ge_u32 s2, 256\n")
    pf = Asm()
    pf("s_load_dwordx8 s[40:47], s[0:1], 24")
    pf("s_lshr_b32 s48, s2, 3")
    pf("s_and_b32 s49, s2, 7")
    pf("v_lshlrev_b32 v90, 7, v1")
    pf("s_cmp_eq_u32 s12, 3")
    pf("s_cbranch_scc1 K0_pfdone")
    pf("s_cmp_eq_u32 s12, 0")
    pf("s_cbranch_scc0 K0_pfC")
    pf("s_lshr_b32 s49, s49, 1")
    pf("s_mul_i32 s49, s49, 204800")
    pf("s_mul_i32 s50, s48, 6400")
    pf("s_add_u32 s49, s49, s50")
    pf("s_waitcnt lgkmcnt(0)")
    srd_off(pf, 52, 40, 41, "s49", 6400)
    srd_off(pf, 56, 42, 43, "s49", 6400)
    pf("buffer_load_dword v91, v90, s[52:55], 0 offen")
    pf("buffer_load_dword v92, v90, s[56:59], 0 offen")
    pf("s_branch K0_pfdone")
    pf.label("K0_pfC")
    pf("s_lshr_b32 s49, s49, 2")
    pf("s_mul_i32 s49, s49, 409600")
    pf("s_mul_i32 s50, s48, 12800")
    pf("s_add_u32 s49, s49, s50")
    pf("s_cmp_eq_u32 s12, 1")
    pf("s_waitcnt lgkmcnt(0)")
    pf("s_cselect_b32 s50, s44, s46")
    pf("s_cselect_b32 s51, s45, s47")
    srd_off(pf, 52, 50, 51, "s49", 12800)
    pf("s_movk_i32 s50, 8192")
    pf("buffer_load_dword v91, v90, s[52:55], 0 offen")
    pf("buffer_load_dword v92, v90, s[52:55], s50 offen")
    pf.label("K0_pfdone")
    if int(os.environ.get("PF", "1")):
        s = s.replace("    v_readfirstlane_b32 s12, v2\n", "    v_readfirstlane_b32 s12, v2\n    s_nop 3\n" + "\n".join(pf.lines) + "\n", 1)
    s = s.replace("    s_cmp_ge_u32 s2, 248\n", "    s_cmp_ge_u32 s2, 253\n    s_cbranch_scc1 K0_zero\n    s_cmp_ge_u32 s2, 248\n", 1)
    s = s.replace("v_lshlrev_b32 v5, 2, v2", "v_lshlrev_b32 v5, 6, v2")
    for k in range(10):
        s = s.replace("s_mov_b32 s13, %d\n" % (k * 5120), "s_mov_b32 s13, %d\n" % (k * 4))
    s = s.replace("s_mov_b32 s30, 0x%x\n    s_mov_b32 s31, 0x00020000" % (10 * 5120), "s_mov_b32 s30, 0x%x\n    s_mov_b32 s31, 0x00020000" % (1280 * 64))
    a.lines += s.split("\n")
    a.label("K0_zero")
    a("s_waitcnt lgkmcnt(0)")
    srd_off(a, 16, 10, 11, WS_ET, 1280 * 256)
    srd_off(a, 20, 10, 11, WS_FLG, 20480)
    a("s_sub_u32 s13, s2, 253")
    a("s_lshl_b32 s13, s13, 8")
    a("v_add_u32 v2, s13, v0")
    a("v_mov_b32 v8, 0")
    a("v_mov_b32 v9, 0")
    a("v_mov_b32 v10, 0")
    a("v_mov_b32 v11, 0")
    a("v_lshlrev_b32 v4, 8, v2")
    a("buffer_store_dword v8, v4, s[20:23], 0 offen")
    a("s_endpgm")
    return nm, vg


if __name__ == "__main__":
    gen.WS_TAB = WS_TAB
    ks = [(gen_k0, 256, 256, 0), (gen_mega, 256, 512, 163840)]
    txt = gen.build(ks)
    open(sys.argv[1] if len(sys.argv) > 1 else "cdna_kernels/%s.s" % NAME, "w").write(txt)
```

```python
import sys, os, math
from gen import Asm, srd, srd_off, kernel_header, kernel_desc, fh, KA, LOG2E, DPP8, NAME
import gen

WS_XN = 0x0000000
WS_W2T = 0x0500000
WS_FLG = 0x0780000
WS_H1 = 0x0800000
WS_ET = 0x0F00000
WS_HT = 0x2000000
WS_DBG = 0x3000000
F_XN, F_H1, F_E, F_HT, F_W2, F_SIZE = 0, 4096, 12288, 16384, 24576, 24832

STAMP = int(os.environ.get("STAMP", "0"))
NS = 4
SLOT = 36864
SUB = 18432
MISC = 147456

P_X, P_LRE, P_LIM, P_BRE, P_BIM, P_CRE, P_CIM, P_LDT, P_DSK, P_W1, P_B1, P_W2, P_B2, P_OUT, P_DBG = \
    32, 34, 36, 38, 40, 42, 44, 46, 48, 52, 54, 56, 58, 60, 62


class Stamper:
    def __init__(self, a):
        self.a = a
        self.n = 0

    def __call__(self, real=False):
        if not STAMP:
            return
        a = self.a
        assert self.n < 64
        if self.n == 0 and not real:
            a("v_mov_b32 v255, 0")
            self(True)
        a("s_memrealtime s[100:101]" if real else "s_memtime s[100:101]")
        a("s_waitcnt lgkmcnt(0)")
        a("v_writelane_b32 v255, s100, %d" % self.n)
        self.n += 1

    def flush(self):
        if not STAMP:
            return
        a = self.a
        self()
        self(True)
        a("s_mov_b64 exec, -1")
        a("s_lshl_b32 s100, s2, 3")
        a("s_add_u32 s100, s100, s12")
        a("s_lshl_b32 s100, s100, 8")
        a("s_add_u32 s100, s100, 0x%x" % (WS_DBG + 0x100000))
        srd_off(a, 96, 10, 11, "s100", 256)
        a("v_and_b32 v254, 63, v0")
        a("v_lshlrev_b32 v254, 2, v254")
        a("buffer_store_dword v255, v254, s[96:99], 0 offen")


class VM:
    def __init__(self, a):
        self.a = a
        self.q = []

    def issue(self, tag, n):
        self.q.append((tag, n))

    def wait(self, tag):
        idxs = [i for i, (t, n) in enumerate(self.q) if t == tag]
        if not idxs:
            return
        idx = max(idxs)
        rest = sum(n for t, n in self.q[idx + 1:])
        assert rest <= 63, rest
        self.a("s_waitcnt vmcnt(%d)" % rest)
        self.q = self.q[idx + 1:]

    def drain(self):
        self.a("s_waitcnt vmcnt(0)")
        self.q = []


def interleave(ms, rs):
    out = []
    ri = 0
    for m in ms:
        out.append(m)
        if ri < len(rs):
            out.append(rs[ri])
            ri += 1
    return out + rs[ri:]


def poll(a, vreg, vzero, sflg, soff, check, lbl, slp=4):
    Lp = a.newlabel(lbl + "_poll")
    Ld = a.newlabel(lbl + "_done")
    a("s_mov_b32 s31, 0x100000")
    a.label(Lp)
    a("buffer_load_dword v%d, v%d, s[%d:%d], %s offen sc1" % (vreg, vzero, sflg, sflg + 3, soff))
    a("s_waitcnt vmcnt(0)")
    a("v_readfirstlane_b32 s30, v%d" % vreg)
    a("s_nop 3")
    check(30)
    a("s_cbranch_scc1 %s" % Ld)
    a("s_sleep %d" % slp)
    a("s_sub_u32 s31, s31, 1")
    a("s_cmp_lg_u32 s31, 0")
    a("s_cbranch_scc1 %s" % Lp)
    a.label(Ld)


def lds_wait(a, vtmp, vaddr, off, val, lbl, slp=1):
    Lw = a.newlabel(lbl)
    Ld = a.newlabel(lbl + "d")
    a.label(Lw)
    a("ds_read_b32 v%d, v%d offset:%d" % (vtmp, vaddr, off))
    a("s_waitcnt lgkmcnt(0)")
    a("v_readfirstlane_b32 s30, v%d" % vtmp)
    a("s_nop 3")
    a("s_cmp_ge_u32 s30, %d" % val)
    a("s_cbranch_scc1 %s" % Ld)
    if slp:
        a("s_sleep %d" % slp)
    a("s_branch %s" % Lw)
    a.label(Ld)


def cmul_add(a, items):
    for (d, lr, li, s, ad) in items:
        if ad is None:
            a("v_mul_f32 v%d, v%d, v%d" % (d, lr, s))
        else:
            a("v_fma_f32 v%d, v%d, v%d, v%d" % (d, lr, s, ad))
    if len(items) < 2:
        a("s_nop 1")
    for (d, lr, li, s, ad) in items:
        a("v_fmac_f32_dpp v%d, v%d, v%d %s" % (d, s, li, DPP8))


def gelu_units(a, units, tmp, vK1, sK2, sLO, sHI, sMask):
    P = []
    for ui, (rA, rB, b, d) in enumerate(units):
        for h, r in enumerate((rA, rA + 2, rB, rB + 2)):
            P.append((r, b + 2 * h, d + h, tmp + 8 * ui + 2 * h))
    for (r, b, d, t) in P:
        a("v_cvt_pk_bf16_f32 v%d, v%d, v%d" % (d, r, r + 1))
    for (r, b, d, t) in P:
        a("v_dot2_f32_bf16 v%d, v%d, s%d, v%d" % (r, d, sLO, b))
        a("v_dot2_f32_bf16 v%d, v%d, s%d, v%d" % (r + 1, d, sHI, b + 1))
    a("s_nop 1")
    for (r, b, d, t) in P:
        a("v_cvt_pk_bf16_f32 v%d, v%d, v%d" % (d, r, r + 1))
    for (r, b, d, t) in P:
        a("v_lshlrev_b32 v%d, 16, v%d" % (r, d))
        a("v_and_b32 v%d, s%d, v%d" % (r + 1, sMask, d))
    for (r, b, d, t) in P:
        a("v_pk_mul_f32 v[%d:%d], v[%d:%d], v[%d:%d]" % (t, t + 1, r, r + 1, r, r + 1))
    for (r, b, d, t) in P:
        a("v_pk_fma_f32 v[%d:%d], v[%d:%d], s[%d:%d], v[%d:%d]" % (t, t + 1, t, t + 1, sK2, sK2 + 1, vK1, vK1 + 1))
    for (r, b, d, t) in P:
        a("v_pk_mul_f32 v[%d:%d], v[%d:%d], v[%d:%d]" % (t, t + 1, t, t + 1, r, r + 1))
    for (r, b, d, t) in P:
        a("v_exp_f32 v%d, v%d" % (t, t))
        a("v_exp_f32 v%d, v%d" % (t + 1, t + 1))
    a("s_nop 0")
    for (r, b, d, t) in P:
        a("v_pk_add_f32 v[%d:%d], v[%d:%d], 1.0" % (t, t + 1, t, t + 1))
    for (r, b, d, t) in P:
        a("v_rcp_f32 v%d, v%d" % (t, t))
        a("v_rcp_f32 v%d, v%d" % (t + 1, t + 1))
    a("s_nop 0")
    for (r, b, d, t) in P:
        a("v_pk_mul_f32 v[%d:%d], v[%d:%d], v[%d:%d]" % (r, r + 1, r, r + 1, t, t + 1))
    for (r, b, d, t) in P:
        a("v_cvt_pk_bf16_f32 v%d, v%d, v%d" % (d, r, r + 1))


def gen_uni(a):
    name = NAME + "_kernel"
    kernel_header(a, name)
    st = Stamper(a)
    Lend = a.newlabel("U_end")
    Lld = a.newlabel("U_ld")
    a("s_cmp_ge_u32 s2, 256")
    a("s_cbranch_scc1 %s" % Lend)
    a("s_load_dwordx16 s[32:47], s[0:1], 0")
    a("s_load_dwordx16 s[48:63], s[0:1], 64")
    a("s_load_dwordx2 s[10:11], s[0:1], 128")
    a("v_lshrrev_b32 v2, 6, v0")
    a("v_and_b32 v1, 63, v0")
    a("s_nop 0")
    a("v_readfirstlane_b32 s12, v2")
    a("s_lshr_b32 s20, s2, 3")
    a("s_and_b32 s21, s20, 7")
    a("s_lshr_b32 s20, s20, 3")
    a("s_and_b32 s13, s2, 1")
    a("s_lshl_b32 s13, s13, 3")
    a("s_add_u32 s13, s13, s21")
    a("s_lshr_b32 s14, s2, 1")
    a("s_and_b32 s14, s14, 3")
    a("s_lshl_b32 s14, s14, 2")
    a("s_add_u32 s14, s14, s20")
    a("s_and_b32 s15, s2, 3")
    a("s_lshl_b32 s15, s15, 3")
    a("s_add_u32 s15, s15, s21")
    a("s_lshr_b32 s16, s2, 2")
    a("s_and_b32 s16, s16, 1")
    a("s_lshl_b32 s16, s16, 2")
    a("s_add_u32 s16, s16, s20")
    a("s_and_b32 s17, s12, 3")
    a("s_and_b32 s18, s17, 1")
    a("s_lshr_b32 s19, s17, 1")
    a("v_lshrrev_b32 v2, 3, v1")
    a("v_and_b32 v3, 7, v1")
    a("v_lshrrev_b32 v6, 4, v1")
    a("v_and_b32 v7, 15, v1")
    a("v_xor_b32 v4, v6, v3")
    a("v_lshlrev_b32 v8, 7, v7")
    a("v_lshl_add_u32 v8, v4, 4, v8")
    a("v_xor_b32 v9, 64, v8")
    a("v_xor_b32 v4, v2, v3")
    a("s_waitcnt lgkmcnt(0)")
    srd_off(a, 76, 10, 11, WS_FLG, F_SIZE)
    a("v_mov_b32 v15, %d" % MISC)
    for i in range(4):
        a("v_mov_b32 v%d, 0" % (10 + i))
    a("ds_write_b128 v15, v[10:13]")
    a("s_waitcnt lgkmcnt(0)")
    a("s_barrier")
    st()
    n0 = st.n
    a("s_cmp_ge_u32 s12, 4")
    a("s_cbranch_scc1 %s" % Lld)

    def signal(vd, vz, soff, op="add", val="1"):
        a("v_cmp_eq_u32 vcc, 0, v1")
        a("s_and_saveexec_b64 s[30:31], vcc")
        a("v_mov_b32 v%d, %s" % (vd, val))
        a("v_mov_b32 v%d, 0" % vz)
        a("buffer_atomic_%s v%d, v%d, s[76:79], %s offen" % (op, vd, vz, soff))
        a("s_mov_b64 exec, -1")

    def chk_ge(n):
        return lambda sr: a("s_cmp_ge_u32 s%d, %d" % (sr, n))

    def wait_init(vt, vz, sdbg):
        a("s_waitcnt vmcnt(0)")
        lds_wait(a, vt, 15, 0, 1, "U_ini", 1)

    ACC1, ACC2, ACC3, BRAW, FR, ADR, CON = 16, 56, 16, 64, 76, 172, 196
    Lp0b = a.newlabel("U_p0b")
    Lp0c = a.newlabel("U_p0c")
    Lp0d = a.newlabel("U_p0d")
    a("s_cmp_ge_u32 s17, 2")
    a("s_cbranch_scc1 %s" % Lp0b)
    X0, XF = 76, 96
    a("s_lshl_b32 s20, s13, 7")
    a("s_lshl_b32 s21, s14, 3")
    a("s_add_u32 s20, s20, s21")
    a("s_lshl_b32 s21, s17, 2")
    a("s_add_u32 s20, s20, s21")
    a("s_mul_i32 s20, s20, 1280")
    a("s_lshl_b32 s21, s13, 7")
    a("s_lshr_b32 s22, s14, 2")
    a("s_lshl_b32 s22, s22, 5")
    a("s_add_u32 s21, s21, s22")
    a("s_lshl_b32 s22, s17, 4")
    a("s_add_u32 s21, s21, s22")
    a("s_and_b32 s22, s14, 3")
    a("s_lshl_b32 s22, s22, 2")
    a("s_add_u32 s21, s21, s22")
    a("s_mul_i32 s21, s21, 1280")
    srd(a, 64, P_X, P_X + 1, 2048 * 1280)
    srd_off(a, 68, 10, 11, WS_XN, 2048 * 1280)
    a("v_mul_u32_u24 v10, 1280, v6")
    a("v_lshl_add_u32 v10, v7, 4, v10")
    for m in range(5):
        a("buffer_load_dwordx4 v[%d:%d], v10, s[64:67], s20 offen offset:%d" % (X0 + 4 * m, X0 + 3 + 4 * m, 256 * m))
    a("s_mov_b32 s24, 0xffff0000")
    a("s_waitcnt vmcnt(0)")
    st()
    for i in range(20):
        a("v_lshlrev_b32 v%d, 16, v%d" % (XF + 2 * i, X0 + i))
        a("v_and_b32 v%d, s24, v%d" % (XF + 2 * i + 1, X0 + i))
    S0 = 136
    a("v_pk_add_f32 v[%d:%d], v[%d:%d], v[%d:%d]" % (S0, S0 + 1, XF, XF + 1, XF + 2, XF + 3))
    a("v_pk_add_f32 v[%d:%d], v[%d:%d], v[%d:%d]" % (S0 + 2, S0 + 3, XF + 4, XF + 5, XF + 6, XF + 7))
    for i in range(4, 20):
        d = S0 + 2 * (i & 1)
        a("v_pk_add_f32 v[%d:%d], v[%d:%d], v[%d:%d]" % (d, d + 1, d, d + 1, XF + 2 * i, XF + 2 * i + 1))
    a("v_pk_add_f32 v[%d:%d], v[%d:%d], v[%d:%d]" % (S0, S0 + 1, S0, S0 + 1, S0 + 2, S0 + 3))
    a("v_add_f32 v%d, v%d, v%d" % (S0, S0, S0 + 1))

    def allreduce16(r):
        for sh in (8, 4, 2, 1):
            a("s_nop 1")
            a("v_add_f32_dpp v%d, v%d, v%d row_ror:%d row_mask:0xf bank_mask:0xf" % (r, r, r, sh))
    allreduce16(S0)
    a("v_mul_f32 v%d, %s, v%d" % (S0, fh(-1.0 / 640), S0))
    a("v_mov_b32 v%d, v%d" % (S0 + 1, S0))
    for i in range(20):
        t = S0 + 4 + 2 * (i & 1)
        q = S0 + 8 + 2 * (i & 1)
        a("v_pk_add_f32 v[%d:%d], v[%d:%d], v[%d:%d]" % (t, t + 1, XF + 2 * i, XF + 2 * i + 1, S0, S0 + 1))
        if i < 2:
            a("v_pk_mul_f32 v[%d:%d], v[%d:%d], v[%d:%d]" % (q, q + 1, t, t + 1, t, t + 1))
        else:
            a("v_pk_fma_f32 v[%d:%d], v[%d:%d], v[%d:%d], v[%d:%d]" % (q, q + 1, t, t + 1, t, t + 1, q, q + 1))
    a("v_pk_add_f32 v[%d:%d], v[%d:%d], v[%d:%d]" % (S0 + 8, S0 + 9, S0 + 8, S0 + 9, S0 + 10, S0 + 11))
    a("v_add_f32 v%d, v%d, v%d" % (S0 + 8, S0 + 8, S0 + 9))
    allreduce16(S0 + 8)
    V = S0 + 8
    a("v_mul_f32 v%d, %s, v%d" % (V, fh(1.0 / 640), V))
    a("v_cvt_pk_bf16_f32 v%d, v%d, v%d" % (S0 + 2, S0, V))
    a("v_lshlrev_b32 v%d, 16, v%d" % (S0, S0 + 2))
    a("v_mov_b32 v%d, v%d" % (S0 + 1, S0))
    a("v_and_b32 v%d, s24, v%d" % (V, S0 + 2))
    a("v_add_f32 v%d, %s, v%d" % (V, fh(1e-5), V))
    a("v_cvt_pk_bf16_f32 v%d, v%d, v%d" % (V, V, V))
    a("v_and_b32 v%d, s24, v%d" % (V, V))
    a("v_sqrt_f32 v%d, v%d" % (V, V))
    a("s_nop 0")
    a("v_cvt_pk_bf16_f32 v%d, v%d, v%d" % (V, V, V))
    a("v_and_b32 v%d, s24, v%d" % (V, V))
    RS = S0 + 4
    a("v_rcp_f32 v%d, v%d" % (RS, V))
    a("s_nop 0")
    a("v_fma_f32 v%d, -v%d, v%d, 1.0" % (RS + 2, V, RS))
    a("v_fma_f32 v%d, v%d, v%d, v%d" % (RS, RS + 2, RS, RS))
    a("v_mov_b32 v%d, v%d" % (RS + 1, RS))
    a("v_sub_f32 v%d, 0, v%d" % (V, V))
    a("v_mov_b32 v%d, v%d" % (V + 1, V))
    for i in range(20):
        a("v_pk_add_f32 v[%d:%d], v[%d:%d], v[%d:%d]" % (XF + 2 * i, XF + 2 * i + 1, XF + 2 * i, XF + 2 * i + 1, S0, S0 + 1))
    for i in range(20):
        a("v_cvt_pk_bf16_f32 v%d, v%d, v%d" % (X0 + i, XF + 2 * i, XF + 2 * i + 1))
    Q = 148
    for i in range(20):
        x = XF + 2 * i
        q = Q + 4 * (i & 3)
        a("v_lshlrev_b32 v%d, 16, v%d" % (x, X0 + i))
        a("v_and_b32 v%d, s24, v%d" % (x + 1, X0 + i))
        a("v_pk_mul_f32 v[%d:%d], v[%d:%d], v[%d:%d]" % (q, q + 1, x, x + 1, RS, RS + 1))
        a("v_pk_fma_f32 v[%d:%d], v[%d:%d], v[%d:%d], v[%d:%d]" % (q + 2, q + 3, q, q + 1, V, V + 1, x, x + 1))
        a("v_pk_fma_f32 v[%d:%d], v[%d:%d], v[%d:%d], v[%d:%d]" % (q, q + 1, q + 2, q + 3, RS, RS + 1, q, q + 1))
        a("v_cvt_pk_bf16_f32 v%d, v%d, v%d" % (X0 + i, q, q + 1))
    for m in range(5):
        a("buffer_store_dwordx4 v[%d:%d], v10, s[68:71], s21 offen offset:%d sc1" % (X0 + 4 * m, X0 + 3 + 4 * m, 256 * m))
    st()
    wait_init(11, 12, 92)
    a("s_lshl_b32 s20, s13, 8")
    signal(11, 12, "s20")
    st()
    np0 = st.n
    a("s_branch %s" % Lp0d)

    a.label(Lp0b)
    st.n = n0
    a("s_cmp_eq_u32 s17, 3")
    a("s_cbranch_scc1 %s" % Lp0c)
    a("s_cmp_ge_u32 s2, 240")
    a("s_cbranch_scc1 %s" % Lp0c)
    a("s_mul_hi_u32 s20, s2, 0x%x" % ((1 << 32) // 24 + 1))
    a("s_mul_i32 s21, s20, 24")
    a("s_sub_u32 s21, s2, s21")
    a("s_mul_i32 s22, s21, %d" % (64 * 1280))
    a("s_lshl_b32 s23, s20, 7")
    a("s_add_u32 s22, s22, s23")
    a("v_lshrrev_b32 v10, 2, v3")
    a("v_and_b32 v11, 3, v3")
    a("v_lshlrev_b32 v10, 5, v10")
    a("v_lshl_add_u32 v10, v11, 2, v10")
    a("v_mul_u32_u24 v10, 1280, v10")
    a("v_lshl_add_u32 v10, v2, 4, v10")
    a("v_mul_u32_u24 v11, %d, v2" % (8 * 3072))
    a("v_lshl_add_u32 v11, v3, 4, v11")
    a("s_mul_i32 s23, s20, %d" % (64 * 3072))
    a("s_lshl_b32 s24, s21, 7")
    a("s_add_u32 s23, s23, s24")
    srd(a, 64, P_W2, P_W2 + 1, 1536 * 1280)
    srd_off(a, 68, 10, 11, WS_W2T, 640 * 3072)
    for j in range(8):
        a("s_add_u32 s24, s22, %d" % ((j if j < 4 else 12 + j) * 1280))
        a("buffer_load_dwordx4 v[%d:%d], v10, s[64:67], s24 offen" % (76 + 4 * j, 79 + 4 * j))
    a("s_mov_b32 s26, 0x05040100")
    a("s_mov_b32 s27, 0x07060302")
    a("s_waitcnt vmcnt(0)")
    for i in range(8):
        for m in range(4):
            a("v_perm_b32 v%d, v%d, v%d, s%d" % (108 + 4 * i + m, 76 + 4 * (2 * m + 1) + (i >> 1), 76 + 4 * (2 * m) + (i >> 1), 26 + (i & 1)))
    for i in range(8):
        a("s_add_u32 s24, s23, %d" % (i * 3072))
        a("buffer_store_dwordx4 v[%d:%d], v11, s[68:71], s24 offen sc1" % (108 + 4 * i, 111 + 4 * i))
    wait_init(11, 12, 92)
    a("s_mov_b32 s20, %d" % F_W2)
    signal(11, 12, "s20")
    a("s_branch U_p0pad")
    a.label(Lp0c)
    a("s_cmp_lg_u32 s17, 3")
    a("s_cbranch_scc1 U_p0pad")
    K = lambda c, k: CON + 11 * c + k
    srd(a, 64, P_LRE, P_LRE + 1, 1280)
    srd(a, 68, P_LIM, P_LIM + 1, 1280)
    srd(a, 72, P_LDT, P_LDT + 1, 1280)
    a("s_mul_i32 s20, s14, 80")
    a("v_lshlrev_b32 v10, 1, v3")
    T = 76
    for c in range(5):
        a("buffer_load_ushort v%d, v10, s[64:67], s20 offen offset:%d" % (T + 3 * c, c * 16))
        a("buffer_load_ushort v%d, v10, s[68:71], s20 offen offset:%d" % (T + 3 * c + 1, c * 16))
        a("buffer_load_ushort v%d, v10, s[72:75], s20 offen offset:%d" % (T + 3 * c + 2, c * 16))
    a("v_and_b32 v12, 8, v7")
    a("v_lshlrev_b32 v12, 28, v12")
    a("v_xor_b32 v12, 0x80000000, v12")
    a("v_lshlrev_b32 v13, 3, v6")
    a("v_cvt_f32_u32 v13, v13")
    a("v_mul_u32_u24 v10, 48, v7")
    a("v_add_u32 v10, %d, v10" % (MISC + 2048))
    a("v_lshlrev_b32 v11, 3, v1")
    a("v_add_u32 v11, %d, v11" % (MISC + 6144))
    a("s_waitcnt vmcnt(0)")
    ZR, ZI, W0 = 96, 101, 108
    CT = lambda c, k: 180 + 12 * c + k

    def cpow_all(n, dst):
        ns = n if isinstance(n, str) else fh(n)
        for c in range(5):
            t = W0 + 4 * c
            a("v_mul_f32 v%d, %s, v%d" % (t, ns, ZR + c))
            a("v_mul_f32 v%d, %s, v%d" % (t + 1, ns, ZI + c))
            a("v_exp_f32 v%d, v%d" % (t, t))
            a("v_fract_f32 v%d, v%d" % (t + 1, t + 1))
            a("v_cos_f32 v%d, v%d" % (t + 2, t + 1))
            a("v_sin_f32 v%d, v%d" % (t + 3, t + 1))
        a("s_nop 0")
        for c in range(5):
            t = W0 + 4 * c
            a("v_mul_f32 v%d, v%d, v%d" % (dst(c), t, t + 2))
            a("v_mul_f32 v%d, v%d, v%d" % (dst(c) + 1, t, t + 3))
    for c in range(5):
        lre, lim, ldt = T + 3 * c, T + 3 * c + 1, T + 3 * c + 2
        a("v_lshlrev_b32 v%d, 16, v%d" % (lre, lre))
        a("v_lshlrev_b32 v%d, 16, v%d" % (lim, lim))
        a("v_lshlrev_b32 v%d, 16, v%d" % (ldt, ldt))
        a("v_mul_f32 v%d, %s, v%d" % (ldt, fh(LOG2E), ldt))
        a("v_exp_f32 v%d, v%d" % (ldt, ldt))
        a("s_nop 0")
        a("v_cvt_pk_bf16_f32 v%d, v%d, v%d" % (ldt, ldt, ldt))
        a("v_and_b32 v%d, 0xffff0000, v%d" % (ldt, ldt))
        a("v_mul_f32 v%d, v%d, v%d" % (ZR + c, ldt, lre))
        a("v_mul_f32 v%d, v%d, v%d" % (ZI + c, ldt, lim))
        a("v_mul_f32 v%d, %s, v%d" % (ZR + c, fh(LOG2E), ZR + c))
        a("v_mul_f32 v%d, 0.15915494, v%d" % (ZI + c, ZI + c))
    cpow_all(1.0, lambda c: CT(c, 0))
    for c in range(5):
        lre, lim = T + 3 * c, T + 3 * c + 1
        t = W0 + 4 * c
        a("v_add_f32 v%d, -1.0, v%d" % (t, CT(c, 0)))
        a("v_mul_f32 v%d, v%d, v%d" % (t + 1, lre, lre))
        a("v_fmac_f32 v%d, v%d, v%d" % (t + 1, lim, lim))
        a("v_rcp_f32 v%d, v%d" % (t + 2, t + 1))
        a("s_nop 0")
        a("v_fma_f32 v%d, -v%d, v%d, 1.0" % (t + 3, t + 1, t + 2))
        a("v_fma_f32 v%d, v%d, v%d, v%d" % (t + 2, t + 3, t + 2, t + 2))
        a("v_mul_f32 v%d, v%d, v%d" % (CT(c, 2), t, lre))
        a("v_fmac_f32 v%d, v%d, v%d" % (CT(c, 2), CT(c, 1), lim))
        a("v_mul_f32 v%d, v%d, v%d" % (CT(c, 3), CT(c, 1), lre))
        a("v_fma_f32 v%d, -v%d, v%d, v%d" % (CT(c, 3), t, lim, CT(c, 3)))
        a("v_mul_f32 v%d, v%d, v%d" % (CT(c, 2), CT(c, 2), t + 2))
        a("v_mul_f32 v%d, v%d, v%d" % (CT(c, 3), CT(c, 3), t + 2))
    for n, k in ((8.0, 4), (32.0, 6), (128.0, 8), (512.0, 10)):
        cpow_all(n, lambda c: CT(c, k))
    for c in range(5):
        for k in (1, 3, 5, 7, 9, 11):
            a("v_xor_b32 v%d, v12, v%d" % (CT(c, k), CT(c, k)))
        for k in range(3):
            a("ds_write_b128 v10, v[%d:%d] offset:%d" % (CT(c, 4 * k), CT(c, 4 * k + 3), c * 768 + k * 16))
    for w in range(4):
        AT = lambda c: 130 + 10 * (w & 1) + 2 * c
        cpow_all("v13", AT)
        for c in range(5):
            a("v_xor_b32 v%d, v12, v%d" % (AT(c) + 1, AT(c) + 1))
            a("ds_write_b64 v11, v[%d:%d] offset:%d" % (AT(c), AT(c) + 1, w * 2560 + c * 512))
        if w < 3:
            a("v_add_f32 v13, 0x42000000, v13")
    a.label("U_p0pad")
    while st.n < np0:
        st()
    a.label(Lp0d)
    srd(a, 80, P_B1, P_B1 + 1, 3072)
    a("s_mul_i32 s21, s14, 192")
    a("v_lshlrev_b32 v11, 3, v6")
    for nt in range(6):
        a("buffer_load_dwordx2 v[%d:%d], v11, s[80:83], s21 offen offset:%d" % (BRAW + 2 * nt, BRAW + 2 * nt + 1, nt * 32))

    a("v_lshrrev_b32 v10, 2, v7")
    a("v_and_b32 v11, 3, v7")
    a("v_lshrrev_b32 v12, 1, v6")
    a("v_and_b32 v13, 1, v6")
    a("v_lshlrev_b32 v12, 4, v12")
    a("v_lshl_add_u32 v12, v13, 2, v12")
    a("v_add_u32 v12, v12, v10")
    a("v_lshlrev_b32 v12, 6, v12")
    a("v_lshl_add_u32 v12, v13, 5, v12")
    a("v_lshl_add_u32 v12, v11, 3, v12")
    a("v_xor_b32 v13, 32, v12")
    a("s_lshl_b32 s20, s17, 12")
    for sl in range(NS):
        a("s_add_u32 s21, s20, %d" % (sl * SLOT))
        a("v_add_u32 v%d, s21, v8" % (ADR + 6 * sl))
        a("v_add_u32 v%d, s21, v9" % (ADR + 6 * sl + 1))
        a("v_add_u32 v%d, %d, v12" % (ADR + 6 * sl + 2, sl * SLOT + 16384))
        a("v_add_u32 v%d, %d, v13" % (ADR + 6 * sl + 3, sl * SLOT + 16384))
        a("v_add_u32 v%d, %d, v8" % (ADR + 6 * sl + 4, sl * SLOT + 16384))
        a("v_add_u32 v%d, %d, v9" % (ADR + 6 * sl + 5, sl * SLOT + 16384))
    a("s_waitcnt lgkmcnt(0)")

    def reads(s, sub, sset):
        sl = s % NS
        A = ADR + 6 * sl
        out = []
        if s < 10:
            b = FR + 48 * sset
            order = [("N", 0), ("T", 0), ("T", 1), ("N", 1), ("N", 2), ("N", 3), ("N", 4), ("N", 5)]
            for k, i in order:
                if k == "T":
                    out.append("ds_read_b128 v[%d:%d], v%d offset:%d" % (b + 4 * i, b + 4 * i + 3, A + sub, i * 2048))
                else:
                    o = (i >> 1) * 4096 + sub * 2048
                    r = b + 8 + 4 * i
                    out.append("ds_read_b64_tr_b16 v[%d:%d], v%d offset:%d" % (r, r + 1, A + 2 + (i & 1), o))
                    out.append("ds_read_b64_tr_b16 v[%d:%d], v%d offset:%d" % (r + 2, r + 3, A + 2 + (i & 1), o + 512))
        elif s < 20:
            b = FR + 48 * sset
            for k, i in [("N", 0), ("T", 0), ("T", 1), ("N", 1), ("N", 2), ("N", 3), ("N", 4)]:
                if k == "T":
                    out.append("ds_read_b128 v[%d:%d], v%d offset:%d" % (b + 4 * i, b + 4 * i + 3, A + sub, i * 2048))
                else:
                    out.append("ds_read_b128 v[%d:%d], v%d offset:%d" % (b + 8 + 4 * i, b + 11 + 4 * i, A + 4 + sub, i * 2048))
        else:
            so = sub * SUB
            for ks in range(2):
                b = FR + 48 * sset + 24 * ks
                for k, i in [("D", 0), ("T", 0), ("D", 1), ("D", 2), ("D", 3), ("D", 4)]:
                    if k == "T":
                        if s < 32:
                            out.append("ds_read_b128 v[%d:%d], v%d offset:%d" % (b, b + 3, A + ks, so))
                        else:
                            out.append("ds_read_b64_tr_b16 v[%d:%d], v%d offset:%d" % (b, b + 1, A + 2, so + ks * 4096))
                            out.append("ds_read_b64_tr_b16 v[%d:%d], v%d offset:%d" % (b + 2, b + 3, A + 2, so + ks * 4096 + 512))
                    else:
                        out.append("ds_read_b128 v[%d:%d], v%d offset:%d" % (b + 4 + 4 * i, b + 7 + 4 * i, A + 4 + ks, so + i * 2048))
        return out

    def mf(d, av, bv, first):
        return "v_mfma_f32_16x16x32_bf16 v[%d:%d], v[%d:%d], v[%d:%d], %s" % (
            d, d + 3, av, av + 3, bv, bv + 3, "0" if first else "v[%d:%d]" % (d, d + 3))

    def mfmas(s, sub, sset):
        out = []
        if s < 10:
            b = FR + 48 * sset
            for nt in range(6):
                for j in range(2):
                    out.append(mf(ACC1 + (j * 6 + nt) * 4, b + 8 + 4 * nt, b + 4 * j, s == 0 and sub == 0))
        elif s < 20:
            b = FR + 48 * sset
            for c in range(5):
                for j in range(2):
                    out.append(mf(ACC1 + (c * 2 + j) * 4, b + 4 * j, b + 8 + 4 * c, s == 10 and sub == 0))
        else:
            acc = ACC2 if s < 32 else ACC3
            for ks in range(2):
                b = FR + 48 * sset + 24 * ks
                for dt in range(5):
                    out.append(mf(acc + dt * 4, b + 4 + 4 * dt, b, s in (20, 32) and sub == 0 and ks == 0))
        return out

    F1 = FR + 48

    def f1_epi():
        st()
        a("s_waitcnt vmcnt(0)")
        a("s_lshl_b32 s24, s13, 1")
        a("s_add_u32 s24, s24, s19")
        a("s_lshl_b32 s29, s24, 8")
        a("s_add_u32 s29, s29, %d" % F_H1)
        a("s_mul_i32 s24, s24, 196608")
        a("s_mul_i32 s25, s14, 12288")
        a("s_add_u32 s24, s24, s25")
        a("s_lshl_b32 s25, s18, 11")
        a("s_add_u32 s24, s24, s25")
        a("s_add_u32 s24, s24, %d" % WS_H1)
        srd_off(a, 20, 10, 11, "s24", 12288)
        a("v_lshrrev_b32 v10, 2, v7")
        a("v_and_b32 v11, 3, v7")
        a("v_lshl_add_u32 v10, v10, 3, v11")
        a("v_lshlrev_b32 v10, 6, v10")
        a("v_lshl_add_u32 v10, v6, 4, v10")
        a("s_mov_b32 s24, 0xffff0000")
        a("s_mov_b32 s25, 0x00003f80")
        a("s_mov_b32 s26, %s" % fh(-2 * math.sqrt(2 / math.pi) * LOG2E * 0.044715))
        a("s_mov_b32 s27, s26")
        a("s_mov_b32 s28, 0x3f800000")
        a("v_mov_b32 v12, %s" % fh(-2 * math.sqrt(2 / math.pi) * LOG2E))
        a("v_mov_b32 v13, v12")
        BF, DST, TMP = F1, F1 + 8, F1 + 32
        for aa in range(3):
            for i in range(4):
                a("v_lshlrev_b32 v%d, 16, v%d" % (BF + 2 * i, BRAW + 4 * aa + i))
                a("v_and_b32 v%d, s24, v%d" % (BF + 2 * i + 1, BRAW + 4 * aa + i))
            d0 = DST + 8 * aa
            units = [(ACC1 + (j * 6 + 2 * aa) * 4, ACC1 + (j * 6 + 2 * aa + 1) * 4, BF, d0 + 4 * j) for j in range(2)]
            gelu_units(a, units, TMP, 12, 26, 25, 28, 24)
            a("s_mov_b32 s30, %d" % (aa * 4096))
            for j in range(2):
                a("buffer_store_dwordx4 v[%d:%d], v10, s[20:23], s30 offen offset:%d sc1" % (d0 + 4 * j, d0 + 4 * j + 3, j * 256))
        st()

    def f1_signal():
        a("s_waitcnt vmcnt(0)")
        signal(10, 11, "s29")
        st()

    def k_fetch():
        a("v_mul_u32_u24 v14, 48, v7")
        a("v_add_u32 v14, %d, v14" % (MISC + 2048))
        a("s_mul_i32 s20, s17, 2560")
        a("s_add_u32 s20, s20, %d" % (MISC + 6144))
        a("v_lshl_add_u32 v13, v1, 3, s20")
        for c in range(5):
            for k in range(8):
                a("ds_read_b32 v%d, v14 offset:%d" % (K(c, k), c * 768 + k * 4))
            a("ds_read_b32 v%d, v13 offset:%d" % (K(c, 8), c * 512))
            a("ds_read_b32 v%d, v13 offset:%d" % (K(c, 9), c * 512 + 4))
            a("s_waitcnt lgkmcnt(0)")

    EQ = F1
    EW = F1 + 20
    TM = F1 + 40

    def s1_epi():
        st()
        a("s_nop 7")
        G = lambda c, i: ACC1 + c * 8 + i
        for i in range(8):
            for c in range(5):
                a("v_mul_f32 v%d, v%d, v%d" % (TM + c, K(c, 2), G(c, i)))
            for c in range(5):
                a("v_fmac_f32_dpp v%d, v%d, v%d %s" % (TM + c, G(c, i), K(c, 3), DPP8))
            if i == 0:
                for c in range(5):
                    a("v_mov_b32 v%d, v%d" % (G(c, 0), TM + c))
            else:
                for c in range(5):
                    a("v_fma_f32 v%d, v%d, v%d, v%d" % (G(c, i), K(c, 0), G(c, i - 1), TM + c))
                for c in range(5):
                    a("v_fmac_f32_dpp v%d, v%d, v%d %s" % (G(c, i), G(c, i - 1), K(c, 1), DPP8))
        a("v_lshlrev_b32 v5, 2, v7")
        for q in range(4):
            a("v_add_u32 v%d, %d, v5" % (10 + q, q * 64))
        for q in range(4):
            for c in range(5):
                a("ds_bpermute_b32 v%d, v%d, v%d" % (EQ + c * 4 + q, 10 + q, G(c, 7)))
        a("s_waitcnt lgkmcnt(0)")
        cmul_add(a, [(EW + c * 4 + 1, K(c, 4), K(c, 5), EQ + c * 4, EQ + c * 4 + 1) for c in range(5)])
        for q in range(2, 4):
            cmul_add(a, [(EW + c * 4 + q, K(c, 4), K(c, 5), EW + c * 4 + q - 1, EQ + c * 4 + q) for c in range(5)])
        a("s_mul_i32 s20, s17, 320")
        a("s_add_u32 s20, s20, %d" % (MISC + 256))
        a("v_add_u32 v%d, s20, v5" % TM)
        for c in range(5):
            a("ds_write_b32 v%d, v%d offset:%d" % (TM, EW + c * 4 + 3, c * 64))
        a("s_waitcnt lgkmcnt(0)")
        a("v_cmp_eq_u32 vcc, 0, v1")
        a("s_and_saveexec_b64 s[30:31], vcc")
        a("v_mov_b32 v%d, 1" % (TM + 1))
        a("ds_add_u32 v15, v%d offset:8" % (TM + 1))
        a("s_mov_b64 exec, -1")
        lds_wait(a, TM + 1, 15, 8, 4, "U_ex", 0)
        a("v_add_u32 v%d, %d, v5" % (TM, MISC + 256))
        for w in range(4):
            for c in range(5):
                a("ds_read_b32 v%d, v%d offset:%d" % (EW + c * 4 + w, TM, w * 320 + c * 64))
        a("s_waitcnt lgkmcnt(0)")
        for w in range(1, 4):
            cmul_add(a, [(EW + c * 4 + w, K(c, 6), K(c, 7), EW + c * 4 + w - 1, EW + c * 4 + w) for c in range(5)])
        a("s_mul_i32 s20, s14, 5120")
        a("s_add_u32 s20, s20, %d" % WS_ET)
        srd_off(a, 68, 10, 11, "s20", 5120)
        Lnp = a.newlabel("U_nopub")
        a("s_cmp_lg_u32 s17, 0")
        a("s_cbranch_scc1 %s" % Lnp)
        a("s_mul_i32 s20, s13, 320")
        a("v_cmp_gt_u32 vcc, 16, v1")
        a("s_and_saveexec_b64 s[30:31], vcc")
        for c in range(5):
            a("buffer_store_dword v%d, v5, s[68:71], s20 offen offset:%d sc1" % (EW + c * 4 + 3, c * 64))
        a("s_mov_b64 exec, -1")
        a.label(Lnp)
        for w in range(1, 4):
            a("s_cmp_eq_u32 s17, %d" % w)
            a("s_cselect_b64 s[%d:%d], -1, 0" % (80 + 2 * w, 81 + 2 * w))
        for c in range(5):
            a("v_cndmask_b32 v%d, 0, v%d, s[82:83]" % (K(c, 10), EW + c * 4))
        for c in range(5):
            a("v_cndmask_b32 v%d, v%d, v%d, s[84:85]" % (K(c, 10), K(c, 10), EW + c * 4 + 1))
        for c in range(5):
            a("v_cndmask_b32 v%d, v%d, v%d, s[86:87]" % (K(c, 10), K(c, 10), EW + c * 4 + 2))
        cmul_add(a, [(EW + c * 4, K(c, 4), K(c, 5), K(c, 10), EQ + c * 4) for c in range(5)])
        for q in range(1, 3):
            cmul_add(a, [(EW + c * 4 + q, K(c, 4), K(c, 5), EW + c * 4 + q - 1, EQ + c * 4 + q) for c in range(5)])
        a("v_cmp_eq_u32 s[82:83], 1, v6")
        a("v_cmp_eq_u32 s[84:85], 2, v6")
        a("v_cmp_eq_u32 s[86:87], 3, v6")
        a("s_nop 1")
        for q in range(3):
            for c in range(5):
                a("v_cndmask_b32 v%d, v%d, v%d, s[%d:%d]" % (K(c, 10), K(c, 10), EW + c * 4 + q, 82 + 2 * q, 83 + 2 * q))
        for c in range(5):
            for k in range(4):
                a("ds_read_b32 v%d, v14 offset:%d" % (K(c, 4 + k), c * 768 + 32 + k * 4))
        st()

    def e_signal():
        Lnp = a.newlabel("U_nosig")
        a("s_cmp_lg_u32 s17, 0")
        a("s_cbranch_scc1 %s" % Lnp)
        a("s_waitcnt vmcnt(0)")
        a("s_lshl_b32 s20, 1, s13")
        a("s_lshl_b32 s21, s14, 8")
        a("s_add_u32 s21, s21, %d" % F_E)
        signal(TM, TM + 1, "s21", "or", "s20")
        a.label(Lnp)

    def p23_addr():
        t0, t1, t2 = TM, TM + 1, TM + 2
        a("v_lshrrev_b32 v%d, 2, v7" % t0)
        a("v_and_b32 v%d, 3, v7" % t1)
        a("v_lshl_add_u32 v%d, v6, 3, v%d" % (t2, t0))
        a("v_lshlrev_b32 v%d, 7, v%d" % (t2, t2))
        a("v_lshl_add_u32 v%d, v%d, 3, v%d" % (t2, t1, t2))
        a("v_lshrrev_b32 v%d, 1, v%d" % (t0, t0))
        a("v_and_b32 v%d, 1, v6" % t1)
        a("v_lshl_add_u32 v%d, v%d, 1, v%d" % (t0, t1, t0))
        a("v_xor_b32 v%d, s17, v%d" % (t0, t0))
        a("v_lshl_add_u32 v%d, v%d, 5, v%d" % (t2, t0, t2))
        a("s_lshl_b32 s20, s17, 11")
        for sl in range(NS):
            a("s_add_u32 s21, s20, %d" % (sl * SLOT))
            a("v_add_u32 v%d, s21, v8" % (ADR + 6 * sl))
            a("v_add_u32 v%d, s21, v9" % (ADR + 6 * sl + 1))
            a("v_add_u32 v%d, %d, v%d" % (ADR + 6 * sl + 2, sl * SLOT, t2))
            a("v_add_u32 v%d, %d, v8" % (ADR + 6 * sl + 4, sl * SLOT + 8192))
            a("v_add_u32 v%d, %d, v9" % (ADR + 6 * sl + 5, sl * SLOT + 8192))

    EVR = [[K(c, 2), K(c, 3)] for c in range(5)]
    spare = [ADR + 3, ADR + 9, ADR + 15, ADR + 21, 251, 252, 253, 10, 11, 12]
    for c in range(5):
        EVR[c] += [spare[2 * c], spare[2 * c + 1]]

    EB = MISC + 6144

    def e_zero():
        a("s_mul_i32 s20, s17, 1280")
        a("s_add_u32 s20, s20, %d" % EB)
        a("v_lshl_add_u32 v13, v1, 2, s20")
        a("v_mov_b32 v12, 0")
        for i in range(5):
            a("ds_write_b32 v13, v12 offset:%d" % (i * 256))

    def fx_carry():
        st()
        a("v_lshl_add_u32 v13, v6, 2, s13")
        a("v_mul_u32_u24 v13, 320, v13")
        a("v_add_u32 v13, v13, v5")
        a("v_add_u32 v13, %d, v13" % EB)
        for e in range(4):
            for c in range(5):
                a("ds_read_b32 v%d, v13 offset:%d" % (EVR[c][e], e * 320 + c * 64))
        a("s_waitcnt lgkmcnt(0)")
        for e in range(1, 4):
            cmul_add(a, [(EVR[c][e], K(c, 4), K(c, 5), EVR[c][e - 1], EVR[c][e]) for c in range(5)])
        PQ = F1
        for q in range(4):
            a("v_add_u32 v%d, %d, v5" % (F1 + 40 + q, q * 64))
        for c in range(5):
            for q in range(4):
                a("ds_bpermute_b32 v%d, v%d, v%d" % (PQ + 4 * c + q, F1 + 40 + q, EVR[c][3]))
        a("s_waitcnt lgkmcnt(0)")
        for q in range(1, 4):
            cmul_add(a, [(PQ + 4 * c + q, K(c, 6), K(c, 7), PQ + 4 * c + q - 1, PQ + 4 * c + q) for c in range(5)])
        cmul_add(a, [(K(c, 10), K(c, 8), K(c, 9), PQ + 4 * c + 3, K(c, 10)) for c in range(5)])
        CC = F1 + 20
        G = lambda c, i: ACC1 + c * 8 + i
        for i in range(8):
            cmul_add(a, [(CC + 2 * c + (i & 1), K(c, 0), K(c, 1), K(c, 10) if i == 0 else CC + 2 * c + ((i - 1) & 1), None) for c in range(5)])
            if i & 1:
                for c in range(5):
                    u = G(c, i - 1)
                    a("v_pk_add_f32 v[%d:%d], v[%d:%d], v[%d:%d]" % (u, u + 1, u, u + 1, CC + 2 * c, CC + 2 * c + 1))
        a("s_lshl_b32 s20, s13, 1")
        a("s_add_u32 s20, s20, s19")
        a("s_lshl_b32 s29, s20, 8")
        a("s_add_u32 s29, s29, %d" % F_HT)
        a("s_mul_i32 s20, s20, 163840")
        a("s_mul_i32 s21, s18, 81920")
        a("s_add_u32 s20, s20, s21")
        a("s_add_u32 s20, s20, %d" % WS_HT)
        srd_off(a, 72, 10, 11, "s20", 81920)
        a("v_lshrrev_b32 v10, 3, v7")
        a("v_mul_u32_u24 v11, 640, v10")
        a("v_add_u32 v11, v11, v3")
        a("v_lshlrev_b32 v11, 6, v11")
        a("v_lshl_add_u32 v11, v6, 4, v11")
        a("v_mul_u32_u24 v10, 0x8000, v10")
        a("v_lshl_add_u32 v10, v10, 16, v10")
        a("s_mul_i32 s20, s14, 2560")
        PKH = CON
        for c in range(5):
            for j in range(4):
                a("v_cvt_pk_bf16_f32 v%d, v%d, v%d" % (PKH + 4 * c + j, G(c, 2 * j), G(c, 2 * j + 1)))
        for c in range(5):
            for j in range(4):
                a("v_xor_b32 v%d, v10, v%d" % (PKH + 4 * c + j, PKH + 4 * c + j))
            a("buffer_store_dwordx4 v[%d:%d], v11, s[72:75], s20 offen offset:%d sc1" % (PKH + 4 * c, PKH + 4 * c + 3, c * 512))
        st()

    XR, XNR, DS, B2 = 36, 46, 216, 226
    T0, T1 = 196, 234
    PK = DS

    def fx_signal():
        a("s_waitcnt vmcnt(0)")
        signal(10, 11, "s29")
        a("s_lshl_b32 s21, s15, 6")
        a("s_lshl_b32 s22, s17, 4")
        a("s_add_u32 s21, s21, s22")
        a("s_mul_i32 s22, s21, 1280")
        a("s_mul_i32 s23, s16, 160")
        a("s_add_u32 s22, s22, s23")
        srd(a, 80, P_OUT, P_OUT + 1, 2048 * 2560)
        a("v_mul_u32_u24 v15, 2560, v7")
        a("v_lshl_add_u32 v15, v6, 4, v15")
        a("s_lshl_b32 s27, s22, 1")
        a("s_mov_b32 s20, 0xffff0000")
        a("s_mov_b32 s21, 0x00003f80")
        a("s_mov_b32 s26, 0x3f800000")
        a("s_mov_b32 s88, %s" % fh(-LOG2E))
        a("s_mov_b32 s89, s88")
        a("v_lshlrev_b32 v14, 3, v6")
        a("v_add_u32 v14, %d, v14" % (MISC + 1536))
        for dt in range(5):
            a("ds_read_b64 v[%d:%d], v14 offset:%d" % (B2 + 2 * dt, B2 + 2 * dt + 1, dt * 32))
            a("ds_read_b64 v[%d:%d], v14 offset:%d" % (DS + 2 * dt, DS + 2 * dt + 1, 256 + dt * 32))
        a("s_mul_i32 s22, s17, 2560")
        a("s_add_u32 s22, s22, %d" % (2 * SLOT))
        a("v_mul_u32_u24 v10, 160, v7")
        a("v_lshl_add_u32 v10, v6, 3, v10")
        a("v_add_u32 v10, s22, v10")

    DF = XR

    def h_sk():
        for i in range(10):
            a("v_lshlrev_b32 v%d, 16, v%d" % (DF + 2 * i, DS + i))
            a("v_and_b32 v%d, s20, v%d" % (DF + 2 * i + 1, DS + i))
        for i in reversed(range(10)):
            a("v_and_b32 v%d, s20, v%d" % (T1 + 2 * i + 1, B2 + i))
            a("v_lshlrev_b32 v%d, 16, v%d" % (T1 + 2 * i, B2 + i))

    def h_gate1():
        for i in range(10):
            a("v_cvt_pk_bf16_f32 v%d, v%d, v%d" % (PK + i, ACC2 + 2 * i, ACC2 + 2 * i + 1))
        for i in range(10):
            a("v_dot2_f32_bf16 v%d, v%d, s21, v%d" % (ACC2 + 2 * i, PK + i, T1 + 2 * i))
            a("v_dot2_f32_bf16 v%d, v%d, s26, v%d" % (ACC2 + 2 * i + 1, PK + i, T1 + 2 * i + 1))
        a("s_nop 1")
        for i in range(10):
            a("v_cvt_pk_bf16_f32 v%d, v%d, v%d" % (PK + i, ACC2 + 2 * i, ACC2 + 2 * i + 1))
        for i in range(10):
            a("v_lshlrev_b32 v%d, 16, v%d" % (ACC2 + 2 * i, PK + i))
            a("v_and_b32 v%d, s20, v%d" % (ACC2 + 2 * i + 1, PK + i))
        for i in range(10):
            a("v_pk_mul_f32 v[%d:%d], v[%d:%d], s[88:89]" % (T0 + 2 * i, T0 + 2 * i + 1, ACC2 + 2 * i, ACC2 + 2 * i + 1))

    def h_gate2():
        for i in range(20):
            a("v_exp_f32 v%d, v%d" % (T0 + i, T0 + i))
        a("s_nop 0")
        for i in range(10):
            a("v_pk_add_f32 v[%d:%d], v[%d:%d], 1.0" % (T0 + 2 * i, T0 + 2 * i + 1, T0 + 2 * i, T0 + 2 * i + 1))
        for i in range(20):
            a("v_rcp_f32 v%d, v%d" % (T0 + i, T0 + i))
        a("s_nop 0")

    def h_gate3():
        for i in range(10):
            a("v_pk_mul_f32 v[%d:%d], v[%d:%d], v[%d:%d]" % (ACC2 + 2 * i, ACC2 + 2 * i + 1, ACC2 + 2 * i, ACC2 + 2 * i + 1, T0 + 2 * i, T0 + 2 * i + 1))
        for i in range(10):
            a("v_cvt_pk_bf16_f32 v%d, v%d, v%d" % (PK + i, ACC2 + 2 * i, ACC2 + 2 * i + 1))
        for i in range(10):
            a("v_lshlrev_b32 v%d, 16, v%d" % (T0 + 2 * i, PK + i))
            a("v_and_b32 v%d, s20, v%d" % (T0 + 2 * i + 1, PK + i))

    def h_fin():
        RX, RN = FR, FR + 10
        for dt in range(5):
            a("ds_read_b64 v[%d:%d], v10 offset:%d" % (RN + 2 * dt, RN + 2 * dt + 1, 10240 + dt * 32))
        for dt in range(5):
            a("ds_read_b64 v[%d:%d], v10 offset:%d" % (RX + 2 * dt, RX + 2 * dt + 1, dt * 32))
        a("s_waitcnt lgkmcnt(5)")
        for i in range(10):
            a("v_lshlrev_b32 v%d, 16, v%d" % (ACC2 + 2 * i, RN + i))
            a("v_and_b32 v%d, s20, v%d" % (ACC2 + 2 * i + 1, RN + i))
        for i in range(10):
            a("v_pk_mul_f32 v[%d:%d], v[%d:%d], v[%d:%d]" % (ACC2 + 2 * i, ACC2 + 2 * i + 1, ACC2 + 2 * i, ACC2 + 2 * i + 1, DF + 2 * i, DF + 2 * i + 1))
        for i in range(10):
            a("v_cvt_pk_bf16_f32 v%d, v%d, v%d" % (RN + i, ACC2 + 2 * i, ACC2 + 2 * i + 1))
        a("s_waitcnt lgkmcnt(0)")
        for i in range(10):
            a("v_lshlrev_b32 v%d, 16, v%d" % (ACC2 + 2 * i, RN + i))
            a("v_and_b32 v%d, s20, v%d" % (ACC2 + 2 * i + 1, RN + i))
            a("v_lshlrev_b32 v%d, 16, v%d" % (T1 + 2 * i, RX + i))
            a("v_and_b32 v%d, s20, v%d" % (T1 + 2 * i + 1, RX + i))

    hooks = {9: [lambda: a("s_nop 7"), f1_epi], 11: [f1_signal], 14: [k_fetch], 16: [e_zero],
             23: [fx_carry], 25: [fx_signal], 27: [h_sk],
             33: [h_gate1], 35: [h_gate2], 37: [h_gate3], 41: [h_fin]}

    def run(s0, s1, pre_barrier):
        st()
        a("s_barrier")
        st()
        for r in reads(s0, 0, 0):
            a(r)
        for s in range(s0, s1):
            a("s_waitcnt lgkmcnt(0)")
            for x in interleave(mfmas(s, 0, 0), reads(s, 1, 1)):
                a(x)
            a("s_waitcnt lgkmcnt(0)")
            a("s_barrier")
            if STAMP and s % 2 == 1:
                st()
            rs = reads(s + 1, 0, 0) if s + 1 < s1 else []
            for x in interleave(mfmas(s, 1, 1), rs):
                a(x)
            for h in hooks.get(s, []):
                h()
    run(0, 20, None)
    s1_epi()
    p23_addr()
    e_signal()
    run(20, 42, None)
    st()
    a("s_nop 7")
    for i in range(10):
        r = ACC3 + 2 * i
        a("v_pk_fma_f32 v[%d:%d], v[%d:%d], 2.0, v[%d:%d]" % (r, r + 1, r, r + 1, ACC2 + 2 * i, ACC2 + 2 * i + 1))
    for i in range(10):
        r = ACC3 + 2 * i
        a("v_pk_mul_f32 v[%d:%d], v[%d:%d], v[%d:%d]" % (r, r + 1, r, r + 1, T0 + 2 * i, T0 + 2 * i + 1))
    for i in range(10):
        r = ACC3 + 2 * i
        a("v_pk_add_f32 v[%d:%d], v[%d:%d], v[%d:%d]" % (r, r + 1, r, r + 1, T1 + 2 * i, T1 + 2 * i + 1))
    for dt in range(5):
        a("buffer_store_dwordx4 v[%d:%d], v15, s[80:83], s27 offen offset:%d" % (ACC3 + 4 * dt, ACC3 + 4 * dt + 3, dt * 64))
    st.flush()
    a("s_endpgm")

    a.label(Lld)
    st.n = n0
    vm = VM(a)
    Lni = a.newlabel("U_noinit")
    srd(a, 20, P_DBG, P_DBG + 1, 256)
    a("v_mov_b32 v17, 0")
    a("s_cmp_lg_u32 s2, 0")
    a("s_cbranch_scc1 %s" % Lni)
    a("s_cmp_lg_u32 s17, 3")
    a("s_cbranch_scc1 %s" % Lni)
    a("v_lshlrev_b32 v18, 8, v1")
    a("s_movk_i32 s24, 16384")
    a("buffer_store_dword v17, v18, s[76:79], 0 offen sc1")
    a("buffer_store_dword v17, v18, s[76:79], s24 offen sc1")
    a("s_waitcnt vmcnt(0)")
    a("v_mov_b32 v18, 1")
    a("buffer_store_dword v18, v17, s[20:23], 0 offen sc1")
    a.label(Lni)
    a("s_mul_i32 s24, s14, 192")
    srd_off(a, 68, P_W1, P_W1 + 1, "s24", 640 * 3072 - 15 * 192)
    a("v_lshrrev_b32 v10, 2, v1")
    a("v_and_b32 v11, 3, v10")
    a("v_lshrrev_b32 v12, 2, v10")
    a("v_and_b32 v12, 1, v12")
    a("v_lshrrev_b32 v13, 3, v10")
    a("v_lshl_add_u32 v11, v12, 3, v11")
    a("v_lshl_add_u32 v11, v13, 2, v11")
    a("v_mul_u32_u24 v22, 3072, v11")
    a("v_lshrrev_b32 v13, 1, v1")
    a("v_and_b32 v13, 1, v13")
    a("v_xor_b32 v13, v13, v12")
    a("v_lshl_add_u32 v22, v13, 5, v22")
    a("v_and_b32 v13, 1, v1")
    a("v_lshl_add_u32 v22, v13, 4, v22")
    a("s_mul_i32 s3, s17, %d" % (16 * 3072))
    a("s_lshl_b32 s4, s17, 10")

    def free_part(s):
        sl = s % NS
        if s < 10:
            for p in range(3):
                a("s_add_u32 m0, s4, %d" % (sl * SLOT + 16384 + p * 4096))
                a("s_add_u32 s6, s3, %d" % (s * 64 * 3072 + p * 64))
                a("buffer_load_dwordx4 v22, s[68:71], s6 offen lds")
            n = 3
        elif s < 20:
            for i in range(3):
                a("s_add_u32 m0, s4, %d" % (sl * SLOT + 16384 + i * 4096))
                a("s_add_u32 s6, s5, %d" % (i * 20480 + (s - 10) * 128))
                a("buffer_load_dwordx4 v5, s[72:75], s6 offen lds")
            n = 3
        else:
            for i in range(5):
                a("s_add_u32 m0, s46, %d" % (sl * SLOT + 8192 + i * 2048))
                if s < 32:
                    a("s_add_u32 s6, s7, %d" % (i * 16 * 3072 + (s - 20) * 256))
                    a("buffer_load_dwordx4 v16, s[84:87], s6 offen sc1 lds")
                else:
                    s3 = s - 32
                    sr = 92 if s3 < 5 else 96
                    a("s_add_u32 s6, s8, %d" % (i * 16 * 1280 + (s3 % 5) * 256))
                    a("buffer_load_dwordx4 v5, s[%d:%d], s6 offen lds" % (sr, sr + 3))
            n = 5
        vm.issue(("F", s), n)

    def dep_part(s):
        sl = s % NS
        for i in range(4):
            if s < 20:
                a("s_add_u32 m0, s4, %d" % (sl * SLOT + i * 4096))
                a("s_add_u32 s6, s47, %d" % (i * 40960 + (s % 10) * 128))
                a("buffer_load_dwordx4 v5, s[64:67], s6 offen sc1 lds")
            elif s < 32:
                a("s_add_u32 m0, s46, %d" % (sl * SLOT + i * 2048))
                a("s_add_u32 s6, s50, %d" % (i * 1024 + (s - 20) * 16384))
                a("buffer_load_dwordx4 v21, s[80:83], s6 offen sc1 lds")
            else:
                a("s_add_u32 m0, s46, %d" % (sl * SLOT + i * 2048))
                a("s_add_u32 s6, s9, %d" % (i * 1024 + (s - 32) * 8192))
                a("buffer_load_dwordx4 v10, s[88:91], s6 offen sc1 lds")
        vm.issue(("D", s), 4)
    for s in range(4):
        free_part(s)
    st()
    a("s_mul_i32 s24, s13, %d" % (128 * 1280))
    a("s_add_u32 s24, s24, %d" % WS_XN)
    srd_off(a, 64, 10, 11, "s24", 128 * 1280)
    a("s_cmp_eq_u32 s18, 0")
    a("s_cselect_b32 s24, s%d, s%d" % (P_BRE, P_BIM))
    a("s_cselect_b32 s25, s%d, s%d" % (P_BRE + 1, P_BIM + 1))
    a("s_mul_i32 s26, s14, %d" % (40 * 1280))
    srd_off(a, 72, 24, 25, "s26", 40 * 1280)
    a("s_mul_i32 s24, s15, 196608")
    a("s_add_u32 s24, s24, %d" % WS_H1)
    srd_off(a, 80, 10, 11, "s24", 196608)
    a("s_mul_i32 s24, s16, %d" % (80 * 3072))
    a("s_add_u32 s24, s24, %d" % WS_W2T)
    srd_off(a, 84, 10, 11, "s24", 80 * 3072)
    a("s_mul_i32 s24, s15, 163840")
    a("s_add_u32 s24, s24, %d" % WS_HT)
    srd_off(a, 88, 10, 11, "s24", 163840)
    a("s_lshr_b32 s24, s2, 3")
    a("s_and_b32 s25, s2, 7")
    a("v_lshlrev_b32 v18, 7, v1")
    Lpf1 = a.newlabel("U_pf1")
    Lpf3 = a.newlabel("U_pf3")
    Lpfd = a.newlabel("U_pfd")
    a("s_cmp_eq_u32 s17, 3")
    a("s_cbranch_scc1 %s" % Lpf3)
    a("s_cmp_lg_u32 s17, 0")
    a("s_cbranch_scc1 %s" % Lpf1)
    a("s_lshr_b32 s25, s25, 1")
    a("s_mul_i32 s25, s25, 204800")
    a("s_mul_i32 s26, s24, 6400")
    a("s_add_u32 s25, s25, s26")
    srd_off(a, 92, P_BRE, P_BRE + 1, "s25", 6400)
    srd_off(a, 96, P_BIM, P_BIM + 1, "s25", 6400)
    a("buffer_load_dword v19, v18, s[92:95], 0 offen")
    a("buffer_load_dword v20, v18, s[96:99], 0 offen")
    a("s_branch %s" % Lpfd)
    a.label(Lpf1)
    a("s_lshr_b32 s25, s25, 2")
    a("s_mul_i32 s25, s25, 409600")
    a("s_mul_i32 s26, s24, 12800")
    a("s_add_u32 s25, s25, s26")
    a("s_cmp_eq_u32 s17, 1")
    a("s_cselect_b32 s26, s%d, s%d" % (P_CRE, P_CIM))
    a("s_cselect_b32 s27, s%d, s%d" % (P_CRE + 1, P_CIM + 1))
    srd_off(a, 92, 26, 27, "s25", 12800)
    a("s_movk_i32 s26, 8192")
    a("buffer_load_dword v19, v18, s[92:95], 0 offen")
    a("buffer_load_dword v20, v18, s[92:95], s26 offen")
    a("s_branch %s" % Lpfd)
    a.label(Lpf3)
    a("s_lshr_b32 s25, s25, 1")
    a("s_mul_i32 s25, s25, 768")
    a("s_mul_i32 s26, s24, %d" % (12 * 3072))
    a("s_add_u32 s25, s25, s26")
    a("s_add_u32 s25, s25, %d" % (256 * 3072))
    srd_off(a, 92, P_W1, P_W1 + 1, "s25", 12 * 3072 - 2304)
    a("v_lshrrev_b32 v19, 3, v1")
    a("v_and_b32 v20, 7, v1")
    a("v_min_u32 v20, 5, v20")
    a("v_mul_u32_u24 v19, 3072, v19")
    a("v_lshl_add_u32 v18, v20, 7, v19")
    a("s_movk_i32 s26, %d" % (8 * 3072))
    a("buffer_load_dword v19, v18, s[92:95], 0 offen")
    a("buffer_load_dword v20, v18, s[92:95], s26 offen")
    a.label(Lpfd)
    vm.issue("pf", 2)
    a("s_cmp_eq_u32 s18, 0")
    a("s_cselect_b32 s24, s%d, s%d" % (P_B2, P_DSK))
    a("s_cselect_b32 s25, s%d, s%d" % (P_B2 + 1, P_DSK + 1))
    a("s_mul_i32 s26, s16, 160")
    srd_off(a, 92, 24, 25, "s26", 160)
    a("v_lshlrev_b32 v18, 4, v1")
    a("v_cmp_gt_u32 vcc, 16, v1")
    a("s_and_saveexec_b64 s[26:27], vcc")
    a("s_lshl_b32 s24, s18, 8")
    a("s_add_u32 m0, s24, %d" % (MISC + 1536))
    a("s_nop 0")
    a("buffer_load_dwordx4 v18, s[92:95], 0 offen lds")
    a("s_mov_b64 exec, -1")
    vm.issue("bd", 1)
    a("s_mul_i32 s24, s16, %d" % (80 * 1280))
    srd_off(a, 92, P_CRE, P_CRE + 1, "s24", 80 * 1280)
    srd_off(a, 96, P_CIM, P_CIM + 1, "s24", 80 * 1280)
    a("v_mul_u32_u24 v5, 1280, v2")
    a("v_lshl_add_u32 v5, v4, 4, v5")
    a("v_mul_u32_u24 v16, 3072, v2")
    a("v_lshl_add_u32 v16, v4, 4, v16")
    a("v_and_b32 v10, 1, v6")
    a("s_lshl_b32 s24, s18, 1")
    a("v_or_b32 v10, s24, v10")
    a("v_lshrrev_b32 v11, 1, v3")
    a("v_xor_b32 v11, v10, v11")
    a("v_lshrrev_b32 v10, 1, v11")
    a("v_mul_u32_u24 v10, 81920, v10")
    a("v_lshl_add_u32 v10, v2, 6, v10")
    a("v_and_b32 v11, 1, v11")
    a("v_lshl_add_u32 v10, v11, 5, v10")
    a("v_and_b32 v11, 1, v1")
    a("v_lshl_add_u32 v10, v11, 4, v10")
    a("v_lshrrev_b32 v21, 2, v4")
    a("v_lshlrev_b32 v21, 12, v21")
    a("v_lshl_add_u32 v21, v2, 6, v21")
    a("v_and_b32 v11, 3, v4")
    a("v_lshl_add_u32 v21, v11, 4, v21")
    a("s_mul_i32 s47, s17, 10240")
    a("s_mul_i32 s5, s19, 10240")
    a("s_lshl_b32 s50, s19, 13")
    a("s_lshl_b32 s24, s18, 9")
    a("s_add_u32 s50, s50, s24")
    a("s_lshl_b32 s9, s19, 12")
    a("s_add_u32 s9, s9, s24")
    a("s_mul_i32 s7, s18, %d" % (8 * 3072))
    a("s_lshl_b32 s24, s19, 7")
    a("s_add_u32 s7, s7, s24")
    a("s_mul_i32 s8, s18, %d" % (8 * 1280))
    a("s_add_u32 s8, s8, s24")
    a("s_mul_i32 s46, s19, %d" % SUB)
    a("s_lshl_b32 s24, s18, 10")
    a("s_add_u32 s46, s46, s24")

    def gate(soff_code, target, word, first=False):
        Lnp = a.newlabel("U_gnp")
        Lgo = a.newlabel("U_ggo")
        a("s_cmp_lg_u32 s17, 0")
        a("s_cbranch_scc1 %s" % Lnp)
        a("v_mov_b32 v23, 1")
        if first:
            poll(a, 18, 17, 20, "0", chk_ge(1), "U_ini", 2)
            a("ds_write_b32 v15, v23")
        soff_code()
        poll(a, 18, 17, 76, "s24", chk_ge(target), "U_g", 3)
        a("ds_write_b32 v15, v23 offset:%d" % word)
        a("s_branch %s" % Lgo)
        a.label(Lnp)
        lds_wait(a, 18, 15, word, 1, "U_gw", 1)
        a.label(Lgo)

    gate(lambda: a("s_lshl_b32 s24, s13, 8"), 32, 4, True)
    st()

    def phase(s0, s1, nxt_free_to):
        dep_part(s0)
        dep_part(s0 + 1)
        vm.wait(("D", s0))
        st()
        a("s_barrier")
        dep_part(s0 + 2)
        dep_part(s0 + 3)
        for s in range(s0, s1):
            if s + 1 < s1:
                vm.wait(("D", s + 1))
            if s == 23:
                vm.wait("Emark")
            if s == 41:
                vm.drain()
            a("s_barrier")
            if STAMP and s % 2 == 1:
                st()
            n = s + NS
            if s == 20:
                a("s_lshl_b32 s26, 1, s13")
                a("s_sub_u32 s26, s26, 1")
                a("s_lshl_b32 s27, s14, 8")
                a("s_add_u32 s27, s27, %d" % F_E)
                a("buffer_load_dword v20, v17, s[76:79], s27 offen sc1")
                vm.issue("pollE", 1)
            if s == 21:
                def chkE(sr):
                    a("s_and_b32 s%d, s%d, s26" % (sr, sr))
                    a("s_cmp_eq_u32 s%d, s26" % sr)
                vm.wait("pollE")
                Lok = a.newlabel("U_eok")
                a("v_readfirstlane_b32 s30, v20")
                a("s_nop 3")
                chkE(30)
                a("s_cbranch_scc1 %s" % Lok)
                poll(a, 20, 17, 76, "s27", chkE, "U_e", 2)
                a.label(Lok)
                a("s_mul_i32 s24, s14, 5120")
                a("s_add_u32 s24, s24, %d" % WS_ET)
                srd_off(a, 64, 10, 11, "s24", 5120)
                a("v_lshlrev_b32 v18, 4, v1")
                a("s_add_u32 m0, s4, %d" % (MISC + 6144 + 5120))
                a("s_nop 0")
                a("buffer_load_dwordx4 v18, s[64:67], s4 offen sc1 lds")
                Lsk = a.newlabel("U_e5")
                a("s_cmp_lg_u32 s17, 0")
                a("s_cbranch_scc1 %s" % Lsk)
                a("s_mov_b32 m0, %d" % (MISC + 6144 + 5120 + 4096))
                a("s_movk_i32 s24, 4096")
                a("buffer_load_dwordx4 v18, s[64:67], s24 offen sc1 lds")
                a.label(Lsk)
                vm.issue("E", 1)
                vm.issue("Emark", 0)
            if s == 38:
                a("s_lshl_b32 s24, s15, 6")
                a("s_mul_i32 s24, s24, 1280")
                a("s_mul_i32 s25, s16, 160")
                a("s_add_u32 s24, s24, s25")
                srd_off(a, 64, P_X, P_X + 1, "s24", 64 * 1280 - 1120)
                a("s_add_u32 s24, s24, %d" % WS_XN)
                srd_off(a, 68, 10, 11, "s24", 64 * 1280 - 1120)
                a("s_lshl_b32 s24, s17, 6")
                for i in range(3):
                    a("v_add_u32 v18, s24, v1")
                    if i:
                        a("v_add_u32 v18, %d, v18" % (256 * i))
                    a("v_mul_u32_u24 v19, 6554, v18")
                    a("v_lshrrev_b32 v19, 16, v19")
                    a("v_mul_u32_u24 v20, 10, v19")
                    a("v_sub_u32 v20, v18, v20")
                    a("v_mul_u32_u24 v23, 1280, v19")
                    a("v_lshl_add_u32 v23, v20, 4, v23")
                    a("v_and_b32 v24, 0xffe3, v19")
                    a("v_lshrrev_b32 v25, 2, v19")
                    a("v_and_b32 v25, 1, v25")
                    a("v_lshl_add_u32 v24, v25, 4, v24")
                    a("v_lshrrev_b32 v25, 3, v19")
                    a("v_and_b32 v25, 3, v25")
                    a("v_lshl_add_u32 v24, v25, 2, v24")
                    a("v_mul_u32_u24 v24, 1280, v24")
                    a("v_lshl_add_u32 v24, v20, 4, v24")
                    if i < 2:
                        a("s_add_u32 m0, s4, %d" % (2 * SLOT + i * 4096))
                        a("s_nop 0")
                        a("buffer_load_dwordx4 v23, s[64:67], 0 offen lds")
                        a("s_add_u32 m0, s4, %d" % (2 * SLOT + 10240 + i * 4096))
                        a("s_nop 0")
                        a("buffer_load_dwordx4 v24, s[68:71], 0 offen sc1 lds")
                    else:
                        Lsk = a.newlabel("U_x3")
                        a("s_cmp_ge_u32 s17, 2")
                        a("s_cbranch_scc1 %s" % Lsk)
                        a("s_add_u32 m0, s4, %d" % (2 * SLOT + i * 4096))
                        a("s_nop 0")
                        a("buffer_load_dwordx4 v23, s[64:67], 0 offen lds")
                        a("s_add_u32 m0, s4, %d" % (2 * SLOT + 10240 + i * 4096))
                        a("s_nop 0")
                        a("buffer_load_dwordx4 v24, s[68:71], 0 offen sc1 lds")
                        a.label(Lsk)
                vm.issue("X", 4)
            if n < s1:
                if n == 31:
                    a("s_lshl_b32 s25, s15, 8")
                    a("s_add_u32 s25, s25, %d" % F_HT)
                    a("buffer_load_dword v19, v17, s[76:79], s25 offen sc1")
                    vm.issue("pollHT", 1)
                if n == 19:
                    a("s_mov_b32 s25, %d" % F_W2)
                    a("buffer_load_dword v19, v17, s[76:79], s25 offen sc1")
                    vm.issue("pollW2", 1)
                free_part(n)
                if n == 32:
                    vm.wait("pollHT")
                    Lok = a.newlabel("U_htok")
                    a("v_readfirstlane_b32 s30, v19")
                    a("s_nop 3")
                    a("s_cmp_ge_u32 s30, 32")
                    a("s_cbranch_scc1 %s" % Lok)
                    poll(a, 19, 17, 76, "s25", chk_ge(32), "U_ht")
                    a.label(Lok)
                dep_part(n)
            elif n < nxt_free_to:
                if n == 20:
                    vm.wait("pollW2")
                    Lok = a.newlabel("U_w2ok")
                    a("v_readfirstlane_b32 s30, v19")
                    a("s_nop 3")
                    a("s_cmp_ge_u32 s30, 240")
                    a("s_cbranch_scc1 %s" % Lok)
                    poll(a, 19, 17, 76, "s25", chk_ge(240), "U_w2")
                    a.label(Lok)
                free_part(n)
    phase(0, 20, 24)
    st()

    def h1off():
        a("s_lshl_b32 s24, s15, 8")
        a("s_add_u32 s24, s24, %d" % F_H1)
    gate(h1off, 32, 12)
    st()
    phase(20, 42, 42)
    st.flush()
    a.label(Lend)
    a("s_endpgm")
    return name, 256


if __name__ == "__main__":
    a = Asm()
    nm, vg = gen_uni(a)
    hdr = open("cdna_kernels/%s.s.ref" % NAME).read().split("\n")
    hdr = [l for l in hdr if l.startswith(";") and "@launch" not in l]
    out = "\n".join(hdr) + "\n; @launch grid=(256,1,1) block=(512,1,1) lds=163840\n"
    out += '.amdgcn_target "amdgcn-amd-amdhsa--gfx950"\n.text\n' + a.text()
    out += '.section .rodata,"a"\n.p2align 6\n' + kernel_desc(nm, vg)
    open(sys.argv[1] if len(sys.argv) > 1 else "cdna_kernels/%s.s" % NAME, "w").write(out)
```

```python
import sys, os, math
from gen import Asm, srd, srd_off, kernel_header, kernel_desc, fh, KA, LOG2E, DPP8, NAME
import gen

WS_XN = 0x0000000
WS_W2T = 0x0500000
WS_FLG = 0x0780000
WS_H1 = 0x0800000
WS_ET = 0x0F00000
WS_HT = 0x2000000
WS_DBG = 0x3000000
F_XN, F_H1, F_E, F_HT, F_W2, F_SIZE = 0, 4096, 12288, 16384, 24576, 24832

STAMP = int(os.environ.get("STAMP", "0"))
NS = 4
CODEPF = int(os.environ.get("CODEPF", "1"))
SLOT = 36864
SUB = 18432
MISC = 147456

P_X, P_LRE, P_LIM, P_BRE, P_BIM, P_CRE, P_CIM, P_LDT, P_DSK, P_W1, P_B1, P_W2, P_B2, P_OUT, P_DBG = \
    32, 34, 36, 38, 40, 42, 44, 46, 48, 52, 54, 56, 58, 60, 62


class Stamper:
    def __init__(self, a):
        self.a = a
        self.n = 0

    def __call__(self, real=False):
        if not STAMP:
            return
        a = self.a
        assert self.n < 64
        if self.n == 0 and not real:
            a("v_mov_b32 v255, 0")
            self(True)
        a("s_memrealtime s[100:101]" if real else "s_memtime s[100:101]")
        a("s_waitcnt lgkmcnt(0)")
        a("v_writelane_b32 v255, s100, %d" % self.n)
        self.n += 1

    def flush(self):
        if not STAMP:
            return
        a = self.a
        self()
        self(True)
        a("s_mov_b64 exec, -1")
        a("s_lshl_b32 s100, s2, 3")
        a("s_add_u32 s100, s100, s12")
        a("s_lshl_b32 s100, s100, 8")
        a("s_add_u32 s100, s100, 0x%x" % (WS_DBG + 0x100000))
        srd_off(a, 96, 10, 11, "s100", 256)
        a("v_and_b32 v254, 63, v0")
        a("v_lshlrev_b32 v254, 2, v254")
        a("buffer_store_dword v255, v254, s[96:99], 0 offen")


class VM:
    def __init__(self, a):
        self.a = a
        self.q = []

    def issue(self, tag, n):
        self.q.append((tag, n))

    def wait(self, tag):
        idxs = [i for i, (t, n) in enumerate(self.q) if t == tag]
        if not idxs:
            return
        idx = max(idxs)
        rest = sum(n for t, n in self.q[idx + 1:])
        assert rest <= 63, rest
        self.a("s_waitcnt vmcnt(%d)" % rest)
        self.q = self.q[idx + 1:]

    def drain(self):
        self.a("s_waitcnt vmcnt(0)")
        self.q = []


def interleave(ms, rs):
    out = []
    ri = 0
    for m in ms:
        out.append(m)
        if ri < len(rs):
            out.append(rs[ri])
            ri += 1
    return out + rs[ri:]


def poll(a, vreg, vzero, sflg, soff, check, lbl, slp=4):
    Lp = a.newlabel(lbl + "_poll")
    Ld = a.newlabel(lbl + "_done")
    a("s_mov_b32 s31, 0x100000")
    a.label(Lp)
    a("buffer_load_dword v%d, v%d, s[%d:%d], %s offen sc1" % (vreg, vzero, sflg, sflg + 3, soff))
    a("s_waitcnt vmcnt(0)")
    a("v_readfirstlane_b32 s30, v%d" % vreg)
    a("s_nop 3")
    check(30)
    a("s_cbranch_scc1 %s" % Ld)
    a("s_sleep %d" % slp)
    a("s_sub_u32 s31, s31, 1")
    a("s_cmp_lg_u32 s31, 0")
    a("s_cbranch_scc1 %s" % Lp)
    a.label(Ld)


def lds_wait(a, vtmp, vaddr, off, val, lbl, slp=1):
    Lw = a.newlabel(lbl)
    Ld = a.newlabel(lbl + "d")
    a.label(Lw)
    a("ds_read_b32 v%d, v%d offset:%d" % (vtmp, vaddr, off))
    a("s_waitcnt lgkmcnt(0)")
    a("v_readfirstlane_b32 s30, v%d" % vtmp)
    a("s_nop 3")
    a("s_cmp_ge_u32 s30, %d" % val)
    a("s_cbranch_scc1 %s" % Ld)
    if slp:
        a("s_sleep %d" % slp)
    a("s_branch %s" % Lw)
    a.label(Ld)


def cmul_add(a, items):
    for (d, lr, li, s, ad) in items:
        if ad is None:
            a("v_mul_f32 v%d, v%d, v%d" % (d, lr, s))
        else:
            a("v_fma_f32 v%d, v%d, v%d, v%d" % (d, lr, s, ad))
    if len(items) < 2:
        a("s_nop 1")
    for (d, lr, li, s, ad) in items:
        a("v_fmac_f32_dpp v%d, v%d, v%d %s" % (d, s, li, DPP8))


def gelu_units(a, units, tmp, vK1, sK2, sLO, sHI, sMask):
    P = []
    for ui, (rA, rB, b, d) in enumerate(units):
        for h, r in enumerate((rA, rA + 2, rB, rB + 2)):
            P.append((r, b + 2 * h, d + h, tmp + 8 * ui + 2 * h))
    for (r, b, d, t) in P:
        a("v_cvt_pk_bf16_f32 v%d, v%d, v%d" % (d, r, r + 1))
    for (r, b, d, t) in P:
        a("v_dot2_f32_bf16 v%d, v%d, s%d, v%d" % (r, d, sLO, b))
        a("v_dot2_f32_bf16 v%d, v%d, s%d, v%d" % (r + 1, d, sHI, b + 1))
    a("s_nop 1")
    for (r, b, d, t) in P:
        a("v_cvt_pk_bf16_f32 v%d, v%d, v%d" % (d, r, r + 1))
    for (r, b, d, t) in P:
        a("v_lshlrev_b32 v%d, 16, v%d" % (r, d))
        a("v_and_b32 v%d, s%d, v%d" % (r + 1, sMask, d))
    for (r, b, d, t) in P:
        a("v_pk_mul_f32 v[%d:%d], v[%d:%d], v[%d:%d]" % (t, t + 1, r, r + 1, r, r + 1))
    for (r, b, d, t) in P:
        a("v_pk_fma_f32 v[%d:%d], v[%d:%d], s[%d:%d], v[%d:%d]" % (t, t + 1, t, t + 1, sK2, sK2 + 1, vK1, vK1 + 1))
    for (r, b, d, t) in P:
        a("v_pk_mul_f32 v[%d:%d], v[%d:%d], v[%d:%d]" % (t, t + 1, t, t + 1, r, r + 1))
    for (r, b, d, t) in P:
        a("v_exp_f32 v%d, v%d" % (t, t))
        a("v_exp_f32 v%d, v%d" % (t + 1, t + 1))
    a("s_nop 0")
    for (r, b, d, t) in P:
        a("v_pk_add_f32 v[%d:%d], v[%d:%d], 1.0" % (t, t + 1, t, t + 1))
    for (r, b, d, t) in P:
        a("v_rcp_f32 v%d, v%d" % (t, t))
        a("v_rcp_f32 v%d, v%d" % (t + 1, t + 1))
    a("s_nop 0")
    for (r, b, d, t) in P:
        a("v_pk_mul_f32 v[%d:%d], v[%d:%d], v[%d:%d]" % (r, r + 1, r, r + 1, t, t + 1))
    for (r, b, d, t) in P:
        a("v_cvt_pk_bf16_f32 v%d, v%d, v%d" % (d, r, r + 1))


def gen_uni(a):
    name = NAME + "_kernel"
    kernel_header(a, name)
    st = Stamper(a)
    Lend = a.newlabel("U_end")
    Lld = a.newlabel("U_ld")
    a("s_cmp_ge_u32 s2, 256")
    a("s_cbranch_scc1 %s" % Lend)
    if CODEPF:
        a("s_getpc_b64 s[4:5]")
        a.label("U_code_start")
        a("s_lshr_b32 s6, s2, 3")
        a("s_lshl_b32 s6, s6, 11")
        a("v_and_b32 v1, 15, v0")
        a("v_lshlrev_b32 v1, 7, v1")
        a("v_add_u32 v1, s6, v1")
        a("v_min_u32 v1, CODE_END_OFF, v1")
        a("v_cmp_gt_u32 vcc, 16, v0")
        a("s_and_saveexec_b64 s[6:7], vcc")
        a("s_cbranch_execz U_cpf")
        a("global_load_dword v30, v1, s[4:5]")
        a.label("U_cpf")
        a("s_mov_b64 exec, -1")
    a("s_load_dwordx16 s[32:47], s[0:1], 0")
    a("s_load_dwordx16 s[48:63], s[0:1], 64")
    a("s_load_dwordx2 s[10:11], s[0:1], 128")
    a("v_lshrrev_b32 v2, 6, v0")
    a("v_and_b32 v1, 63, v0")
    a("s_nop 0")
    a("v_readfirstlane_b32 s12, v2")
    a("s_lshr_b32 s20, s2, 3")
    a("s_and_b32 s21, s20, 7")
    a("s_lshr_b32 s20, s20, 3")
    a("s_and_b32 s13, s2, 1")
    a("s_lshl_b32 s13, s13, 3")
    a("s_add_u32 s13, s13, s21")
    a("s_lshr_b32 s14, s2, 1")
    a("s_and_b32 s14, s14, 3")
    a("s_lshl_b32 s14, s14, 2")
    a("s_add_u32 s14, s14, s20")
    a("s_and_b32 s15, s2, 3")
    a("s_lshl_b32 s15, s15, 3")
    a("s_add_u32 s15, s15, s21")
    a("s_lshr_b32 s16, s2, 2")
    a("s_and_b32 s16, s16, 1")
    a("s_lshl_b32 s16, s16, 2")
    a("s_add_u32 s16, s16, s20")
    a("s_and_b32 s17, s12, 3")
    a("s_and_b32 s18, s17, 1")
    a("s_lshr_b32 s19, s17, 1")
    a("v_lshrrev_b32 v2, 3, v1")
    a("v_and_b32 v3, 7, v1")
    a("v_lshrrev_b32 v6, 4, v1")
    a("v_and_b32 v7, 15, v1")
    a("v_xor_b32 v4, v6, v3")
    a("v_lshlrev_b32 v8, 7, v7")
    a("v_lshl_add_u32 v8, v4, 4, v8")
    a("v_xor_b32 v9, 64, v8")
    a("v_xor_b32 v4, v2, v3")
    a("s_waitcnt lgkmcnt(0)")
    srd_off(a, 76, 10, 11, WS_FLG, F_SIZE)
    a("v_mov_b32 v15, %d" % MISC)
    for i in range(4):
        a("v_mov_b32 v%d, 0" % (10 + i))
    a("ds_write_b128 v15, v[10:13]")
    a("s_waitcnt lgkmcnt(0)")
    a("s_barrier")
    st()
    n0 = st.n
    a("s_cmp_ge_u32 s12, 4")
    a("s_cbranch_scc1 %s" % Lld)

    def signal(vd, vz, soff, op="add", val="1"):
        a("v_cmp_eq_u32 vcc, 0, v1")
        a("s_and_saveexec_b64 s[30:31], vcc")
        a("v_mov_b32 v%d, %s" % (vd, val))
        a("v_mov_b32 v%d, 0" % vz)
        a("buffer_atomic_%s v%d, v%d, s[76:79], %s offen" % (op, vd, vz, soff))
        a("s_mov_b64 exec, -1")

    def chk_ge(n):
        return lambda sr: a("s_cmp_ge_u32 s%d, %d" % (sr, n))

    def wait_init(vt, vz, sdbg):
        a("s_waitcnt vmcnt(0)")
        lds_wait(a, vt, 15, 0, 1, "U_ini", 1)

    ACC1, ACC2, ACC3, BRAW, FR, ADR, CON = 16, 56, 16, 64, 76, 172, 196
    Lp0b = a.newlabel("U_p0b")
    Lp0c = a.newlabel("U_p0c")
    Lp0d = a.newlabel("U_p0d")
    a("s_cmp_ge_u32 s17, 2")
    a("s_cbranch_scc1 %s" % Lp0b)
    X0, XF = 76, 96
    a("s_lshl_b32 s20, s13, 7")
    a("s_lshl_b32 s21, s14, 3")
    a("s_add_u32 s20, s20, s21")
    a("s_lshl_b32 s21, s17, 2")
    a("s_add_u32 s20, s20, s21")
    a("s_mul_i32 s20, s20, 1280")
    a("s_lshl_b32 s21, s13, 7")
    a("s_lshr_b32 s22, s14, 2")
    a("s_lshl_b32 s22, s22, 5")
    a("s_add_u32 s21, s21, s22")
    a("s_lshl_b32 s22, s17, 4")
    a("s_add_u32 s21, s21, s22")
    a("s_and_b32 s22, s14, 3")
    a("s_lshl_b32 s22, s22, 2")
    a("s_add_u32 s21, s21, s22")
    a("s_mul_i32 s21, s21, 1280")
    srd(a, 64, P_X, P_X + 1, 2048 * 1280)
    srd_off(a, 68, 10, 11, WS_XN, 2048 * 1280)
    a("v_mul_u32_u24 v10, 1280, v6")
    a("v_lshl_add_u32 v10, v7, 4, v10")
    for m in range(5):
        a("buffer_load_dwordx4 v[%d:%d], v10, s[64:67], s20 offen offset:%d" % (X0 + 4 * m, X0 + 3 + 4 * m, 256 * m))
    a("s_mov_b32 s24, 0xffff0000")
    a("s_waitcnt vmcnt(0)")
    st()
    for i in range(20):
        a("v_lshlrev_b32 v%d, 16, v%d" % (XF + 2 * i, X0 + i))
        a("v_and_b32 v%d, s24, v%d" % (XF + 2 * i + 1, X0 + i))
    S0 = 136
    a("v_pk_add_f32 v[%d:%d], v[%d:%d], v[%d:%d]" % (S0, S0 + 1, XF, XF + 1, XF + 2, XF + 3))
    a("v_pk_add_f32 v[%d:%d], v[%d:%d], v[%d:%d]" % (S0 + 2, S0 + 3, XF + 4, XF + 5, XF + 6, XF + 7))
    for i in range(4, 20):
        d = S0 + 2 * (i & 1)
        a("v_pk_add_f32 v[%d:%d], v[%d:%d], v[%d:%d]" % (d, d + 1, d, d + 1, XF + 2 * i, XF + 2 * i + 1))
    a("v_pk_add_f32 v[%d:%d], v[%d:%d], v[%d:%d]" % (S0, S0 + 1, S0, S0 + 1, S0 + 2, S0 + 3))
    a("v_add_f32 v%d, v%d, v%d" % (S0, S0, S0 + 1))

    def allreduce16(r):
        for sh in (8, 4, 2, 1):
            a("s_nop 1")
            a("v_add_f32_dpp v%d, v%d, v%d row_ror:%d row_mask:0xf bank_mask:0xf" % (r, r, r, sh))
    allreduce16(S0)
    a("v_mul_f32 v%d, %s, v%d" % (S0, fh(-1.0 / 640), S0))
    a("v_mov_b32 v%d, v%d" % (S0 + 1, S0))
    for i in range(20):
        t = S0 + 4 + 2 * (i & 1)
        q = S0 + 8 + 2 * (i & 1)
        a("v_pk_add_f32 v[%d:%d], v[%d:%d], v[%d:%d]" % (t, t + 1, XF + 2 * i, XF + 2 * i + 1, S0, S0 + 1))
        if i < 2:
            a("v_pk_mul_f32 v[%d:%d], v[%d:%d], v[%d:%d]" % (q, q + 1, t, t + 1, t, t + 1))
        else:
            a("v_pk_fma_f32 v[%d:%d], v[%d:%d], v[%d:%d], v[%d:%d]" % (q, q + 1, t, t + 1, t, t + 1, q, q + 1))
    a("v_pk_add_f32 v[%d:%d], v[%d:%d], v[%d:%d]" % (S0 + 8, S0 + 9, S0 + 8, S0 + 9, S0 + 10, S0 + 11))
    a("v_add_f32 v%d, v%d, v%d" % (S0 + 8, S0 + 8, S0 + 9))
    allreduce16(S0 + 8)
    V = S0 + 8
    a("v_mul_f32 v%d, %s, v%d" % (V, fh(1.0 / 640), V))
    a("v_cvt_pk_bf16_f32 v%d, v%d, v%d" % (S0 + 2, S0, V))
    a("v_lshlrev_b32 v%d, 16, v%d" % (S0, S0 + 2))
    a("v_mov_b32 v%d, v%d" % (S0 + 1, S0))
    a("v_and_b32 v%d, s24, v%d" % (V, S0 + 2))
    a("v_add_f32 v%d, %s, v%d" % (V, fh(1e-5), V))
    a("v_cvt_pk_bf16_f32 v%d, v%d, v%d" % (V, V, V))
    a("v_and_b32 v%d, s24, v%d" % (V, V))
    a("v_sqrt_f32 v%d, v%d" % (V, V))
    a("s_nop 0")
    a("v_cvt_pk_bf16_f32 v%d, v%d, v%d" % (V, V, V))
    a("v_and_b32 v%d, s24, v%d" % (V, V))
    RS = S0 + 4
    a("v_rcp_f32 v%d, v%d" % (RS, V))
    a("s_nop 0")
    a("v_fma_f32 v%d, -v%d, v%d, 1.0" % (RS + 2, V, RS))
    a("v_fma_f32 v%d, v%d, v%d, v%d" % (RS, RS + 2, RS, RS))
    a("v_mov_b32 v%d, v%d" % (RS + 1, RS))
    a("v_sub_f32 v%d, 0, v%d" % (V, V))
    a("v_mov_b32 v%d, v%d" % (V + 1, V))
    for i in range(20):
        a("v_pk_add_f32 v[%d:%d], v[%d:%d], v[%d:%d]" % (XF + 2 * i, XF + 2 * i + 1, XF + 2 * i, XF + 2 * i + 1, S0, S0 + 1))
    for i in range(20):
        a("v_cvt_pk_bf16_f32 v%d, v%d, v%d" % (X0 + i, XF + 2 * i, XF + 2 * i + 1))
    Q = 148
    for i in range(20):
        x = XF + 2 * i
        q = Q + 4 * (i & 3)
        a("v_lshlrev_b32 v%d, 16, v%d" % (x, X0 + i))
        a("v_and_b32 v%d, s24, v%d" % (x + 1, X0 + i))
        a("v_pk_mul_f32 v[%d:%d], v[%d:%d], v[%d:%d]" % (q, q + 1, x, x + 1, RS, RS + 1))
        a("v_pk_fma_f32 v[%d:%d], v[%d:%d], v[%d:%d], v[%d:%d]" % (q + 2, q + 3, q, q + 1, V, V + 1, x, x + 1))
        a("v_pk_fma_f32 v[%d:%d], v[%d:%d], v[%d:%d], v[%d:%d]" % (q, q + 1, q + 2, q + 3, RS, RS + 1, q, q + 1))
        a("v_cvt_pk_bf16_f32 v%d, v%d, v%d" % (X0 + i, q, q + 1))
    for m in range(5):
        a("buffer_store_dwordx4 v[%d:%d], v10, s[68:71], s21 offen offset:%d sc1" % (X0 + 4 * m, X0 + 3 + 4 * m, 256 * m))
    st()
    wait_init(11, 12, 92)
    a("s_lshl_b32 s20, s13, 8")
    signal(11, 12, "s20")
    st()
    np0 = st.n
    a("s_branch %s" % Lp0d)

    a.label(Lp0b)
    st.n = n0
    a("s_cmp_eq_u32 s17, 3")
    a("s_cbranch_scc1 %s" % Lp0c)
    a("s_cmp_ge_u32 s2, 240")
    a("s_cbranch_scc1 %s" % Lp0c)
    a("s_mul_hi_u32 s20, s2, 0x%x" % ((1 << 32) // 24 + 1))
    a("s_mul_i32 s21, s20, 24")
    a("s_sub_u32 s21, s2, s21")
    a("s_mul_i32 s22, s21, %d" % (64 * 1280))
    a("s_lshl_b32 s23, s20, 7")
    a("s_add_u32 s22, s22, s23")
    a("v_lshrrev_b32 v10, 2, v3")
    a("v_and_b32 v11, 3, v3")
    a("v_lshlrev_b32 v10, 5, v10")
    a("v_lshl_add_u32 v10, v11, 2, v10")
    a("v_mul_u32_u24 v10, 1280, v10")
    a("v_lshl_add_u32 v10, v2, 4, v10")
    a("v_mul_u32_u24 v11, %d, v2" % (8 * 3072))
    a("v_lshl_add_u32 v11, v3, 4, v11")
    a("s_mul_i32 s23, s20, %d" % (64 * 3072))
    a("s_lshl_b32 s24, s21, 7")
    a("s_add_u32 s23, s23, s24")
    srd(a, 64, P_W2, P_W2 + 1, 1536 * 1280)
    srd_off(a, 68, 10, 11, WS_W2T, 640 * 3072)
    for j in range(8):
        a("s_add_u32 s24, s22, %d" % ((j if j < 4 else 12 + j) * 1280))
        a("buffer_load_dwordx4 v[%d:%d], v10, s[64:67], s24 offen" % (76 + 4 * j, 79 + 4 * j))
    a("s_mov_b32 s26, 0x05040100")
    a("s_mov_b32 s27, 0x07060302")
    a("s_waitcnt vmcnt(0)")
    for i in range(8):
        for m in range(4):
            a("v_perm_b32 v%d, v%d, v%d, s%d" % (108 + 4 * i + m, 76 + 4 * (2 * m + 1) + (i >> 1), 76 + 4 * (2 * m) + (i >> 1), 26 + (i & 1)))
    for i in range(8):
        a("s_add_u32 s24, s23, %d" % (i * 3072))
        a("buffer_store_dwordx4 v[%d:%d], v11, s[68:71], s24 offen sc1" % (108 + 4 * i, 111 + 4 * i))
    wait_init(11, 12, 92)
    a("s_mov_b32 s20, %d" % F_W2)
    signal(11, 12, "s20")
    a("s_branch U_p0pad")
    a.label(Lp0c)
    a("s_cmp_lg_u32 s17, 3")
    a("s_cbranch_scc1 U_p0pad")
    K = lambda c, k: CON + 11 * c + k
    srd(a, 64, P_LRE, P_LRE + 1, 1280)
    srd(a, 68, P_LIM, P_LIM + 1, 1280)
    srd(a, 72, P_LDT, P_LDT + 1, 1280)
    a("s_mul_i32 s20, s14, 80")
    a("v_lshlrev_b32 v10, 1, v3")
    T = 76
    for c in range(5):
        a("buffer_load_ushort v%d, v10, s[64:67], s20 offen offset:%d" % (T + 3 * c, c * 16))
        a("buffer_load_ushort v%d, v10, s[68:71], s20 offen offset:%d" % (T + 3 * c + 1, c * 16))
        a("buffer_load_ushort v%d, v10, s[72:75], s20 offen offset:%d" % (T + 3 * c + 2, c * 16))
    a("v_and_b32 v12, 8, v7")
    a("v_lshlrev_b32 v12, 28, v12")
    a("v_xor_b32 v12, 0x80000000, v12")
    a("v_lshlrev_b32 v13, 3, v6")
    a("v_cvt_f32_u32 v13, v13")
    a("v_mul_u32_u24 v10, 48, v7")
    a("v_add_u32 v10, %d, v10" % (MISC + 2048))
    a("v_lshlrev_b32 v11, 3, v1")
    a("v_add_u32 v11, %d, v11" % (MISC + 6144))
    a("s_waitcnt vmcnt(0)")
    ZR, ZI, W0 = 96, 101, 108
    CT = lambda c, k: 180 + 12 * c + k

    def cpow_all(n, dst):
        ns = n if isinstance(n, str) else fh(n)
        for c in range(5):
            t = W0 + 4 * c
            a("v_mul_f32 v%d, %s, v%d" % (t, ns, ZR + c))
            a("v_mul_f32 v%d, %s, v%d" % (t + 1, ns, ZI + c))
            a("v_exp_f32 v%d, v%d" % (t, t))
            a("v_fract_f32 v%d, v%d" % (t + 1, t + 1))
            a("v_cos_f32 v%d, v%d" % (t + 2, t + 1))
            a("v_sin_f32 v%d, v%d" % (t + 3, t + 1))
        a("s_nop 0")
        for c in range(5):
            t = W0 + 4 * c
            a("v_mul_f32 v%d, v%d, v%d" % (dst(c), t, t + 2))
            a("v_mul_f32 v%d, v%d, v%d" % (dst(c) + 1, t, t + 3))
    for c in range(5):
        lre, lim, ldt = T + 3 * c, T + 3 * c + 1, T + 3 * c + 2
        a("v_lshlrev_b32 v%d, 16, v%d" % (lre, lre))
        a("v_lshlrev_b32 v%d, 16, v%d" % (lim, lim))
        a("v_lshlrev_b32 v%d, 16, v%d" % (ldt, ldt))
        a("v_mul_f32 v%d, %s, v%d" % (ldt, fh(LOG2E), ldt))
        a("v_exp_f32 v%d, v%d" % (ldt, ldt))
        a("s_nop 0")
        a("v_cvt_pk_bf16_f32 v%d, v%d, v%d" % (ldt, ldt, ldt))
        a("v_and_b32 v%d, 0xffff0000, v%d" % (ldt, ldt))
        a("v_mul_f32 v%d, v%d, v%d" % (ZR + c, ldt, lre))
        a("v_mul_f32 v%d, v%d, v%d" % (ZI + c, ldt, lim))
        a("v_mul_f32 v%d, %s, v%d" % (ZR + c, fh(LOG2E), ZR + c))
        a("v_mul_f32 v%d, 0.15915494, v%d" % (ZI + c, ZI + c))
    cpow_all(1.0, lambda c: CT(c, 0))
    for c in range(5):
        lre, lim = T + 3 * c, T + 3 * c + 1
        t = W0 + 4 * c
        a("v_add_f32 v%d, -1.0, v%d" % (t, CT(c, 0)))
        a("v_mul_f32 v%d, v%d, v%d" % (t + 1, lre, lre))
        a("v_fmac_f32 v%d, v%d, v%d" % (t + 1, lim, lim))
        a("v_rcp_f32 v%d, v%d" % (t + 2, t + 1))
        a("s_nop 0")
        a("v_fma_f32 v%d, -v%d, v%d, 1.0" % (t + 3, t + 1, t + 2))
        a("v_fma_f32 v%d, v%d, v%d, v%d" % (t + 2, t + 3, t + 2, t + 2))
        a("v_mul_f32 v%d, v%d, v%d" % (CT(c, 2), t, lre))
        a("v_fmac_f32 v%d, v%d, v%d" % (CT(c, 2), CT(c, 1), lim))
        a("v_mul_f32 v%d, v%d, v%d" % (CT(c, 3), CT(c, 1), lre))
        a("v_fma_f32 v%d, -v%d, v%d, v%d" % (CT(c, 3), t, lim, CT(c, 3)))
        a("v_mul_f32 v%d, v%d, v%d" % (CT(c, 2), CT(c, 2), t + 2))
        a("v_mul_f32 v%d, v%d, v%d" % (CT(c, 3), CT(c, 3), t + 2))
    for n, k in ((8.0, 4), (32.0, 6), (128.0, 8), (512.0, 10)):
        cpow_all(n, lambda c: CT(c, k))
    for c in range(5):
        for k in (1, 3, 5, 7, 9, 11):
            a("v_xor_b32 v%d, v12, v%d" % (CT(c, k), CT(c, k)))
        for k in range(3):
            a("ds_write_b128 v10, v[%d:%d] offset:%d" % (CT(c, 4 * k), CT(c, 4 * k + 3), c * 768 + k * 16))
    for w in range(4):
        AT = lambda c: 130 + 10 * (w & 1) + 2 * c
        cpow_all("v13", AT)
        for c in range(5):
            a("v_xor_b32 v%d, v12, v%d" % (AT(c) + 1, AT(c) + 1))
            a("ds_write_b64 v11, v[%d:%d] offset:%d" % (AT(c), AT(c) + 1, w * 2560 + c * 512))
        if w < 3:
            a("v_add_f32 v13, 0x42000000, v13")
    a.label("U_p0pad")
    while st.n < np0:
        st()
    a.label(Lp0d)
    srd(a, 80, P_B1, P_B1 + 1, 3072)
    a("s_mul_i32 s21, s14, 192")
    a("v_lshlrev_b32 v11, 3, v6")
    for nt in range(6):
        a("buffer_load_dwordx2 v[%d:%d], v11, s[80:83], s21 offen offset:%d" % (BRAW + 2 * nt, BRAW + 2 * nt + 1, nt * 32))

    a("v_lshrrev_b32 v10, 2, v7")
    a("v_and_b32 v11, 3, v7")
    a("v_lshrrev_b32 v12, 1, v6")
    a("v_and_b32 v13, 1, v6")
    a("v_lshlrev_b32 v12, 4, v12")
    a("v_lshl_add_u32 v12, v13, 2, v12")
    a("v_add_u32 v12, v12, v10")
    a("v_lshlrev_b32 v12, 6, v12")
    a("v_lshl_add_u32 v12, v13, 5, v12")
    a("v_lshl_add_u32 v12, v11, 3, v12")
    a("v_xor_b32 v13, 32, v12")
    a("s_lshl_b32 s20, s17, 12")
    for sl in range(NS):
        a("s_add_u32 s21, s20, %d" % (sl * SLOT))
        a("v_add_u32 v%d, s21, v8" % (ADR + 6 * sl))
        a("v_add_u32 v%d, s21, v9" % (ADR + 6 * sl + 1))
        a("v_add_u32 v%d, %d, v12" % (ADR + 6 * sl + 2, sl * SLOT + 16384))
        a("v_add_u32 v%d, %d, v13" % (ADR + 6 * sl + 3, sl * SLOT + 16384))
        a("v_add_u32 v%d, %d, v8" % (ADR + 6 * sl + 4, sl * SLOT + 16384))
        a("v_add_u32 v%d, %d, v9" % (ADR + 6 * sl + 5, sl * SLOT + 16384))
    a("s_waitcnt lgkmcnt(0)")

    def reads(s, sub, sset):
        sl = s % NS
        A = ADR + 6 * sl
        out = []
        if s < 10:
            b = FR + 48 * sset
            order = [("N", 0), ("T", 0), ("T", 1), ("N", 1), ("N", 2), ("N", 3), ("N", 4), ("N", 5)]
            for k, i in order:
                if k == "T":
                    out.append("ds_read_b128 v[%d:%d], v%d offset:%d" % (b + 4 * i, b + 4 * i + 3, A + sub, i * 2048))
                else:
                    o = (i >> 1) * 4096 + sub * 2048
                    r = b + 8 + 4 * i
                    out.append("ds_read_b64_tr_b16 v[%d:%d], v%d offset:%d" % (r, r + 1, A + 2 + (i & 1), o))
                    out.append("ds_read_b64_tr_b16 v[%d:%d], v%d offset:%d" % (r + 2, r + 3, A + 2 + (i & 1), o + 512))
        elif s < 20:
            b = FR + 48 * sset
            for k, i in [("N", 0), ("T", 0), ("T", 1), ("N", 1), ("N", 2), ("N", 3), ("N", 4)]:
                if k == "T":
                    out.append("ds_read_b128 v[%d:%d], v%d offset:%d" % (b + 4 * i, b + 4 * i + 3, A + sub, i * 2048))
                else:
                    out.append("ds_read_b128 v[%d:%d], v%d offset:%d" % (b + 8 + 4 * i, b + 11 + 4 * i, A + 4 + sub, i * 2048))
        else:
            so = sub * SUB
            for ks in range(2):
                b = FR + 48 * sset + 24 * ks
                for k, i in [("D", 0), ("T", 0), ("D", 1), ("D", 2), ("D", 3), ("D", 4)]:
                    if k == "T":
                        if s < 32:
                            out.append("ds_read_b128 v[%d:%d], v%d offset:%d" % (b, b + 3, A + ks, so))
                        else:
                            out.append("ds_read_b64_tr_b16 v[%d:%d], v%d offset:%d" % (b, b + 1, A + 2, so + ks * 4096))
                            out.append("ds_read_b64_tr_b16 v[%d:%d], v%d offset:%d" % (b + 2, b + 3, A + 2, so + ks * 4096 + 512))
                    else:
                        out.append("ds_read_b128 v[%d:%d], v%d offset:%d" % (b + 4 + 4 * i, b + 7 + 4 * i, A + 4 + ks, so + i * 2048))
        return out

    def mf(d, av, bv, first):
        return "v_mfma_f32_16x16x32_bf16 v[%d:%d], v[%d:%d], v[%d:%d], %s" % (
            d, d + 3, av, av + 3, bv, bv + 3, "0" if first else "v[%d:%d]" % (d, d + 3))

    def mfmas(s, sub, sset):
        out = []
        if s < 10:
            b = FR + 48 * sset
            for nt in range(6):
                for j in range(2):
                    out.append(mf(ACC1 + (j * 6 + nt) * 4, b + 8 + 4 * nt, b + 4 * j, s == 0 and sub == 0))
        elif s < 20:
            b = FR + 48 * sset
            for c in range(5):
                for j in range(2):
                    out.append(mf(ACC1 + (c * 2 + j) * 4, b + 4 * j, b + 8 + 4 * c, s == 10 and sub == 0))
        else:
            acc = ACC2 if s < 32 else ACC3
            for ks in range(2):
                b = FR + 48 * sset + 24 * ks
                for dt in range(5):
                    out.append(mf(acc + dt * 4, b + 4 + 4 * dt, b, s in (20, 32) and sub == 0 and ks == 0))
        return out

    F1 = FR + 48

    def f1_epi():
        st()
        a("s_waitcnt vmcnt(0)")
        a("s_lshl_b32 s24, s13, 1")
        a("s_add_u32 s24, s24, s19")
        a("s_lshl_b32 s29, s24, 8")
        a("s_add_u32 s29, s29, %d" % F_H1)
        a("s_mul_i32 s24, s24, 196608")
        a("s_mul_i32 s25, s14, 12288")
        a("s_add_u32 s24, s24, s25")
        a("s_lshl_b32 s25, s18, 11")
        a("s_add_u32 s24, s24, s25")
        a("s_add_u32 s24, s24, %d" % WS_H1)
        srd_off(a, 20, 10, 11, "s24", 12288)
        a("v_lshrrev_b32 v10, 2, v7")
        a("v_and_b32 v11, 3, v7")
        a("v_lshl_add_u32 v10, v10, 3, v11")
        a("v_lshlrev_b32 v10, 6, v10")
        a("v_lshl_add_u32 v10, v6, 4, v10")
        a("s_mov_b32 s24, 0xffff0000")
        a("s_mov_b32 s25, 0x00003f80")
        a("s_mov_b32 s26, %s" % fh(-2 * math.sqrt(2 / math.pi) * LOG2E * 0.044715))
        a("s_mov_b32 s27, s26")
        a("s_mov_b32 s28, 0x3f800000")
        a("v_mov_b32 v12, %s" % fh(-2 * math.sqrt(2 / math.pi) * LOG2E))
        a("v_mov_b32 v13, v12")
        BF, DST, TMP = F1, F1 + 8, F1 + 32
        for aa in range(3):
            for i in range(4):
                a("v_lshlrev_b32 v%d, 16, v%d" % (BF + 2 * i, BRAW + 4 * aa + i))
                a("v_and_b32 v%d, s24, v%d" % (BF + 2 * i + 1, BRAW + 4 * aa + i))
            d0 = DST + 8 * aa
            units = [(ACC1 + (j * 6 + 2 * aa) * 4, ACC1 + (j * 6 + 2 * aa + 1) * 4, BF, d0 + 4 * j) for j in range(2)]
            gelu_units(a, units, TMP, 12, 26, 25, 28, 24)
            a("s_mov_b32 s30, %d" % (aa * 4096))
            for j in range(2):
                a("buffer_store_dwordx4 v[%d:%d], v10, s[20:23], s30 offen offset:%d sc1" % (d0 + 4 * j, d0 + 4 * j + 3, j * 256))
        st()

    def f1_signal():
        a("s_waitcnt vmcnt(0)")
        signal(10, 11, "s29")
        st()

    def k_fetch():
        a("v_mul_u32_u24 v14, 48, v7")
        a("v_add_u32 v14, %d, v14" % (MISC + 2048))
        a("s_mul_i32 s20, s17, 2560")
        a("s_add_u32 s20, s20, %d" % (MISC + 6144))
        a("v_lshl_add_u32 v13, v1, 3, s20")
        for c in range(5):
            for k in range(8):
                a("ds_read_b32 v%d, v14 offset:%d" % (K(c, k), c * 768 + k * 4))
            a("ds_read_b32 v%d, v13 offset:%d" % (K(c, 8), c * 512))
            a("ds_read_b32 v%d, v13 offset:%d" % (K(c, 9), c * 512 + 4))
            a("s_waitcnt lgkmcnt(0)")

    EQ = F1
    EW = F1 + 20
    TM = F1 + 40

    def s1_epi():
        st()
        a("s_nop 7")
        G = lambda c, i: ACC1 + c * 8 + i
        for i in range(8):
            for c in range(5):
                a("v_mul_f32 v%d, v%d, v%d" % (TM + c, K(c, 2), G(c, i)))
            for c in range(5):
                a("v_fmac_f32_dpp v%d, v%d, v%d %s" % (TM + c, G(c, i), K(c, 3), DPP8))
            if i == 0:
                for c in range(5):
                    a("v_mov_b32 v%d, v%d" % (G(c, 0), TM + c))
            else:
                for c in range(5):
                    a("v_fma_f32 v%d, v%d, v%d, v%d" % (G(c, i), K(c, 0), G(c, i - 1), TM + c))
                for c in range(5):
                    a("v_fmac_f32_dpp v%d, v%d, v%d %s" % (G(c, i), G(c, i - 1), K(c, 1), DPP8))
        a("v_lshlrev_b32 v5, 2, v7")
        for q in range(4):
            a("v_add_u32 v%d, %d, v5" % (10 + q, q * 64))
        for q in range(4):
            for c in range(5):
                a("ds_bpermute_b32 v%d, v%d, v%d" % (EQ + c * 4 + q, 10 + q, G(c, 7)))
        a("s_waitcnt lgkmcnt(0)")
        cmul_add(a, [(EW + c * 4 + 1, K(c, 4), K(c, 5), EQ + c * 4, EQ + c * 4 + 1) for c in range(5)])
        for q in range(2, 4):
            cmul_add(a, [(EW + c * 4 + q, K(c, 4), K(c, 5), EW + c * 4 + q - 1, EQ + c * 4 + q) for c in range(5)])
        a("s_mul_i32 s20, s17, 320")
        a("s_add_u32 s20, s20, %d" % (MISC + 256))
        a("v_add_u32 v%d, s20, v5" % TM)
        for c in range(5):
            a("ds_write_b32 v%d, v%d offset:%d" % (TM, EW + c * 4 + 3, c * 64))
        a("s_waitcnt lgkmcnt(0)")
        a("v_cmp_eq_u32 vcc, 0, v1")
        a("s_and_saveexec_b64 s[30:31], vcc")
        a("v_mov_b32 v%d, 1" % (TM + 1))
        a("ds_add_u32 v15, v%d offset:8" % (TM + 1))
        a("s_mov_b64 exec, -1")
        lds_wait(a, TM + 1, 15, 8, 4, "U_ex", 0)
        a("v_add_u32 v%d, %d, v5" % (TM, MISC + 256))
        for w in range(4):
            for c in range(5):
                a("ds_read_b32 v%d, v%d offset:%d" % (EW + c * 4 + w, TM, w * 320 + c * 64))
        a("s_waitcnt lgkmcnt(0)")
        for w in range(1, 4):
            cmul_add(a, [(EW + c * 4 + w, K(c, 6), K(c, 7), EW + c * 4 + w - 1, EW + c * 4 + w) for c in range(5)])
        a("s_mul_i32 s20, s14, 5120")
        a("s_add_u32 s20, s20, %d" % WS_ET)
        srd_off(a, 68, 10, 11, "s20", 5120)
        Lnp = a.newlabel("U_nopub")
        a("s_cmp_lg_u32 s17, 0")
        a("s_cbranch_scc1 %s" % Lnp)
        a("s_mul_i32 s20, s13, 320")
        a("v_cmp_gt_u32 vcc, 16, v1")
        a("s_and_saveexec_b64 s[30:31], vcc")
        for c in range(5):
            a("buffer_store_dword v%d, v5, s[68:71], s20 offen offset:%d sc1" % (EW + c * 4 + 3, c * 64))
        a("s_mov_b64 exec, -1")
        a.label(Lnp)
        for w in range(1, 4):
            a("s_cmp_eq_u32 s17, %d" % w)
            a("s_cselect_b64 s[%d:%d], -1, 0" % (80 + 2 * w, 81 + 2 * w))
        for c in range(5):
            a("v_cndmask_b32 v%d, 0, v%d, s[82:83]" % (K(c, 10), EW + c * 4))
        for c in range(5):
            a("v_cndmask_b32 v%d, v%d, v%d, s[84:85]" % (K(c, 10), K(c, 10), EW + c * 4 + 1))
        for c in range(5):
            a("v_cndmask_b32 v%d, v%d, v%d, s[86:87]" % (K(c, 10), K(c, 10), EW + c * 4 + 2))
        cmul_add(a, [(EW + c * 4, K(c, 4), K(c, 5), K(c, 10), EQ + c * 4) for c in range(5)])
        for q in range(1, 3):
            cmul_add(a, [(EW + c * 4 + q, K(c, 4), K(c, 5), EW + c * 4 + q - 1, EQ + c * 4 + q) for c in range(5)])
        a("v_cmp_eq_u32 s[82:83], 1, v6")
        a("v_cmp_eq_u32 s[84:85], 2, v6")
        a("v_cmp_eq_u32 s[86:87], 3, v6")
        a("s_nop 1")
        for q in range(3):
            for c in range(5):
                a("v_cndmask_b32 v%d, v%d, v%d, s[%d:%d]" % (K(c, 10), K(c, 10), EW + c * 4 + q, 82 + 2 * q, 83 + 2 * q))
        for c in range(5):
            for k in range(4):
                a("ds_read_b32 v%d, v14 offset:%d" % (K(c, 4 + k), c * 768 + 32 + k * 4))
        st()

    def e_signal():
        Lnp = a.newlabel("U_nosig")
        a("s_cmp_lg_u32 s17, 0")
        a("s_cbranch_scc1 %s" % Lnp)
        a("s_waitcnt vmcnt(0)")
        a("s_lshl_b32 s20, 1, s13")
        a("s_lshl_b32 s21, s14, 8")
        a("s_add_u32 s21, s21, %d" % F_E)
        signal(TM, TM + 1, "s21", "or", "s20")
        a.label(Lnp)

    def p23_addr():
        t0, t1, t2 = TM, TM + 1, TM + 2
        a("v_lshrrev_b32 v%d, 2, v7" % t0)
        a("v_and_b32 v%d, 3, v7" % t1)
        a("v_lshl_add_u32 v%d, v6, 3, v%d" % (t2, t0))
        a("v_lshlrev_b32 v%d, 7, v%d" % (t2, t2))
        a("v_lshl_add_u32 v%d, v%d, 3, v%d" % (t2, t1, t2))
        a("v_lshrrev_b32 v%d, 1, v%d" % (t0, t0))
        a("v_and_b32 v%d, 1, v6" % t1)
        a("v_lshl_add_u32 v%d, v%d, 1, v%d" % (t0, t1, t0))
        a("v_xor_b32 v%d, s17, v%d" % (t0, t0))
        a("v_lshl_add_u32 v%d, v%d, 5, v%d" % (t2, t0, t2))
        a("s_lshl_b32 s20, s17, 11")
        for sl in range(NS):
            a("s_add_u32 s21, s20, %d" % (sl * SLOT))
            a("v_add_u32 v%d, s21, v8" % (ADR + 6 * sl))
            a("v_add_u32 v%d, s21, v9" % (ADR + 6 * sl + 1))
            a("v_add_u32 v%d, %d, v%d" % (ADR + 6 * sl + 2, sl * SLOT, t2))
            a("v_add_u32 v%d, %d, v8" % (ADR + 6 * sl + 4, sl * SLOT + 8192))
            a("v_add_u32 v%d, %d, v9" % (ADR + 6 * sl + 5, sl * SLOT + 8192))

    EVR = [[K(c, 2), K(c, 3)] for c in range(5)]
    spare = [ADR + 3, ADR + 9, ADR + 15, ADR + 21, 251, 252, 253, 10, 11, 12]
    for c in range(5):
        EVR[c] += [spare[2 * c], spare[2 * c + 1]]

    EB = MISC + 6144

    def e_zero():
        a("s_mul_i32 s20, s17, 1280")
        a("s_add_u32 s20, s20, %d" % EB)
        a("v_lshl_add_u32 v13, v1, 2, s20")
        a("v_mov_b32 v12, 0")
        for i in range(5):
            a("ds_write_b32 v13, v12 offset:%d" % (i * 256))

    def fx_carry():
        st()
        a("v_lshl_add_u32 v13, v6, 2, s13")
        a("v_mul_u32_u24 v13, 320, v13")
        a("v_add_u32 v13, v13, v5")
        a("v_add_u32 v13, %d, v13" % EB)
        for e in range(4):
            for c in range(5):
                a("ds_read_b32 v%d, v13 offset:%d" % (EVR[c][e], e * 320 + c * 64))
        a("s_waitcnt lgkmcnt(0)")
        for e in range(1, 4):
            cmul_add(a, [(EVR[c][e], K(c, 4), K(c, 5), EVR[c][e - 1], EVR[c][e]) for c in range(5)])
        PQ = F1
        for q in range(4):
            a("v_add_u32 v%d, %d, v5" % (F1 + 40 + q, q * 64))
        for c in range(5):
            for q in range(4):
                a("ds_bpermute_b32 v%d, v%d, v%d" % (PQ + 4 * c + q, F1 + 40 + q, EVR[c][3]))
        a("s_waitcnt lgkmcnt(0)")
        for q in range(1, 4):
            cmul_add(a, [(PQ + 4 * c + q, K(c, 6), K(c, 7), PQ + 4 * c + q - 1, PQ + 4 * c + q) for c in range(5)])
        cmul_add(a, [(K(c, 10), K(c, 8), K(c, 9), PQ + 4 * c + 3, K(c, 10)) for c in range(5)])
        CC = F1 + 20
        G = lambda c, i: ACC1 + c * 8 + i
        for i in range(8):
            cmul_add(a, [(CC + 2 * c + (i & 1), K(c, 0), K(c, 1), K(c, 10) if i == 0 else CC + 2 * c + ((i - 1) & 1), None) for c in range(5)])
            if i & 1:
                for c in range(5):
                    u = G(c, i - 1)
                    a("v_pk_add_f32 v[%d:%d], v[%d:%d], v[%d:%d]" % (u, u + 1, u, u + 1, CC + 2 * c, CC + 2 * c + 1))
        a("s_lshl_b32 s20, s13, 1")
        a("s_add_u32 s20, s20, s19")
        a("s_lshl_b32 s29, s20, 8")
        a("s_add_u32 s29, s29, %d" % F_HT)
        a("s_mul_i32 s20, s20, 163840")
        a("s_mul_i32 s21, s18, 81920")
        a("s_add_u32 s20, s20, s21")
        a("s_add_u32 s20, s20, %d" % WS_HT)
        srd_off(a, 72, 10, 11, "s20", 81920)
        a("v_lshrrev_b32 v10, 3, v7")
        a("v_mul_u32_u24 v11, 640, v10")
        a("v_add_u32 v11, v11, v3")
        a("v_lshlrev_b32 v11, 6, v11")
        a("v_lshl_add_u32 v11, v6, 4, v11")
        a("v_mul_u32_u24 v10, 0x8000, v10")
        a("v_lshl_add_u32 v10, v10, 16, v10")
        a("s_mul_i32 s20, s14, 2560")
        PKH = CON
        for c in range(5):
            for j in range(4):
                a("v_cvt_pk_bf16_f32 v%d, v%d, v%d" % (PKH + 4 * c + j, G(c, 2 * j), G(c, 2 * j + 1)))
        for c in range(5):
            for j in range(4):
                a("v_xor_b32 v%d, v10, v%d" % (PKH + 4 * c + j, PKH + 4 * c + j))
            a("buffer_store_dwordx4 v[%d:%d], v11, s[72:75], s20 offen offset:%d sc1" % (PKH + 4 * c, PKH + 4 * c + 3, c * 512))
        st()

    XR, XNR, DS, B2 = 36, 46, 216, 226
    T0, T1 = 196, 234
    PK = DS

    def fx_signal():
        a("s_waitcnt vmcnt(0)")
        signal(10, 11, "s29")
        a("s_lshl_b32 s21, s15, 6")
        a("s_lshl_b32 s22, s17, 4")
        a("s_add_u32 s21, s21, s22")
        a("s_mul_i32 s22, s21, 1280")
        a("s_mul_i32 s23, s16, 160")
        a("s_add_u32 s22, s22, s23")
        srd(a, 80, P_OUT, P_OUT + 1, 2048 * 2560)
        a("v_mul_u32_u24 v15, 2560, v7")
        a("v_lshl_add_u32 v15, v6, 4, v15")
        a("s_lshl_b32 s27, s22, 1")
        a("s_mov_b32 s20, 0xffff0000")
        a("s_mov_b32 s21, 0x00003f80")
        a("s_mov_b32 s26, 0x3f800000")
        a("s_mov_b32 s88, %s" % fh(-LOG2E))
        a("s_mov_b32 s89, s88")
        a("v_lshlrev_b32 v14, 3, v6")
        a("v_add_u32 v14, %d, v14" % (MISC + 1536))
        for dt in range(5):
            a("ds_read_b64 v[%d:%d], v14 offset:%d" % (B2 + 2 * dt, B2 + 2 * dt + 1, dt * 32))
            a("ds_read_b64 v[%d:%d], v14 offset:%d" % (DS + 2 * dt, DS + 2 * dt + 1, 256 + dt * 32))
        a("s_mul_i32 s22, s17, 2560")
        a("s_add_u32 s22, s22, %d" % (2 * SLOT))
        a("v_mul_u32_u24 v10, 160, v7")
        a("v_lshl_add_u32 v10, v6, 3, v10")
        a("v_add_u32 v10, s22, v10")

    DF = XR

    def h_sk():
        for i in range(10):
            a("v_lshlrev_b32 v%d, 16, v%d" % (DF + 2 * i, DS + i))
            a("v_and_b32 v%d, s20, v%d" % (DF + 2 * i + 1, DS + i))
        for i in reversed(range(10)):
            a("v_and_b32 v%d, s20, v%d" % (T1 + 2 * i + 1, B2 + i))
            a("v_lshlrev_b32 v%d, 16, v%d" % (T1 + 2 * i, B2 + i))

    def h_gate1():
        for i in range(10):
            a("v_cvt_pk_bf16_f32 v%d, v%d, v%d" % (PK + i, ACC2 + 2 * i, ACC2 + 2 * i + 1))
        for i in range(10):
            a("v_dot2_f32_bf16 v%d, v%d, s21, v%d" % (ACC2 + 2 * i, PK + i, T1 + 2 * i))
            a("v_dot2_f32_bf16 v%d, v%d, s26, v%d" % (ACC2 + 2 * i + 1, PK + i, T1 + 2 * i + 1))
        a("s_nop 1")
        for i in range(10):
            a("v_cvt_pk_bf16_f32 v%d, v%d, v%d" % (PK + i, ACC2 + 2 * i, ACC2 + 2 * i + 1))
        for i in range(10):
            a("v_lshlrev_b32 v%d, 16, v%d" % (ACC2 + 2 * i, PK + i))
            a("v_and_b32 v%d, s20, v%d" % (ACC2 + 2 * i + 1, PK + i))
        for i in range(10):
            a("v_pk_mul_f32 v[%d:%d], v[%d:%d], s[88:89]" % (T0 + 2 * i, T0 + 2 * i + 1, ACC2 + 2 * i, ACC2 + 2 * i + 1))

    def h_gate2():
        for i in range(20):
            a("v_exp_f32 v%d, v%d" % (T0 + i, T0 + i))
        a("s_nop 0")
        for i in range(10):
            a("v_pk_add_f32 v[%d:%d], v[%d:%d], 1.0" % (T0 + 2 * i, T0 + 2 * i + 1, T0 + 2 * i, T0 + 2 * i + 1))
        for i in range(20):
            a("v_rcp_f32 v%d, v%d" % (T0 + i, T0 + i))
        a("s_nop 0")

    def h_gate3():
        for i in range(10):
            a("v_pk_mul_f32 v[%d:%d], v[%d:%d], v[%d:%d]" % (ACC2 + 2 * i, ACC2 + 2 * i + 1, ACC2 + 2 * i, ACC2 + 2 * i + 1, T0 + 2 * i, T0 + 2 * i + 1))
        for i in range(10):
            a("v_cvt_pk_bf16_f32 v%d, v%d, v%d" % (PK + i, ACC2 + 2 * i, ACC2 + 2 * i + 1))
        for i in range(10):
            a("v_lshlrev_b32 v%d, 16, v%d" % (T0 + 2 * i, PK + i))
            a("v_and_b32 v%d, s20, v%d" % (T0 + 2 * i + 1, PK + i))

    def h_fin():
        RX, RN = FR, FR + 10
        for dt in range(5):
            a("ds_read_b64 v[%d:%d], v10 offset:%d" % (RN + 2 * dt, RN + 2 * dt + 1, 10240 + dt * 32))
        for dt in range(5):
            a("ds_read_b64 v[%d:%d], v10 offset:%d" % (RX + 2 * dt, RX + 2 * dt + 1, dt * 32))
        a("s_waitcnt lgkmcnt(5)")
        for i in range(10):
            a("v_lshlrev_b32 v%d, 16, v%d" % (ACC2 + 2 * i, RN + i))
            a("v_and_b32 v%d, s20, v%d" % (ACC2 + 2 * i + 1, RN + i))
        for i in range(10):
            a("v_pk_mul_f32 v[%d:%d], v[%d:%d], v[%d:%d]" % (ACC2 + 2 * i, ACC2 + 2 * i + 1, ACC2 + 2 * i, ACC2 + 2 * i + 1, DF + 2 * i, DF + 2 * i + 1))
        for i in range(10):
            a("v_cvt_pk_bf16_f32 v%d, v%d, v%d" % (RN + i, ACC2 + 2 * i, ACC2 + 2 * i + 1))
        a("s_waitcnt lgkmcnt(0)")
        for i in range(10):
            a("v_lshlrev_b32 v%d, 16, v%d" % (ACC2 + 2 * i, RN + i))
            a("v_and_b32 v%d, s20, v%d" % (ACC2 + 2 * i + 1, RN + i))
            a("v_lshlrev_b32 v%d, 16, v%d" % (T1 + 2 * i, RX + i))
            a("v_and_b32 v%d, s20, v%d" % (T1 + 2 * i + 1, RX + i))

    hooks = {9: [lambda: a("s_nop 7"), f1_epi], 11: [f1_signal], 14: [k_fetch], 16: [e_zero],
             23: [fx_carry], 25: [fx_signal], 27: [h_sk],
             33: [h_gate1], 35: [h_gate2], 37: [h_gate3], 41: [h_fin]}

    def run(s0, s1, pre_barrier):
        st()
        a("s_barrier")
        st()
        for r in reads(s0, 0, 0):
            a(r)
        for s in range(s0, s1):
            a("s_waitcnt lgkmcnt(0)")
            for x in interleave(mfmas(s, 0, 0), reads(s, 1, 1)):
                a(x)
            a("s_waitcnt lgkmcnt(0)")
            a("s_barrier")
            if STAMP and s % 2 == 1:
                st()
            rs = reads(s + 1, 0, 0) if s + 1 < s1 else []
            for x in interleave(mfmas(s, 1, 1), rs):
                a(x)
            for h in hooks.get(s, []):
                h()
    run(0, 20, None)
    s1_epi()
    p23_addr()
    e_signal()
    run(20, 42, None)
    st()
    a("s_nop 7")
    for i in range(10):
        r = ACC3 + 2 * i
        a("v_pk_fma_f32 v[%d:%d], v[%d:%d], 2.0, v[%d:%d]" % (r, r + 1, r, r + 1, ACC2 + 2 * i, ACC2 + 2 * i + 1))
    for i in range(10):
        r = ACC3 + 2 * i
        a("v_pk_mul_f32 v[%d:%d], v[%d:%d], v[%d:%d]" % (r, r + 1, r, r + 1, T0 + 2 * i, T0 + 2 * i + 1))
    for i in range(10):
        r = ACC3 + 2 * i
        a("v_pk_add_f32 v[%d:%d], v[%d:%d], v[%d:%d]" % (r, r + 1, r, r + 1, T1 + 2 * i, T1 + 2 * i + 1))
    for dt in range(5):
        a("buffer_store_dwordx4 v[%d:%d], v15, s[80:83], s27 offen offset:%d" % (ACC3 + 4 * dt, ACC3 + 4 * dt + 3, dt * 64))
    st.flush()
    a("s_endpgm")

    a.label(Lld)
    st.n = n0
    vm = VM(a)
    Lni = a.newlabel("U_noinit")
    srd(a, 20, P_DBG, P_DBG + 1, 256)
    a("v_mov_b32 v17, 0")
    a("s_cmp_lg_u32 s2, 0")
    a("s_cbranch_scc1 %s" % Lni)
    a("s_cmp_lg_u32 s17, 3")
    a("s_cbranch_scc1 %s" % Lni)
    a("v_lshlrev_b32 v18, 8, v1")
    a("s_movk_i32 s24, 16384")
    a("buffer_store_dword v17, v18, s[76:79], 0 offen sc1")
    a("buffer_store_dword v17, v18, s[76:79], s24 offen sc1")
    a("s_waitcnt vmcnt(0)")
    a("v_mov_b32 v18, 1")
    a("buffer_store_dword v18, v17, s[20:23], 0 offen sc1")
    a.label(Lni)
    a("s_mul_i32 s24, s14, 192")
    srd_off(a, 68, P_W1, P_W1 + 1, "s24", 640 * 3072 - 15 * 192)
    a("v_lshrrev_b32 v10, 2, v1")
    a("v_and_b32 v11, 3, v10")
    a("v_lshrrev_b32 v12, 2, v10")
    a("v_and_b32 v12, 1, v12")
    a("v_lshrrev_b32 v13, 3, v10")
    a("v_lshl_add_u32 v11, v12, 3, v11")
    a("v_lshl_add_u32 v11, v13, 2, v11")
    a("v_mul_u32_u24 v22, 3072, v11")
    a("v_lshrrev_b32 v13, 1, v1")
    a("v_and_b32 v13, 1, v13")
    a("v_xor_b32 v13, v13, v12")
    a("v_lshl_add_u32 v22, v13, 5, v22")
    a("v_and_b32 v13, 1, v1")
    a("v_lshl_add_u32 v22, v13, 4, v22")
    a("s_mul_i32 s3, s17, %d" % (16 * 3072))
    a("s_lshl_b32 s4, s17, 10")

    def free_part(s):
        sl = s % NS
        if s < 10:
            for p in range(3):
                a("s_add_u32 m0, s4, %d" % (sl * SLOT + 16384 + p * 4096))
                a("s_add_u32 s6, s3, %d" % (s * 64 * 3072 + p * 64))
                a("buffer_load_dwordx4 v22, s[68:71], s6 offen lds")
            n = 3
        elif s < 20:
            for i in range(3):
                a("s_add_u32 m0, s4, %d" % (sl * SLOT + 16384 + i * 4096))
                a("s_add_u32 s6, s5, %d" % (i * 20480 + (s - 10) * 128))
                a("buffer_load_dwordx4 v5, s[72:75], s6 offen lds")
            n = 3
        else:
            for i in range(5):
                a("s_add_u32 m0, s46, %d" % (sl * SLOT + 8192 + i * 2048))
                if s < 32:
                    a("s_add_u32 s6, s7, %d" % (i * 16 * 3072 + (s - 20) * 256))
                    a("buffer_load_dwordx4 v16, s[84:87], s6 offen sc1 lds")
                else:
                    s3 = s - 32
                    sr = 92 if s3 < 5 else 96
                    a("s_add_u32 s6, s8, %d" % (i * 16 * 1280 + (s3 % 5) * 256))
                    a("buffer_load_dwordx4 v5, s[%d:%d], s6 offen lds" % (sr, sr + 3))
            n = 5
        vm.issue(("F", s), n)

    def dep_part(s):
        sl = s % NS
        for i in range(4):
            if s < 20:
                a("s_add_u32 m0, s4, %d" % (sl * SLOT + i * 4096))
                a("s_add_u32 s6, s47, %d" % (i * 40960 + (s % 10) * 128))
                a("buffer_load_dwordx4 v5, s[64:67], s6 offen sc1 lds")
            elif s < 32:
                a("s_add_u32 m0, s46, %d" % (sl * SLOT + i * 2048))
                a("s_add_u32 s6, s50, %d" % (i * 1024 + (s - 20) * 16384))
                a("buffer_load_dwordx4 v21, s[80:83], s6 offen sc1 lds")
            else:
                a("s_add_u32 m0, s46, %d" % (sl * SLOT + i * 2048))
                a("s_add_u32 s6, s9, %d" % (i * 1024 + (s - 32) * 8192))
                a("buffer_load_dwordx4 v10, s[88:91], s6 offen sc1 lds")
        vm.issue(("D", s), 4)
    for s in range(4):
        free_part(s)
    st()
    a("s_mul_i32 s24, s13, %d" % (128 * 1280))
    a("s_add_u32 s24, s24, %d" % WS_XN)
    srd_off(a, 64, 10, 11, "s24", 128 * 1280)
    a("s_cmp_eq_u32 s18, 0")
    a("s_cselect_b32 s24, s%d, s%d" % (P_BRE, P_BIM))
    a("s_cselect_b32 s25, s%d, s%d" % (P_BRE + 1, P_BIM + 1))
    a("s_mul_i32 s26, s14, %d" % (40 * 1280))
    srd_off(a, 72, 24, 25, "s26", 40 * 1280)
    a("s_mul_i32 s24, s15, 196608")
    a("s_add_u32 s24, s24, %d" % WS_H1)
    srd_off(a, 80, 10, 11, "s24", 196608)
    a("s_mul_i32 s24, s16, %d" % (80 * 3072))
    a("s_add_u32 s24, s24, %d" % WS_W2T)
    srd_off(a, 84, 10, 11, "s24", 80 * 3072)
    a("s_mul_i32 s24, s15, 163840")
    a("s_add_u32 s24, s24, %d" % WS_HT)
    srd_off(a, 88, 10, 11, "s24", 163840)
    a("s_lshr_b32 s24, s2, 3")
    a("s_and_b32 s25, s2, 7")
    a("v_lshlrev_b32 v18, 7, v1")
    Lpf1 = a.newlabel("U_pf1")
    Lpf3 = a.newlabel("U_pf3")
    Lpfd = a.newlabel("U_pfd")
    a("s_cmp_eq_u32 s17, 3")
    a("s_cbranch_scc1 %s" % Lpf3)
    a("s_cmp_lg_u32 s17, 0")
    a("s_cbranch_scc1 %s" % Lpf1)
    a("s_lshr_b32 s25, s25, 1")
    a("s_mul_i32 s25, s25, 204800")
    a("s_mul_i32 s26, s24, 6400")
    a("s_add_u32 s25, s25, s26")
    srd_off(a, 92, P_BRE, P_BRE + 1, "s25", 6400)
    srd_off(a, 96, P_BIM, P_BIM + 1, "s25", 6400)
    a("buffer_load_dword v19, v18, s[92:95], 0 offen")
    a("buffer_load_dword v20, v18, s[96:99], 0 offen")
    a("s_branch %s" % Lpfd)
    a.label(Lpf1)
    a("s_lshr_b32 s25, s25, 2")
    a("s_mul_i32 s25, s25, 409600")
    a("s_mul_i32 s26, s24, 12800")
    a("s_add_u32 s25, s25, s26")
    a("s_cmp_eq_u32 s17, 1")
    a("s_cselect_b32 s26, s%d, s%d" % (P_CRE, P_CIM))
    a("s_cselect_b32 s27, s%d, s%d" % (P_CRE + 1, P_CIM + 1))
    srd_off(a, 92, 26, 27, "s25", 12800)
    a("s_movk_i32 s26, 8192")
    a("buffer_load_dword v19, v18, s[92:95], 0 offen")
    a("buffer_load_dword v20, v18, s[92:95], s26 offen")
    a("s_branch %s" % Lpfd)
    a.label(Lpf3)
    a("s_lshr_b32 s25, s25, 1")
    a("s_mul_i32 s25, s25, 768")
    a("s_mul_i32 s26, s24, %d" % (12 * 3072))
    a("s_add_u32 s25, s25, s26")
    a("s_add_u32 s25, s25, %d" % (256 * 3072))
    srd_off(a, 92, P_W1, P_W1 + 1, "s25", 12 * 3072 - 2304)
    a("v_lshrrev_b32 v19, 3, v1")
    a("v_and_b32 v20, 7, v1")
    a("v_min_u32 v20, 5, v20")
    a("v_mul_u32_u24 v19, 3072, v19")
    a("v_lshl_add_u32 v18, v20, 7, v19")
    a("s_movk_i32 s26, %d" % (8 * 3072))
    a("buffer_load_dword v19, v18, s[92:95], 0 offen")
    a("buffer_load_dword v20, v18, s[92:95], s26 offen")
    a.label(Lpfd)
    vm.issue("pf", 2)
    a("s_cmp_eq_u32 s18, 0")
    a("s_cselect_b32 s24, s%d, s%d" % (P_B2, P_DSK))
    a("s_cselect_b32 s25, s%d, s%d" % (P_B2 + 1, P_DSK + 1))
    a("s_mul_i32 s26, s16, 160")
    srd_off(a, 92, 24, 25, "s26", 160)
    a("v_lshlrev_b32 v18, 4, v1")
    a("v_cmp_gt_u32 vcc, 16, v1")
    a("s_and_saveexec_b64 s[26:27], vcc")
    a("s_lshl_b32 s24, s18, 8")
    a("s_add_u32 m0, s24, %d" % (MISC + 1536))
    a("s_nop 0")
    a("buffer_load_dwordx4 v18, s[92:95], 0 offen lds")
    a("s_mov_b64 exec, -1")
    vm.issue("bd", 1)
    a("s_mul_i32 s24, s16, %d" % (80 * 1280))
    srd_off(a, 92, P_CRE, P_CRE + 1, "s24", 80 * 1280)
    srd_off(a, 96, P_CIM, P_CIM + 1, "s24", 80 * 1280)
    a("v_mul_u32_u24 v5, 1280, v2")
    a("v_lshl_add_u32 v5, v4, 4, v5")
    a("v_mul_u32_u24 v16, 3072, v2")
    a("v_lshl_add_u32 v16, v4, 4, v16")
    a("v_and_b32 v10, 1, v6")
    a("s_lshl_b32 s24, s18, 1")
    a("v_or_b32 v10, s24, v10")
    a("v_lshrrev_b32 v11, 1, v3")
    a("v_xor_b32 v11, v10, v11")
    a("v_lshrrev_b32 v10, 1, v11")
    a("v_mul_u32_u24 v10, 81920, v10")
    a("v_lshl_add_u32 v10, v2, 6, v10")
    a("v_and_b32 v11, 1, v11")
    a("v_lshl_add_u32 v10, v11, 5, v10")
    a("v_and_b32 v11, 1, v1")
    a("v_lshl_add_u32 v10, v11, 4, v10")
    a("v_lshrrev_b32 v21, 2, v4")
    a("v_lshlrev_b32 v21, 12, v21")
    a("v_lshl_add_u32 v21, v2, 6, v21")
    a("v_and_b32 v11, 3, v4")
    a("v_lshl_add_u32 v21, v11, 4, v21")
    a("s_mul_i32 s47, s17, 10240")
    a("s_mul_i32 s5, s19, 10240")
    a("s_lshl_b32 s50, s19, 13")
    a("s_lshl_b32 s24, s18, 9")
    a("s_add_u32 s50, s50, s24")
    a("s_lshl_b32 s9, s19, 12")
    a("s_add_u32 s9, s9, s24")
    a("s_mul_i32 s7, s18, %d" % (8 * 3072))
    a("s_lshl_b32 s24, s19, 7")
    a("s_add_u32 s7, s7, s24")
    a("s_mul_i32 s8, s18, %d" % (8 * 1280))
    a("s_add_u32 s8, s8, s24")
    a("s_mul_i32 s46, s19, %d" % SUB)
    a("s_lshl_b32 s24, s18, 10")
    a("s_add_u32 s46, s46, s24")

    def gate(soff_code, target, word, first=False):
        Lnp = a.newlabel("U_gnp")
        Lgo = a.newlabel("U_ggo")
        a("s_cmp_lg_u32 s17, 0")
        a("s_cbranch_scc1 %s" % Lnp)
        a("v_mov_b32 v23, 1")
        if first:
            poll(a, 18, 17, 20, "0", chk_ge(1), "U_ini", 2)
            a("ds_write_b32 v15, v23")
        soff_code()
        poll(a, 18, 17, 76, "s24", chk_ge(target), "U_g", 3)
        a("ds_write_b32 v15, v23 offset:%d" % word)
        a("s_branch %s" % Lgo)
        a.label(Lnp)
        lds_wait(a, 18, 15, word, 1, "U_gw", 1)
        a.label(Lgo)

    gate(lambda: a("s_lshl_b32 s24, s13, 8"), 32, 4, True)
    st()

    def phase(s0, s1, nxt_free_to):
        dep_part(s0)
        dep_part(s0 + 1)
        vm.wait(("D", s0))
        st()
        a("s_barrier")
        dep_part(s0 + 2)
        dep_part(s0 + 3)
        for s in range(s0, s1):
            if s + 1 < s1:
                vm.wait(("D", s + 1))
            if s == 23:
                vm.wait("Emark")
            if s == 41:
                vm.drain()
            a("s_barrier")
            if STAMP and s % 2 == 1:
                st()
            n = s + NS
            if s == 20:
                a("s_lshl_b32 s26, 1, s13")
                a("s_sub_u32 s26, s26, 1")
                a("s_lshl_b32 s27, s14, 8")
                a("s_add_u32 s27, s27, %d" % F_E)
                a("buffer_load_dword v20, v17, s[76:79], s27 offen sc1")
                vm.issue("pollE", 1)
            if s == 21:
                def chkE(sr):
                    a("s_and_b32 s%d, s%d, s26" % (sr, sr))
                    a("s_cmp_eq_u32 s%d, s26" % sr)
                vm.wait("pollE")
                Lok = a.newlabel("U_eok")
                a("v_readfirstlane_b32 s30, v20")
                a("s_nop 3")
                chkE(30)
                a("s_cbranch_scc1 %s" % Lok)
                poll(a, 20, 17, 76, "s27", chkE, "U_e", 2)
                a.label(Lok)
                a("s_mul_i32 s24, s14, 5120")
                a("s_add_u32 s24, s24, %d" % WS_ET)
                srd_off(a, 64, 10, 11, "s24", 5120)
                a("v_lshlrev_b32 v18, 4, v1")
                a("s_add_u32 m0, s4, %d" % (MISC + 6144 + 5120))
                a("s_nop 0")
                a("buffer_load_dwordx4 v18, s[64:67], s4 offen sc1 lds")
                Lsk = a.newlabel("U_e5")
                a("s_cmp_lg_u32 s17, 0")
                a("s_cbranch_scc1 %s" % Lsk)
                a("s_mov_b32 m0, %d" % (MISC + 6144 + 5120 + 4096))
                a("s_movk_i32 s24, 4096")
                a("buffer_load_dwordx4 v18, s[64:67], s24 offen sc1 lds")
                a.label(Lsk)
                vm.issue("E", 1)
                vm.issue("Emark", 0)
            if s == 38:
                a("s_lshl_b32 s24, s15, 6")
                a("s_mul_i32 s24, s24, 1280")
                a("s_mul_i32 s25, s16, 160")
                a("s_add_u32 s24, s24, s25")
                srd_off(a, 64, P_X, P_X + 1, "s24", 64 * 1280 - 1120)
                a("s_add_u32 s24, s24, %d" % WS_XN)
                srd_off(a, 68, 10, 11, "s24", 64 * 1280 - 1120)
                a("s_lshl_b32 s24, s17, 6")
                for i in range(3):
                    a("v_add_u32 v18, s24, v1")
                    if i:
                        a("v_add_u32 v18, %d, v18" % (256 * i))
                    a("v_mul_u32_u24 v19, 6554, v18")
                    a("v_lshrrev_b32 v19, 16, v19")
                    a("v_mul_u32_u24 v20, 10, v19")
                    a("v_sub_u32 v20, v18, v20")
                    a("v_mul_u32_u24 v23, 1280, v19")
                    a("v_lshl_add_u32 v23, v20, 4, v23")
                    a("v_and_b32 v24, 0xffe3, v19")
                    a("v_lshrrev_b32 v25, 2, v19")
                    a("v_and_b32 v25, 1, v25")
                    a("v_lshl_add_u32 v24, v25, 4, v24")
                    a("v_lshrrev_b32 v25, 3, v19")
                    a("v_and_b32 v25, 3, v25")
                    a("v_lshl_add_u32 v24, v25, 2, v24")
                    a("v_mul_u32_u24 v24, 1280, v24")
                    a("v_lshl_add_u32 v24, v20, 4, v24")
                    if i < 2:
                        a("s_add_u32 m0, s4, %d" % (2 * SLOT + i * 4096))
                        a("s_nop 0")
                        a("buffer_load_dwordx4 v23, s[64:67], 0 offen lds")
                        a("s_add_u32 m0, s4, %d" % (2 * SLOT + 10240 + i * 4096))
                        a("s_nop 0")
                        a("buffer_load_dwordx4 v24, s[68:71], 0 offen sc1 lds")
                    else:
                        Lsk = a.newlabel("U_x3")
                        a("s_cmp_ge_u32 s17, 2")
                        a("s_cbranch_scc1 %s" % Lsk)
                        a("s_add_u32 m0, s4, %d" % (2 * SLOT + i * 4096))
                        a("s_nop 0")
                        a("buffer_load_dwordx4 v23, s[64:67], 0 offen lds")
                        a("s_add_u32 m0, s4, %d" % (2 * SLOT + 10240 + i * 4096))
                        a("s_nop 0")
                        a("buffer_load_dwordx4 v24, s[68:71], 0 offen sc1 lds")
                        a.label(Lsk)
                vm.issue("X", 4)
            if n < s1:
                if n == 31:
                    a("s_lshl_b32 s25, s15, 8")
                    a("s_add_u32 s25, s25, %d" % F_HT)
                    a("buffer_load_dword v19, v17, s[76:79], s25 offen sc1")
                    vm.issue("pollHT", 1)
                if n == 19:
                    a("s_mov_b32 s25, %d" % F_W2)
                    a("buffer_load_dword v19, v17, s[76:79], s25 offen sc1")
                    vm.issue("pollW2", 1)
                free_part(n)
                if n == 32:
                    vm.wait("pollHT")
                    Lok = a.newlabel("U_htok")
                    a("v_readfirstlane_b32 s30, v19")
                    a("s_nop 3")
                    a("s_cmp_ge_u32 s30, 32")
                    a("s_cbranch_scc1 %s" % Lok)
                    poll(a, 19, 17, 76, "s25", chk_ge(32), "U_ht")
                    a.label(Lok)
                dep_part(n)
            elif n < nxt_free_to:
                if n == 20:
                    vm.wait("pollW2")
                    Lok = a.newlabel("U_w2ok")
                    a("v_readfirstlane_b32 s30, v19")
                    a("s_nop 3")
                    a("s_cmp_ge_u32 s30, 240")
                    a("s_cbranch_scc1 %s" % Lok)
                    poll(a, 19, 17, 76, "s25", chk_ge(240), "U_w2")
                    a.label(Lok)
                free_part(n)
    phase(0, 20, 24)
    st()

    def h1off():
        a("s_lshl_b32 s24, s15, 8")
        a("s_add_u32 s24, s24, %d" % F_H1)
    gate(h1off, 32, 12)
    st()
    phase(20, 42, 42)
    st.flush()
    a.label(Lend)
    a("s_endpgm")
    a.label("U_code_end")
    if CODEPF:
        a.raw(".set CODE_END_OFF, U_code_end - U_code_start - 64")
    return name, 256


if __name__ == "__main__":
    a = Asm()
    nm, vg = gen_uni(a)
    hdr = open("cdna_kernels/%s.s.ref" % NAME).read().split("\n")
    hdr = [l for l in hdr if l.startswith(";") and "@launch" not in l]
    out = "\n".join(hdr) + "\n; @launch grid=(256,1,1) block=(512,1,1) lds=163840\n"
    out += '.amdgcn_target "amdgcn-amd-amdhsa--gfx950"\n.text\n' + a.text()
    out += '.section .rodata,"a"\n.p2align 6\n' + kernel_desc(nm, vg)
    open(sys.argv[1] if len(sys.argv) > 1 else "cdna_kernels/%s.s" % NAME, "w").write(out)
```

```python
import sys, os, math
from gen import Asm, srd, srd_off, kernel_header, kernel_desc, fh, KA, LOG2E, DPP8, NAME
import gen

WS_XN = 0x0000000
WS_W2T = 0x0500000
WS_FLG = 0x0780000
WS_H1 = 0x0800000
WS_ET = 0x0F00000
WS_HT = 0x2000000
WS_DBG = 0x3000000
F_XN, F_H1, F_E, F_HT, F_W2, F_SIZE = 0, 4096, 12288, 16384, 24576, 27136

STAMP = int(os.environ.get("STAMP", "0"))
NS = 4
ESTAGE = int(os.environ.get("ESTAGE", "24"))
RATE1 = eval(os.environ.get("RATE1", "(3, 30)"))
RATE2 = eval(os.environ.get("RATE2", "(4, 40)"))
RATE3 = eval(os.environ.get("RATE3", "(2, 10)"))
PRE20 = int(os.environ.get("PRE20", "260"))
CODE_SIZE = 40000
CODEPF = int(os.environ.get("CODEPF", "1"))
SLOT = 36864
SUB = 18432
MISC = 147456

P_X, P_LRE, P_LIM, P_BRE, P_BIM, P_CRE, P_CIM, P_LDT, P_DSK, P_W1, P_B1, P_W2, P_B2, P_OUT, P_DBG = \
    32, 34, 36, 38, 40, 42, 44, 46, 48, 52, 54, 56, 58, 60, 62


class Stamper:
    def __init__(self, a):
        self.a = a
        self.n = 0

    def __call__(self, real=False):
        if not STAMP:
            return
        a = self.a
        assert self.n < 64
        if self.n == 0 and not real:
            a("v_mov_b32 v255, 0")
            self(True)
        a("s_memrealtime s[100:101]" if real else "s_memtime s[100:101]")
        a("s_waitcnt lgkmcnt(0)")
        a("v_writelane_b32 v255, s100, %d" % self.n)
        self.n += 1

    def flush(self):
        if not STAMP:
            return
        a = self.a
        self()
        self(True)
        a("s_mov_b64 exec, -1")
        a("s_lshl_b32 s100, s2, 3")
        a("s_add_u32 s100, s100, s12")
        a("s_lshl_b32 s100, s100, 8")
        a("s_add_u32 s100, s100, 0x%x" % (WS_DBG + 0x100000))
        srd_off(a, 96, 10, 11, "s100", 256)
        a("v_and_b32 v254, 63, v0")
        a("v_lshlrev_b32 v254, 2, v254")
        a("buffer_store_dword v255, v254, s[96:99], 0 offen")


class VM:
    def __init__(self, a):
        self.a = a
        self.q = []

    def issue(self, tag, n):
        self.q.append((tag, n))

    def wait(self, tag):
        idxs = [i for i, (t, n) in enumerate(self.q) if t == tag]
        if not idxs:
            return
        idx = max(idxs)
        rest = sum(n for t, n in self.q[idx + 1:])
        assert rest <= 63, rest
        self.a("s_waitcnt vmcnt(%d)" % rest)
        self.q = self.q[idx + 1:]

    def drain(self):
        self.a("s_waitcnt vmcnt(0)")
        self.q = []


def interleave(ms, rs):
    out = []
    ri = 0
    for m in ms:
        out.append(m)
        if ri < len(rs):
            out.append(rs[ri])
            ri += 1
    return out + rs[ri:]


def poll(a, vreg, vzero, sflg, soff, check, lbl, slp=4):
    Lp = a.newlabel(lbl + "_poll")
    Ld = a.newlabel(lbl + "_done")
    a("s_mov_b32 s31, 0x100000")
    a.label(Lp)
    a("buffer_load_dword v%d, v%d, s[%d:%d], %s offen sc1" % (vreg, vzero, sflg, sflg + 3, soff))
    a("s_waitcnt vmcnt(0)")
    a("v_readfirstlane_b32 s30, v%d" % vreg)
    a("s_nop 3")
    check(30)
    a("s_cbranch_scc1 %s" % Ld)
    a("s_sleep %d" % slp)
    a("s_sub_u32 s31, s31, 1")
    a("s_cmp_lg_u32 s31, 0")
    a("s_cbranch_scc1 %s" % Lp)
    a.label(Ld)


def lds_wait(a, vtmp, vaddr, off, val, lbl, slp=1):
    Lw = a.newlabel(lbl)
    Ld = a.newlabel(lbl + "d")
    a.label(Lw)
    a("ds_read_b32 v%d, v%d offset:%d" % (vtmp, vaddr, off))
    a("s_waitcnt lgkmcnt(0)")
    a("v_readfirstlane_b32 s30, v%d" % vtmp)
    a("s_nop 3")
    a("s_cmp_ge_u32 s30, %d" % val)
    a("s_cbranch_scc1 %s" % Ld)
    if slp:
        a("s_sleep %d" % slp)
    a("s_branch %s" % Lw)
    a.label(Ld)


def cmul_add(a, items):
    for (d, lr, li, s, ad) in items:
        if ad is None:
            a("v_mul_f32 v%d, v%d, v%d" % (d, lr, s))
        else:
            a("v_fma_f32 v%d, v%d, v%d, v%d" % (d, lr, s, ad))
    if len(items) < 2:
        a("s_nop 1")
    for (d, lr, li, s, ad) in items:
        a("v_fmac_f32_dpp v%d, v%d, v%d %s" % (d, s, li, DPP8))


def gelu_units(a, units, tmp, vK1, sK2, sLO, sHI, sMask):
    P = []
    for ui, (rA, rB, b, d) in enumerate(units):
        for h, r in enumerate((rA, rA + 2, rB, rB + 2)):
            P.append((r, b + 2 * h, d + h, tmp + 8 * ui + 2 * h))
    for (r, b, d, t) in P:
        a("v_cvt_pk_bf16_f32 v%d, v%d, v%d" % (d, r, r + 1))
    for (r, b, d, t) in P:
        a("v_dot2_f32_bf16 v%d, v%d, s%d, v%d" % (r, d, sLO, b))
        a("v_dot2_f32_bf16 v%d, v%d, s%d, v%d" % (r + 1, d, sHI, b + 1))
    a("s_nop 1")
    for (r, b, d, t) in P:
        a("v_cvt_pk_bf16_f32 v%d, v%d, v%d" % (d, r, r + 1))
    for (r, b, d, t) in P:
        a("v_lshlrev_b32 v%d, 16, v%d" % (r, d))
        a("v_and_b32 v%d, s%d, v%d" % (r + 1, sMask, d))
    for (r, b, d, t) in P:
        a("v_pk_mul_f32 v[%d:%d], v[%d:%d], v[%d:%d]" % (t, t + 1, r, r + 1, r, r + 1))
    for (r, b, d, t) in P:
        a("v_pk_fma_f32 v[%d:%d], v[%d:%d], s[%d:%d], v[%d:%d]" % (t, t + 1, t, t + 1, sK2, sK2 + 1, vK1, vK1 + 1))
    for (r, b, d, t) in P:
        a("v_pk_mul_f32 v[%d:%d], v[%d:%d], v[%d:%d]" % (t, t + 1, t, t + 1, r, r + 1))
    for (r, b, d, t) in P:
        a("v_exp_f32 v%d, v%d" % (t, t))
        a("v_exp_f32 v%d, v%d" % (t + 1, t + 1))
    a("s_nop 0")
    for (r, b, d, t) in P:
        a("v_pk_add_f32 v[%d:%d], v[%d:%d], 1.0" % (t, t + 1, t, t + 1))
    for (r, b, d, t) in P:
        a("v_rcp_f32 v%d, v%d" % (t, t))
        a("v_rcp_f32 v%d, v%d" % (t + 1, t + 1))
    a("s_nop 0")
    for (r, b, d, t) in P:
        a("v_pk_mul_f32 v[%d:%d], v[%d:%d], v[%d:%d]" % (r, r + 1, r, r + 1, t, t + 1))
    for (r, b, d, t) in P:
        a("v_cvt_pk_bf16_f32 v%d, v%d, v%d" % (d, r, r + 1))


def gen_uni(a):
    name = NAME + "_kernel"
    kernel_header(a, name)
    st = Stamper(a)
    Lend = a.newlabel("U_end")
    Lld = a.newlabel("U_ld")
    a("s_cmp_ge_u32 s2, 256")
    a("s_cbranch_scc1 %s" % Lend)
    if CODEPF:
        a("s_getpc_b64 s[4:5]")
        a.label("U_code_start")
        a("s_lshr_b32 s6, s2, 3")
        a("s_lshl_b32 s6, s6, 11")
        a("v_and_b32 v1, 15, v0")
        a("v_lshlrev_b32 v1, 7, v1")
        a("v_add_u32 v1, s6, v1")
        a("v_min_u32 v1, 0x%x, v1" % CODE_SIZE)
        a("v_cmp_gt_u32 vcc, 16, v0")
        a("s_and_saveexec_b64 s[6:7], vcc")
        a("s_cbranch_execz U_cpf")
        a("global_load_dword v30, v1, s[4:5]")
        a.label("U_cpf")
        a("s_mov_b64 exec, -1")
    a("s_load_dwordx16 s[32:47], s[0:1], 0")
    a("s_load_dwordx16 s[48:63], s[0:1], 64")
    a("s_load_dwordx2 s[10:11], s[0:1], 128")
    a("v_lshrrev_b32 v2, 6, v0")
    a("v_and_b32 v1, 63, v0")
    a("s_nop 0")
    a("v_readfirstlane_b32 s12, v2")
    a("s_lshr_b32 s20, s2, 3")
    a("s_and_b32 s21, s20, 7")
    a("s_lshr_b32 s20, s20, 3")
    a("s_and_b32 s13, s2, 1")
    a("s_lshl_b32 s13, s13, 3")
    a("s_add_u32 s13, s13, s21")
    a("s_lshr_b32 s14, s2, 1")
    a("s_and_b32 s14, s14, 3")
    a("s_lshl_b32 s14, s14, 2")
    a("s_add_u32 s14, s14, s20")
    a("s_and_b32 s15, s2, 3")
    a("s_lshl_b32 s15, s15, 3")
    a("s_add_u32 s15, s15, s21")
    a("s_lshr_b32 s16, s2, 2")
    a("s_and_b32 s16, s16, 1")
    a("s_lshl_b32 s16, s16, 2")
    a("s_add_u32 s16, s16, s20")
    a("s_and_b32 s17, s12, 3")
    a("s_and_b32 s18, s17, 1")
    a("s_lshr_b32 s19, s17, 1")
    a("v_lshrrev_b32 v2, 3, v1")
    a("v_and_b32 v3, 7, v1")
    a("v_lshrrev_b32 v6, 4, v1")
    a("v_and_b32 v7, 15, v1")
    a("v_xor_b32 v4, v6, v3")
    a("v_lshlrev_b32 v8, 7, v7")
    a("v_lshl_add_u32 v8, v4, 4, v8")
    a("v_xor_b32 v9, 64, v8")
    a("v_xor_b32 v4, v2, v3")
    a("s_waitcnt lgkmcnt(0)")
    srd_off(a, 76, 10, 11, WS_FLG, F_SIZE)
    a("v_mov_b32 v15, %d" % MISC)
    for i in range(4):
        a("v_mov_b32 v%d, 0" % (10 + i))
    a("ds_write_b128 v15, v[10:13]")
    a("ds_write_b128 v15, v[10:13] offset:16")
    a("s_waitcnt lgkmcnt(0)")
    a("s_barrier")
    st()
    srd(a, 92, P_DBG, P_DBG + 1, 256)
    a("v_mov_b32 v17, 0")
    n0 = st.n
    a("s_cmp_ge_u32 s12, 4")
    a("s_cbranch_scc1 %s" % Lld)
    X0, XF, S0 = 76, 88, 112
    a("s_lshl_b32 s20, s13, 7")
    a("s_lshl_b32 s21, s14, 3")
    a("s_add_u32 s20, s20, s21")
    a("s_lshl_b32 s21, s17, 1")
    a("s_add_u32 s20, s20, s21")
    a("s_mul_i32 s20, s20, 1280")
    a("s_lshl_b32 s21, s13, 7")
    a("s_lshr_b32 s22, s14, 2")
    a("s_lshl_b32 s22, s22, 5")
    a("s_add_u32 s21, s21, s22")
    a("s_lshl_b32 s22, s19, 4")
    a("s_add_u32 s21, s21, s22")
    a("s_and_b32 s22, s14, 3")
    a("s_lshl_b32 s22, s22, 2")
    a("s_add_u32 s21, s21, s22")
    a("s_lshl_b32 s22, s18, 1")
    a("s_add_u32 s21, s21, s22")
    a("s_mul_i32 s21, s21, 1280")
    a("s_add_u32 s21, s21, %d" % WS_XN)
    srd_off(a, 64, P_X, P_X + 1, "s20", 2560)
    srd_off(a, 68, 10, 11, "s21", 2560)
    a("v_lshrrev_b32 v11, 5, v1")
    a("v_and_b32 v12, 31, v1")
    a("v_mul_u32_u24 v10, 1280, v11")
    a("v_lshl_add_u32 v10, v12, 4, v10")
    a("v_cmp_gt_u32 s[26:27], 16, v12")
    a("v_mov_b32 v13, 0x10000")
    a("s_nop 0")
    a("v_cndmask_b32 v13, v13, v10, s[26:27]")
    a("buffer_load_dwordx4 v[%d:%d], v10, s[64:67], 0 offen" % (X0, X0 + 3))
    a("buffer_load_dwordx4 v[%d:%d], v10, s[64:67], 0 offen offset:512" % (X0 + 4, X0 + 7))
    a("buffer_load_dwordx4 v[%d:%d], v13, s[64:67], 0 offen offset:1024" % (X0 + 8, X0 + 11))
    a("s_mov_b32 s24, 0xffff0000")
    for i in range(12):
        if i == 0:
            a("s_waitcnt vmcnt(0)")
        a("v_lshlrev_b32 v%d, 16, v%d" % (XF + 2 * i, X0 + i))
        a("v_and_b32 v%d, s24, v%d" % (XF + 2 * i + 1, X0 + i))

    def pk(op, d, x, y, z=None):
        if z is None:
            a("v_pk_%s_f32 v[%d:%d], v[%d:%d], v[%d:%d]" % (op, d, d + 1, x, x + 1, y, y + 1))
        else:
            a("v_pk_%s_f32 v[%d:%d], v[%d:%d], v[%d:%d], v[%d:%d]" % (op, d, d + 1, x, x + 1, y, y + 1, z, z + 1))

    def allreduce32(r):
        for sh in (8, 4, 2, 1):
            a("s_nop 1")
            a("v_add_f32_dpp v%d, v%d, v%d row_ror:%d row_mask:0xf bank_mask:0xf" % (r, r, r, sh))
        a("ds_swizzle_b32 v%d, v%d offset:0x401F" % (r + 1, r))
        a("s_waitcnt lgkmcnt(0)")
        a("v_add_f32 v%d, v%d, v%d" % (r, r, r + 1))
    pk("add", S0, XF, XF + 2)
    pk("add", S0 + 2, XF + 4, XF + 6)
    for i in range(4, 12):
        pk("add", S0 + 2 * (i & 1), S0 + 2 * (i & 1), XF + 2 * i)
    pk("add", S0, S0, S0 + 2)
    a("v_add_f32 v%d, v%d, v%d" % (S0, S0, S0 + 1))
    allreduce32(S0)
    a("v_mul_f32 v%d, %s, v%d" % (S0, fh(-1.0 / 640), S0))
    a("v_mov_b32 v%d, v%d" % (S0 + 1, S0))
    for i in range(12):
        t = S0 + 4 + 2 * (i & 1)
        q = S0 + 8 + 2 * (i >> 3)
        pk("add", t, XF + 2 * i, S0)
        if i % 8 == 0:
            pk("mul", q, t, t)
        else:
            pk("fma", q, t, t, q)
    a("v_add_f32 v%d, v%d, v%d" % (S0 + 8, S0 + 8, S0 + 9))
    a("v_add_f32 v%d, v%d, v%d" % (S0 + 10, S0 + 10, S0 + 11))
    a("v_cndmask_b32 v%d, 0, v%d, s[26:27]" % (S0 + 10, S0 + 10))
    a("v_add_f32 v%d, v%d, v%d" % (S0 + 8, S0 + 8, S0 + 10))
    allreduce32(S0 + 8)
    V = S0 + 8
    a("v_mul_f32 v%d, %s, v%d" % (V, fh(1.0 / 640), V))
    a("v_cvt_pk_bf16_f32 v%d, v%d, v%d" % (S0 + 2, S0, V))
    a("v_lshlrev_b32 v%d, 16, v%d" % (S0, S0 + 2))
    a("v_mov_b32 v%d, v%d" % (S0 + 1, S0))
    a("v_and_b32 v%d, s24, v%d" % (V, S0 + 2))
    a("v_add_f32 v%d, %s, v%d" % (V, fh(1e-5), V))
    a("v_cvt_pk_bf16_f32 v%d, v%d, v%d" % (V, V, V))
    a("v_and_b32 v%d, s24, v%d" % (V, V))
    a("v_sqrt_f32 v%d, v%d" % (V, V))
    a("s_nop 0")
    a("v_cvt_pk_bf16_f32 v%d, v%d, v%d" % (V, V, V))
    a("v_and_b32 v%d, s24, v%d" % (V, V))
    RS = S0 + 4
    a("v_rcp_f32 v%d, v%d" % (RS, V))
    a("s_nop 0")
    a("v_fma_f32 v%d, -v%d, v%d, 1.0" % (RS + 2, V, RS))
    a("v_fma_f32 v%d, v%d, v%d, v%d" % (RS, RS + 2, RS, RS))
    a("v_mov_b32 v%d, v%d" % (RS + 1, RS))
    a("v_sub_f32 v%d, 0, v%d" % (V, V))
    a("v_mov_b32 v%d, v%d" % (V + 1, V))
    for i in range(12):
        pk("add", XF + 2 * i, XF + 2 * i, S0)
    for i in range(12):
        a("v_cvt_pk_bf16_f32 v%d, v%d, v%d" % (X0 + i, XF + 2 * i, XF + 2 * i + 1))
    Q = 124
    for i in range(12):
        x = XF + 2 * i
        q = Q + 4 * (i & 3)
        a("v_lshlrev_b32 v%d, 16, v%d" % (x, X0 + i))
        a("v_and_b32 v%d, s24, v%d" % (x + 1, X0 + i))
        pk("mul", q, x, RS)
        pk("fma", q + 2, q, V, x)
        pk("fma", q, q + 2, RS, q)
        a("v_cvt_pk_bf16_f32 v%d, v%d, v%d" % (X0 + i, q, q + 1))
    a("buffer_store_dwordx4 v[%d:%d], v10, s[68:71], 0 offen sc1" % (X0, X0 + 3))
    a("buffer_store_dwordx4 v[%d:%d], v10, s[68:71], 0 offen offset:512 sc1" % (X0 + 4, X0 + 7))
    a("buffer_store_dwordx4 v[%d:%d], v13, s[68:71], 0 offen offset:1024 sc1" % (X0 + 8, X0 + 11))
    st()
    a("s_waitcnt vmcnt(0)")
    a("v_mov_b32 v16, 1")
    a("v_cmp_eq_u32 vcc, 0, v1")
    a("s_and_saveexec_b64 s[26:27], vcc")
    a("ds_add_rtn_u32 v18, v15, v16")
    a("s_waitcnt lgkmcnt(0)")
    a("v_readfirstlane_b32 s20, v18")
    a("s_nop 3")
    Lns = a.newlabel("U_nsig")
    a("s_cmp_lg_u32 s20, 3")
    a("s_cbranch_scc1 %s" % Lns)
    lds_wait(a, 18, 15, 16, 1, "U_iw", 1)
    a("s_lshl_b32 s20, s13, 8")
    a("buffer_atomic_add v16, v17, s[76:79], s20 offen")
    a.label(Lns)
    a("s_mov_b64 exec, -1")
    st()

    def signal(vd, vz, soff, op="add", val="1"):
        a("v_cmp_eq_u32 vcc, 0, v1")
        a("s_and_saveexec_b64 s[30:31], vcc")
        a("v_mov_b32 v%d, %s" % (vd, val))
        a("v_mov_b32 v%d, 0" % vz)
        a("buffer_atomic_%s v%d, v%d, s[76:79], %s offen" % (op, vd, vz, soff))
        a("s_mov_b64 exec, -1")

    def chk_ge(n):
        return lambda sr: a("s_cmp_ge_u32 s%d, %d" % (sr, n))

    def wait_init(vt, vz, sdbg):
        a("s_waitcnt vmcnt(0)")

    ACCF, BRAW, ACCS, ADR, CON = 16, 64, 140, 228, 16
    ACC2, ACC3 = 180, 140
    Lp0b = a.newlabel("U_p0b")
    Lp0c = a.newlabel("U_p0c")
    Lp0d = a.newlabel("U_p0d")
    np0 = st.n
    K = lambda c, k: CON + 11 * c + k
    a("s_cmp_lg_u32 s17, 0")
    a("s_cbranch_scc1 %s" % Lp0d)
    lds_wait(a, 18, 15, 16, 1, "U_iw", 1)
    a("s_lshl_b32 s24, s13, 8")
    poll(a, 18, 17, 76, "s24", chk_ge(16), "U_g", 2)
    a("ds_write_b32 v15, v16 offset:4")
    a.label(Lp0d)
    srd(a, 80, P_B1, P_B1 + 1, 3072)
    a("s_mul_i32 s21, s14, 192")
    a("v_lshlrev_b32 v11, 3, v6")
    for nt in range(6):
        a("buffer_load_dwordx2 v[%d:%d], v11, s[80:83], s21 offen offset:%d" % (BRAW + 2 * nt, BRAW + 2 * nt + 1, nt * 32))

    a("v_lshrrev_b32 v10, 2, v7")
    a("v_and_b32 v11, 3, v7")
    a("v_lshrrev_b32 v12, 1, v6")
    a("v_and_b32 v13, 1, v6")
    a("v_lshlrev_b32 v12, 4, v12")
    a("v_lshl_add_u32 v12, v13, 2, v12")
    a("v_add_u32 v12, v12, v10")
    a("v_lshlrev_b32 v12, 6, v12")
    a("v_lshl_add_u32 v12, v13, 5, v12")
    a("v_lshl_add_u32 v12, v11, 3, v12")
    a("v_xor_b32 v13, 32, v12")
    a("s_lshl_b32 s20, s17, 12")
    for sl in range(NS):
        a("s_add_u32 s21, s20, %d" % (sl * SLOT))
        a("v_add_u32 v%d, s21, v8" % (ADR + 6 * sl))
        a("v_add_u32 v%d, s21, v9" % (ADR + 6 * sl + 1))
        a("v_add_u32 v%d, %d, v12" % (ADR + 6 * sl + 2, sl * SLOT + 16384))
        a("v_add_u32 v%d, %d, v13" % (ADR + 6 * sl + 3, sl * SLOT + 16384))
        a("v_add_u32 v%d, %d, v8" % (ADR + 6 * sl + 4, sl * SLOT + 16384))
        a("v_add_u32 v%d, %d, v9" % (ADR + 6 * sl + 5, sl * SLOT + 16384))
    a("v_lshlrev_b32 v5, 2, v7")
    a("s_waitcnt lgkmcnt(0)")

    def nsub(s):
        return 4 if 20 <= s < 32 else 2

    def fbase(s, sset):
        if s < 20:
            return 76 + 32 * sset
        if s < 32:
            return 76 + 24 * sset
        return (16, 76)[sset]

    def reads(s, sub, sset):
        sl = s % NS
        A = ADR + 6 * sl
        b0 = fbase(s, sset)
        out = []
        if s < 10:
            b = b0
            for k, i in [("N", 0), ("T", 0), ("T", 1), ("N", 1), ("N", 2), ("N", 3), ("N", 4), ("N", 5)]:
                if k == "T":
                    out.append("ds_read_b128 v[%d:%d], v%d offset:%d" % (b + 4 * i, b + 4 * i + 3, A + sub, i * 2048))
                else:
                    o = (i >> 1) * 4096 + sub * 2048
                    r = b + 8 + 4 * i
                    out.append("ds_read_b64_tr_b16 v[%d:%d], v%d offset:%d" % (r, r + 1, A + 2 + (i & 1), o))
                    out.append("ds_read_b64_tr_b16 v[%d:%d], v%d offset:%d" % (r + 2, r + 3, A + 2 + (i & 1), o + 512))
        elif s < 20:
            b = b0
            for k, i in [("N", 0), ("T", 0), ("T", 1), ("N", 1), ("N", 2), ("N", 3), ("N", 4)]:
                if k == "T":
                    out.append("ds_read_b128 v[%d:%d], v%d offset:%d" % (b + 4 * i, b + 4 * i + 3, A + sub, i * 2048))
                else:
                    out.append("ds_read_b128 v[%d:%d], v%d offset:%d" % (b + 8 + 4 * i, b + 11 + 4 * i, A + 4 + sub, i * 2048))
        else:
            steps = [(sub >> 1, sub & 1, b0)] if s < 32 else [(sub, 0, b0), (sub, 1, b0 + 24)]
            for (sb, ks, b) in steps:
                so = sb * SUB
                for k, i in [("D", 0), ("T", 0), ("D", 1), ("D", 2), ("D", 3), ("D", 4)]:
                    if k == "T":
                        if s < 32:
                            out.append("ds_read_b128 v[%d:%d], v%d offset:%d" % (b, b + 3, A + ks, so))
                        else:
                            out.append("ds_read_b64_tr_b16 v[%d:%d], v%d offset:%d" % (b, b + 1, A + 2, so + ks * 4096))
                            out.append("ds_read_b64_tr_b16 v[%d:%d], v%d offset:%d" % (b + 2, b + 3, A + 2, so + ks * 4096 + 512))
                    else:
                        out.append("ds_read_b128 v[%d:%d], v%d offset:%d" % (b + 4 + 4 * i, b + 7 + 4 * i, A + 4 + ks, so + i * 2048))
        return out

    def mf(d, av, bv, first):
        return "v_mfma_f32_16x16x32_bf16 v[%d:%d], v[%d:%d], v[%d:%d], %s" % (
            d, d + 3, av, av + 3, bv, bv + 3, "0" if first else "v[%d:%d]" % (d, d + 3))

    def mfmas(s, sub, sset):
        out = []
        b = fbase(s, sset)
        if s < 10:
            for nt in range(6):
                for j in range(2):
                    out.append(mf(ACCF + (j * 6 + nt) * 4, b + 8 + 4 * nt, b + 4 * j, s == 0 and sub == 0))
        elif s < 20:
            for c in range(5):
                for j in range(2):
                    out.append(mf(ACCS + (c * 2 + j) * 4, b + 4 * j, b + 8 + 4 * c, s == 10 and sub == 0))
        elif s < 32:
            for dt in range(5):
                out.append(mf(ACC2 + dt * 4, b + 4 + 4 * dt, b, s == 20 and sub == 0))
        else:
            for ks in range(2):
                for dt in range(5):
                    out.append(mf(ACC3 + dt * 4, b + 24 * ks + 4 + 4 * dt, b + 24 * ks, s == 32 and sub == 0 and ks == 0))
        return out

    class BG:
        def __init__(self):
            self.q = []
            self.cur = None

        def __call__(self, line):
            Asm()(line)
            if self.cur is not None:
                self.cur.append("    " + line)
            else:
                self.q.append(["    " + line])

        def label(self, name):
            self.cur.append(name + ":")

        def newlabel(self, p):
            return a.newlabel(p)

        def begin(self):
            self.cur = []

        def end(self):
            self.q.append(self.cur)
            self.cur = None

        def bar(self, n=1):
            self.q.append(("BAR", n))

        def at(self, s):
            self.q.append(("AT", s))

        def emit(self, budget, s):
            while self.q and budget > 0:
                h = self.q[0]
                if isinstance(h, tuple):
                    if h[0] == "AT" and s >= h[1]:
                        self.q.pop(0)
                        continue
                    return
                a.lines += h
                budget -= len(h)
                self.q.pop(0)

        def barrier_passed(self):
            if self.q and isinstance(self.q[0], tuple) and self.q[0][0] == "BAR":
                n = self.q[0][1] - 1
                self.q.pop(0)
                if n > 0:
                    self.q.insert(0, ("BAR", n))
    b = BG()

    def bsignal(vd, vz, soff, op="add", val="1"):
        b("v_cmp_eq_u32 vcc, 0, v1")
        b("s_and_saveexec_b64 s[30:31], vcc")
        b("v_mov_b32 v%d, %s" % (vd, val))
        b("v_mov_b32 v%d, 0" % vz)
        b("buffer_atomic_%s v%d, v%d, s[76:79], %s offen" % (op, vd, vz, soff))
        b("s_mov_b64 exec, -1")
        b("s_nop 3")

    b.at(10)
    b("s_waitcnt vmcnt(0)")
    b("s_lshl_b32 s24, s13, 1")
    b("s_add_u32 s24, s24, s19")
    b("s_lshl_b32 s29, s24, 8")
    b("s_add_u32 s29, s29, %d" % F_H1)
    b("s_mul_i32 s24, s24, 196608")
    b("s_mul_i32 s25, s14, 12288")
    b("s_add_u32 s24, s24, s25")
    b("s_lshl_b32 s25, s18, 11")
    b("s_add_u32 s24, s24, s25")
    b("s_add_u32 s24, s24, %d" % WS_H1)
    b.begin()
    srd_off(b, 20, 10, 11, "s24", 12288)
    b.end()
    b("v_lshrrev_b32 v10, 2, v7")
    b("v_and_b32 v11, 3, v7")
    b("v_lshl_add_u32 v10, v10, 3, v11")
    b("v_lshlrev_b32 v10, 6, v10")
    b("v_lshl_add_u32 v10, v6, 4, v10")
    b("s_mov_b32 s24, 0xffff0000")
    b("s_mov_b32 s25, 0x00003f80")
    b("s_mov_b32 s26, %s" % fh(-2 * math.sqrt(2 / math.pi) * LOG2E * 0.044715))
    b("s_mov_b32 s27, s26")
    b("s_mov_b32 s28, 0x3f800000")
    b("v_mov_b32 v12, %s" % fh(-2 * math.sqrt(2 / math.pi) * LOG2E))
    b("v_mov_b32 v13, v12")
    BF, DST, TMP = 180, 188, 212
    for aa in range(3):
        for i in range(4):
            b("v_lshlrev_b32 v%d, 16, v%d" % (BF + 2 * i, BRAW + 4 * aa + i))
            b("v_and_b32 v%d, s24, v%d" % (BF + 2 * i + 1, BRAW + 4 * aa + i))
        d0 = DST + 8 * aa
        units = [(ACCF + (j * 6 + 2 * aa) * 4, ACCF + (j * 6 + 2 * aa + 1) * 4, BF, d0 + 4 * j) for j in range(2)]
        gelu_units(b, units, TMP, 12, 26, 25, 28, 24)
        b("s_mov_b32 s88, %d" % (aa * 4096))
        for j in range(2):
            b("buffer_store_dwordx4 v[%d:%d], v10, s[20:23], s88 offen offset:%d sc1" % (d0 + 4 * j, d0 + 4 * j + 3, j * 256))
    b("v_mul_u32_u24 v14, 48, v7")
    b("v_add_u32 v14, %d, v14" % (MISC + 2048))
    b("s_mul_i32 s20, s17, 2560")
    b("s_add_u32 s20, s20, %d" % (MISC + 6144))
    b("v_lshl_add_u32 v13, v1, 3, s20")
    for c in range(5):
        for k in range(8):
            b("ds_read_b32 v%d, v14 offset:%d" % (K(c, k), c * 768 + k * 4))
        b("ds_read_b32 v%d, v13 offset:%d" % (K(c, 8), c * 512))
        b("ds_read_b32 v%d, v13 offset:%d" % (K(c, 9), c * 512 + 4))
    b.bar(1)
    b.begin()
    b("s_waitcnt vmcnt(0)")
    bsignal(10, 11, "s29")
    b.end()
    b.bar(1)
    EB = MISC + 6144
    b("s_mul_i32 s20, s17, 1280")
    b("s_add_u32 s20, s20, %d" % EB)
    b("v_lshl_add_u32 v13, v1, 2, s20")
    b("v_mov_b32 v12, 0")
    for i in range(5):
        b("ds_write_b32 v13, v12 offset:%d" % (i * 256))

    b.at(20)
    G = lambda c, i: ACCS + c * 8 + i
    EQ = lambda c, q: 200 + 4 * c + q
    EWL = list(range(124, 140)) + list(range(220, 224))
    EW = lambda c, q: EWL[4 * c + q]
    TM = 71
    for i in range(8):
        for c in range(5):
            b("v_mul_f32 v%d, v%d, v%d" % (TM + c, K(c, 2), G(c, i)))
        for c in range(5):
            b("v_fmac_f32_dpp v%d, v%d, v%d %s" % (TM + c, G(c, i), K(c, 3), DPP8))
        if i == 0:
            for c in range(5):
                b("v_mov_b32 v%d, v%d" % (G(c, 0), TM + c))
        else:
            for c in range(5):
                b("v_fma_f32 v%d, v%d, v%d, v%d" % (G(c, i), K(c, 0), G(c, i - 1), TM + c))
            for c in range(5):
                b("v_fmac_f32_dpp v%d, v%d, v%d %s" % (G(c, i), G(c, i - 1), K(c, 1), DPP8))
    for q in range(4):
        b("v_add_u32 v%d, %d, v5" % (10 + q, q * 64))
    for q in range(4):
        for c in range(5):
            b("ds_bpermute_b32 v%d, v%d, v%d" % (EQ(c, q), 10 + q, G(c, 7)))
    b("s_waitcnt lgkmcnt(0)")
    cmul_add(b, [(EW(c, 1), K(c, 4), K(c, 5), EQ(c, 0), EQ(c, 1)) for c in range(5)])
    for q in range(2, 4):
        cmul_add(b, [(EW(c, q), K(c, 4), K(c, 5), EW(c, q - 1), EQ(c, q)) for c in range(5)])
    b("s_mul_i32 s20, s17, 320")
    b("s_add_u32 s20, s20, %d" % (MISC + 256))
    b("v_add_u32 v%d, s20, v5" % TM)
    for c in range(5):
        b("ds_write_b32 v%d, v%d offset:%d" % (TM, EW(c, 3), c * 64))
    b.bar(1)
    b("v_add_u32 v%d, %d, v5" % (TM, MISC + 256))
    for w in range(4):
        for c in range(5):
            b("ds_read_b32 v%d, v%d offset:%d" % (EW(c, w), TM, w * 320 + c * 64))
    b("s_mul_i32 s20, s14, 5120")
    b("s_add_u32 s20, s20, %d" % WS_ET)
    b.begin()
    srd_off(b, 68, 10, 11, "s20", 5120)
    b.end()
    b("s_waitcnt lgkmcnt(0)")
    for w in range(1, 4):
        cmul_add(b, [(EW(c, w), K(c, 6), K(c, 7), EW(c, w - 1), EW(c, w)) for c in range(5)])
    b.begin()
    Lnp = a.newlabel("U_nopub")
    b("s_cmp_lg_u32 s17, 0")
    b("s_cbranch_scc1 %s" % Lnp)
    b("s_mul_i32 s20, s13, 320")
    b("v_cmp_gt_u32 vcc, 16, v1")
    b("s_and_saveexec_b64 s[30:31], vcc")
    for c in range(5):
        b("buffer_store_dword v%d, v5, s[68:71], s20 offen offset:%d sc1" % (EW(c, 3), c * 64))
    b("s_mov_b64 exec, -1")
    b("s_nop 3")
    b.label(Lnp)
    b.end()
    for w in range(1, 4):
        b.begin()
        b("s_cmp_eq_u32 s17, %d" % w)
        b("s_cselect_b64 s[%d:%d], -1, 0" % (80 + 2 * w, 81 + 2 * w))
        b.end()
    for c in range(5):
        b("v_cndmask_b32 v%d, 0, v%d, s[82:83]" % (K(c, 10), EW(c, 0)))
    for c in range(5):
        b("v_cndmask_b32 v%d, v%d, v%d, s[84:85]" % (K(c, 10), K(c, 10), EW(c, 1)))
    for c in range(5):
        b("v_cndmask_b32 v%d, v%d, v%d, s[86:87]" % (K(c, 10), K(c, 10), EW(c, 2)))
    cmul_add(b, [(EW(c, 0), K(c, 4), K(c, 5), K(c, 10), EQ(c, 0)) for c in range(5)])
    for q in range(1, 3):
        cmul_add(b, [(EW(c, q), K(c, 4), K(c, 5), EW(c, q - 1), EQ(c, q)) for c in range(5)])
    b.begin()
    Lnp = a.newlabel("U_nosig")
    b("s_cmp_lg_u32 s17, 0")
    b("s_cbranch_scc1 %s" % Lnp)
    b("s_waitcnt vmcnt(0)")
    b("s_lshl_b32 s20, 1, s13")
    b("s_lshl_b32 s21, s14, 8")
    b("s_add_u32 s21, s21, %d" % F_E)
    bsignal(TM, TM + 1, "s21", "or", "s20")
    b.label(Lnp)
    b.end()
    b("v_cmp_eq_u32 s[82:83], 1, v6")
    b("v_cmp_eq_u32 s[84:85], 2, v6")
    b("v_cmp_eq_u32 s[86:87], 3, v6")
    b("s_nop 1")
    for q in range(3):
        for c in range(5):
            b("v_cndmask_b32 v%d, v%d, v%d, s[%d:%d]" % (K(c, 10), K(c, 10), EW(c, q), 82 + 2 * q, 83 + 2 * q))
    for c in range(5):
        for k in range(4):
            b("ds_read_b32 v%d, v14 offset:%d" % (K(c, 4 + k), c * 768 + 32 + k * 4))
    b("s_lshl_b32 s20, s13, 1")
    b("s_add_u32 s20, s20, s19")
    b("s_lshl_b32 s29, s20, 8")
    b("s_add_u32 s29, s29, %d" % F_HT)
    b("s_mul_i32 s20, s20, 163840")
    b("s_mul_i32 s21, s18, 81920")
    b("s_add_u32 s20, s20, s21")
    b("s_add_u32 s20, s20, %d" % WS_HT)
    b.begin()
    srd_off(b, 72, 10, 11, "s20", 81920)
    b.end()
    b("v_lshrrev_b32 v%d, 3, v7" % TM)
    b("v_mul_u32_u24 v%d, 640, v%d" % (TM + 1, TM))
    b("v_add_u32 v%d, v%d, v3" % (TM + 1, TM + 1))
    b("v_lshlrev_b32 v%d, 6, v%d" % (TM + 1, TM + 1))
    b("v_lshl_add_u32 v%d, v6, 4, v%d" % (TM + 1, TM + 1))
    b("v_mul_u32_u24 v%d, 0x8000, v%d" % (TM, TM))
    b("v_lshl_add_u32 v%d, v%d, 16, v%d" % (TM, TM, TM))
    b("s_mul_i32 s20, s14, 2560")
    b("v_lshl_add_u32 v%d, v6, 2, s13" % (TM + 2))
    b("v_mul_u32_u24 v%d, 320, v%d" % (TM + 2, TM + 2))
    b("v_add_u32 v%d, v%d, v5" % (TM + 2, TM + 2))
    b("v_add_u32 v%d, %d, v%d" % (TM + 2, EB, TM + 2))
    b.at(ESTAGE + 0.5)
    for e in range(4):
        for c in range(5):
            b("ds_read_b32 v%d, v%d offset:%d" % (EW(c, e), TM + 2, e * 320 + c * 64))
    b("s_waitcnt lgkmcnt(0)")
    for e in range(1, 4):
        cmul_add(b, [(EW(c, e), K(c, 4), K(c, 5), EW(c, e - 1), EW(c, e)) for c in range(5)])
    b("s_nop 0")
    for c in range(5):
        for q in range(4):
            b("ds_bpermute_b32 v%d, v%d, v%d" % (EQ(c, q), 10 + q, EW(c, 3)))
    b("s_waitcnt lgkmcnt(0)")
    for q in range(1, 4):
        cmul_add(b, [(EQ(c, q), K(c, 6), K(c, 7), EQ(c, q - 1), EQ(c, q)) for c in range(5)])
    cmul_add(b, [(K(c, 10), K(c, 8), K(c, 9), EQ(c, 3), K(c, 10)) for c in range(5)])
    CC = lambda c, i: 124 + 2 * c + i
    for i in range(8):
        cmul_add(b, [(CC(c, i & 1), K(c, 0), K(c, 1), K(c, 10) if i == 0 else CC(c, (i - 1) & 1), None) for c in range(5)])
        if i & 1:
            for c in range(5):
                u = G(c, i - 1)
                b("v_pk_add_f32 v[%d:%d], v[%d:%d], v[%d:%d]" % (u, u + 1, u, u + 1, CC(c, 0), CC(c, 1)))
    for c in range(5):
        for j in range(4):
            b("v_cvt_pk_bf16_f32 v%d, v%d, v%d" % (EQ(c, j), G(c, 2 * j), G(c, 2 * j + 1)))
    for c in range(5):
        for j in range(4):
            b("v_xor_b32 v%d, v%d, v%d" % (EQ(c, j), TM, EQ(c, j)))
        b("buffer_store_dwordx4 v[%d:%d], v%d, s[72:75], s20 offen offset:%d sc1" % (EQ(c, 0), EQ(c, 3), TM + 1, c * 512))
    b("s_lshl_b32 s21, s15, 6")
    b("s_lshl_b32 s22, s17, 4")
    b("s_add_u32 s21, s21, s22")
    b("s_mul_i32 s22, s21, 1280")
    b("s_mul_i32 s23, s16, 160")
    b("s_add_u32 s22, s22, s23")
    b.begin()
    srd(b, 80, P_OUT, P_OUT + 1, 2048 * 2560)
    b.end()
    b("v_mul_u32_u24 v15, 2560, v7")
    b("v_lshl_add_u32 v15, v6, 4, v15")
    b("s_lshl_b32 s27, s22, 1")
    b("s_mov_b32 s20, 0xffff0000")
    b("s_mov_b32 s21, 0x00003f80")
    b("s_mov_b32 s26, 0x3f800000")
    b("s_mov_b32 s88, %s" % fh(-LOG2E))
    b("s_mov_b32 s89, s88")
    b("v_lshlrev_b32 v14, 3, v6")
    b("v_add_u32 v14, %d, v14" % (MISC + 1536))
    b("s_mul_i32 s22, s17, 2560")
    b("s_add_u32 s22, s22, %d" % (2 * SLOT))
    b("v_mul_u32_u24 v10, 160, v7")
    b("v_lshl_add_u32 v10, v6, 3, v10")
    b("v_add_u32 v10, s22, v10")
    b.bar(1)
    b.begin()
    b("s_waitcnt vmcnt(0)")
    bsignal(12, 13, "s29")
    b.end()
    T0, T1, PK = 160, 200, 64
    DFL = list(range(124, 140)) + list(range(220, 224))
    b.at(32.5)
    for dt in range(5):
        b("ds_read_b64 v[%d:%d], v14 offset:%d" % (PK + 2 * dt, PK + 2 * dt + 1, dt * 32))
        b("ds_read_b64 v[%d:%d], v14 offset:%d" % (T0 + 2 * dt, T0 + 2 * dt + 1, 256 + dt * 32))
    b("s_waitcnt lgkmcnt(0)")
    for i in range(10):
        b("v_lshlrev_b32 v%d, 16, v%d" % (T1 + 2 * i, PK + i))
        b("v_and_b32 v%d, s20, v%d" % (T1 + 2 * i + 1, PK + i))
        b("v_lshlrev_b32 v%d, 16, v%d" % (DFL[2 * i], T0 + i))
        b("v_and_b32 v%d, s20, v%d" % (DFL[2 * i + 1], T0 + i))
    for i in range(10):
        b("v_cvt_pk_bf16_f32 v%d, v%d, v%d" % (PK + i, ACC2 + 2 * i, ACC2 + 2 * i + 1))
    for i in range(10):
        b("v_dot2_f32_bf16 v%d, v%d, s21, v%d" % (ACC2 + 2 * i, PK + i, T1 + 2 * i))
        b("v_dot2_f32_bf16 v%d, v%d, s26, v%d" % (ACC2 + 2 * i + 1, PK + i, T1 + 2 * i + 1))
    b("s_nop 1")
    for i in range(10):
        b("v_cvt_pk_bf16_f32 v%d, v%d, v%d" % (PK + i, ACC2 + 2 * i, ACC2 + 2 * i + 1))
    for i in range(10):
        b("v_lshlrev_b32 v%d, 16, v%d" % (ACC2 + 2 * i, PK + i))
        b("v_and_b32 v%d, s20, v%d" % (ACC2 + 2 * i + 1, PK + i))
    for i in range(10):
        b("v_pk_mul_f32 v[%d:%d], v[%d:%d], s[88:89]" % (T0 + 2 * i, T0 + 2 * i + 1, ACC2 + 2 * i, ACC2 + 2 * i + 1))
    for i in range(20):
        b("v_exp_f32 v%d, v%d" % (T0 + i, T0 + i))
    b("s_nop 0")
    for i in range(10):
        b("v_pk_add_f32 v[%d:%d], v[%d:%d], 1.0" % (T0 + 2 * i, T0 + 2 * i + 1, T0 + 2 * i, T0 + 2 * i + 1))
    for i in range(20):
        b("v_rcp_f32 v%d, v%d" % (T0 + i, T0 + i))
    b("s_nop 0")
    for i in range(10):
        b("v_pk_mul_f32 v[%d:%d], v[%d:%d], v[%d:%d]" % (ACC2 + 2 * i, ACC2 + 2 * i + 1, ACC2 + 2 * i, ACC2 + 2 * i + 1, T0 + 2 * i, T0 + 2 * i + 1))
    for i in range(10):
        b("v_cvt_pk_bf16_f32 v%d, v%d, v%d" % (PK + i, ACC2 + 2 * i, ACC2 + 2 * i + 1))
    for i in range(10):
        b("v_lshlrev_b32 v%d, 16, v%d" % (T0 + 2 * i, PK + i))
        b("v_and_b32 v%d, s20, v%d" % (T0 + 2 * i + 1, PK + i))
    b.at(41.5)
    RX, RN = 16, 26
    for dt in range(5):
        b("ds_read_b64 v[%d:%d], v10 offset:%d" % (RN + 2 * dt, RN + 2 * dt + 1, 10240 + dt * 32))
    for dt in range(5):
        b("ds_read_b64 v[%d:%d], v10 offset:%d" % (RX + 2 * dt, RX + 2 * dt + 1, dt * 32))
    b("s_waitcnt lgkmcnt(5)")
    for i in range(10):
        b("v_lshlrev_b32 v%d, 16, v%d" % (ACC2 + 2 * i, RN + i))
        b("v_and_b32 v%d, s20, v%d" % (ACC2 + 2 * i + 1, RN + i))
    for i in range(10):
        b("v_pk_mul_f32 v[%d:%d], v[%d:%d], v[%d:%d]" % (ACC2 + 2 * i, ACC2 + 2 * i + 1, ACC2 + 2 * i, ACC2 + 2 * i + 1, DFL[2 * i], DFL[2 * i + 1]))
    for i in range(10):
        b("v_cvt_pk_bf16_f32 v%d, v%d, v%d" % (RN + i, ACC2 + 2 * i, ACC2 + 2 * i + 1))
    b("s_waitcnt lgkmcnt(0)")
    for i in range(10):
        b("v_lshlrev_b32 v%d, 16, v%d" % (ACC2 + 2 * i, RN + i))
        b("v_and_b32 v%d, s20, v%d" % (ACC2 + 2 * i + 1, RN + i))
        b("v_lshlrev_b32 v%d, 16, v%d" % (T1 + 2 * i, RX + i))
        b("v_and_b32 v%d, s20, v%d" % (T1 + 2 * i + 1, RX + i))

    def p23_addr():
        t0, t1, t2 = 10, 11, 12
        a("v_lshrrev_b32 v%d, 2, v7" % t0)
        a("v_and_b32 v%d, 3, v7" % t1)
        a("v_lshl_add_u32 v%d, v6, 3, v%d" % (t2, t0))
        a("v_lshlrev_b32 v%d, 7, v%d" % (t2, t2))
        a("v_lshl_add_u32 v%d, v%d, 3, v%d" % (t2, t1, t2))
        a("v_lshrrev_b32 v%d, 1, v%d" % (t0, t0))
        a("v_and_b32 v%d, 1, v6" % t1)
        a("v_lshl_add_u32 v%d, v%d, 1, v%d" % (t0, t1, t0))
        a("v_xor_b32 v%d, s17, v%d" % (t0, t0))
        a("v_lshl_add_u32 v%d, v%d, 5, v%d" % (t2, t0, t2))
        a("s_lshl_b32 s20, s17, 11")
        for sl in range(NS):
            a("s_add_u32 s21, s20, %d" % (sl * SLOT))
            a("v_add_u32 v%d, s21, v8" % (ADR + 6 * sl))
            a("v_add_u32 v%d, s21, v9" % (ADR + 6 * sl + 1))
            a("v_add_u32 v%d, %d, v%d" % (ADR + 6 * sl + 2, sl * SLOT, t2))
            a("v_add_u32 v%d, %d, v8" % (ADR + 6 * sl + 4, sl * SLOT + 8192))
            a("v_add_u32 v%d, %d, v9" % (ADR + 6 * sl + 5, sl * SLOT + 8192))

    def rate(s):
        if s < 20:
            return RATE1
        if s < 32:
            return RATE2
        return RATE3

    def run(s0, s1):
        st()
        a("s_waitcnt lgkmcnt(0)")
        a("s_barrier")
        b.barrier_passed()
        st()
        for r in reads(s0, 0, 0):
            a(r)
        for s in range(s0, s1):
            n = nsub(s)
            for sub in range(n):
                cur = sub & 1
                pos = s
                a("s_waitcnt lgkmcnt(0)")
                if sub == n - 1:
                    a("s_barrier")
                    b.barrier_passed()
                    pos = s + 0.5
                    if s == 31:
                        assert b.q[0] == ("AT", 32.5), b.q[0]
                    if os.environ.get("BGDBG"):
                        print("after B_%d: queue len %d head %s" % (s, len(b.q), b.q[0] if b.q else None))
                    if STAMP and s % 2 == 1:
                        st()
                    rs = reads(s + 1, 0, 1 - cur) if s + 1 < s1 else []
                else:
                    rs = reads(s, sub + 1, 1 - cur)
                per, burst = rate(s)
                ms = mfmas(s, sub, cur)
                ri = 0
                step = max(1, -(-len(rs) // len(ms)))
                for m in ms:
                    a(m)
                    for r in rs[ri:ri + step]:
                        a(r)
                    ri += step
                    b.emit(per, pos)
                for r in rs[ri:]:
                    a(r)
                b.emit(burst, pos)
    run(0, 20)
    b.emit(10000, 19.9)
    assert isinstance(b.q[0], tuple) and b.q[0] == ("AT", 20), b.q[0]
    p23_addr()
    a("s_nop 4")
    b.emit(PRE20, 20)
    run(20, 42)
    b.emit(10000, 42)
    assert not b.q, b.q[0]
    st()
    a("s_nop 7")
    for i in range(10):
        r = ACC3 + 2 * i
        a("v_pk_fma_f32 v[%d:%d], v[%d:%d], 2.0, v[%d:%d]" % (r, r + 1, r, r + 1, ACC2 + 2 * i, ACC2 + 2 * i + 1))
    for i in range(10):
        r = ACC3 + 2 * i
        a("v_pk_mul_f32 v[%d:%d], v[%d:%d], v[%d:%d]" % (r, r + 1, r, r + 1, T0 + 2 * i, T0 + 2 * i + 1))
    for i in range(10):
        r = ACC3 + 2 * i
        a("v_pk_add_f32 v[%d:%d], v[%d:%d], v[%d:%d]" % (r, r + 1, r, r + 1, T1 + 2 * i, T1 + 2 * i + 1))
    for dt in range(5):
        a("buffer_store_dwordx4 v[%d:%d], v15, s[80:83], s27 offen offset:%d" % (ACC3 + 4 * dt, ACC3 + 4 * dt + 3, dt * 64))
    st.flush()
    a("s_endpgm")

    a.label(Lld)
    st.n = n0
    vm = VM(a)
    a("s_cmp_lg_u32 s17, 0")
    a("s_cbranch_scc1 U_lp0a")
    Lni = a.newlabel("U_noinit")
    a("s_cmp_lg_u32 s2, 0")
    a("s_cbranch_scc1 %s" % Lni)
    a("v_lshlrev_b32 v18, 8, v1")
    a("s_movk_i32 s24, 16384")
    a("buffer_store_dword v17, v18, s[76:79], 0 offen sc1")
    a("buffer_store_dword v17, v18, s[76:79], s24 offen sc1")
    a("s_waitcnt vmcnt(0)")
    a("v_mov_b32 v18, 1")
    a("buffer_store_dword v18, v17, s[92:95], 0 offen sc1")
    a.label(Lni)
    a("s_sleep 24")
    poll(a, 18, 17, 92, "0", chk_ge(1), "U_ini", 6)
    a("v_mov_b32 v18, 1")
    a("ds_write_b32 v15, v18 offset:16")
    a("s_branch U_lp0d")
    a.label("U_lp0a")
    a("s_cmp_lt_u32 s17, 2")
    a("s_cbranch_scc1 U_lp0d")
    a("s_cmp_eq_u32 s17, 3")
    a("s_cbranch_scc1 U_lp0c")
    a("s_cmp_ge_u32 s2, 240")
    a("s_cbranch_scc1 U_lp0d")
    a("s_mul_hi_u32 s28, s2, 0x%x" % ((1 << 32) // 24 + 1))
    a("s_mul_i32 s29, s28, 24")
    a("s_sub_u32 s29, s2, s29")
    a("s_mul_i32 s22, s29, %d" % (64 * 1280))
    a("s_lshl_b32 s23, s28, 7")
    a("s_add_u32 s22, s22, s23")
    a("v_lshrrev_b32 v18, 2, v3")
    a("v_and_b32 v19, 3, v3")
    a("v_lshlrev_b32 v18, 5, v18")
    a("v_lshl_add_u32 v18, v19, 2, v18")
    a("v_mul_u32_u24 v18, 1280, v18")
    a("v_lshl_add_u32 v18, v2, 4, v18")
    srd(a, 72, P_W2, P_W2 + 1, 1536 * 1280)
    for j in range(8):
        a("s_add_u32 s24, s22, %d" % ((j if j < 4 else 12 + j) * 1280))
        a("buffer_load_dwordx4 v[%d:%d], v18, s[72:75], s24 offen" % (180 + 4 * j, 183 + 4 * j))
    a("v_mul_u32_u24 v11, %d, v2" % (8 * 3072))
    a("v_lshl_add_u32 v11, v3, 4, v11")
    a("s_mul_i32 s23, s28, %d" % (64 * 3072))
    a("s_lshl_b32 s24, s29, 7")
    a("s_add_u32 s23, s23, s24")
    srd_off(a, 68, 10, 11, WS_W2T, 640 * 3072)
    a("s_mov_b32 s26, 0x05040100")
    a("s_mov_b32 s27, 0x07060302")
    a("s_waitcnt vmcnt(0)")
    for i in range(8):
        for m in range(4):
            a("v_perm_b32 v%d, v%d, v%d, s%d" % (212 + 4 * i + m, 180 + 4 * (2 * m + 1) + (i >> 1), 180 + 4 * (2 * m) + (i >> 1), 26 + (i & 1)))
    for i in range(8):
        a("s_add_u32 s24, s23, %d" % (i * 3072))
        a("buffer_store_dwordx4 v[%d:%d], v11, s[68:71], s24 offen sc1" % (212 + 4 * i, 215 + 4 * i))
    a("s_branch U_lp0d")
    a.label("U_lp0c")
    srd(a, 64, P_LRE, P_LRE + 1, 1280)
    srd(a, 68, P_LIM, P_LIM + 1, 1280)
    srd(a, 72, P_LDT, P_LDT + 1, 1280)
    a("s_mul_i32 s20, s14, 80")
    a("v_lshlrev_b32 v18, 1, v3")
    for c in range(5):
        a("buffer_load_ushort v%d, v18, s[64:67], s20 offen offset:%d" % (160 + 3 * c, c * 16))
        a("buffer_load_ushort v%d, v18, s[68:71], s20 offen offset:%d" % (160 + 3 * c + 1, c * 16))
        a("buffer_load_ushort v%d, v18, s[72:75], s20 offen offset:%d" % (160 + 3 * c + 2, c * 16))
    T = 160
    a("v_and_b32 v12, 8, v7")
    a("v_lshlrev_b32 v12, 28, v12")
    a("v_xor_b32 v12, 0x80000000, v12")
    a("v_lshlrev_b32 v13, 3, v6")
    a("v_cvt_f32_u32 v13, v13")
    a("v_mul_u32_u24 v10, 48, v7")
    a("v_add_u32 v10, %d, v10" % (MISC + 2048))
    a("v_lshlrev_b32 v11, 3, v1")
    a("v_add_u32 v11, %d, v11" % (MISC + 6144))
    a("s_waitcnt vmcnt(0)")
    ZR, ZI, W0 = 96, 101, 108
    CT = lambda c, k: 180 + 12 * c + k

    def cpow_all(n, dst):
        ns = n if isinstance(n, str) else fh(n)
        for c in range(5):
            t = W0 + 4 * c
            a("v_mul_f32 v%d, %s, v%d" % (t, ns, ZR + c))
            a("v_mul_f32 v%d, %s, v%d" % (t + 1, ns, ZI + c))
            a("v_exp_f32 v%d, v%d" % (t, t))
            a("v_fract_f32 v%d, v%d" % (t + 1, t + 1))
            a("v_cos_f32 v%d, v%d" % (t + 2, t + 1))
            a("v_sin_f32 v%d, v%d" % (t + 3, t + 1))
        a("s_nop 0")
        for c in range(5):
            t = W0 + 4 * c
            a("v_mul_f32 v%d, v%d, v%d" % (dst(c), t, t + 2))
            a("v_mul_f32 v%d, v%d, v%d" % (dst(c) + 1, t, t + 3))
    for c in range(5):
        lre, lim, ldt = T + 3 * c, T + 3 * c + 1, T + 3 * c + 2
        a("v_lshlrev_b32 v%d, 16, v%d" % (lre, lre))
        a("v_lshlrev_b32 v%d, 16, v%d" % (lim, lim))
        a("v_lshlrev_b32 v%d, 16, v%d" % (ldt, ldt))
        a("v_mul_f32 v%d, %s, v%d" % (ldt, fh(LOG2E), ldt))
        a("v_exp_f32 v%d, v%d" % (ldt, ldt))
        a("s_nop 0")
        a("v_cvt_pk_bf16_f32 v%d, v%d, v%d" % (ldt, ldt, ldt))
        a("v_and_b32 v%d, 0xffff0000, v%d" % (ldt, ldt))
        a("v_mul_f32 v%d, v%d, v%d" % (ZR + c, ldt, lre))
        a("v_mul_f32 v%d, v%d, v%d" % (ZI + c, ldt, lim))
        a("v_mul_f32 v%d, %s, v%d" % (ZR + c, fh(LOG2E), ZR + c))
        a("v_mul_f32 v%d, 0.15915494, v%d" % (ZI + c, ZI + c))
    cpow_all(1.0, lambda c: CT(c, 0))
    for c in range(5):
        lre, lim = T + 3 * c, T + 3 * c + 1
        t = W0 + 4 * c
        a("v_add_f32 v%d, -1.0, v%d" % (t, CT(c, 0)))
        a("v_mul_f32 v%d, v%d, v%d" % (t + 1, lre, lre))
        a("v_fmac_f32 v%d, v%d, v%d" % (t + 1, lim, lim))
        a("v_rcp_f32 v%d, v%d" % (t + 2, t + 1))
        a("s_nop 0")
        a("v_fma_f32 v%d, -v%d, v%d, 1.0" % (t + 3, t + 1, t + 2))
        a("v_fma_f32 v%d, v%d, v%d, v%d" % (t + 2, t + 3, t + 2, t + 2))
        a("v_mul_f32 v%d, v%d, v%d" % (CT(c, 2), t, lre))
        a("v_fmac_f32 v%d, v%d, v%d" % (CT(c, 2), CT(c, 1), lim))
        a("v_mul_f32 v%d, v%d, v%d" % (CT(c, 3), CT(c, 1), lre))
        a("v_fma_f32 v%d, -v%d, v%d, v%d" % (CT(c, 3), t, lim, CT(c, 3)))
        a("v_mul_f32 v%d, v%d, v%d" % (CT(c, 2), CT(c, 2), t + 2))
        a("v_mul_f32 v%d, v%d, v%d" % (CT(c, 3), CT(c, 3), t + 2))
    for n, k in ((8.0, 4), (32.0, 6), (128.0, 8), (512.0, 10)):
        cpow_all(n, lambda c: CT(c, k))
    for c in range(5):
        for k in (1, 3, 5, 7, 9, 11):
            a("v_xor_b32 v%d, v12, v%d" % (CT(c, k), CT(c, k)))
        for k in range(3):
            a("ds_write_b128 v10, v[%d:%d] offset:%d" % (CT(c, 4 * k), CT(c, 4 * k + 3), c * 768 + k * 16))
    for w in range(4):
        AT = lambda c: 130 + 10 * (w & 1) + 2 * c
        cpow_all("v13", AT)
        for c in range(5):
            a("v_xor_b32 v%d, v12, v%d" % (AT(c) + 1, AT(c) + 1))
            a("ds_write_b64 v11, v[%d:%d] offset:%d" % (AT(c), AT(c) + 1, w * 2560 + c * 512))
        if w < 3:
            a("v_add_f32 v13, 0x42000000, v13")
    a.label("U_lp0d")
    a("s_mul_i32 s24, s14, 192")
    srd_off(a, 68, P_W1, P_W1 + 1, "s24", 640 * 3072 - 15 * 192)
    a("v_lshrrev_b32 v10, 2, v1")
    a("v_and_b32 v11, 3, v10")
    a("v_lshrrev_b32 v12, 2, v10")
    a("v_and_b32 v12, 1, v12")
    a("v_lshrrev_b32 v13, 3, v10")
    a("v_lshl_add_u32 v11, v12, 3, v11")
    a("v_lshl_add_u32 v11, v13, 2, v11")
    a("v_mul_u32_u24 v22, 3072, v11")
    a("v_lshrrev_b32 v13, 1, v1")
    a("v_and_b32 v13, 1, v13")
    a("v_xor_b32 v13, v13, v12")
    a("v_lshl_add_u32 v22, v13, 5, v22")
    a("v_and_b32 v13, 1, v1")
    a("v_lshl_add_u32 v22, v13, 4, v22")
    a("s_mul_i32 s3, s17, %d" % (16 * 3072))
    a("s_lshl_b32 s4, s17, 10")

    def free_part(s):
        sl = s % NS
        if s < 10:
            for p in range(3):
                a("s_add_u32 m0, s4, %d" % (sl * SLOT + 16384 + p * 4096))
                a("s_add_u32 s6, s3, %d" % (s * 64 * 3072 + p * 64))
                a("buffer_load_dwordx4 v22, s[68:71], s6 offen lds")
            n = 3
        elif s < 20:
            for i in range(3):
                a("s_add_u32 m0, s4, %d" % (sl * SLOT + 16384 + i * 4096))
                a("s_add_u32 s6, s5, %d" % (i * 20480 + (s - 10) * 128))
                a("buffer_load_dwordx4 v5, s[72:75], s6 offen lds")
            n = 3
        else:
            for i in range(5):
                a("s_add_u32 m0, s46, %d" % (sl * SLOT + 8192 + i * 2048))
                if s < 32:
                    a("s_add_u32 s6, s7, %d" % (i * 16 * 3072 + (s - 20) * 256))
                    a("buffer_load_dwordx4 v16, s[84:87], s6 offen sc1 lds")
                else:
                    s3 = s - 32
                    sr = 92 if s3 < 5 else 96
                    a("s_add_u32 s6, s8, %d" % (i * 16 * 1280 + (s3 % 5) * 256))
                    a("buffer_load_dwordx4 v5, s[%d:%d], s6 offen lds" % (sr, sr + 3))
            n = 5
        vm.issue(("F", s), n)

    def dep_part(s):
        sl = s % NS
        for i in range(4):
            if s < 20:
                a("s_add_u32 m0, s4, %d" % (sl * SLOT + i * 4096))
                a("s_add_u32 s6, s47, %d" % (i * 40960 + (s % 10) * 128))
                a("buffer_load_dwordx4 v5, s[64:67], s6 offen sc1 lds")
            elif s < 32:
                a("s_add_u32 m0, s46, %d" % (sl * SLOT + i * 2048))
                a("s_add_u32 s6, s50, %d" % (i * 1024 + (s - 20) * 16384))
                a("buffer_load_dwordx4 v21, s[80:83], s6 offen sc1 lds")
            else:
                a("s_add_u32 m0, s46, %d" % (sl * SLOT + i * 2048))
                a("s_add_u32 s6, s9, %d" % (i * 1024 + (s - 32) * 8192))
                a("buffer_load_dwordx4 v10, s[88:91], s6 offen sc1 lds")
        vm.issue(("D", s), 4)
    a("s_mul_i32 s24, s13, %d" % (128 * 1280))
    a("s_add_u32 s24, s24, %d" % WS_XN)
    srd_off(a, 64, 10, 11, "s24", 128 * 1280)
    a("s_cmp_eq_u32 s18, 0")
    a("s_cselect_b32 s24, s%d, s%d" % (P_BRE, P_BIM))
    a("s_cselect_b32 s25, s%d, s%d" % (P_BRE + 1, P_BIM + 1))
    a("s_mul_i32 s26, s14, %d" % (40 * 1280))
    srd_off(a, 72, 24, 25, "s26", 40 * 1280)
    a("s_mul_i32 s24, s15, 196608")
    a("s_add_u32 s24, s24, %d" % WS_H1)
    srd_off(a, 80, 10, 11, "s24", 196608)
    a("s_mul_i32 s24, s16, %d" % (80 * 3072))
    a("s_add_u32 s24, s24, %d" % WS_W2T)
    srd_off(a, 84, 10, 11, "s24", 80 * 3072)
    a("s_mul_i32 s24, s15, 163840")
    a("s_add_u32 s24, s24, %d" % WS_HT)
    srd_off(a, 88, 10, 11, "s24", 163840)
    a("s_lshr_b32 s24, s2, 3")
    a("s_and_b32 s25, s2, 7")
    a("v_lshlrev_b32 v18, 7, v1")
    Lpf1 = a.newlabel("U_pf1")
    Lpf3 = a.newlabel("U_pf3")
    Lpfd = a.newlabel("U_pfd")
    a("s_cmp_eq_u32 s17, 3")
    a("s_cbranch_scc1 %s" % Lpf3)
    a("s_cmp_lg_u32 s17, 0")
    a("s_cbranch_scc1 %s" % Lpf1)
    a("s_lshr_b32 s25, s25, 1")
    a("s_mul_i32 s25, s25, 204800")
    a("s_mul_i32 s26, s24, 6400")
    a("s_add_u32 s25, s25, s26")
    srd_off(a, 92, P_BRE, P_BRE + 1, "s25", 6400)
    srd_off(a, 96, P_BIM, P_BIM + 1, "s25", 6400)
    a("buffer_load_dword v19, v18, s[92:95], 0 offen")
    a("buffer_load_dword v20, v18, s[96:99], 0 offen")
    a("s_branch %s" % Lpfd)
    a.label(Lpf1)
    a("s_lshr_b32 s25, s25, 2")
    a("s_mul_i32 s25, s25, 409600")
    a("s_mul_i32 s26, s24, 12800")
    a("s_add_u32 s25, s25, s26")
    a("s_cmp_eq_u32 s17, 1")
    a("s_cselect_b32 s26, s%d, s%d" % (P_CRE, P_CIM))
    a("s_cselect_b32 s27, s%d, s%d" % (P_CRE + 1, P_CIM + 1))
    srd_off(a, 92, 26, 27, "s25", 12800)
    a("s_movk_i32 s26, 8192")
    a("buffer_load_dword v19, v18, s[92:95], 0 offen")
    a("buffer_load_dword v20, v18, s[92:95], s26 offen")
    a("s_branch %s" % Lpfd)
    a.label(Lpf3)
    a("s_lshr_b32 s25, s25, 1")
    a("s_mul_i32 s25, s25, 768")
    a("s_mul_i32 s26, s24, %d" % (20 * 3072))
    a("s_add_u32 s25, s25, s26")
    srd_off(a, 92, P_W1, P_W1 + 1, "s25", 20 * 3072 - 2304)
    a("v_mul_u32_u24 v19, 43, v1")
    a("v_lshrrev_b32 v19, 8, v19")
    a("v_mul_u32_u24 v20, 6, v19")
    a("v_sub_u32 v20, v1, v20")
    a("v_mul_u32_u24 v19, 3072, v19")
    a("v_lshl_add_u32 v18, v20, 7, v19")
    a("s_movk_i32 s26, %d" % (10 * 3072))
    a("buffer_load_dword v19, v18, s[92:95], 0 offen")
    a("buffer_load_dword v20, v18, s[92:95], s26 offen")
    a.label(Lpfd)
    vm.issue("pf", 2)
    a("s_cmp_eq_u32 s18, 0")
    a("s_cselect_b32 s24, s%d, s%d" % (P_B2, P_DSK))
    a("s_cselect_b32 s25, s%d, s%d" % (P_B2 + 1, P_DSK + 1))
    a("s_mul_i32 s26, s16, 160")
    srd_off(a, 92, 24, 25, "s26", 160)
    a("v_lshlrev_b32 v18, 4, v1")
    a("v_cmp_gt_u32 vcc, 16, v1")
    a("s_and_saveexec_b64 s[26:27], vcc")
    a("s_lshl_b32 s24, s18, 8")
    a("s_add_u32 m0, s24, %d" % (MISC + 1536))
    a("s_nop 0")
    a("buffer_load_dwordx4 v18, s[92:95], 0 offen lds")
    a("s_mov_b64 exec, -1")
    vm.issue("bd", 1)
    a("s_mul_i32 s24, s16, %d" % (80 * 1280))
    srd_off(a, 92, P_CRE, P_CRE + 1, "s24", 80 * 1280)
    srd_off(a, 96, P_CIM, P_CIM + 1, "s24", 80 * 1280)
    a("v_mul_u32_u24 v5, 1280, v2")
    a("v_lshl_add_u32 v5, v4, 4, v5")
    a("v_mul_u32_u24 v16, 3072, v2")
    a("v_lshl_add_u32 v16, v4, 4, v16")
    a("v_and_b32 v10, 1, v6")
    a("s_lshl_b32 s24, s18, 1")
    a("v_or_b32 v10, s24, v10")
    a("v_lshrrev_b32 v11, 1, v3")
    a("v_xor_b32 v11, v10, v11")
    a("v_lshrrev_b32 v10, 1, v11")
    a("v_mul_u32_u24 v10, 81920, v10")
    a("v_lshl_add_u32 v10, v2, 6, v10")
    a("v_and_b32 v11, 1, v11")
    a("v_lshl_add_u32 v10, v11, 5, v10")
    a("v_and_b32 v11, 1, v1")
    a("v_lshl_add_u32 v10, v11, 4, v10")
    a("v_lshrrev_b32 v21, 2, v4")
    a("v_lshlrev_b32 v21, 12, v21")
    a("v_lshl_add_u32 v21, v2, 6, v21")
    a("v_and_b32 v11, 3, v4")
    a("v_lshl_add_u32 v21, v11, 4, v21")
    a("s_mul_i32 s47, s17, 10240")
    a("s_mul_i32 s5, s19, 10240")
    a("s_lshl_b32 s50, s19, 13")
    a("s_lshl_b32 s24, s18, 9")
    a("s_add_u32 s50, s50, s24")
    a("s_lshl_b32 s9, s19, 12")
    a("s_add_u32 s9, s9, s24")
    a("s_mul_i32 s7, s18, %d" % (8 * 3072))
    a("s_lshl_b32 s24, s19, 7")
    a("s_add_u32 s7, s7, s24")
    a("s_mul_i32 s8, s18, %d" % (8 * 1280))
    a("s_add_u32 s8, s8, s24")
    a("s_mul_i32 s46, s19, %d" % SUB)
    a("s_lshl_b32 s24, s18, 10")
    a("s_add_u32 s46, s46, s24")

    def gate(soff_code, target, word, first=False):
        Lnp = a.newlabel("U_gnp")
        Lgo = a.newlabel("U_ggo")
        a("s_cmp_lg_u32 s17, 0")
        a("s_cbranch_scc1 %s" % Lnp)
        a("v_mov_b32 v23, 1")
        soff_code()
        poll(a, 18, 17, 76, "s24", chk_ge(target), "U_g", 3)
        a("ds_write_b32 v15, v23 offset:%d" % word)
        a("s_branch %s" % Lgo)
        a.label(Lnp)
        lds_wait(a, 18, 15, word, 1, "U_gw", 1)
        a.label(Lgo)

    st()
    lds_wait(a, 18, 15, 4, 1, "U_gx", 1)
    st()

    def phase(s0, s1, nxt_free_to):
        for k in range(2):
            if s0 == 0:
                free_part(s0 + k)
            dep_part(s0 + k)
        vm.wait(("D", s0))
        st()
        a("s_barrier")
        for k in range(2, 4):
            if s0 == 0:
                free_part(s0 + k)
            dep_part(s0 + k)
        for s in range(s0, s1):
            if s + 1 < s1:
                vm.wait(("D", s + 1))
            if s == ESTAGE:
                vm.wait("Emark")
            if s == 41:
                vm.drain()
            a("s_barrier")
            if STAMP and s % 2 == 1:
                st()
            n = s + NS
            if s == 1:
                Lsk = a.newlabel("U_w2s")
                a("s_cmp_lg_u32 s17, 2")
                a("s_cbranch_scc1 %s" % Lsk)
                a("s_cmp_ge_u32 s2, 240")
                a("s_cbranch_scc1 %s" % Lsk)
                a("s_lshl_b32 s24, s28, 8")
                a("s_add_u32 s24, s24, %d" % F_W2)
                signal(18, 19, "s24")
                a.label(Lsk)
            if s == ESTAGE - 3:
                a("s_lshl_b32 s26, 1, s13")
                a("s_sub_u32 s26, s26, 1")
                a("s_lshl_b32 s27, s14, 8")
                a("s_add_u32 s27, s27, %d" % F_E)
                a("buffer_load_dword v20, v17, s[76:79], s27 offen sc1")
                vm.issue("pollE", 1)
            if s == ESTAGE - 2:
                def chkE(sr):
                    a("s_and_b32 s%d, s%d, s26" % (sr, sr))
                    a("s_cmp_eq_u32 s%d, s26" % sr)
                vm.wait("pollE")
                Lok = a.newlabel("U_eok")
                a("v_readfirstlane_b32 s30, v20")
                a("s_nop 3")
                chkE(30)
                a("s_cbranch_scc1 %s" % Lok)
                poll(a, 20, 17, 76, "s27", chkE, "U_e", 2)
                a.label(Lok)
                a("s_mul_i32 s24, s14, 5120")
                a("s_add_u32 s24, s24, %d" % WS_ET)
                srd_off(a, 64, 10, 11, "s24", 5120)
                a("v_lshlrev_b32 v18, 4, v1")
                a("s_add_u32 m0, s4, %d" % (MISC + 6144 + 5120))
                a("s_nop 0")
                a("buffer_load_dwordx4 v18, s[64:67], s4 offen sc1 lds")
                Lsk = a.newlabel("U_e5")
                a("s_cmp_lg_u32 s17, 0")
                a("s_cbranch_scc1 %s" % Lsk)
                a("s_mov_b32 m0, %d" % (MISC + 6144 + 5120 + 4096))
                a("s_movk_i32 s24, 4096")
                a("buffer_load_dwordx4 v18, s[64:67], s24 offen sc1 lds")
                a.label(Lsk)
                vm.issue("E", 1)
                vm.issue("Emark", 0)
            if s == 38:
                a("s_lshl_b32 s24, s15, 6")
                a("s_mul_i32 s24, s24, 1280")
                a("s_mul_i32 s25, s16, 160")
                a("s_add_u32 s24, s24, s25")
                srd_off(a, 64, P_X, P_X + 1, "s24", 64 * 1280 - 1120)
                a("s_add_u32 s24, s24, %d" % WS_XN)
                srd_off(a, 68, 10, 11, "s24", 64 * 1280 - 1120)
                a("s_lshl_b32 s24, s17, 6")
                for i in range(3):
                    a("v_add_u32 v18, s24, v1")
                    if i:
                        a("v_add_u32 v18, %d, v18" % (256 * i))
                    a("v_mul_u32_u24 v19, 6554, v18")
                    a("v_lshrrev_b32 v19, 16, v19")
                    a("v_mul_u32_u24 v20, 10, v19")
                    a("v_sub_u32 v20, v18, v20")
                    a("v_mul_u32_u24 v23, 1280, v19")
                    a("v_lshl_add_u32 v23, v20, 4, v23")
                    a("v_and_b32 v24, 0xffe3, v19")
                    a("v_lshrrev_b32 v25, 2, v19")
                    a("v_and_b32 v25, 1, v25")
                    a("v_lshl_add_u32 v24, v25, 4, v24")
                    a("v_lshrrev_b32 v25, 3, v19")
                    a("v_and_b32 v25, 3, v25")
                    a("v_lshl_add_u32 v24, v25, 2, v24")
                    a("v_mul_u32_u24 v24, 1280, v24")
                    a("v_lshl_add_u32 v24, v20, 4, v24")
                    if i < 2:
                        a("s_add_u32 m0, s4, %d" % (2 * SLOT + i * 4096))
                        a("s_nop 0")
                        a("buffer_load_dwordx4 v23, s[64:67], 0 offen lds")
                        a("s_add_u32 m0, s4, %d" % (2 * SLOT + 10240 + i * 4096))
                        a("s_nop 0")
                        a("buffer_load_dwordx4 v24, s[68:71], 0 offen sc1 lds")
                    else:
                        Lsk = a.newlabel("U_x3")
                        a("s_cmp_ge_u32 s17, 2")
                        a("s_cbranch_scc1 %s" % Lsk)
                        a("s_add_u32 m0, s4, %d" % (2 * SLOT + i * 4096))
                        a("s_nop 0")
                        a("buffer_load_dwordx4 v23, s[64:67], 0 offen lds")
                        a("s_add_u32 m0, s4, %d" % (2 * SLOT + 10240 + i * 4096))
                        a("s_nop 0")
                        a("buffer_load_dwordx4 v24, s[68:71], 0 offen sc1 lds")
                        a.label(Lsk)
                vm.issue("X", 4)
            if n < s1:
                if n == 31:
                    a("s_lshl_b32 s25, s15, 8")
                    a("s_add_u32 s25, s25, %d" % F_HT)
                    a("buffer_load_dword v19, v17, s[76:79], s25 offen sc1")
                    vm.issue("pollHT", 1)
                if n == 19:
                    a("s_mul_i32 s25, s16, 80")
                    a("s_add_u32 s26, s25, 79")
                    a("s_lshr_b32 s25, s25, 6")
                    a("s_lshr_b32 s26, s26, 6")
                    a("s_lshl_b32 s25, s25, 8")
                    a("s_lshl_b32 s26, s26, 8")
                    a("s_add_u32 s25, s25, %d" % F_W2)
                    a("s_add_u32 s26, s26, %d" % F_W2)
                    a("buffer_load_dword v19, v17, s[76:79], s25 offen sc1")
                    a("buffer_load_dword v20, v17, s[76:79], s26 offen sc1")
                    vm.issue("pollW2", 2)
                free_part(n)
                if n == 32:
                    vm.wait("pollHT")
                    Lok = a.newlabel("U_htok")
                    a("v_readfirstlane_b32 s30, v19")
                    a("s_nop 3")
                    a("s_cmp_ge_u32 s30, 32")
                    a("s_cbranch_scc1 %s" % Lok)
                    poll(a, 19, 17, 76, "s25", chk_ge(32), "U_ht")
                    a.label(Lok)
                dep_part(n)
            elif n < nxt_free_to:
                if n == 20:
                    vm.wait("pollW2")
                    Lok = a.newlabel("U_w2ok")
                    a("v_min_u32 v19, v19, v20")
                    a("s_nop 0")
                    a("v_readfirstlane_b32 s30, v19")
                    a("s_nop 3")
                    a("s_cmp_ge_u32 s30, 24")
                    a("s_cbranch_scc1 %s" % Lok)
                    poll(a, 19, 17, 76, "s25", chk_ge(24), "U_w2")
                    poll(a, 19, 17, 76, "s26", chk_ge(24), "U_w2")
                    a.label(Lok)
                free_part(n)
    phase(0, 20, 24)
    st()

    def h1off():
        a("s_lshl_b32 s24, s15, 8")
        a("s_add_u32 s24, s24, %d" % F_H1)
    gate(h1off, 32, 12)
    st()
    phase(20, 42, 42)
    st.flush()
    a.label(Lend)
    a("s_endpgm")
    a.label("U_code_end")
    return name, 256


if __name__ == "__main__":
    a = Asm()
    nm, vg = gen_uni(a)
    hdr = open("cdna_kernels/%s.s.ref" % NAME).read().split("\n")
    hdr = [l for l in hdr if l.startswith(";") and "@launch" not in l]
    out = "\n".join(hdr) + "\n; @launch grid=(256,1,1) block=(512,1,1) lds=163840\n"
    out += '.amdgcn_target "amdgcn-amd-amdhsa--gfx950"\n.text\n' + a.text()
    out += '.section .rodata,"a"\n.p2align 6\n' + kernel_desc(nm, vg)
    open(sys.argv[1] if len(sys.argv) > 1 else "cdna_kernels/%s.s" % NAME, "w").write(out)
```

```python
import sys, os, math
from gen import Asm, srd, srd_off, kernel_header, kernel_desc, fh, KA, LOG2E, DPP8, NAME
import gen

WS_XN = 0x0000000
WS_W2T = 0x0500000
WS_FLG = 0x0780000
WS_H1 = 0x0800000
WS_ET = 0x0F00000
WS_HT = 0x2000000
WS_DBG = 0x3000000
F_XN, F_H1, F_E, F_HT, F_W2, F_SIZE = 0, 4096, 12288, 16384, 24576, 27136

STAMP = int(os.environ.get("STAMP", "0"))
NS = 4
TLBPF = int(os.environ.get("TLBPF", "0"))
OUTFLAG = os.environ.get("OUTFLAG", "")
ESTAGE = int(os.environ.get("ESTAGE", "24"))
RATE1 = eval(os.environ.get("RATE1", "(3, 80)"))
RATE2 = eval(os.environ.get("RATE2", "(4, 100)"))
RATE3 = eval(os.environ.get("RATE3", "(2, 10)"))
PRE20 = int(os.environ.get("PRE20", "260"))
CODE_SIZE = 40000
CODEPF = int(os.environ.get("CODEPF", "1"))
SLOT = 36864
SUB = 18432
MISC = 147456

P_X, P_LRE, P_LIM, P_BRE, P_BIM, P_CRE, P_CIM, P_LDT, P_DSK, P_W1, P_B1, P_W2, P_B2, P_OUT, P_DBG = \
    32, 34, 36, 38, 40, 42, 44, 46, 48, 52, 54, 56, 58, 60, 62


class Stamper:
    def __init__(self, a):
        self.a = a
        self.n = 0

    def __call__(self, real=False):
        if not STAMP:
            return
        a = self.a
        assert self.n < 64
        if self.n == 0 and not real:
            a("v_mov_b32 v255, 0")
            self(True)
        a("s_memrealtime s[100:101]" if real else "s_memtime s[100:101]")
        a("s_waitcnt lgkmcnt(0)")
        a("v_writelane_b32 v255, s100, %d" % self.n)
        self.n += 1

    def flush(self):
        if not STAMP:
            return
        a = self.a
        self()
        self(True)
        a("s_mov_b64 exec, -1")
        a("s_lshl_b32 s100, s2, 3")
        a("s_add_u32 s100, s100, s12")
        a("s_lshl_b32 s100, s100, 8")
        a("s_add_u32 s100, s100, 0x%x" % (WS_DBG + 0x100000))
        srd_off(a, 96, 10, 11, "s100", 256)
        a("v_and_b32 v254, 63, v0")
        a("v_lshlrev_b32 v254, 2, v254")
        a("buffer_store_dword v255, v254, s[96:99], 0 offen")


class VM:
    def __init__(self, a):
        self.a = a
        self.q = []

    def issue(self, tag, n):
        self.q.append((tag, n))

    def wait(self, tag):
        idxs = [i for i, (t, n) in enumerate(self.q) if t == tag]
        if not idxs:
            return
        idx = max(idxs)
        rest = sum(n for t, n in self.q[idx + 1:])
        assert rest <= 63, rest
        self.a("s_waitcnt vmcnt(%d)" % rest)
        self.q = self.q[idx + 1:]

    def drain(self):
        self.a("s_waitcnt vmcnt(0)")
        self.q = []


def interleave(ms, rs):
    out = []
    ri = 0
    for m in ms:
        out.append(m)
        if ri < len(rs):
            out.append(rs[ri])
            ri += 1
    return out + rs[ri:]


def poll(a, vreg, vzero, sflg, soff, check, lbl, slp=4):
    Lp = a.newlabel(lbl + "_poll")
    Ld = a.newlabel(lbl + "_done")
    a("s_mov_b32 s31, 0x100000")
    a.label(Lp)
    a("buffer_load_dword v%d, v%d, s[%d:%d], %s offen sc1" % (vreg, vzero, sflg, sflg + 3, soff))
    a("s_waitcnt vmcnt(0)")
    a("v_readfirstlane_b32 s30, v%d" % vreg)
    a("s_nop 3")
    check(30)
    a("s_cbranch_scc1 %s" % Ld)
    a("s_sleep %d" % slp)
    a("s_sub_u32 s31, s31, 1")
    a("s_cmp_lg_u32 s31, 0")
    a("s_cbranch_scc1 %s" % Lp)
    a.label(Ld)


def lds_wait(a, vtmp, vaddr, off, val, lbl, slp=1):
    Lw = a.newlabel(lbl)
    Ld = a.newlabel(lbl + "d")
    a.label(Lw)
    a("ds_read_b32 v%d, v%d offset:%d" % (vtmp, vaddr, off))
    a("s_waitcnt lgkmcnt(0)")
    a("v_readfirstlane_b32 s30, v%d" % vtmp)
    a("s_nop 3")
    a("s_cmp_ge_u32 s30, %d" % val)
    a("s_cbranch_scc1 %s" % Ld)
    if slp:
        a("s_sleep %d" % slp)
    a("s_branch %s" % Lw)
    a.label(Ld)


def cmul_add(a, items):
    for (d, lr, li, s, ad) in items:
        if ad is None:
            a("v_mul_f32 v%d, v%d, v%d" % (d, lr, s))
        else:
            a("v_fma_f32 v%d, v%d, v%d, v%d" % (d, lr, s, ad))
    if len(items) < 2:
        a("s_nop 1")
    for (d, lr, li, s, ad) in items:
        a("v_fmac_f32_dpp v%d, v%d, v%d %s" % (d, s, li, DPP8))


def gelu_units(a, units, tmp, vK1, sK2, sLO, sHI, sMask):
    P = []
    for ui, (rA, rB, b, d) in enumerate(units):
        for h, r in enumerate((rA, rA + 2, rB, rB + 2)):
            P.append((r, b + 2 * h, d + h, tmp + 8 * ui + 2 * h))
    for (r, b, d, t) in P:
        a("v_cvt_pk_bf16_f32 v%d, v%d, v%d" % (d, r, r + 1))
    for (r, b, d, t) in P:
        a("v_dot2_f32_bf16 v%d, v%d, s%d, v%d" % (r, d, sLO, b))
        a("v_dot2_f32_bf16 v%d, v%d, s%d, v%d" % (r + 1, d, sHI, b + 1))
    a("s_nop 1")
    for (r, b, d, t) in P:
        a("v_cvt_pk_bf16_f32 v%d, v%d, v%d" % (d, r, r + 1))
    for (r, b, d, t) in P:
        a("v_lshlrev_b32 v%d, 16, v%d" % (r, d))
        a("v_and_b32 v%d, s%d, v%d" % (r + 1, sMask, d))
    for (r, b, d, t) in P:
        a("v_pk_mul_f32 v[%d:%d], v[%d:%d], v[%d:%d]" % (t, t + 1, r, r + 1, r, r + 1))
    for (r, b, d, t) in P:
        a("v_pk_fma_f32 v[%d:%d], v[%d:%d], s[%d:%d], v[%d:%d]" % (t, t + 1, t, t + 1, sK2, sK2 + 1, vK1, vK1 + 1))
    for (r, b, d, t) in P:
        a("v_pk_mul_f32 v[%d:%d], v[%d:%d], v[%d:%d]" % (t, t + 1, t, t + 1, r, r + 1))
    for (r, b, d, t) in P:
        a("v_exp_f32 v%d, v%d" % (t, t))
        a("v_exp_f32 v%d, v%d" % (t + 1, t + 1))
    a("s_nop 0")
    for (r, b, d, t) in P:
        a("v_pk_add_f32 v[%d:%d], v[%d:%d], 1.0" % (t, t + 1, t, t + 1))
    for (r, b, d, t) in P:
        a("v_rcp_f32 v%d, v%d" % (t, t))
        a("v_rcp_f32 v%d, v%d" % (t + 1, t + 1))
    a("s_nop 0")
    for (r, b, d, t) in P:
        a("v_pk_mul_f32 v[%d:%d], v[%d:%d], v[%d:%d]" % (r, r + 1, r, r + 1, t, t + 1))
    for (r, b, d, t) in P:
        a("v_cvt_pk_bf16_f32 v%d, v%d, v%d" % (d, r, r + 1))


def gen_uni(a):
    name = NAME + "_kernel"
    kernel_header(a, name)
    st = Stamper(a)
    Lend = a.newlabel("U_end")
    Lld = a.newlabel("U_ld")
    a("s_cmp_ge_u32 s2, 256")
    a("s_cbranch_scc1 %s" % Lend)
    if CODEPF:
        a("s_getpc_b64 s[4:5]")
        a.label("U_code_start")
        a("s_lshr_b32 s6, s2, 3")
        a("s_lshl_b32 s6, s6, 11")
        a("v_and_b32 v1, 15, v0")
        a("v_lshlrev_b32 v1, 7, v1")
        a("v_add_u32 v1, s6, v1")
        a("v_min_u32 v1, 0x%x, v1" % CODE_SIZE)
        a("v_cmp_gt_u32 vcc, 16, v0")
        a("s_and_saveexec_b64 s[6:7], vcc")
        a("s_cbranch_execz U_cpf")
        a("global_load_dword v30, v1, s[4:5]")
        a.label("U_cpf")
        a("s_mov_b64 exec, -1")
    a("s_load_dwordx16 s[32:47], s[0:1], 0")
    a("s_load_dwordx16 s[48:63], s[0:1], 64")
    a("s_load_dwordx2 s[10:11], s[0:1], 128")
    a("v_lshrrev_b32 v2, 6, v0")
    a("v_and_b32 v1, 63, v0")
    a("s_nop 0")
    a("v_readfirstlane_b32 s12, v2")
    a("s_lshr_b32 s20, s2, 3")
    a("s_and_b32 s21, s20, 7")
    a("s_lshr_b32 s20, s20, 3")
    a("s_and_b32 s13, s2, 1")
    a("s_lshl_b32 s13, s13, 3")
    a("s_add_u32 s13, s13, s21")
    a("s_lshr_b32 s14, s2, 1")
    a("s_and_b32 s14, s14, 3")
    a("s_lshl_b32 s14, s14, 2")
    a("s_add_u32 s14, s14, s20")
    a("s_and_b32 s15, s2, 3")
    a("s_lshl_b32 s15, s15, 3")
    a("s_add_u32 s15, s15, s21")
    a("s_lshr_b32 s16, s2, 2")
    a("s_and_b32 s16, s16, 1")
    a("s_lshl_b32 s16, s16, 2")
    a("s_add_u32 s16, s16, s20")
    a("s_and_b32 s17, s12, 3")
    a("s_and_b32 s18, s17, 1")
    a("s_lshr_b32 s19, s17, 1")
    a("v_lshrrev_b32 v2, 3, v1")
    a("v_and_b32 v3, 7, v1")
    a("v_lshrrev_b32 v6, 4, v1")
    a("v_and_b32 v7, 15, v1")
    a("v_xor_b32 v4, v6, v3")
    a("v_lshlrev_b32 v8, 7, v7")
    a("v_lshl_add_u32 v8, v4, 4, v8")
    a("v_xor_b32 v9, 64, v8")
    a("v_xor_b32 v4, v2, v3")
    a("s_waitcnt lgkmcnt(0)")
    srd_off(a, 76, 10, 11, WS_FLG, F_SIZE)
    a("v_mov_b32 v15, %d" % MISC)
    for i in range(4):
        a("v_mov_b32 v%d, 0" % (10 + i))
    a("ds_write_b128 v15, v[10:13]")
    a("ds_write_b128 v15, v[10:13] offset:16")
    a("s_waitcnt lgkmcnt(0)")
    a("s_barrier")
    st()
    srd(a, 92, P_DBG, P_DBG + 1, 256)
    a("v_mov_b32 v17, 0")
    n0 = st.n
    a("s_cmp_ge_u32 s12, 4")
    a("s_cbranch_scc1 %s" % Lld)
    X0, XF, S0 = 76, 88, 112
    a("s_lshl_b32 s20, s13, 7")
    a("s_lshl_b32 s21, s14, 3")
    a("s_add_u32 s20, s20, s21")
    a("s_lshl_b32 s21, s17, 1")
    a("s_add_u32 s20, s20, s21")
    a("s_mul_i32 s20, s20, 1280")
    a("s_lshl_b32 s21, s13, 7")
    a("s_lshr_b32 s22, s14, 2")
    a("s_lshl_b32 s22, s22, 5")
    a("s_add_u32 s21, s21, s22")
    a("s_lshl_b32 s22, s19, 4")
    a("s_add_u32 s21, s21, s22")
    a("s_and_b32 s22, s14, 3")
    a("s_lshl_b32 s22, s22, 2")
    a("s_add_u32 s21, s21, s22")
    a("s_lshl_b32 s22, s18, 1")
    a("s_add_u32 s21, s21, s22")
    a("s_mul_i32 s21, s21, 1280")
    a("s_add_u32 s21, s21, %d" % WS_XN)
    srd_off(a, 64, P_X, P_X + 1, "s20", 2560)
    srd_off(a, 68, 10, 11, "s21", 2560)
    a("v_lshrrev_b32 v11, 5, v1")
    a("v_and_b32 v12, 31, v1")
    a("v_mul_u32_u24 v10, 1280, v11")
    a("v_lshl_add_u32 v10, v12, 4, v10")
    a("v_cmp_gt_u32 s[26:27], 16, v12")
    a("v_mov_b32 v13, 0x10000")
    a("s_nop 0")
    a("v_cndmask_b32 v13, v13, v10, s[26:27]")
    a("buffer_load_dwordx4 v[%d:%d], v10, s[64:67], 0 offen" % (X0, X0 + 3))
    a("buffer_load_dwordx4 v[%d:%d], v10, s[64:67], 0 offen offset:512" % (X0 + 4, X0 + 7))
    a("buffer_load_dwordx4 v[%d:%d], v13, s[64:67], 0 offen offset:1024" % (X0 + 8, X0 + 11))
    a("s_mov_b32 s24, 0xffff0000")
    for i in range(12):
        if i == 0:
            a("s_waitcnt vmcnt(0)")
        a("v_lshlrev_b32 v%d, 16, v%d" % (XF + 2 * i, X0 + i))
        a("v_and_b32 v%d, s24, v%d" % (XF + 2 * i + 1, X0 + i))

    def pk(op, d, x, y, z=None):
        if z is None:
            a("v_pk_%s_f32 v[%d:%d], v[%d:%d], v[%d:%d]" % (op, d, d + 1, x, x + 1, y, y + 1))
        else:
            a("v_pk_%s_f32 v[%d:%d], v[%d:%d], v[%d:%d], v[%d:%d]" % (op, d, d + 1, x, x + 1, y, y + 1, z, z + 1))

    def allreduce32(r):
        for sh in (8, 4, 2, 1):
            a("s_nop 1")
            a("v_add_f32_dpp v%d, v%d, v%d row_ror:%d row_mask:0xf bank_mask:0xf" % (r, r, r, sh))
        a("ds_swizzle_b32 v%d, v%d offset:0x401F" % (r + 1, r))
        a("s_waitcnt lgkmcnt(0)")
        a("v_add_f32 v%d, v%d, v%d" % (r, r, r + 1))
    pk("add", S0, XF, XF + 2)
    pk("add", S0 + 2, XF + 4, XF + 6)
    for i in range(4, 12):
        pk("add", S0 + 2 * (i & 1), S0 + 2 * (i & 1), XF + 2 * i)
    pk("add", S0, S0, S0 + 2)
    a("v_add_f32 v%d, v%d, v%d" % (S0, S0, S0 + 1))
    allreduce32(S0)
    a("v_mul_f32 v%d, %s, v%d" % (S0, fh(-1.0 / 640), S0))
    a("v_mov_b32 v%d, v%d" % (S0 + 1, S0))
    for i in range(12):
        t = S0 + 4 + 2 * (i & 1)
        q = S0 + 8 + 2 * (i >> 3)
        pk("add", t, XF + 2 * i, S0)
        if i % 8 == 0:
            pk("mul", q, t, t)
        else:
            pk("fma", q, t, t, q)
    a("v_add_f32 v%d, v%d, v%d" % (S0 + 8, S0 + 8, S0 + 9))
    a("v_add_f32 v%d, v%d, v%d" % (S0 + 10, S0 + 10, S0 + 11))
    a("v_cndmask_b32 v%d, 0, v%d, s[26:27]" % (S0 + 10, S0 + 10))
    a("v_add_f32 v%d, v%d, v%d" % (S0 + 8, S0 + 8, S0 + 10))
    allreduce32(S0 + 8)
    V = S0 + 8
    a("v_mul_f32 v%d, %s, v%d" % (V, fh(1.0 / 640), V))
    a("v_cvt_pk_bf16_f32 v%d, v%d, v%d" % (S0 + 2, S0, V))
    a("v_lshlrev_b32 v%d, 16, v%d" % (S0, S0 + 2))
    a("v_mov_b32 v%d, v%d" % (S0 + 1, S0))
    a("v_and_b32 v%d, s24, v%d" % (V, S0 + 2))
    a("v_add_f32 v%d, %s, v%d" % (V, fh(1e-5), V))
    a("v_cvt_pk_bf16_f32 v%d, v%d, v%d" % (V, V, V))
    a("v_and_b32 v%d, s24, v%d" % (V, V))
    a("v_sqrt_f32 v%d, v%d" % (V, V))
    a("s_nop 0")
    a("v_cvt_pk_bf16_f32 v%d, v%d, v%d" % (V, V, V))
    a("v_and_b32 v%d, s24, v%d" % (V, V))
    RS = S0 + 4
    a("v_rcp_f32 v%d, v%d" % (RS, V))
    a("s_nop 0")
    a("v_fma_f32 v%d, -v%d, v%d, 1.0" % (RS + 2, V, RS))
    a("v_fma_f32 v%d, v%d, v%d, v%d" % (RS, RS + 2, RS, RS))
    a("v_mov_b32 v%d, v%d" % (RS + 1, RS))
    a("v_sub_f32 v%d, 0, v%d" % (V, V))
    a("v_mov_b32 v%d, v%d" % (V + 1, V))
    for i in range(12):
        pk("add", XF + 2 * i, XF + 2 * i, S0)
    for i in range(12):
        a("v_cvt_pk_bf16_f32 v%d, v%d, v%d" % (X0 + i, XF + 2 * i, XF + 2 * i + 1))
    Q = 124
    for i in range(12):
        x = XF + 2 * i
        q = Q + 4 * (i & 3)
        a("v_lshlrev_b32 v%d, 16, v%d" % (x, X0 + i))
        a("v_and_b32 v%d, s24, v%d" % (x + 1, X0 + i))
        pk("mul", q, x, RS)
        pk("fma", q + 2, q, V, x)
        pk("fma", q, q + 2, RS, q)
        a("v_cvt_pk_bf16_f32 v%d, v%d, v%d" % (X0 + i, q, q + 1))
    a("buffer_store_dwordx4 v[%d:%d], v10, s[68:71], 0 offen sc1" % (X0, X0 + 3))
    a("buffer_store_dwordx4 v[%d:%d], v10, s[68:71], 0 offen offset:512 sc1" % (X0 + 4, X0 + 7))
    a("buffer_store_dwordx4 v[%d:%d], v13, s[68:71], 0 offen offset:1024 sc1" % (X0 + 8, X0 + 11))
    st()
    a("s_waitcnt vmcnt(0)")
    a("v_mov_b32 v16, 1")
    a("v_cmp_eq_u32 vcc, 0, v1")
    a("s_and_saveexec_b64 s[26:27], vcc")
    a("ds_add_rtn_u32 v18, v15, v16")
    a("s_waitcnt lgkmcnt(0)")
    a("v_readfirstlane_b32 s20, v18")
    a("s_nop 3")
    Lns = a.newlabel("U_nsig")
    a("s_cmp_lg_u32 s20, 3")
    a("s_cbranch_scc1 %s" % Lns)
    lds_wait(a, 18, 15, 16, 1, "U_iw", 1)
    a("s_lshl_b32 s20, s13, 8")
    a("buffer_atomic_add v16, v17, s[76:79], s20 offen")
    a.label(Lns)
    a("s_mov_b64 exec, -1")
    st()

    def signal(vd, vz, soff, op="add", val="1"):
        a("v_cmp_eq_u32 vcc, 0, v1")
        a("s_and_saveexec_b64 s[30:31], vcc")
        a("v_mov_b32 v%d, %s" % (vd, val))
        a("v_mov_b32 v%d, 0" % vz)
        a("buffer_atomic_%s v%d, v%d, s[76:79], %s offen" % (op, vd, vz, soff))
        a("s_mov_b64 exec, -1")

    def chk_ge(n):
        return lambda sr: a("s_cmp_ge_u32 s%d, %d" % (sr, n))

    def wait_init(vt, vz, sdbg):
        a("s_waitcnt vmcnt(0)")

    ACCF, BRAW, ACCS, ADR, CON = 16, 64, 140, 228, 16
    ACC2, ACC3 = 180, 140
    Lp0b = a.newlabel("U_p0b")
    Lp0c = a.newlabel("U_p0c")
    Lp0d = a.newlabel("U_p0d")
    np0 = st.n
    K = lambda c, k: CON + 11 * c + k
    a("s_cmp_lg_u32 s17, 0")
    a("s_cbranch_scc1 %s" % Lp0d)
    lds_wait(a, 18, 15, 16, 1, "U_iw", 1)
    a("s_lshl_b32 s24, s13, 8")
    poll(a, 18, 17, 76, "s24", chk_ge(16), "U_g", 2)
    a("ds_write_b32 v15, v16 offset:4")
    a.label(Lp0d)
    srd(a, 80, P_B1, P_B1 + 1, 3072)
    a("s_mul_i32 s21, s14, 192")
    a("v_lshlrev_b32 v11, 3, v6")
    for nt in range(6):
        a("buffer_load_dwordx2 v[%d:%d], v11, s[80:83], s21 offen offset:%d" % (BRAW + 2 * nt, BRAW + 2 * nt + 1, nt * 32))

    a("v_lshrrev_b32 v10, 2, v7")
    a("v_and_b32 v11, 3, v7")
    a("v_lshrrev_b32 v12, 1, v6")
    a("v_and_b32 v13, 1, v6")
    a("v_lshlrev_b32 v12, 4, v12")
    a("v_lshl_add_u32 v12, v13, 2, v12")
    a("v_add_u32 v12, v12, v10")
    a("v_lshlrev_b32 v12, 6, v12")
    a("v_lshl_add_u32 v12, v13, 5, v12")
    a("v_lshl_add_u32 v12, v11, 3, v12")
    a("v_xor_b32 v13, 32, v12")
    a("s_lshl_b32 s20, s17, 12")
    for sl in range(NS):
        a("s_add_u32 s21, s20, %d" % (sl * SLOT))
        a("v_add_u32 v%d, s21, v8" % (ADR + 6 * sl))
        a("v_add_u32 v%d, s21, v9" % (ADR + 6 * sl + 1))
        a("v_add_u32 v%d, %d, v12" % (ADR + 6 * sl + 2, sl * SLOT + 16384))
        a("v_add_u32 v%d, %d, v13" % (ADR + 6 * sl + 3, sl * SLOT + 16384))
        a("v_add_u32 v%d, %d, v8" % (ADR + 6 * sl + 4, sl * SLOT + 16384))
        a("v_add_u32 v%d, %d, v9" % (ADR + 6 * sl + 5, sl * SLOT + 16384))
    a("v_lshlrev_b32 v5, 2, v7")
    a("s_waitcnt lgkmcnt(0)")

    def nsub(s):
        return 4 if 20 <= s < 32 else 2

    def fbase(s, sset):
        if s < 20:
            return 76 + 32 * sset
        if s < 32:
            return 76 + 24 * sset
        return (16, 76)[sset]

    def reads(s, sub, sset):
        sl = s % NS
        A = ADR + 6 * sl
        b0 = fbase(s, sset)
        out = []
        if s < 10:
            b = b0
            for k, i in [("N", 0), ("T", 0), ("T", 1), ("N", 1), ("N", 2), ("N", 3), ("N", 4), ("N", 5)]:
                if k == "T":
                    out.append("ds_read_b128 v[%d:%d], v%d offset:%d" % (b + 4 * i, b + 4 * i + 3, A + sub, i * 2048))
                else:
                    o = (i >> 1) * 4096 + sub * 2048
                    r = b + 8 + 4 * i
                    out.append("ds_read_b64_tr_b16 v[%d:%d], v%d offset:%d" % (r, r + 1, A + 2 + (i & 1), o))
                    out.append("ds_read_b64_tr_b16 v[%d:%d], v%d offset:%d" % (r + 2, r + 3, A + 2 + (i & 1), o + 512))
        elif s < 20:
            b = b0
            for k, i in [("N", 0), ("T", 0), ("T", 1), ("N", 1), ("N", 2), ("N", 3), ("N", 4)]:
                if k == "T":
                    out.append("ds_read_b128 v[%d:%d], v%d offset:%d" % (b + 4 * i, b + 4 * i + 3, A + sub, i * 2048))
                else:
                    out.append("ds_read_b128 v[%d:%d], v%d offset:%d" % (b + 8 + 4 * i, b + 11 + 4 * i, A + 4 + sub, i * 2048))
        else:
            steps = [(sub >> 1, sub & 1, b0)] if s < 32 else [(sub, 0, b0), (sub, 1, b0 + 24)]
            for (sb, ks, b) in steps:
                so = sb * SUB
                for k, i in [("D", 0), ("T", 0), ("D", 1), ("D", 2), ("D", 3), ("D", 4)]:
                    if k == "T":
                        if s < 32:
                            out.append("ds_read_b128 v[%d:%d], v%d offset:%d" % (b, b + 3, A + ks, so))
                        else:
                            out.append("ds_read_b64_tr_b16 v[%d:%d], v%d offset:%d" % (b, b + 1, A + 2, so + ks * 4096))
                            out.append("ds_read_b64_tr_b16 v[%d:%d], v%d offset:%d" % (b + 2, b + 3, A + 2, so + ks * 4096 + 512))
                    else:
                        out.append("ds_read_b128 v[%d:%d], v%d offset:%d" % (b + 4 + 4 * i, b + 7 + 4 * i, A + 4 + ks, so + i * 2048))
        return out

    def mf(d, av, bv, first):
        return "v_mfma_f32_16x16x32_bf16 v[%d:%d], v[%d:%d], v[%d:%d], %s" % (
            d, d + 3, av, av + 3, bv, bv + 3, "0" if first else "v[%d:%d]" % (d, d + 3))

    def mfmas(s, sub, sset):
        out = []
        b = fbase(s, sset)
        if s < 10:
            for nt in range(6):
                for j in range(2):
                    out.append(mf(ACCF + (j * 6 + nt) * 4, b + 8 + 4 * nt, b + 4 * j, s == 0 and sub == 0))
        elif s < 20:
            for c in range(5):
                for j in range(2):
                    out.append(mf(ACCS + (c * 2 + j) * 4, b + 4 * j, b + 8 + 4 * c, s == 10 and sub == 0))
        elif s < 32:
            for dt in range(5):
                out.append(mf(ACC2 + dt * 4, b + 4 + 4 * dt, b, s == 20 and sub == 0))
        else:
            for ks in range(2):
                for dt in range(5):
                    out.append(mf(ACC3 + dt * 4, b + 24 * ks + 4 + 4 * dt, b + 24 * ks, s == 32 and sub == 0 and ks == 0))
        return out

    class BG:
        def __init__(self):
            self.q = []
            self.cur = None

        def __call__(self, line):
            Asm()(line)
            if self.cur is not None:
                self.cur.append("    " + line)
            else:
                self.q.append(["    " + line])

        def label(self, name):
            self.cur.append(name + ":")

        def newlabel(self, p):
            return a.newlabel(p)

        def begin(self):
            self.cur = []

        def end(self):
            self.q.append(self.cur)
            self.cur = None

        def bar(self, n=1):
            self.q.append(("BAR", n))

        def at(self, s):
            self.q.append(("AT", s))

        def emit(self, budget, s):
            while self.q and budget > 0:
                h = self.q[0]
                if isinstance(h, tuple):
                    if h[0] == "AT" and s >= h[1]:
                        self.q.pop(0)
                        continue
                    return
                a.lines += h
                budget -= len(h)
                self.q.pop(0)

        def barrier_passed(self):
            if self.q and isinstance(self.q[0], tuple) and self.q[0][0] == "BAR":
                n = self.q[0][1] - 1
                self.q.pop(0)
                if n > 0:
                    self.q.insert(0, ("BAR", n))
    b = BG()

    def bsignal(vd, vz, soff, op="add", val="1"):
        b("v_cmp_eq_u32 vcc, 0, v1")
        b("s_and_saveexec_b64 s[30:31], vcc")
        b("v_mov_b32 v%d, %s" % (vd, val))
        b("v_mov_b32 v%d, 0" % vz)
        b("buffer_atomic_%s v%d, v%d, s[76:79], %s offen" % (op, vd, vz, soff))
        b("s_mov_b64 exec, -1")
        b("s_nop 3")

    b.at(10)
    b("s_waitcnt vmcnt(0)")
    b("s_lshl_b32 s24, s13, 1")
    b("s_add_u32 s24, s24, s19")
    b("s_lshl_b32 s29, s24, 8")
    b("s_add_u32 s29, s29, %d" % F_H1)
    b("s_mul_i32 s24, s24, 196608")
    b("s_mul_i32 s25, s14, 12288")
    b("s_add_u32 s24, s24, s25")
    b("s_lshl_b32 s25, s18, 11")
    b("s_add_u32 s24, s24, s25")
    b("s_add_u32 s24, s24, %d" % WS_H1)
    b.begin()
    srd_off(b, 20, 10, 11, "s24", 12288)
    b.end()
    b("v_lshrrev_b32 v10, 2, v7")
    b("v_and_b32 v11, 3, v7")
    b("v_lshl_add_u32 v10, v10, 3, v11")
    b("v_lshlrev_b32 v10, 6, v10")
    b("v_lshl_add_u32 v10, v6, 4, v10")
    b("s_mov_b32 s24, 0xffff0000")
    b("s_mov_b32 s25, 0x00003f80")
    b("s_mov_b32 s26, %s" % fh(-2 * math.sqrt(2 / math.pi) * LOG2E * 0.044715))
    b("s_mov_b32 s27, s26")
    b("s_mov_b32 s28, 0x3f800000")
    b("v_mov_b32 v12, %s" % fh(-2 * math.sqrt(2 / math.pi) * LOG2E))
    b("v_mov_b32 v13, v12")
    BF, DST, TMP = 180, 188, 212
    for aa in range(3):
        for i in range(4):
            b("v_lshlrev_b32 v%d, 16, v%d" % (BF + 2 * i, BRAW + 4 * aa + i))
            b("v_and_b32 v%d, s24, v%d" % (BF + 2 * i + 1, BRAW + 4 * aa + i))
        d0 = DST + 8 * aa
        units = [(ACCF + (j * 6 + 2 * aa) * 4, ACCF + (j * 6 + 2 * aa + 1) * 4, BF, d0 + 4 * j) for j in range(2)]
        gelu_units(b, units, TMP, 12, 26, 25, 28, 24)
        b("s_mov_b32 s88, %d" % (aa * 4096))
        for j in range(2):
            b("buffer_store_dwordx4 v[%d:%d], v10, s[20:23], s88 offen offset:%d sc1" % (d0 + 4 * j, d0 + 4 * j + 3, j * 256))
    b("v_mul_u32_u24 v14, 48, v7")
    b("v_add_u32 v14, %d, v14" % (MISC + 2048))
    b("s_mul_i32 s20, s17, 2560")
    b("s_add_u32 s20, s20, %d" % (MISC + 6144))
    b("v_lshl_add_u32 v13, v1, 3, s20")
    for c in range(5):
        for k in range(8):
            b("ds_read_b32 v%d, v14 offset:%d" % (K(c, k), c * 768 + k * 4))
        b("ds_read_b32 v%d, v13 offset:%d" % (K(c, 8), c * 512))
        b("ds_read_b32 v%d, v13 offset:%d" % (K(c, 9), c * 512 + 4))
    b.bar(1)
    b.begin()
    b("s_waitcnt vmcnt(0)")
    bsignal(10, 11, "s29")
    b.end()
    b.bar(1)
    EB = MISC + 6144
    b("s_mul_i32 s20, s17, 1280")
    b("s_add_u32 s20, s20, %d" % EB)
    b("v_lshl_add_u32 v13, v1, 2, s20")
    b("v_mov_b32 v12, 0")
    for i in range(5):
        b("ds_write_b32 v13, v12 offset:%d" % (i * 256))

    b.at(20)
    G = lambda c, i: ACCS + c * 8 + i
    EQ = lambda c, q: 200 + 4 * c + q
    EWL = list(range(124, 140)) + list(range(220, 224))
    EW = lambda c, q: EWL[4 * c + q]
    TM = 71
    for i in range(8):
        for c in range(5):
            b("v_mul_f32 v%d, v%d, v%d" % (TM + c, K(c, 2), G(c, i)))
        for c in range(5):
            b("v_fmac_f32_dpp v%d, v%d, v%d %s" % (TM + c, G(c, i), K(c, 3), DPP8))
        if i == 0:
            for c in range(5):
                b("v_mov_b32 v%d, v%d" % (G(c, 0), TM + c))
        else:
            for c in range(5):
                b("v_fma_f32 v%d, v%d, v%d, v%d" % (G(c, i), K(c, 0), G(c, i - 1), TM + c))
            for c in range(5):
                b("v_fmac_f32_dpp v%d, v%d, v%d %s" % (G(c, i), G(c, i - 1), K(c, 1), DPP8))
    for q in range(4):
        b("v_add_u32 v%d, %d, v5" % (10 + q, q * 64))
    for q in range(4):
        for c in range(5):
            b("ds_bpermute_b32 v%d, v%d, v%d" % (EQ(c, q), 10 + q, G(c, 7)))
    b("s_waitcnt lgkmcnt(0)")
    cmul_add(b, [(EW(c, 1), K(c, 4), K(c, 5), EQ(c, 0), EQ(c, 1)) for c in range(5)])
    for q in range(2, 4):
        cmul_add(b, [(EW(c, q), K(c, 4), K(c, 5), EW(c, q - 1), EQ(c, q)) for c in range(5)])
    b("s_mul_i32 s20, s17, 320")
    b("s_add_u32 s20, s20, %d" % (MISC + 256))
    b("v_add_u32 v%d, s20, v5" % TM)
    for c in range(5):
        b("ds_write_b32 v%d, v%d offset:%d" % (TM, EW(c, 3), c * 64))
    b.bar(1)
    b("v_add_u32 v%d, %d, v5" % (TM, MISC + 256))
    for w in range(4):
        for c in range(5):
            b("ds_read_b32 v%d, v%d offset:%d" % (EW(c, w), TM, w * 320 + c * 64))
    b("s_mul_i32 s20, s14, 5120")
    b("s_add_u32 s20, s20, %d" % WS_ET)
    b.begin()
    srd_off(b, 68, 10, 11, "s20", 5120)
    b.end()
    b("s_waitcnt lgkmcnt(0)")
    for w in range(1, 4):
        cmul_add(b, [(EW(c, w), K(c, 6), K(c, 7), EW(c, w - 1), EW(c, w)) for c in range(5)])
    b.begin()
    Lnp = a.newlabel("U_nopub")
    b("s_cmp_lg_u32 s17, 0")
    b("s_cbranch_scc1 %s" % Lnp)
    b("s_mul_i32 s20, s13, 320")
    b("v_cmp_gt_u32 vcc, 16, v1")
    b("s_and_saveexec_b64 s[30:31], vcc")
    for c in range(5):
        b("buffer_store_dword v%d, v5, s[68:71], s20 offen offset:%d sc1" % (EW(c, 3), c * 64))
    b("s_mov_b64 exec, -1")
    b("s_nop 3")
    b.label(Lnp)
    b.end()
    for w in range(1, 4):
        b.begin()
        b("s_cmp_eq_u32 s17, %d" % w)
        b("s_cselect_b64 s[%d:%d], -1, 0" % (80 + 2 * w, 81 + 2 * w))
        b.end()
    for c in range(5):
        b("v_cndmask_b32 v%d, 0, v%d, s[82:83]" % (K(c, 10), EW(c, 0)))
    for c in range(5):
        b("v_cndmask_b32 v%d, v%d, v%d, s[84:85]" % (K(c, 10), K(c, 10), EW(c, 1)))
    for c in range(5):
        b("v_cndmask_b32 v%d, v%d, v%d, s[86:87]" % (K(c, 10), K(c, 10), EW(c, 2)))
    cmul_add(b, [(EW(c, 0), K(c, 4), K(c, 5), K(c, 10), EQ(c, 0)) for c in range(5)])
    for q in range(1, 3):
        cmul_add(b, [(EW(c, q), K(c, 4), K(c, 5), EW(c, q - 1), EQ(c, q)) for c in range(5)])
    b.begin()
    Lnp = a.newlabel("U_nosig")
    b("s_cmp_lg_u32 s17, 0")
    b("s_cbranch_scc1 %s" % Lnp)
    b("s_waitcnt vmcnt(0)")
    b("s_lshl_b32 s20, 1, s13")
    b("s_lshl_b32 s21, s14, 8")
    b("s_add_u32 s21, s21, %d" % F_E)
    bsignal(TM, TM + 1, "s21", "or", "s20")
    b.label(Lnp)
    b.end()
    b("v_cmp_eq_u32 s[82:83], 1, v6")
    b("v_cmp_eq_u32 s[84:85], 2, v6")
    b("v_cmp_eq_u32 s[86:87], 3, v6")
    b("s_nop 1")
    for q in range(3):
        for c in range(5):
            b("v_cndmask_b32 v%d, v%d, v%d, s[%d:%d]" % (K(c, 10), K(c, 10), EW(c, q), 82 + 2 * q, 83 + 2 * q))
    for c in range(5):
        for k in range(4):
            b("ds_read_b32 v%d, v14 offset:%d" % (K(c, 4 + k), c * 768 + 32 + k * 4))
    b("s_lshl_b32 s20, s13, 1")
    b("s_add_u32 s20, s20, s19")
    b("s_lshl_b32 s29, s20, 8")
    b("s_add_u32 s29, s29, %d" % F_HT)
    b("s_mul_i32 s20, s20, 163840")
    b("s_mul_i32 s21, s18, 81920")
    b("s_add_u32 s20, s20, s21")
    b("s_add_u32 s20, s20, %d" % WS_HT)
    b.begin()
    srd_off(b, 72, 10, 11, "s20", 81920)
    b.end()
    b("v_lshrrev_b32 v%d, 3, v7" % TM)
    b("v_mul_u32_u24 v%d, 640, v%d" % (TM + 1, TM))
    b("v_add_u32 v%d, v%d, v3" % (TM + 1, TM + 1))
    b("v_lshlrev_b32 v%d, 6, v%d" % (TM + 1, TM + 1))
    b("v_lshl_add_u32 v%d, v6, 4, v%d" % (TM + 1, TM + 1))
    b("v_mul_u32_u24 v%d, 0x8000, v%d" % (TM, TM))
    b("v_lshl_add_u32 v%d, v%d, 16, v%d" % (TM, TM, TM))
    b("s_mul_i32 s20, s14, 2560")
    b("v_lshl_add_u32 v%d, v6, 2, s13" % (TM + 2))
    b("v_mul_u32_u24 v%d, 320, v%d" % (TM + 2, TM + 2))
    b("v_add_u32 v%d, v%d, v5" % (TM + 2, TM + 2))
    b("v_add_u32 v%d, %d, v%d" % (TM + 2, EB, TM + 2))
    b.at(ESTAGE + 0.5)
    for e in range(4):
        for c in range(5):
            b("ds_read_b32 v%d, v%d offset:%d" % (EW(c, e), TM + 2, e * 320 + c * 64))
    b("s_waitcnt lgkmcnt(0)")
    for e in range(1, 4):
        cmul_add(b, [(EW(c, e), K(c, 4), K(c, 5), EW(c, e - 1), EW(c, e)) for c in range(5)])
    b("s_nop 0")
    for c in range(5):
        for q in range(4):
            b("ds_bpermute_b32 v%d, v%d, v%d" % (EQ(c, q), 10 + q, EW(c, 3)))
    b("s_waitcnt lgkmcnt(0)")
    for q in range(1, 4):
        cmul_add(b, [(EQ(c, q), K(c, 6), K(c, 7), EQ(c, q - 1), EQ(c, q)) for c in range(5)])
    cmul_add(b, [(K(c, 10), K(c, 8), K(c, 9), EQ(c, 3), K(c, 10)) for c in range(5)])
    CC = lambda c, i: 124 + 2 * c + i
    for i in range(8):
        cmul_add(b, [(CC(c, i & 1), K(c, 0), K(c, 1), K(c, 10) if i == 0 else CC(c, (i - 1) & 1), None) for c in range(5)])
        if i & 1:
            for c in range(5):
                u = G(c, i - 1)
                b("v_pk_add_f32 v[%d:%d], v[%d:%d], v[%d:%d]" % (u, u + 1, u, u + 1, CC(c, 0), CC(c, 1)))
    for c in range(5):
        for j in range(4):
            b("v_cvt_pk_bf16_f32 v%d, v%d, v%d" % (EQ(c, j), G(c, 2 * j), G(c, 2 * j + 1)))
    for c in range(5):
        for j in range(4):
            b("v_xor_b32 v%d, v%d, v%d" % (EQ(c, j), TM, EQ(c, j)))
        b("buffer_store_dwordx4 v[%d:%d], v%d, s[72:75], s20 offen offset:%d sc1" % (EQ(c, 0), EQ(c, 3), TM + 1, c * 512))
    b("s_lshl_b32 s21, s15, 6")
    b("s_lshl_b32 s22, s17, 4")
    b("s_add_u32 s21, s21, s22")
    b("s_mul_i32 s22, s21, 1280")
    b("s_mul_i32 s23, s16, 160")
    b("s_add_u32 s22, s22, s23")
    b.begin()
    srd(b, 80, P_OUT, P_OUT + 1, 2048 * 2560)
    b.end()
    b("v_mul_u32_u24 v15, 2560, v7")
    b("v_lshl_add_u32 v15, v6, 4, v15")
    b("s_lshl_b32 s27, s22, 1")
    b("s_mov_b32 s20, 0xffff0000")
    b("s_mov_b32 s21, 0x00003f80")
    b("s_mov_b32 s26, 0x3f800000")
    b("s_mov_b32 s88, %s" % fh(-LOG2E))
    b("s_mov_b32 s89, s88")
    b("v_lshlrev_b32 v14, 3, v6")
    b("v_add_u32 v14, %d, v14" % (MISC + 1536))
    b("s_mul_i32 s22, s17, 2560")
    b("s_add_u32 s22, s22, %d" % (2 * SLOT))
    b("v_mul_u32_u24 v10, 160, v7")
    b("v_lshl_add_u32 v10, v6, 3, v10")
    b("v_add_u32 v10, s22, v10")
    b.bar(1)
    b.begin()
    b("s_waitcnt vmcnt(0)")
    bsignal(12, 13, "s29")
    b.end()
    T0, T1, PK = 160, 200, 64
    DFL = list(range(124, 140)) + list(range(220, 224))
    b.at(32.5)
    for dt in range(5):
        b("ds_read_b64 v[%d:%d], v14 offset:%d" % (PK + 2 * dt, PK + 2 * dt + 1, dt * 32))
        b("ds_read_b64 v[%d:%d], v14 offset:%d" % (T0 + 2 * dt, T0 + 2 * dt + 1, 256 + dt * 32))
    b("s_waitcnt lgkmcnt(0)")
    for i in range(10):
        b("v_lshlrev_b32 v%d, 16, v%d" % (T1 + 2 * i, PK + i))
        b("v_and_b32 v%d, s20, v%d" % (T1 + 2 * i + 1, PK + i))
        b("v_lshlrev_b32 v%d, 16, v%d" % (DFL[2 * i], T0 + i))
        b("v_and_b32 v%d, s20, v%d" % (DFL[2 * i + 1], T0 + i))
    for i in range(10):
        b("v_cvt_pk_bf16_f32 v%d, v%d, v%d" % (PK + i, ACC2 + 2 * i, ACC2 + 2 * i + 1))
    for i in range(10):
        b("v_dot2_f32_bf16 v%d, v%d, s21, v%d" % (ACC2 + 2 * i, PK + i, T1 + 2 * i))
        b("v_dot2_f32_bf16 v%d, v%d, s26, v%d" % (ACC2 + 2 * i + 1, PK + i, T1 + 2 * i + 1))
    b("s_nop 1")
    for i in range(10):
        b("v_cvt_pk_bf16_f32 v%d, v%d, v%d" % (PK + i, ACC2 + 2 * i, ACC2 + 2 * i + 1))
    for i in range(10):
        b("v_lshlrev_b32 v%d, 16, v%d" % (ACC2 + 2 * i, PK + i))
        b("v_and_b32 v%d, s20, v%d" % (ACC2 + 2 * i + 1, PK + i))
    for i in range(10):
        b("v_pk_mul_f32 v[%d:%d], v[%d:%d], s[88:89]" % (T0 + 2 * i, T0 + 2 * i + 1, ACC2 + 2 * i, ACC2 + 2 * i + 1))
    for i in range(20):
        b("v_exp_f32 v%d, v%d" % (T0 + i, T0 + i))
    b("s_nop 0")
    for i in range(10):
        b("v_pk_add_f32 v[%d:%d], v[%d:%d], 1.0" % (T0 + 2 * i, T0 + 2 * i + 1, T0 + 2 * i, T0 + 2 * i + 1))
    for i in range(20):
        b("v_rcp_f32 v%d, v%d" % (T0 + i, T0 + i))
    b("s_nop 0")
    for i in range(10):
        b("v_pk_mul_f32 v[%d:%d], v[%d:%d], v[%d:%d]" % (ACC2 + 2 * i, ACC2 + 2 * i + 1, ACC2 + 2 * i, ACC2 + 2 * i + 1, T0 + 2 * i, T0 + 2 * i + 1))
    for i in range(10):
        b("v_cvt_pk_bf16_f32 v%d, v%d, v%d" % (PK + i, ACC2 + 2 * i, ACC2 + 2 * i + 1))
    for i in range(10):
        b("v_lshlrev_b32 v%d, 16, v%d" % (T0 + 2 * i, PK + i))
        b("v_and_b32 v%d, s20, v%d" % (T0 + 2 * i + 1, PK + i))
    b.at(41.5)
    RX, RN = 16, 26
    for dt in range(5):
        b("ds_read_b64 v[%d:%d], v10 offset:%d" % (RN + 2 * dt, RN + 2 * dt + 1, 10240 + dt * 32))
    for dt in range(5):
        b("ds_read_b64 v[%d:%d], v10 offset:%d" % (RX + 2 * dt, RX + 2 * dt + 1, dt * 32))
    b("s_waitcnt lgkmcnt(5)")
    for i in range(10):
        b("v_lshlrev_b32 v%d, 16, v%d" % (ACC2 + 2 * i, RN + i))
        b("v_and_b32 v%d, s20, v%d" % (ACC2 + 2 * i + 1, RN + i))
    for i in range(10):
        b("v_pk_mul_f32 v[%d:%d], v[%d:%d], v[%d:%d]" % (ACC2 + 2 * i, ACC2 + 2 * i + 1, ACC2 + 2 * i, ACC2 + 2 * i + 1, DFL[2 * i], DFL[2 * i + 1]))
    for i in range(10):
        b("v_cvt_pk_bf16_f32 v%d, v%d, v%d" % (RN + i, ACC2 + 2 * i, ACC2 + 2 * i + 1))
    b("s_waitcnt lgkmcnt(0)")
    for i in range(10):
        b("v_lshlrev_b32 v%d, 16, v%d" % (ACC2 + 2 * i, RN + i))
        b("v_and_b32 v%d, s20, v%d" % (ACC2 + 2 * i + 1, RN + i))
        b("v_lshlrev_b32 v%d, 16, v%d" % (T1 + 2 * i, RX + i))
        b("v_and_b32 v%d, s20, v%d" % (T1 + 2 * i + 1, RX + i))

    def p23_addr():
        t0, t1, t2 = 10, 11, 12
        a("v_lshrrev_b32 v%d, 2, v7" % t0)
        a("v_and_b32 v%d, 3, v7" % t1)
        a("v_lshl_add_u32 v%d, v6, 3, v%d" % (t2, t0))
        a("v_lshlrev_b32 v%d, 7, v%d" % (t2, t2))
        a("v_lshl_add_u32 v%d, v%d, 3, v%d" % (t2, t1, t2))
        a("v_lshrrev_b32 v%d, 1, v%d" % (t0, t0))
        a("v_and_b32 v%d, 1, v6" % t1)
        a("v_lshl_add_u32 v%d, v%d, 1, v%d" % (t0, t1, t0))
        a("v_xor_b32 v%d, s17, v%d" % (t0, t0))
        a("v_lshl_add_u32 v%d, v%d, 5, v%d" % (t2, t0, t2))
        a("s_lshl_b32 s20, s17, 11")
        for sl in range(NS):
            a("s_add_u32 s21, s20, %d" % (sl * SLOT))
            a("v_add_u32 v%d, s21, v8" % (ADR + 6 * sl))
            a("v_add_u32 v%d, s21, v9" % (ADR + 6 * sl + 1))
            a("v_add_u32 v%d, %d, v%d" % (ADR + 6 * sl + 2, sl * SLOT, t2))
            a("v_add_u32 v%d, %d, v8" % (ADR + 6 * sl + 4, sl * SLOT + 8192))
            a("v_add_u32 v%d, %d, v9" % (ADR + 6 * sl + 5, sl * SLOT + 8192))

    def rate(s):
        if s < 20:
            return RATE1
        if s < 32:
            return RATE2
        return RATE3

    def run(s0, s1):
        st()
        a("s_waitcnt lgkmcnt(0)")
        a("s_barrier")
        b.barrier_passed()
        st()
        for r in reads(s0, 0, 0):
            a(r)
        for s in range(s0, s1):
            n = nsub(s)
            for sub in range(n):
                cur = sub & 1
                pos = s
                a("s_waitcnt lgkmcnt(0)")
                if sub == n - 1:
                    a("s_barrier")
                    b.barrier_passed()
                    pos = s + 0.5
                    if s == 31:
                        assert b.q[0] == ("AT", 32.5), b.q[0]
                    if os.environ.get("BGDBG"):
                        print("after B_%d: queue len %d head %s" % (s, len(b.q), b.q[0] if b.q else None))
                    if STAMP and s % 2 == 1:
                        st()
                    rs = reads(s + 1, 0, 1 - cur) if s + 1 < s1 else []
                else:
                    rs = reads(s, sub + 1, 1 - cur)
                per, burst = rate(s)
                ms = mfmas(s, sub, cur)
                ri = 0
                step = max(1, -(-len(rs) // len(ms)))
                for m in ms:
                    a(m)
                    for r in rs[ri:ri + step]:
                        a(r)
                    ri += step
                    b.emit(per, pos)
                for r in rs[ri:]:
                    a(r)
                b.emit(burst, pos)
    run(0, 20)
    b.emit(10000, 19.9)
    assert isinstance(b.q[0], tuple) and b.q[0] == ("AT", 20), b.q[0]
    p23_addr()
    a("s_nop 4")
    b.emit(PRE20, 20)
    run(20, 42)
    b.emit(10000, 42)
    assert not b.q, b.q[0]
    st()
    a("s_nop 7")
    for i in range(10):
        r = ACC3 + 2 * i
        a("v_pk_fma_f32 v[%d:%d], v[%d:%d], 2.0, v[%d:%d]" % (r, r + 1, r, r + 1, ACC2 + 2 * i, ACC2 + 2 * i + 1))
    for i in range(10):
        r = ACC3 + 2 * i
        a("v_pk_mul_f32 v[%d:%d], v[%d:%d], v[%d:%d]" % (r, r + 1, r, r + 1, T0 + 2 * i, T0 + 2 * i + 1))
    for i in range(10):
        r = ACC3 + 2 * i
        a("v_pk_add_f32 v[%d:%d], v[%d:%d], v[%d:%d]" % (r, r + 1, r, r + 1, T1 + 2 * i, T1 + 2 * i + 1))
    for dt in range(5):
        a("buffer_store_dwordx4 v[%d:%d], v15, s[80:83], s27 offen offset:%d %s" % (ACC3 + 4 * dt, ACC3 + 4 * dt + 3, dt * 64, OUTFLAG))
    st.flush()
    a("s_endpgm")

    a.label(Lld)
    st.n = n0
    vm = VM(a)
    a("s_cmp_lg_u32 s17, 0")
    a("s_cbranch_scc1 U_lp0a")
    Lni = a.newlabel("U_noinit")
    a("s_cmp_lg_u32 s2, 0")
    a("s_cbranch_scc1 %s" % Lni)
    a("v_lshlrev_b32 v18, 8, v1")
    a("s_movk_i32 s24, 16384")
    a("buffer_store_dword v17, v18, s[76:79], 0 offen sc1")
    a("buffer_store_dword v17, v18, s[76:79], s24 offen sc1")
    a("s_waitcnt vmcnt(0)")
    a("v_mov_b32 v18, 1")
    a("buffer_store_dword v18, v17, s[92:95], 0 offen sc1")
    a.label(Lni)
    a("s_sleep 24")
    poll(a, 18, 17, 92, "0", chk_ge(1), "U_ini", 6)
    a("v_mov_b32 v18, 1")
    a("ds_write_b32 v15, v18 offset:16")
    a("s_branch U_lp0d")
    a.label("U_lp0a")
    if TLBPF:
        Lnt = a.newlabel("U_ntlb")
        a("s_cmp_lg_u32 s17, 1")
        a("s_cbranch_scc1 %s" % Lnt)
        srd(a, 64, 10, 11, 0x2600000)
        srd(a, 68, P_OUT, P_OUT + 1, 2048 * 2560)
        a("v_lshlrev_b32 v18, 20, v1")
        a("buffer_load_dword v19, v18, s[64:67], 0 offen")
        a("buffer_load_dword v20, v18, s[68:71], 0 offen")
        a.label(Lnt)
    a("s_cmp_lt_u32 s17, 2")
    a("s_cbranch_scc1 U_lp0d")
    a("s_cmp_eq_u32 s17, 3")
    a("s_cbranch_scc1 U_lp0c")
    a("s_cmp_ge_u32 s2, 240")
    a("s_cbranch_scc1 U_lp0d")
    a("s_mul_hi_u32 s28, s2, 0x%x" % ((1 << 32) // 24 + 1))
    a("s_mul_i32 s29, s28, 24")
    a("s_sub_u32 s29, s2, s29")
    a("s_mul_i32 s22, s29, %d" % (64 * 1280))
    a("s_lshl_b32 s23, s28, 7")
    a("s_add_u32 s22, s22, s23")
    a("v_lshrrev_b32 v18, 2, v3")
    a("v_and_b32 v19, 3, v3")
    a("v_lshlrev_b32 v18, 5, v18")
    a("v_lshl_add_u32 v18, v19, 2, v18")
    a("v_mul_u32_u24 v18, 1280, v18")
    a("v_lshl_add_u32 v18, v2, 4, v18")
    srd(a, 72, P_W2, P_W2 + 1, 1536 * 1280)
    for j in range(8):
        a("s_add_u32 s24, s22, %d" % ((j if j < 4 else 12 + j) * 1280))
        a("buffer_load_dwordx4 v[%d:%d], v18, s[72:75], s24 offen" % (180 + 4 * j, 183 + 4 * j))
    a("v_mul_u32_u24 v11, %d, v2" % (8 * 3072))
    a("v_lshl_add_u32 v11, v3, 4, v11")
    a("s_mul_i32 s23, s28, %d" % (64 * 3072))
    a("s_lshl_b32 s24, s29, 7")
    a("s_add_u32 s23, s23, s24")
    srd_off(a, 68, 10, 11, WS_W2T, 640 * 3072)
    a("s_mov_b32 s26, 0x05040100")
    a("s_mov_b32 s27, 0x07060302")
    a("s_waitcnt vmcnt(0)")
    for i in range(8):
        for m in range(4):
            a("v_perm_b32 v%d, v%d, v%d, s%d" % (212 + 4 * i + m, 180 + 4 * (2 * m + 1) + (i >> 1), 180 + 4 * (2 * m) + (i >> 1), 26 + (i & 1)))
    for i in range(8):
        a("s_add_u32 s24, s23, %d" % (i * 3072))
        a("buffer_store_dwordx4 v[%d:%d], v11, s[68:71], s24 offen sc1" % (212 + 4 * i, 215 + 4 * i))
    a("s_branch U_lp0d")
    a.label("U_lp0c")
    srd(a, 64, P_LRE, P_LRE + 1, 1280)
    srd(a, 68, P_LIM, P_LIM + 1, 1280)
    srd(a, 72, P_LDT, P_LDT + 1, 1280)
    a("s_mul_i32 s20, s14, 80")
    a("v_lshlrev_b32 v18, 1, v3")
    for c in range(5):
        a("buffer_load_ushort v%d, v18, s[64:67], s20 offen offset:%d" % (160 + 3 * c, c * 16))
        a("buffer_load_ushort v%d, v18, s[68:71], s20 offen offset:%d" % (160 + 3 * c + 1, c * 16))
        a("buffer_load_ushort v%d, v18, s[72:75], s20 offen offset:%d" % (160 + 3 * c + 2, c * 16))
    T = 160
    a("v_and_b32 v12, 8, v7")
    a("v_lshlrev_b32 v12, 28, v12")
    a("v_xor_b32 v12, 0x80000000, v12")
    a("v_lshlrev_b32 v13, 3, v6")
    a("v_cvt_f32_u32 v13, v13")
    a("v_mul_u32_u24 v10, 48, v7")
    a("v_add_u32 v10, %d, v10" % (MISC + 2048))
    a("v_lshlrev_b32 v11, 3, v1")
    a("v_add_u32 v11, %d, v11" % (MISC + 6144))
    a("s_waitcnt vmcnt(0)")
    ZR, ZI, W0 = 96, 101, 108
    CT = lambda c, k: 180 + 12 * c + k

    def cpow_all(n, dst):
        ns = n if isinstance(n, str) else fh(n)
        for c in range(5):
            t = W0 + 4 * c
            a("v_mul_f32 v%d, %s, v%d" % (t, ns, ZR + c))
            a("v_mul_f32 v%d, %s, v%d" % (t + 1, ns, ZI + c))
            a("v_exp_f32 v%d, v%d" % (t, t))
            a("v_fract_f32 v%d, v%d" % (t + 1, t + 1))
            a("v_cos_f32 v%d, v%d" % (t + 2, t + 1))
            a("v_sin_f32 v%d, v%d" % (t + 3, t + 1))
        a("s_nop 0")
        for c in range(5):
            t = W0 + 4 * c
            a("v_mul_f32 v%d, v%d, v%d" % (dst(c), t, t + 2))
            a("v_mul_f32 v%d, v%d, v%d" % (dst(c) + 1, t, t + 3))
    for c in range(5):
        lre, lim, ldt = T + 3 * c, T + 3 * c + 1, T + 3 * c + 2
        a("v_lshlrev_b32 v%d, 16, v%d" % (lre, lre))
        a("v_lshlrev_b32 v%d, 16, v%d" % (lim, lim))
        a("v_lshlrev_b32 v%d, 16, v%d" % (ldt, ldt))
        a("v_mul_f32 v%d, %s, v%d" % (ldt, fh(LOG2E), ldt))
        a("v_exp_f32 v%d, v%d" % (ldt, ldt))
        a("s_nop 0")
        a("v_cvt_pk_bf16_f32 v%d, v%d, v%d" % (ldt, ldt, ldt))
        a("v_and_b32 v%d, 0xffff0000, v%d" % (ldt, ldt))
        a("v_mul_f32 v%d, v%d, v%d" % (ZR + c, ldt, lre))
        a("v_mul_f32 v%d, v%d, v%d" % (ZI + c, ldt, lim))
        a("v_mul_f32 v%d, %s, v%d" % (ZR + c, fh(LOG2E), ZR + c))
        a("v_mul_f32 v%d, 0.15915494, v%d" % (ZI + c, ZI + c))
    cpow_all(1.0, lambda c: CT(c, 0))
    for c in range(5):
        lre, lim = T + 3 * c, T + 3 * c + 1
        t = W0 + 4 * c
        a("v_add_f32 v%d, -1.0, v%d" % (t, CT(c, 0)))
        a("v_mul_f32 v%d, v%d, v%d" % (t + 1, lre, lre))
        a("v_fmac_f32 v%d, v%d, v%d" % (t + 1, lim, lim))
        a("v_rcp_f32 v%d, v%d" % (t + 2, t + 1))
        a("s_nop 0")
        a("v_fma_f32 v%d, -v%d, v%d, 1.0" % (t + 3, t + 1, t + 2))
        a("v_fma_f32 v%d, v%d, v%d, v%d" % (t + 2, t + 3, t + 2, t + 2))
        a("v_mul_f32 v%d, v%d, v%d" % (CT(c, 2), t, lre))
        a("v_fmac_f32 v%d, v%d, v%d" % (CT(c, 2), CT(c, 1), lim))
        a("v_mul_f32 v%d, v%d, v%d" % (CT(c, 3), CT(c, 1), lre))
        a("v_fma_f32 v%d, -v%d, v%d, v%d" % (CT(c, 3), t, lim, CT(c, 3)))
        a("v_mul_f32 v%d, v%d, v%d" % (CT(c, 2), CT(c, 2), t + 2))
        a("v_mul_f32 v%d, v%d, v%d" % (CT(c, 3), CT(c, 3), t + 2))
    for n, k in ((8.0, 4), (32.0, 6), (128.0, 8), (512.0, 10)):
        cpow_all(n, lambda c: CT(c, k))
    for c in range(5):
        for k in (1, 3, 5, 7, 9, 11):
            a("v_xor_b32 v%d, v12, v%d" % (CT(c, k), CT(c, k)))
        for k in range(3):
            a("ds_write_b128 v10, v[%d:%d] offset:%d" % (CT(c, 4 * k), CT(c, 4 * k + 3), c * 768 + k * 16))
    for w in range(4):
        AT = lambda c: 130 + 10 * (w & 1) + 2 * c
        cpow_all("v13", AT)
        for c in range(5):
            a("v_xor_b32 v%d, v12, v%d" % (AT(c) + 1, AT(c) + 1))
            a("ds_write_b64 v11, v[%d:%d] offset:%d" % (AT(c), AT(c) + 1, w * 2560 + c * 512))
        if w < 3:
            a("v_add_f32 v13, 0x42000000, v13")
    a.label("U_lp0d")
    a("s_mul_i32 s24, s14, 192")
    srd_off(a, 68, P_W1, P_W1 + 1, "s24", 640 * 3072 - 15 * 192)
    a("v_lshrrev_b32 v10, 2, v1")
    a("v_and_b32 v11, 3, v10")
    a("v_lshrrev_b32 v12, 2, v10")
    a("v_and_b32 v12, 1, v12")
    a("v_lshrrev_b32 v13, 3, v10")
    a("v_lshl_add_u32 v11, v12, 3, v11")
    a("v_lshl_add_u32 v11, v13, 2, v11")
    a("v_mul_u32_u24 v22, 3072, v11")
    a("v_lshrrev_b32 v13, 1, v1")
    a("v_and_b32 v13, 1, v13")
    a("v_xor_b32 v13, v13, v12")
    a("v_lshl_add_u32 v22, v13, 5, v22")
    a("v_and_b32 v13, 1, v1")
    a("v_lshl_add_u32 v22, v13, 4, v22")
    a("s_mul_i32 s3, s17, %d" % (16 * 3072))
    a("s_lshl_b32 s4, s17, 10")

    def free_part(s):
        sl = s % NS
        if s < 10:
            for p in range(3):
                a("s_add_u32 m0, s4, %d" % (sl * SLOT + 16384 + p * 4096))
                a("s_add_u32 s6, s3, %d" % (s * 64 * 3072 + p * 64))
                a("buffer_load_dwordx4 v22, s[68:71], s6 offen lds")
            n = 3
        elif s < 20:
            for i in range(3):
                a("s_add_u32 m0, s4, %d" % (sl * SLOT + 16384 + i * 4096))
                a("s_add_u32 s6, s5, %d" % (i * 20480 + (s - 10) * 128))
                a("buffer_load_dwordx4 v5, s[72:75], s6 offen lds")
            n = 3
        else:
            for i in range(5):
                a("s_add_u32 m0, s46, %d" % (sl * SLOT + 8192 + i * 2048))
                if s < 32:
                    a("s_add_u32 s6, s7, %d" % (i * 16 * 3072 + (s - 20) * 256))
                    a("buffer_load_dwordx4 v16, s[84:87], s6 offen sc1 lds")
                else:
                    s3 = s - 32
                    sr = 92 if s3 < 5 else 96
                    a("s_add_u32 s6, s8, %d" % (i * 16 * 1280 + (s3 % 5) * 256))
                    a("buffer_load_dwordx4 v5, s[%d:%d], s6 offen lds" % (sr, sr + 3))
            n = 5
        vm.issue(("F", s), n)

    def dep_part(s):
        sl = s % NS
        for i in range(4):
            if s < 20:
                a("s_add_u32 m0, s4, %d" % (sl * SLOT + i * 4096))
                a("s_add_u32 s6, s47, %d" % (i * 40960 + (s % 10) * 128))
                a("buffer_load_dwordx4 v5, s[64:67], s6 offen sc1 lds")
            elif s < 32:
                a("s_add_u32 m0, s46, %d" % (sl * SLOT + i * 2048))
                a("s_add_u32 s6, s50, %d" % (i * 1024 + (s - 20) * 16384))
                a("buffer_load_dwordx4 v21, s[80:83], s6 offen sc1 lds")
            else:
                a("s_add_u32 m0, s46, %d" % (sl * SLOT + i * 2048))
                a("s_add_u32 s6, s9, %d" % (i * 1024 + (s - 32) * 8192))
                a("buffer_load_dwordx4 v10, s[88:91], s6 offen sc1 lds")
        vm.issue(("D", s), 4)
    a("s_mul_i32 s24, s13, %d" % (128 * 1280))
    a("s_add_u32 s24, s24, %d" % WS_XN)
    srd_off(a, 64, 10, 11, "s24", 128 * 1280)
    a("s_cmp_eq_u32 s18, 0")
    a("s_cselect_b32 s24, s%d, s%d" % (P_BRE, P_BIM))
    a("s_cselect_b32 s25, s%d, s%d" % (P_BRE + 1, P_BIM + 1))
    a("s_mul_i32 s26, s14, %d" % (40 * 1280))
    srd_off(a, 72, 24, 25, "s26", 40 * 1280)
    a("s_mul_i32 s24, s15, 196608")
    a("s_add_u32 s24, s24, %d" % WS_H1)
    srd_off(a, 80, 10, 11, "s24", 196608)
    a("s_mul_i32 s24, s16, %d" % (80 * 3072))
    a("s_add_u32 s24, s24, %d" % WS_W2T)
    srd_off(a, 84, 10, 11, "s24", 80 * 3072)
    a("s_mul_i32 s24, s15, 163840")
    a("s_add_u32 s24, s24, %d" % WS_HT)
    srd_off(a, 88, 10, 11, "s24", 163840)
    a("s_lshr_b32 s24, s2, 3")
    a("s_and_b32 s25, s2, 7")
    a("v_lshlrev_b32 v18, 7, v1")
    Lpf1 = a.newlabel("U_pf1")
    Lpf3 = a.newlabel("U_pf3")
    Lpfd = a.newlabel("U_pfd")
    a("s_cmp_eq_u32 s17, 3")
    a("s_cbranch_scc1 %s" % Lpf3)
    a("s_cmp_lg_u32 s17, 0")
    a("s_cbranch_scc1 %s" % Lpf1)
    a("s_lshr_b32 s25, s25, 1")
    a("s_mul_i32 s25, s25, 204800")
    a("s_mul_i32 s26, s24, 6400")
    a("s_add_u32 s25, s25, s26")
    srd_off(a, 92, P_BRE, P_BRE + 1, "s25", 6400)
    srd_off(a, 96, P_BIM, P_BIM + 1, "s25", 6400)
    a("buffer_load_dword v19, v18, s[92:95], 0 offen")
    a("buffer_load_dword v20, v18, s[96:99], 0 offen")
    a("s_branch %s" % Lpfd)
    a.label(Lpf1)
    a("s_lshr_b32 s25, s25, 2")
    a("s_mul_i32 s25, s25, 409600")
    a("s_mul_i32 s26, s24, 12800")
    a("s_add_u32 s25, s25, s26")
    a("s_cmp_eq_u32 s17, 1")
    a("s_cselect_b32 s26, s%d, s%d" % (P_CRE, P_CIM))
    a("s_cselect_b32 s27, s%d, s%d" % (P_CRE + 1, P_CIM + 1))
    srd_off(a, 92, 26, 27, "s25", 12800)
    a("s_movk_i32 s26, 8192")
    a("buffer_load_dword v19, v18, s[92:95], 0 offen")
    a("buffer_load_dword v20, v18, s[92:95], s26 offen")
    a("s_branch %s" % Lpfd)
    a.label(Lpf3)
    a("s_lshr_b32 s25, s25, 1")
    a("s_mul_i32 s25, s25, 768")
    a("s_mul_i32 s26, s24, %d" % (20 * 3072))
    a("s_add_u32 s25, s25, s26")
    srd_off(a, 92, P_W1, P_W1 + 1, "s25", 20 * 3072 - 2304)
    a("v_mul_u32_u24 v19, 43, v1")
    a("v_lshrrev_b32 v19, 8, v19")
    a("v_mul_u32_u24 v20, 6, v19")
    a("v_sub_u32 v20, v1, v20")
    a("v_mul_u32_u24 v19, 3072, v19")
    a("v_lshl_add_u32 v18, v20, 7, v19")
    a("s_movk_i32 s26, %d" % (10 * 3072))
    a("buffer_load_dword v19, v18, s[92:95], 0 offen")
    a("buffer_load_dword v20, v18, s[92:95], s26 offen")
    a.label(Lpfd)
    vm.issue("pf", 2)
    a("s_cmp_eq_u32 s18, 0")
    a("s_cselect_b32 s24, s%d, s%d" % (P_B2, P_DSK))
    a("s_cselect_b32 s25, s%d, s%d" % (P_B2 + 1, P_DSK + 1))
    a("s_mul_i32 s26, s16, 160")
    srd_off(a, 92, 24, 25, "s26", 160)
    a("v_lshlrev_b32 v18, 4, v1")
    a("v_cmp_gt_u32 vcc, 16, v1")
    a("s_and_saveexec_b64 s[26:27], vcc")
    a("s_lshl_b32 s24, s18, 8")
    a("s_add_u32 m0, s24, %d" % (MISC + 1536))
    a("s_nop 0")
    a("buffer_load_dwordx4 v18, s[92:95], 0 offen lds")
    a("s_mov_b64 exec, -1")
    vm.issue("bd", 1)
    a("s_mul_i32 s24, s16, %d" % (80 * 1280))
    srd_off(a, 92, P_CRE, P_CRE + 1, "s24", 80 * 1280)
    srd_off(a, 96, P_CIM, P_CIM + 1, "s24", 80 * 1280)
    a("v_mul_u32_u24 v5, 1280, v2")
    a("v_lshl_add_u32 v5, v4, 4, v5")
    a("v_mul_u32_u24 v16, 3072, v2")
    a("v_lshl_add_u32 v16, v4, 4, v16")
    a("v_and_b32 v10, 1, v6")
    a("s_lshl_b32 s24, s18, 1")
    a("v_or_b32 v10, s24, v10")
    a("v_lshrrev_b32 v11, 1, v3")
    a("v_xor_b32 v11, v10, v11")
    a("v_lshrrev_b32 v10, 1, v11")
    a("v_mul_u32_u24 v10, 81920, v10")
    a("v_lshl_add_u32 v10, v2, 6, v10")
    a("v_and_b32 v11, 1, v11")
    a("v_lshl_add_u32 v10, v11, 5, v10")
    a("v_and_b32 v11, 1, v1")
    a("v_lshl_add_u32 v10, v11, 4, v10")
    a("v_lshrrev_b32 v21, 2, v4")
    a("v_lshlrev_b32 v21, 12, v21")
    a("v_lshl_add_u32 v21, v2, 6, v21")
    a("v_and_b32 v11, 3, v4")
    a("v_lshl_add_u32 v21, v11, 4, v21")
    a("s_mul_i32 s47, s17, 10240")
    a("s_mul_i32 s5, s19, 10240")
    a("s_lshl_b32 s50, s19, 13")
    a("s_lshl_b32 s24, s18, 9")
    a("s_add_u32 s50, s50, s24")
    a("s_lshl_b32 s9, s19, 12")
    a("s_add_u32 s9, s9, s24")
    a("s_mul_i32 s7, s18, %d" % (8 * 3072))
    a("s_lshl_b32 s24, s19, 7")
    a("s_add_u32 s7, s7, s24")
    a("s_mul_i32 s8, s18, %d" % (8 * 1280))
    a("s_add_u32 s8, s8, s24")
    a("s_mul_i32 s46, s19, %d" % SUB)
    a("s_lshl_b32 s24, s18, 10")
    a("s_add_u32 s46, s46, s24")

    def gate(soff_code, target, word, first=False):
        Lnp = a.newlabel("U_gnp")
        Lgo = a.newlabel("U_ggo")
        a("s_cmp_lg_u32 s17, 0")
        a("s_cbranch_scc1 %s" % Lnp)
        a("v_mov_b32 v23, 1")
        soff_code()
        poll(a, 18, 17, 76, "s24", chk_ge(target), "U_g", 3)
        a("ds_write_b32 v15, v23 offset:%d" % word)
        a("s_branch %s" % Lgo)
        a.label(Lnp)
        lds_wait(a, 18, 15, word, 1, "U_gw", 1)
        a.label(Lgo)

    st()
    lds_wait(a, 18, 15, 4, 1, "U_gx", 1)
    st()

    def phase(s0, s1, nxt_free_to):
        for k in range(2):
            if s0 == 0:
                free_part(s0 + k)
            dep_part(s0 + k)
        vm.wait(("D", s0))
        st()
        a("s_barrier")
        for k in range(2, 4):
            if s0 == 0:
                free_part(s0 + k)
            dep_part(s0 + k)
        for s in range(s0, s1):
            if s + 1 < s1:
                vm.wait(("D", s + 1))
            if s == ESTAGE:
                vm.wait("Emark")
            if s == 41:
                vm.drain()
            a("s_barrier")
            if STAMP and s % 2 == 1:
                st()
            n = s + NS
            if s == 1:
                Lsk = a.newlabel("U_w2s")
                a("s_cmp_lg_u32 s17, 2")
                a("s_cbranch_scc1 %s" % Lsk)
                a("s_cmp_ge_u32 s2, 240")
                a("s_cbranch_scc1 %s" % Lsk)
                a("s_lshl_b32 s24, s28, 8")
                a("s_add_u32 s24, s24, %d" % F_W2)
                signal(18, 19, "s24")
                a.label(Lsk)
            if s == ESTAGE - 3:
                a("s_lshl_b32 s26, 1, s13")
                a("s_sub_u32 s26, s26, 1")
                a("s_lshl_b32 s27, s14, 8")
                a("s_add_u32 s27, s27, %d" % F_E)
                a("buffer_load_dword v20, v17, s[76:79], s27 offen sc1")
                vm.issue("pollE", 1)
            if s == ESTAGE - 2:
                def chkE(sr):
                    a("s_and_b32 s%d, s%d, s26" % (sr, sr))
                    a("s_cmp_eq_u32 s%d, s26" % sr)
                vm.wait("pollE")
                Lok = a.newlabel("U_eok")
                a("v_readfirstlane_b32 s30, v20")
                a("s_nop 3")
                chkE(30)
                a("s_cbranch_scc1 %s" % Lok)
                poll(a, 20, 17, 76, "s27", chkE, "U_e", 2)
                a.label(Lok)
                a("s_mul_i32 s24, s14, 5120")
                a("s_add_u32 s24, s24, %d" % WS_ET)
                srd_off(a, 64, 10, 11, "s24", 5120)
                a("v_lshlrev_b32 v18, 4, v1")
                a("s_add_u32 m0, s4, %d" % (MISC + 6144 + 5120))
                a("s_nop 0")
                a("buffer_load_dwordx4 v18, s[64:67], s4 offen sc1 lds")
                Lsk = a.newlabel("U_e5")
                a("s_cmp_lg_u32 s17, 0")
                a("s_cbranch_scc1 %s" % Lsk)
                a("s_mov_b32 m0, %d" % (MISC + 6144 + 5120 + 4096))
                a("s_movk_i32 s24, 4096")
                a("buffer_load_dwordx4 v18, s[64:67], s24 offen sc1 lds")
                a.label(Lsk)
                vm.issue("E", 1)
                vm.issue("Emark", 0)
            if s == 38:
                a("s_lshl_b32 s24, s15, 6")
                a("s_mul_i32 s24, s24, 1280")
                a("s_mul_i32 s25, s16, 160")
                a("s_add_u32 s24, s24, s25")
                srd_off(a, 64, P_X, P_X + 1, "s24", 64 * 1280 - 1120)
                a("s_add_u32 s24, s24, %d" % WS_XN)
                srd_off(a, 68, 10, 11, "s24", 64 * 1280 - 1120)
                a("s_lshl_b32 s24, s17, 6")
                for i in range(3):
                    a("v_add_u32 v18, s24, v1")
                    if i:
                        a("v_add_u32 v18, %d, v18" % (256 * i))
                    a("v_mul_u32_u24 v19, 6554, v18")
                    a("v_lshrrev_b32 v19, 16, v19")
                    a("v_mul_u32_u24 v20, 10, v19")
                    a("v_sub_u32 v20, v18, v20")
                    a("v_mul_u32_u24 v23, 1280, v19")
                    a("v_lshl_add_u32 v23, v20, 4, v23")
                    a("v_and_b32 v24, 0xffe3, v19")
                    a("v_lshrrev_b32 v25, 2, v19")
                    a("v_and_b32 v25, 1, v25")
                    a("v_lshl_add_u32 v24, v25, 4, v24")
                    a("v_lshrrev_b32 v25, 3, v19")
                    a("v_and_b32 v25, 3, v25")
                    a("v_lshl_add_u32 v24, v25, 2, v24")
                    a("v_mul_u32_u24 v24, 1280, v24")
                    a("v_lshl_add_u32 v24, v20, 4, v24")
                    if i < 2:
                        a("s_add_u32 m0, s4, %d" % (2 * SLOT + i * 4096))
                        a("s_nop 0")
                        a("buffer_load_dwordx4 v23, s[64:67], 0 offen lds")
                        a("s_add_u32 m0, s4, %d" % (2 * SLOT + 10240 + i * 4096))
                        a("s_nop 0")
                        a("buffer_load_dwordx4 v24, s[68:71], 0 offen sc1 lds")
                    else:
                        Lsk = a.newlabel("U_x3")
                        a("s_cmp_ge_u32 s17, 2")
                        a("s_cbranch_scc1 %s" % Lsk)
                        a("s_add_u32 m0, s4, %d" % (2 * SLOT + i * 4096))
                        a("s_nop 0")
                        a("buffer_load_dwordx4 v23, s[64:67], 0 offen lds")
                        a("s_add_u32 m0, s4, %d" % (2 * SLOT + 10240 + i * 4096))
                        a("s_nop 0")
                        a("buffer_load_dwordx4 v24, s[68:71], 0 offen sc1 lds")
                        a.label(Lsk)
                vm.issue("X", 4)
            if n < s1:
                if n == 31:
                    a("s_lshl_b32 s25, s15, 8")
                    a("s_add_u32 s25, s25, %d" % F_HT)
                    a("buffer_load_dword v19, v17, s[76:79], s25 offen sc1")
                    vm.issue("pollHT", 1)
                if n == 19:
                    a("s_mul_i32 s25, s16, 80")
                    a("s_add_u32 s26, s25, 79")
                    a("s_lshr_b32 s25, s25, 6")
                    a("s_lshr_b32 s26, s26, 6")
                    a("s_lshl_b32 s25, s25, 8")
                    a("s_lshl_b32 s26, s26, 8")
                    a("s_add_u32 s25, s25, %d" % F_W2)
                    a("s_add_u32 s26, s26, %d" % F_W2)
                    a("buffer_load_dword v19, v17, s[76:79], s25 offen sc1")
                    a("buffer_load_dword v20, v17, s[76:79], s26 offen sc1")
                    vm.issue("pollW2", 2)
                free_part(n)
                if n == 32:
                    vm.wait("pollHT")
                    Lok = a.newlabel("U_htok")
                    a("v_readfirstlane_b32 s30, v19")
                    a("s_nop 3")
                    a("s_cmp_ge_u32 s30, 32")
                    a("s_cbranch_scc1 %s" % Lok)
                    poll(a, 19, 17, 76, "s25", chk_ge(32), "U_ht")
                    a.label(Lok)
                dep_part(n)
            elif n < nxt_free_to:
                if n == 20:
                    vm.wait("pollW2")
                    Lok = a.newlabel("U_w2ok")
                    a("v_min_u32 v19, v19, v20")
                    a("s_nop 0")
                    a("v_readfirstlane_b32 s30, v19")
                    a("s_nop 3")
                    a("s_cmp_ge_u32 s30, 24")
                    a("s_cbranch_scc1 %s" % Lok)
                    poll(a, 19, 17, 76, "s25", chk_ge(24), "U_w2")
                    poll(a, 19, 17, 76, "s26", chk_ge(24), "U_w2")
                    a.label(Lok)
                free_part(n)
    phase(0, 20, 24)
    st()

    def h1off():
        a("s_lshl_b32 s24, s15, 8")
        a("s_add_u32 s24, s24, %d" % F_H1)
    gate(h1off, 32, 12)
    st()
    phase(20, 42, 42)
    st.flush()
    a.label(Lend)
    a("s_endpgm")
    a.label("U_code_end")
    return name, 256


if __name__ == "__main__":
    a = Asm()
    nm, vg = gen_uni(a)
    hdr = open("cdna_kernels/%s.s.ref" % NAME).read().split("\n")
    hdr = [l for l in hdr if l.startswith(";") and "@launch" not in l]
    out = "\n".join(hdr) + "\n; @launch grid=(256,1,1) block=(512,1,1) lds=163840\n"
    out += '.amdgcn_target "amdgcn-amd-amdhsa--gfx950"\n.text\n' + a.text()
    out += '.section .rodata,"a"\n.p2align 6\n' + kernel_desc(nm, vg)
    open(sys.argv[1] if len(sys.argv) > 1 else "cdna_kernels/%s.s" % NAME, "w").write(out)
```

```python
import sys, os, math
from gen import Asm, srd, srd_off, kernel_header, kernel_desc, fh, KA, LOG2E, DPP8, NAME
import gen

WS_XN = 0x0000000
WS_W2T = 0x0500000
WS_FLG = 0x0780000
WS_H1 = 0x0800000
WS_ET = 0x0F00000
WS_HT = 0x2000000
WS_DBG = 0x3000000
F_XN, F_H1, F_E, F_HT, F_W2, F_SIZE = 0, 4096, 12288, 16384, 24576, 27136

STAMP = int(os.environ.get("STAMP", "0"))
NS = 4
ALLLATE = int(os.environ.get("ALLLATE", "1"))
TRLATE = int(os.environ.get("TRLATE", "0"))
CLATE = int(os.environ.get("CLATE", "1"))
TLBPF = int(os.environ.get("TLBPF", "0"))
OUTFLAG = os.environ.get("OUTFLAG", "nt")
ESTAGE = int(os.environ.get("ESTAGE", "24"))
RATE1 = eval(os.environ.get("RATE1", "(3, 80)"))
RATE2 = eval(os.environ.get("RATE2", "(4, 100)"))
RATE3 = eval(os.environ.get("RATE3", "(2, 10)"))
PRE20 = int(os.environ.get("PRE20", "260"))
CODE_SIZE = 42000
CODEPF = int(os.environ.get("CODEPF", "1"))
SLOT = 36864
SUB = 18432
MISC = 147456

P_X, P_LRE, P_LIM, P_BRE, P_BIM, P_CRE, P_CIM, P_LDT, P_DSK, P_W1, P_B1, P_W2, P_B2, P_OUT, P_DBG = \
    32, 34, 36, 38, 40, 42, 44, 46, 48, 52, 54, 56, 58, 60, 62


class Stamper:
    def __init__(self, a):
        self.a = a
        self.n = 0

    def __call__(self, real=False):
        if not STAMP:
            return
        a = self.a
        assert self.n < 64
        if self.n == 0 and not real:
            a("v_mov_b32 v255, 0")
            self(True)
        a("s_memrealtime s[100:101]" if real else "s_memtime s[100:101]")
        a("s_waitcnt lgkmcnt(0)")
        a("v_writelane_b32 v255, s100, %d" % self.n)
        self.n += 1

    def flush(self):
        if not STAMP:
            return
        a = self.a
        self()
        self(True)
        a("s_mov_b64 exec, -1")
        a("s_lshl_b32 s100, s2, 3")
        a("s_add_u32 s100, s100, s12")
        a("s_lshl_b32 s100, s100, 8")
        a("s_add_u32 s100, s100, 0x%x" % (WS_DBG + 0x100000))
        srd_off(a, 96, 10, 11, "s100", 256)
        a("v_and_b32 v254, 63, v0")
        a("v_lshlrev_b32 v254, 2, v254")
        a("buffer_store_dword v255, v254, s[96:99], 0 offen")


class VM:
    def __init__(self, a):
        self.a = a
        self.q = []

    def issue(self, tag, n):
        self.q.append((tag, n))

    def wait(self, tag):
        idxs = [i for i, (t, n) in enumerate(self.q) if t == tag]
        if not idxs:
            return
        idx = max(idxs)
        rest = sum(n for t, n in self.q[idx + 1:])
        assert rest <= 63, rest
        self.a("s_waitcnt vmcnt(%d)" % rest)
        self.q = self.q[idx + 1:]

    def drain(self):
        self.a("s_waitcnt vmcnt(0)")
        self.q = []


def interleave(ms, rs):
    out = []
    ri = 0
    for m in ms:
        out.append(m)
        if ri < len(rs):
            out.append(rs[ri])
            ri += 1
    return out + rs[ri:]


def poll(a, vreg, vzero, sflg, soff, check, lbl, slp=4):
    Lp = a.newlabel(lbl + "_poll")
    Ld = a.newlabel(lbl + "_done")
    a("s_mov_b32 s31, 0x100000")
    a.label(Lp)
    a("buffer_load_dword v%d, v%d, s[%d:%d], %s offen sc1" % (vreg, vzero, sflg, sflg + 3, soff))
    a("s_waitcnt vmcnt(0)")
    a("v_readfirstlane_b32 s30, v%d" % vreg)
    a("s_nop 3")
    check(30)
    a("s_cbranch_scc1 %s" % Ld)
    a("s_sleep %d" % slp)
    a("s_sub_u32 s31, s31, 1")
    a("s_cmp_lg_u32 s31, 0")
    a("s_cbranch_scc1 %s" % Lp)
    a.label(Ld)


def lds_wait(a, vtmp, vaddr, off, val, lbl, slp=1):
    Lw = a.newlabel(lbl)
    Ld = a.newlabel(lbl + "d")
    a.label(Lw)
    a("ds_read_b32 v%d, v%d offset:%d" % (vtmp, vaddr, off))
    a("s_waitcnt lgkmcnt(0)")
    a("v_readfirstlane_b32 s30, v%d" % vtmp)
    a("s_nop 3")
    a("s_cmp_ge_u32 s30, %d" % val)
    a("s_cbranch_scc1 %s" % Ld)
    if slp:
        a("s_sleep %d" % slp)
    a("s_branch %s" % Lw)
    a.label(Ld)


def cmul_add(a, items):
    for (d, lr, li, s, ad) in items:
        if ad is None:
            a("v_mul_f32 v%d, v%d, v%d" % (d, lr, s))
        else:
            a("v_fma_f32 v%d, v%d, v%d, v%d" % (d, lr, s, ad))
    if len(items) < 2:
        a("s_nop 1")
    for (d, lr, li, s, ad) in items:
        a("v_fmac_f32_dpp v%d, v%d, v%d %s" % (d, s, li, DPP8))


def gelu_units(a, units, tmp, vK1, sK2, sLO, sHI, sMask):
    P = []
    for ui, (rA, rB, b, d) in enumerate(units):
        for h, r in enumerate((rA, rA + 2, rB, rB + 2)):
            P.append((r, b + 2 * h, d + h, tmp + 8 * ui + 2 * h))
    for (r, b, d, t) in P:
        a("v_cvt_pk_bf16_f32 v%d, v%d, v%d" % (d, r, r + 1))
    for (r, b, d, t) in P:
        a("v_dot2_f32_bf16 v%d, v%d, s%d, v%d" % (r, d, sLO, b))
        a("v_dot2_f32_bf16 v%d, v%d, s%d, v%d" % (r + 1, d, sHI, b + 1))
    a("s_nop 1")
    for (r, b, d, t) in P:
        a("v_cvt_pk_bf16_f32 v%d, v%d, v%d" % (d, r, r + 1))
    for (r, b, d, t) in P:
        a("v_lshlrev_b32 v%d, 16, v%d" % (r, d))
        a("v_and_b32 v%d, s%d, v%d" % (r + 1, sMask, d))
    for (r, b, d, t) in P:
        a("v_pk_mul_f32 v[%d:%d], v[%d:%d], v[%d:%d]" % (t, t + 1, r, r + 1, r, r + 1))
    for (r, b, d, t) in P:
        a("v_pk_fma_f32 v[%d:%d], v[%d:%d], s[%d:%d], v[%d:%d]" % (t, t + 1, t, t + 1, sK2, sK2 + 1, vK1, vK1 + 1))
    for (r, b, d, t) in P:
        a("v_pk_mul_f32 v[%d:%d], v[%d:%d], v[%d:%d]" % (t, t + 1, t, t + 1, r, r + 1))
    for (r, b, d, t) in P:
        a("v_exp_f32 v%d, v%d" % (t, t))
        a("v_exp_f32 v%d, v%d" % (t + 1, t + 1))
    a("s_nop 0")
    for (r, b, d, t) in P:
        a("v_pk_add_f32 v[%d:%d], v[%d:%d], 1.0" % (t, t + 1, t, t + 1))
    for (r, b, d, t) in P:
        a("v_rcp_f32 v%d, v%d" % (t, t))
        a("v_rcp_f32 v%d, v%d" % (t + 1, t + 1))
    a("s_nop 0")
    for (r, b, d, t) in P:
        a("v_pk_mul_f32 v[%d:%d], v[%d:%d], v[%d:%d]" % (r, r + 1, r, r + 1, t, t + 1))
    for (r, b, d, t) in P:
        a("v_cvt_pk_bf16_f32 v%d, v%d, v%d" % (d, r, r + 1))


def gen_uni(a):
    name = NAME + "_kernel"
    kernel_header(a, name)
    st = Stamper(a)
    Lend = a.newlabel("U_end")
    Lld = a.newlabel("U_ld")
    a("s_cmp_ge_u32 s2, 256")
    a("s_cbranch_scc1 %s" % Lend)
    if CODEPF:
        a("s_getpc_b64 s[4:5]")
        a.label("U_code_start")
        a("s_lshr_b32 s6, s2, 3")
        a("s_lshl_b32 s6, s6, 11")
        a("v_and_b32 v1, 15, v0")
        a("v_lshlrev_b32 v1, 7, v1")
        a("v_add_u32 v1, s6, v1")
        a("v_min_u32 v1, 0x%x, v1" % CODE_SIZE)
        a("v_cmp_gt_u32 vcc, 16, v0")
        a("s_and_saveexec_b64 s[6:7], vcc")
        a("s_cbranch_execz U_cpf")
        a("global_load_dword v30, v1, s[4:5]")
        a.label("U_cpf")
        a("s_mov_b64 exec, -1")
    a("s_load_dwordx16 s[32:47], s[0:1], 0")
    a("s_load_dwordx16 s[48:63], s[0:1], 64")
    a("s_load_dwordx2 s[10:11], s[0:1], 128")
    a("v_lshrrev_b32 v2, 6, v0")
    a("v_and_b32 v1, 63, v0")
    a("s_nop 0")
    a("v_readfirstlane_b32 s12, v2")
    a("s_lshr_b32 s20, s2, 3")
    a("s_and_b32 s21, s20, 7")
    a("s_lshr_b32 s20, s20, 3")
    a("s_and_b32 s13, s2, 1")
    a("s_lshl_b32 s13, s13, 3")
    a("s_add_u32 s13, s13, s21")
    a("s_lshr_b32 s14, s2, 1")
    a("s_and_b32 s14, s14, 3")
    a("s_lshl_b32 s14, s14, 2")
    a("s_add_u32 s14, s14, s20")
    a("s_and_b32 s15, s2, 3")
    a("s_lshl_b32 s15, s15, 3")
    a("s_add_u32 s15, s15, s21")
    a("s_lshr_b32 s16, s2, 2")
    a("s_and_b32 s16, s16, 1")
    a("s_lshl_b32 s16, s16, 2")
    a("s_add_u32 s16, s16, s20")
    a("s_and_b32 s17, s12, 3")
    a("s_and_b32 s18, s17, 1")
    a("s_lshr_b32 s19, s17, 1")
    a("v_lshrrev_b32 v2, 3, v1")
    a("v_and_b32 v3, 7, v1")
    a("v_lshrrev_b32 v6, 4, v1")
    a("v_and_b32 v7, 15, v1")
    a("v_xor_b32 v4, v6, v3")
    a("v_lshlrev_b32 v8, 7, v7")
    a("v_lshl_add_u32 v8, v4, 4, v8")
    a("v_xor_b32 v9, 64, v8")
    a("v_xor_b32 v4, v2, v3")
    a("s_waitcnt lgkmcnt(0)")
    srd_off(a, 76, 10, 11, WS_FLG, F_SIZE)
    a("v_mov_b32 v15, %d" % MISC)
    for i in range(4):
        a("v_mov_b32 v%d, 0" % (10 + i))
    a("ds_write_b128 v15, v[10:13]")
    a("ds_write_b128 v15, v[10:13] offset:16")
    a("s_waitcnt lgkmcnt(0)")
    a("s_barrier")
    st()
    srd(a, 92, P_DBG, P_DBG + 1, 256)
    a("v_mov_b32 v17, 0")
    n0 = st.n
    a("s_cmp_ge_u32 s12, 4")
    a("s_cbranch_scc1 %s" % Lld)
    X0, XF, S0 = 76, 88, 112
    a("s_lshl_b32 s20, s13, 7")
    a("s_lshl_b32 s21, s14, 3")
    a("s_add_u32 s20, s20, s21")
    a("s_lshl_b32 s21, s17, 1")
    a("s_add_u32 s20, s20, s21")
    a("s_mul_i32 s20, s20, 1280")
    a("s_lshl_b32 s21, s13, 7")
    a("s_lshr_b32 s22, s14, 2")
    a("s_lshl_b32 s22, s22, 5")
    a("s_add_u32 s21, s21, s22")
    a("s_lshl_b32 s22, s19, 4")
    a("s_add_u32 s21, s21, s22")
    a("s_and_b32 s22, s14, 3")
    a("s_lshl_b32 s22, s22, 2")
    a("s_add_u32 s21, s21, s22")
    a("s_lshl_b32 s22, s18, 1")
    a("s_add_u32 s21, s21, s22")
    a("s_mul_i32 s21, s21, 1280")
    a("s_add_u32 s21, s21, %d" % WS_XN)
    srd_off(a, 64, P_X, P_X + 1, "s20", 2560)
    srd_off(a, 68, 10, 11, "s21", 2560)
    a("v_lshrrev_b32 v11, 5, v1")
    a("v_and_b32 v12, 31, v1")
    a("v_mul_u32_u24 v10, 1280, v11")
    a("v_lshl_add_u32 v10, v12, 4, v10")
    a("v_cmp_gt_u32 s[26:27], 16, v12")
    a("v_mov_b32 v13, 0x10000")
    a("s_nop 0")
    a("v_cndmask_b32 v13, v13, v10, s[26:27]")
    a("buffer_load_dwordx4 v[%d:%d], v10, s[64:67], 0 offen" % (X0, X0 + 3))
    a("buffer_load_dwordx4 v[%d:%d], v10, s[64:67], 0 offen offset:512" % (X0 + 4, X0 + 7))
    a("buffer_load_dwordx4 v[%d:%d], v13, s[64:67], 0 offen offset:1024" % (X0 + 8, X0 + 11))
    a("s_mov_b32 s24, 0xffff0000")
    for i in range(12):
        if i == 0:
            a("s_waitcnt vmcnt(0)")
        a("v_lshlrev_b32 v%d, 16, v%d" % (XF + 2 * i, X0 + i))
        a("v_and_b32 v%d, s24, v%d" % (XF + 2 * i + 1, X0 + i))

    def pk(op, d, x, y, z=None):
        if z is None:
            a("v_pk_%s_f32 v[%d:%d], v[%d:%d], v[%d:%d]" % (op, d, d + 1, x, x + 1, y, y + 1))
        else:
            a("v_pk_%s_f32 v[%d:%d], v[%d:%d], v[%d:%d], v[%d:%d]" % (op, d, d + 1, x, x + 1, y, y + 1, z, z + 1))

    def allreduce32(r):
        for sh in (8, 4, 2, 1):
            a("s_nop 1")
            a("v_add_f32_dpp v%d, v%d, v%d row_ror:%d row_mask:0xf bank_mask:0xf" % (r, r, r, sh))
        a("ds_swizzle_b32 v%d, v%d offset:0x401F" % (r + 1, r))
        a("s_waitcnt lgkmcnt(0)")
        a("v_add_f32 v%d, v%d, v%d" % (r, r, r + 1))
    pk("add", S0, XF, XF + 2)
    pk("add", S0 + 2, XF + 4, XF + 6)
    for i in range(4, 12):
        pk("add", S0 + 2 * (i & 1), S0 + 2 * (i & 1), XF + 2 * i)
    pk("add", S0, S0, S0 + 2)
    a("v_add_f32 v%d, v%d, v%d" % (S0, S0, S0 + 1))
    allreduce32(S0)
    a("v_mul_f32 v%d, %s, v%d" % (S0, fh(-1.0 / 640), S0))
    a("v_mov_b32 v%d, v%d" % (S0 + 1, S0))
    for i in range(12):
        t = S0 + 4 + 2 * (i & 1)
        q = S0 + 8 + 2 * (i >> 3)
        pk("add", t, XF + 2 * i, S0)
        if i % 8 == 0:
            pk("mul", q, t, t)
        else:
            pk("fma", q, t, t, q)
    a("v_add_f32 v%d, v%d, v%d" % (S0 + 8, S0 + 8, S0 + 9))
    a("v_add_f32 v%d, v%d, v%d" % (S0 + 10, S0 + 10, S0 + 11))
    a("v_cndmask_b32 v%d, 0, v%d, s[26:27]" % (S0 + 10, S0 + 10))
    a("v_add_f32 v%d, v%d, v%d" % (S0 + 8, S0 + 8, S0 + 10))
    allreduce32(S0 + 8)
    V = S0 + 8
    a("v_mul_f32 v%d, %s, v%d" % (V, fh(1.0 / 640), V))
    a("v_cvt_pk_bf16_f32 v%d, v%d, v%d" % (S0 + 2, S0, V))
    a("v_lshlrev_b32 v%d, 16, v%d" % (S0, S0 + 2))
    a("v_mov_b32 v%d, v%d" % (S0 + 1, S0))
    a("v_and_b32 v%d, s24, v%d" % (V, S0 + 2))
    a("v_add_f32 v%d, %s, v%d" % (V, fh(1e-5), V))
    a("v_cvt_pk_bf16_f32 v%d, v%d, v%d" % (V, V, V))
    a("v_and_b32 v%d, s24, v%d" % (V, V))
    a("v_sqrt_f32 v%d, v%d" % (V, V))
    a("s_nop 0")
    a("v_cvt_pk_bf16_f32 v%d, v%d, v%d" % (V, V, V))
    a("v_and_b32 v%d, s24, v%d" % (V, V))
    RS = S0 + 4
    a("v_rcp_f32 v%d, v%d" % (RS, V))
    a("s_nop 0")
    a("v_fma_f32 v%d, -v%d, v%d, 1.0" % (RS + 2, V, RS))
    a("v_fma_f32 v%d, v%d, v%d, v%d" % (RS, RS + 2, RS, RS))
    a("v_mov_b32 v%d, v%d" % (RS + 1, RS))
    a("v_sub_f32 v%d, 0, v%d" % (V, V))
    a("v_mov_b32 v%d, v%d" % (V + 1, V))
    for i in range(12):
        pk("add", XF + 2 * i, XF + 2 * i, S0)
    for i in range(12):
        a("v_cvt_pk_bf16_f32 v%d, v%d, v%d" % (X0 + i, XF + 2 * i, XF + 2 * i + 1))
    Q = 124
    for i in range(12):
        x = XF + 2 * i
        q = Q + 4 * (i & 3)
        a("v_lshlrev_b32 v%d, 16, v%d" % (x, X0 + i))
        a("v_and_b32 v%d, s24, v%d" % (x + 1, X0 + i))
        pk("mul", q, x, RS)
        pk("fma", q + 2, q, V, x)
        pk("fma", q, q + 2, RS, q)
        a("v_cvt_pk_bf16_f32 v%d, v%d, v%d" % (X0 + i, q, q + 1))
    a("buffer_store_dwordx4 v[%d:%d], v10, s[68:71], 0 offen sc1" % (X0, X0 + 3))
    a("buffer_store_dwordx4 v[%d:%d], v10, s[68:71], 0 offen offset:512 sc1" % (X0 + 4, X0 + 7))
    a("buffer_store_dwordx4 v[%d:%d], v13, s[68:71], 0 offen offset:1024 sc1" % (X0 + 8, X0 + 11))
    st()
    a("s_waitcnt vmcnt(0)")
    a("v_mov_b32 v16, 1")
    a("v_cmp_eq_u32 vcc, 0, v1")
    a("s_and_saveexec_b64 s[26:27], vcc")
    a("ds_add_rtn_u32 v18, v15, v16")
    a("s_waitcnt lgkmcnt(0)")
    a("v_readfirstlane_b32 s20, v18")
    a("s_nop 3")
    Lns = a.newlabel("U_nsig")
    a("s_cmp_lg_u32 s20, 3")
    a("s_cbranch_scc1 %s" % Lns)
    lds_wait(a, 18, 15, 16, 1, "U_iw", 1)
    a("ds_read_b64 v[20:21], v15 offset:16")
    a("s_lshl_b32 s20, s13, 8")
    a("s_lshl_b32 s21, s14, 3")
    a("s_add_u32 s20, s20, s21")
    a("s_waitcnt lgkmcnt(0)")
    a("buffer_store_dwordx2 v[20:21], v17, s[76:79], s20 offen sc1")
    a.label(Lns)
    a("s_mov_b64 exec, -1")
    st()

    def signal(vd, vz, soff, op="add", val="1"):
        a("v_cmp_eq_u32 vcc, 0, v1")
        a("s_and_saveexec_b64 s[30:31], vcc")
        a("v_mov_b32 v%d, %s" % (vd, val))
        a("v_mov_b32 v%d, 0" % vz)
        a("buffer_atomic_%s v%d, v%d, s[76:79], %s offen" % (op, vd, vz, soff))
        a("s_mov_b64 exec, -1")

    def chk_ge(n):
        return lambda sr: a("s_cmp_ge_u32 s%d, %d" % (sr, n))

    def wait_init(vt, vz, sdbg):
        a("s_waitcnt vmcnt(0)")

    ACCF, BRAW, ACCS, ADR, CON = 16, 64, 140, 228, 16
    ACC2, ACC3 = 180, 140
    Lp0b = a.newlabel("U_p0b")
    Lp0c = a.newlabel("U_p0c")
    Lp0d = a.newlabel("U_p0d")
    np0 = st.n
    K = lambda c, k: CON + 11 * c + k
    a("s_cmp_lg_u32 s17, 0")
    a("s_cbranch_scc1 %s" % Lp0d)
    lds_wait(a, 18, 15, 16, 1, "U_iw", 1)
    a("ds_read_b64 v[20:21], v15 offset:16")
    a("s_lshl_b32 s24, s13, 8")
    a("v_lshlrev_b32 v19, 3, v7")
    a("s_mov_b32 s31, 0x100000")
    Lq = a.newlabel("U_xq")
    Lqd = a.newlabel("U_xqd")
    a.label(Lq)
    a("buffer_load_dwordx2 v[22:23], v19, s[76:79], s24 offen sc1")
    a("s_waitcnt vmcnt(0) lgkmcnt(0)")
    a("v_cmp_eq_u64 vcc, v[20:21], v[22:23]")
    a("s_nop 3")
    a("s_cmp_eq_u64 vcc, -1")
    a("s_cbranch_scc1 %s" % Lqd)
    a("s_sleep 2")
    a("s_sub_u32 s31, s31, 1")
    a("s_cmp_lg_u32 s31, 0")
    a("s_cbranch_scc1 %s" % Lq)
    a.label(Lqd)
    a("ds_write_b32 v15, v16 offset:4")
    a.label(Lp0d)
    srd(a, 80, P_B1, P_B1 + 1, 3072)
    a("s_mul_i32 s21, s14, 192")
    a("v_lshlrev_b32 v11, 3, v6")
    for nt in range(6):
        a("buffer_load_dwordx2 v[%d:%d], v11, s[80:83], s21 offen offset:%d" % (BRAW + 2 * nt, BRAW + 2 * nt + 1, nt * 32))

    a("v_lshrrev_b32 v10, 2, v7")
    a("v_and_b32 v11, 3, v7")
    a("v_lshrrev_b32 v12, 1, v6")
    a("v_and_b32 v13, 1, v6")
    a("v_lshlrev_b32 v12, 4, v12")
    a("v_lshl_add_u32 v12, v13, 2, v12")
    a("v_add_u32 v12, v12, v10")
    a("v_lshlrev_b32 v12, 6, v12")
    a("v_lshl_add_u32 v12, v13, 5, v12")
    a("v_lshl_add_u32 v12, v11, 3, v12")
    a("v_xor_b32 v13, 32, v12")
    a("s_lshl_b32 s20, s17, 12")
    for sl in range(NS):
        a("s_add_u32 s21, s20, %d" % (sl * SLOT))
        a("v_add_u32 v%d, s21, v8" % (ADR + 6 * sl))
        a("v_add_u32 v%d, s21, v9" % (ADR + 6 * sl + 1))
        a("v_add_u32 v%d, %d, v12" % (ADR + 6 * sl + 2, sl * SLOT + 16384))
        a("v_add_u32 v%d, %d, v13" % (ADR + 6 * sl + 3, sl * SLOT + 16384))
        a("v_add_u32 v%d, %d, v8" % (ADR + 6 * sl + 4, sl * SLOT + 16384))
        a("v_add_u32 v%d, %d, v9" % (ADR + 6 * sl + 5, sl * SLOT + 16384))
    a("v_lshlrev_b32 v5, 2, v7")
    a("s_waitcnt lgkmcnt(0)")

    def nsub(s):
        return 4 if 20 <= s < 32 else 2

    def fbase(s, sset):
        if s < 20:
            return 76 + 32 * sset
        if s < 32:
            return 76 + 24 * sset
        return (16, 76)[sset]

    def reads(s, sub, sset):
        sl = s % NS
        A = ADR + 6 * sl
        b0 = fbase(s, sset)
        out = []
        if s < 10:
            b = b0
            for k, i in [("N", 0), ("T", 0), ("T", 1), ("N", 1), ("N", 2), ("N", 3), ("N", 4), ("N", 5)]:
                if k == "T":
                    out.append("ds_read_b128 v[%d:%d], v%d offset:%d" % (b + 4 * i, b + 4 * i + 3, A + sub, i * 2048))
                else:
                    o = (i >> 1) * 4096 + sub * 2048
                    r = b + 8 + 4 * i
                    out.append("ds_read_b64_tr_b16 v[%d:%d], v%d offset:%d" % (r, r + 1, A + 2 + (i & 1), o))
                    out.append("ds_read_b64_tr_b16 v[%d:%d], v%d offset:%d" % (r + 2, r + 3, A + 2 + (i & 1), o + 512))
        elif s < 20:
            b = b0
            for k, i in [("N", 0), ("T", 0), ("T", 1), ("N", 1), ("N", 2), ("N", 3), ("N", 4)]:
                if k == "T":
                    out.append("ds_read_b128 v[%d:%d], v%d offset:%d" % (b + 4 * i, b + 4 * i + 3, A + sub, i * 2048))
                else:
                    out.append("ds_read_b128 v[%d:%d], v%d offset:%d" % (b + 8 + 4 * i, b + 11 + 4 * i, A + 4 + sub, i * 2048))
        else:
            steps = [(sub >> 1, sub & 1, b0)] if s < 32 else [(sub, 0, b0), (sub, 1, b0 + 24)]
            for (sb, ks, b) in steps:
                so = sb * SUB
                for k, i in [("D", 0), ("T", 0), ("D", 1), ("D", 2), ("D", 3), ("D", 4)]:
                    if k == "T":
                        if s < 32:
                            out.append("ds_read_b128 v[%d:%d], v%d offset:%d" % (b, b + 3, A + ks, so))
                        else:
                            out.append("ds_read_b64_tr_b16 v[%d:%d], v%d offset:%d" % (b, b + 1, A + 2, so + ks * 4096))
                            out.append("ds_read_b64_tr_b16 v[%d:%d], v%d offset:%d" % (b + 2, b + 3, A + 2, so + ks * 4096 + 512))
                    else:
                        out.append("ds_read_b128 v[%d:%d], v%d offset:%d" % (b + 4 + 4 * i, b + 7 + 4 * i, A + 4 + ks, so + i * 2048))
        return out

    def mf(d, av, bv, first):
        return "v_mfma_f32_16x16x32_bf16 v[%d:%d], v[%d:%d], v[%d:%d], %s" % (
            d, d + 3, av, av + 3, bv, bv + 3, "0" if first else "v[%d:%d]" % (d, d + 3))

    def mfmas(s, sub, sset):
        out = []
        b = fbase(s, sset)
        if s < 10:
            for nt in range(6):
                for j in range(2):
                    out.append(mf(ACCF + (j * 6 + nt) * 4, b + 8 + 4 * nt, b + 4 * j, s == 0 and sub == 0))
        elif s < 20:
            for c in range(5):
                for j in range(2):
                    out.append(mf(ACCS + (c * 2 + j) * 4, b + 4 * j, b + 8 + 4 * c, s == 10 and sub == 0))
        elif s < 32:
            for dt in range(5):
                out.append(mf(ACC2 + dt * 4, b + 4 + 4 * dt, b, s == 20 and sub == 0))
        else:
            for ks in range(2):
                for dt in range(5):
                    out.append(mf(ACC3 + dt * 4, b + 24 * ks + 4 + 4 * dt, b + 24 * ks, s == 32 and sub == 0 and ks == 0))
        return out

    class BG:
        def __init__(self):
            self.q = []
            self.cur = None

        def __call__(self, line):
            Asm()(line)
            if self.cur is not None:
                self.cur.append("    " + line)
            else:
                self.q.append(["    " + line])

        def label(self, name):
            self.cur.append(name + ":")

        def newlabel(self, p):
            return a.newlabel(p)

        def begin(self):
            self.cur = []

        def end(self):
            self.q.append(self.cur)
            self.cur = None

        def bar(self, n=1):
            self.q.append(("BAR", n))

        def at(self, s):
            self.q.append(("AT", s))

        def emit(self, budget, s):
            while self.q and budget > 0:
                h = self.q[0]
                if isinstance(h, tuple):
                    if h[0] == "AT" and s >= h[1]:
                        self.q.pop(0)
                        continue
                    return
                a.lines += h
                budget -= len(h)
                self.q.pop(0)

        def barrier_passed(self):
            if self.q and isinstance(self.q[0], tuple) and self.q[0][0] == "BAR":
                n = self.q[0][1] - 1
                self.q.pop(0)
                if n > 0:
                    self.q.insert(0, ("BAR", n))
    b = BG()

    def bsignal(vd, vz, soff, op="add", val="1"):
        b("v_cmp_eq_u32 vcc, 0, v1")
        b("s_and_saveexec_b64 s[30:31], vcc")
        b("v_mov_b32 v%d, %s" % (vd, val))
        b("v_mov_b32 v%d, 0" % vz)
        b("buffer_atomic_%s v%d, v%d, s[76:79], %s offen" % (op, vd, vz, soff))
        b("s_mov_b64 exec, -1")
        b("s_nop 3")

    b.at(10)
    b("s_waitcnt vmcnt(0)")
    b("s_lshl_b32 s24, s13, 1")
    b("s_add_u32 s24, s24, s19")
    b("s_lshl_b32 s29, s24, 8")
    b("s_add_u32 s29, s29, %d" % F_H1)
    b("s_mul_i32 s24, s24, 196608")
    b("s_mul_i32 s25, s14, 12288")
    b("s_add_u32 s24, s24, s25")
    b("s_lshl_b32 s25, s18, 11")
    b("s_add_u32 s24, s24, s25")
    b("s_add_u32 s24, s24, %d" % WS_H1)
    b.begin()
    srd_off(b, 20, 10, 11, "s24", 12288)
    b.end()
    b("v_lshrrev_b32 v10, 2, v7")
    b("v_and_b32 v11, 3, v7")
    b("v_lshl_add_u32 v10, v10, 3, v11")
    b("v_lshlrev_b32 v10, 6, v10")
    b("v_lshl_add_u32 v10, v6, 4, v10")
    b("s_mov_b32 s24, 0xffff0000")
    b("s_mov_b32 s25, 0x00003f80")
    b("s_mov_b32 s26, %s" % fh(-2 * math.sqrt(2 / math.pi) * LOG2E * 0.044715))
    b("s_mov_b32 s27, s26")
    b("s_mov_b32 s28, 0x3f800000")
    b("v_mov_b32 v12, %s" % fh(-2 * math.sqrt(2 / math.pi) * LOG2E))
    b("v_mov_b32 v13, v12")
    BF, DST, TMP = 180, 188, 212
    for aa in range(3):
        for i in range(4):
            b("v_lshlrev_b32 v%d, 16, v%d" % (BF + 2 * i, BRAW + 4 * aa + i))
            b("v_and_b32 v%d, s24, v%d" % (BF + 2 * i + 1, BRAW + 4 * aa + i))
        d0 = DST + 8 * aa
        units = [(ACCF + (j * 6 + 2 * aa) * 4, ACCF + (j * 6 + 2 * aa + 1) * 4, BF, d0 + 4 * j) for j in range(2)]
        gelu_units(b, units, TMP, 12, 26, 25, 28, 24)
        b("s_mov_b32 s88, %d" % (aa * 4096))
        for j in range(2):
            b("buffer_store_dwordx4 v[%d:%d], v10, s[20:23], s88 offen offset:%d sc1" % (d0 + 4 * j, d0 + 4 * j + 3, j * 256))
    b("v_mul_u32_u24 v14, 48, v7")
    b("v_add_u32 v14, %d, v14" % (MISC + 2048))
    b("s_mul_i32 s20, s17, 2560")
    b("s_add_u32 s20, s20, %d" % (MISC + 6144))
    b("v_lshl_add_u32 v13, v1, 3, s20")
    for c in range(5):
        for k in range(8):
            b("ds_read_b32 v%d, v14 offset:%d" % (K(c, k), c * 768 + k * 4))
        b("ds_read_b32 v%d, v13 offset:%d" % (K(c, 8), c * 512))
        b("ds_read_b32 v%d, v13 offset:%d" % (K(c, 9), c * 512 + 4))
    b.bar(1)
    b.begin()
    b("s_waitcnt vmcnt(0)")
    bsignal(10, 11, "s29")
    b.end()
    b.bar(1)
    EB = MISC + 6144
    b("s_mul_i32 s20, s17, 1280")
    b("s_add_u32 s20, s20, %d" % EB)
    b("v_lshl_add_u32 v13, v1, 2, s20")
    b("v_mov_b32 v12, 0")
    for i in range(5):
        b("ds_write_b32 v13, v12 offset:%d" % (i * 256))

    b.at(20)
    G = lambda c, i: ACCS + c * 8 + i
    EQ = lambda c, q: 200 + 4 * c + q
    EWL = list(range(124, 140)) + list(range(220, 224))
    EW = lambda c, q: EWL[4 * c + q]
    TM = 71
    for i in range(8):
        for c in range(5):
            b("v_mul_f32 v%d, v%d, v%d" % (TM + c, K(c, 2), G(c, i)))
        for c in range(5):
            b("v_fmac_f32_dpp v%d, v%d, v%d %s" % (TM + c, G(c, i), K(c, 3), DPP8))
        if i == 0:
            for c in range(5):
                b("v_mov_b32 v%d, v%d" % (G(c, 0), TM + c))
        else:
            for c in range(5):
                b("v_fma_f32 v%d, v%d, v%d, v%d" % (G(c, i), K(c, 0), G(c, i - 1), TM + c))
            for c in range(5):
                b("v_fmac_f32_dpp v%d, v%d, v%d %s" % (G(c, i), G(c, i - 1), K(c, 1), DPP8))
    for q in range(4):
        b("v_add_u32 v%d, %d, v5" % (10 + q, q * 64))
    for q in range(4):
        for c in range(5):
            b("ds_bpermute_b32 v%d, v%d, v%d" % (EQ(c, q), 10 + q, G(c, 7)))
    b("s_waitcnt lgkmcnt(0)")
    cmul_add(b, [(EW(c, 1), K(c, 4), K(c, 5), EQ(c, 0), EQ(c, 1)) for c in range(5)])
    for q in range(2, 4):
        cmul_add(b, [(EW(c, q), K(c, 4), K(c, 5), EW(c, q - 1), EQ(c, q)) for c in range(5)])
    b("s_mul_i32 s20, s17, 320")
    b("s_add_u32 s20, s20, %d" % (MISC + 256))
    b("v_add_u32 v%d, s20, v5" % TM)
    for c in range(5):
        b("ds_write_b32 v%d, v%d offset:%d" % (TM, EW(c, 3), c * 64))
    b.bar(1)
    b("v_add_u32 v%d, %d, v5" % (TM, MISC + 256))
    for w in range(4):
        for c in range(5):
            b("ds_read_b32 v%d, v%d offset:%d" % (EW(c, w), TM, w * 320 + c * 64))
    b("s_mul_i32 s20, s14, 5120")
    b("s_add_u32 s20, s20, %d" % WS_ET)
    b.begin()
    srd_off(b, 68, 10, 11, "s20", 5120)
    b.end()
    b("s_waitcnt lgkmcnt(0)")
    for w in range(1, 4):
        cmul_add(b, [(EW(c, w), K(c, 6), K(c, 7), EW(c, w - 1), EW(c, w)) for c in range(5)])
    b.begin()
    Lnp = a.newlabel("U_nopub")
    b("s_cmp_lg_u32 s17, 0")
    b("s_cbranch_scc1 %s" % Lnp)
    b("s_mul_i32 s20, s13, 320")
    b("v_cmp_gt_u32 vcc, 16, v1")
    b("s_and_saveexec_b64 s[30:31], vcc")
    for c in range(5):
        b("buffer_store_dword v%d, v5, s[68:71], s20 offen offset:%d sc1" % (EW(c, 3), c * 64))
    b("s_mov_b64 exec, -1")
    b("s_nop 3")
    b.label(Lnp)
    b.end()
    for w in range(1, 4):
        b.begin()
        b("s_cmp_eq_u32 s17, %d" % w)
        b("s_cselect_b64 s[%d:%d], -1, 0" % (80 + 2 * w, 81 + 2 * w))
        b.end()
    for c in range(5):
        b("v_cndmask_b32 v%d, 0, v%d, s[82:83]" % (K(c, 10), EW(c, 0)))
    for c in range(5):
        b("v_cndmask_b32 v%d, v%d, v%d, s[84:85]" % (K(c, 10), K(c, 10), EW(c, 1)))
    for c in range(5):
        b("v_cndmask_b32 v%d, v%d, v%d, s[86:87]" % (K(c, 10), K(c, 10), EW(c, 2)))
    cmul_add(b, [(EW(c, 0), K(c, 4), K(c, 5), K(c, 10), EQ(c, 0)) for c in range(5)])
    for q in range(1, 3):
        cmul_add(b, [(EW(c, q), K(c, 4), K(c, 5), EW(c, q - 1), EQ(c, q)) for c in range(5)])
    b.begin()
    Lnp = a.newlabel("U_nosig")
    b("s_cmp_lg_u32 s17, 0")
    b("s_cbranch_scc1 %s" % Lnp)
    b("s_waitcnt vmcnt(0)")
    b("s_lshl_b32 s20, 1, s13")
    b("s_lshl_b32 s21, s14, 8")
    b("s_add_u32 s21, s21, %d" % F_E)
    bsignal(TM, TM + 1, "s21", "or", "s20")
    b.label(Lnp)
    b.end()
    b("v_cmp_eq_u32 s[82:83], 1, v6")
    b("v_cmp_eq_u32 s[84:85], 2, v6")
    b("v_cmp_eq_u32 s[86:87], 3, v6")
    b("s_nop 1")
    for q in range(3):
        for c in range(5):
            b("v_cndmask_b32 v%d, v%d, v%d, s[%d:%d]" % (K(c, 10), K(c, 10), EW(c, q), 82 + 2 * q, 83 + 2 * q))
    for c in range(5):
        for k in range(4):
            b("ds_read_b32 v%d, v14 offset:%d" % (K(c, 4 + k), c * 768 + 32 + k * 4))
    b("s_lshl_b32 s20, s13, 1")
    b("s_add_u32 s20, s20, s19")
    b("s_lshl_b32 s29, s20, 8")
    b("s_add_u32 s29, s29, %d" % F_HT)
    b("s_mul_i32 s20, s20, 163840")
    b("s_mul_i32 s21, s18, 81920")
    b("s_add_u32 s20, s20, s21")
    b("s_add_u32 s20, s20, %d" % WS_HT)
    b.begin()
    srd_off(b, 72, 10, 11, "s20", 81920)
    b.end()
    b("v_lshrrev_b32 v%d, 3, v7" % TM)
    b("v_mul_u32_u24 v%d, 640, v%d" % (TM + 1, TM))
    b("v_add_u32 v%d, v%d, v3" % (TM + 1, TM + 1))
    b("v_lshlrev_b32 v%d, 6, v%d" % (TM + 1, TM + 1))
    b("v_lshl_add_u32 v%d, v6, 4, v%d" % (TM + 1, TM + 1))
    b("v_mul_u32_u24 v%d, 0x8000, v%d" % (TM, TM))
    b("v_lshl_add_u32 v%d, v%d, 16, v%d" % (TM, TM, TM))
    b("s_mul_i32 s20, s14, 2560")
    b("v_lshl_add_u32 v%d, v6, 2, s13" % (TM + 2))
    b("v_mul_u32_u24 v%d, 320, v%d" % (TM + 2, TM + 2))
    b("v_add_u32 v%d, v%d, v5" % (TM + 2, TM + 2))
    b("v_add_u32 v%d, %d, v%d" % (TM + 2, EB, TM + 2))
    b.at(ESTAGE + 0.5)
    for e in range(4):
        for c in range(5):
            b("ds_read_b32 v%d, v%d offset:%d" % (EW(c, e), TM + 2, e * 320 + c * 64))
    b("s_waitcnt lgkmcnt(0)")
    for e in range(1, 4):
        cmul_add(b, [(EW(c, e), K(c, 4), K(c, 5), EW(c, e - 1), EW(c, e)) for c in range(5)])
    b("s_nop 0")
    for c in range(5):
        for q in range(4):
            b("ds_bpermute_b32 v%d, v%d, v%d" % (EQ(c, q), 10 + q, EW(c, 3)))
    b("s_waitcnt lgkmcnt(0)")
    for q in range(1, 4):
        cmul_add(b, [(EQ(c, q), K(c, 6), K(c, 7), EQ(c, q - 1), EQ(c, q)) for c in range(5)])
    cmul_add(b, [(K(c, 10), K(c, 8), K(c, 9), EQ(c, 3), K(c, 10)) for c in range(5)])
    CC = lambda c, i: 124 + 2 * c + i
    for i in range(8):
        cmul_add(b, [(CC(c, i & 1), K(c, 0), K(c, 1), K(c, 10) if i == 0 else CC(c, (i - 1) & 1), None) for c in range(5)])
        if i & 1:
            for c in range(5):
                u = G(c, i - 1)
                b("v_pk_add_f32 v[%d:%d], v[%d:%d], v[%d:%d]" % (u, u + 1, u, u + 1, CC(c, 0), CC(c, 1)))
    for c in range(5):
        for j in range(4):
            b("v_cvt_pk_bf16_f32 v%d, v%d, v%d" % (EQ(c, j), G(c, 2 * j), G(c, 2 * j + 1)))
    for c in range(5):
        for j in range(4):
            b("v_xor_b32 v%d, v%d, v%d" % (EQ(c, j), TM, EQ(c, j)))
        b("buffer_store_dwordx4 v[%d:%d], v%d, s[72:75], s20 offen offset:%d sc1" % (EQ(c, 0), EQ(c, 3), TM + 1, c * 512))
    b("s_lshl_b32 s21, s15, 6")
    b("s_lshl_b32 s22, s17, 4")
    b("s_add_u32 s21, s21, s22")
    b("s_mul_i32 s22, s21, 1280")
    b("s_mul_i32 s23, s16, 160")
    b("s_add_u32 s22, s22, s23")
    b.begin()
    srd(b, 80, P_OUT, P_OUT + 1, 2048 * 2560)
    b.end()
    b("v_mul_u32_u24 v15, 2560, v7")
    b("v_lshl_add_u32 v15, v6, 4, v15")
    b("s_lshl_b32 s27, s22, 1")
    b("s_mov_b32 s20, 0xffff0000")
    b("s_mov_b32 s21, 0x00003f80")
    b("s_mov_b32 s26, 0x3f800000")
    b("s_mov_b32 s88, %s" % fh(-LOG2E))
    b("s_mov_b32 s89, s88")
    b("v_lshlrev_b32 v14, 3, v6")
    b("v_add_u32 v14, %d, v14" % (MISC + 1536))
    b("s_mul_i32 s22, s17, 2560")
    b("s_add_u32 s22, s22, %d" % (2 * SLOT))
    b("v_mul_u32_u24 v10, 160, v7")
    b("v_lshl_add_u32 v10, v6, 3, v10")
    b("v_add_u32 v10, s22, v10")
    b.bar(1)
    b.begin()
    b("s_waitcnt vmcnt(0)")
    bsignal(12, 13, "s29")
    b.end()
    T0, T1, PK = 160, 200, 64
    DFL = list(range(124, 140)) + list(range(220, 224))
    b.at(32.5)
    for dt in range(5):
        b("ds_read_b64 v[%d:%d], v14 offset:%d" % (PK + 2 * dt, PK + 2 * dt + 1, dt * 32))
        b("ds_read_b64 v[%d:%d], v14 offset:%d" % (T0 + 2 * dt, T0 + 2 * dt + 1, 256 + dt * 32))
    b("s_waitcnt lgkmcnt(0)")
    for i in range(10):
        b("v_lshlrev_b32 v%d, 16, v%d" % (T1 + 2 * i, PK + i))
        b("v_and_b32 v%d, s20, v%d" % (T1 + 2 * i + 1, PK + i))
        b("v_lshlrev_b32 v%d, 16, v%d" % (DFL[2 * i], T0 + i))
        b("v_and_b32 v%d, s20, v%d" % (DFL[2 * i + 1], T0 + i))
    for i in range(10):
        b("v_cvt_pk_bf16_f32 v%d, v%d, v%d" % (PK + i, ACC2 + 2 * i, ACC2 + 2 * i + 1))
    for i in range(10):
        b("v_dot2_f32_bf16 v%d, v%d, s21, v%d" % (ACC2 + 2 * i, PK + i, T1 + 2 * i))
        b("v_dot2_f32_bf16 v%d, v%d, s26, v%d" % (ACC2 + 2 * i + 1, PK + i, T1 + 2 * i + 1))
    b("s_nop 1")
    for i in range(10):
        b("v_cvt_pk_bf16_f32 v%d, v%d, v%d" % (PK + i, ACC2 + 2 * i, ACC2 + 2 * i + 1))
    for i in range(10):
        b("v_lshlrev_b32 v%d, 16, v%d" % (ACC2 + 2 * i, PK + i))
        b("v_and_b32 v%d, s20, v%d" % (ACC2 + 2 * i + 1, PK + i))
    for i in range(10):
        b("v_pk_mul_f32 v[%d:%d], v[%d:%d], s[88:89]" % (T0 + 2 * i, T0 + 2 * i + 1, ACC2 + 2 * i, ACC2 + 2 * i + 1))
    for i in range(20):
        b("v_exp_f32 v%d, v%d" % (T0 + i, T0 + i))
    b("s_nop 0")
    for i in range(10):
        b("v_pk_add_f32 v[%d:%d], v[%d:%d], 1.0" % (T0 + 2 * i, T0 + 2 * i + 1, T0 + 2 * i, T0 + 2 * i + 1))
    for i in range(20):
        b("v_rcp_f32 v%d, v%d" % (T0 + i, T0 + i))
    b("s_nop 0")
    for i in range(10):
        b("v_pk_mul_f32 v[%d:%d], v[%d:%d], v[%d:%d]" % (ACC2 + 2 * i, ACC2 + 2 * i + 1, ACC2 + 2 * i, ACC2 + 2 * i + 1, T0 + 2 * i, T0 + 2 * i + 1))
    for i in range(10):
        b("v_cvt_pk_bf16_f32 v%d, v%d, v%d" % (PK + i, ACC2 + 2 * i, ACC2 + 2 * i + 1))
    for i in range(10):
        b("v_lshlrev_b32 v%d, 16, v%d" % (T0 + 2 * i, PK + i))
        b("v_and_b32 v%d, s20, v%d" % (T0 + 2 * i + 1, PK + i))
    b.at(41.5)
    RX, RN = 16, 26
    for dt in range(5):
        b("ds_read_b64 v[%d:%d], v10 offset:%d" % (RN + 2 * dt, RN + 2 * dt + 1, 10240 + dt * 32))
    for dt in range(5):
        b("ds_read_b64 v[%d:%d], v10 offset:%d" % (RX + 2 * dt, RX + 2 * dt + 1, dt * 32))
    b("s_waitcnt lgkmcnt(5)")
    for i in range(10):
        b("v_lshlrev_b32 v%d, 16, v%d" % (ACC2 + 2 * i, RN + i))
        b("v_and_b32 v%d, s20, v%d" % (ACC2 + 2 * i + 1, RN + i))
    for i in range(10):
        b("v_pk_mul_f32 v[%d:%d], v[%d:%d], v[%d:%d]" % (ACC2 + 2 * i, ACC2 + 2 * i + 1, ACC2 + 2 * i, ACC2 + 2 * i + 1, DFL[2 * i], DFL[2 * i + 1]))
    for i in range(10):
        b("v_cvt_pk_bf16_f32 v%d, v%d, v%d" % (RN + i, ACC2 + 2 * i, ACC2 + 2 * i + 1))
    b("s_waitcnt lgkmcnt(0)")
    for i in range(10):
        b("v_lshlrev_b32 v%d, 16, v%d" % (ACC2 + 2 * i, RN + i))
        b("v_and_b32 v%d, s20, v%d" % (ACC2 + 2 * i + 1, RN + i))
        b("v_lshlrev_b32 v%d, 16, v%d" % (T1 + 2 * i, RX + i))
        b("v_and_b32 v%d, s20, v%d" % (T1 + 2 * i + 1, RX + i))

    def p23_addr():
        t0, t1, t2 = 10, 11, 12
        a("v_lshrrev_b32 v%d, 2, v7" % t0)
        a("v_and_b32 v%d, 3, v7" % t1)
        a("v_lshl_add_u32 v%d, v6, 3, v%d" % (t2, t0))
        a("v_lshlrev_b32 v%d, 7, v%d" % (t2, t2))
        a("v_lshl_add_u32 v%d, v%d, 3, v%d" % (t2, t1, t2))
        a("v_lshrrev_b32 v%d, 1, v%d" % (t0, t0))
        a("v_and_b32 v%d, 1, v6" % t1)
        a("v_lshl_add_u32 v%d, v%d, 1, v%d" % (t0, t1, t0))
        a("v_xor_b32 v%d, s17, v%d" % (t0, t0))
        a("v_lshl_add_u32 v%d, v%d, 5, v%d" % (t2, t0, t2))
        a("s_lshl_b32 s20, s17, 11")
        for sl in range(NS):
            a("s_add_u32 s21, s20, %d" % (sl * SLOT))
            a("v_add_u32 v%d, s21, v8" % (ADR + 6 * sl))
            a("v_add_u32 v%d, s21, v9" % (ADR + 6 * sl + 1))
            a("v_add_u32 v%d, %d, v%d" % (ADR + 6 * sl + 2, sl * SLOT, t2))
            a("v_add_u32 v%d, %d, v8" % (ADR + 6 * sl + 4, sl * SLOT + 8192))
            a("v_add_u32 v%d, %d, v9" % (ADR + 6 * sl + 5, sl * SLOT + 8192))

    def rate(s):
        if s < 20:
            return RATE1
        if s < 32:
            return RATE2
        return RATE3

    def run(s0, s1):
        st()
        a("s_waitcnt lgkmcnt(0)")
        a("s_barrier")
        b.barrier_passed()
        st()
        for r in reads(s0, 0, 0):
            a(r)
        for s in range(s0, s1):
            n = nsub(s)
            for sub in range(n):
                cur = sub & 1
                pos = s
                a("s_waitcnt lgkmcnt(0)")
                if sub == n - 1:
                    a("s_barrier")
                    b.barrier_passed()
                    pos = s + 0.5
                    if s == 31:
                        assert b.q[0] == ("AT", 32.5), b.q[0]
                    if os.environ.get("BGDBG"):
                        print("after B_%d: queue len %d head %s" % (s, len(b.q), b.q[0] if b.q else None))
                    if STAMP and s % 2 == 1:
                        st()
                    rs = reads(s + 1, 0, 1 - cur) if s + 1 < s1 else []
                else:
                    rs = reads(s, sub + 1, 1 - cur)
                per, burst = rate(s)
                ms = mfmas(s, sub, cur)
                ri = 0
                step = max(1, -(-len(rs) // len(ms)))
                for m in ms:
                    a(m)
                    for r in rs[ri:ri + step]:
                        a(r)
                    ri += step
                    b.emit(per, pos)
                for r in rs[ri:]:
                    a(r)
                b.emit(burst, pos)
    run(0, 20)
    b.emit(10000, 19.9)
    assert isinstance(b.q[0], tuple) and b.q[0] == ("AT", 20), b.q[0]
    p23_addr()
    a("s_nop 4")
    b.emit(PRE20, 20)
    run(20, 42)
    b.emit(10000, 42)
    assert not b.q, b.q[0]
    st()
    a("s_nop 7")
    for i in range(10):
        r = ACC3 + 2 * i
        a("v_pk_fma_f32 v[%d:%d], v[%d:%d], 2.0, v[%d:%d]" % (r, r + 1, r, r + 1, ACC2 + 2 * i, ACC2 + 2 * i + 1))
    for i in range(10):
        r = ACC3 + 2 * i
        a("v_pk_mul_f32 v[%d:%d], v[%d:%d], v[%d:%d]" % (r, r + 1, r, r + 1, T0 + 2 * i, T0 + 2 * i + 1))
    for i in range(10):
        r = ACC3 + 2 * i
        a("v_pk_add_f32 v[%d:%d], v[%d:%d], v[%d:%d]" % (r, r + 1, r, r + 1, T1 + 2 * i, T1 + 2 * i + 1))
    for dt in range(5):
        a("buffer_store_dwordx4 v[%d:%d], v15, s[80:83], s27 offen offset:%d %s" % (ACC3 + 4 * dt, ACC3 + 4 * dt + 3, dt * 64, OUTFLAG))
    st.flush()
    a("s_endpgm")

    a.label(Lld)
    st.n = n0
    vm = VM(a)
    a("s_cmp_lg_u32 s17, 0")
    a("s_cbranch_scc1 U_lp0a")
    Lni = a.newlabel("U_noinit")
    a("s_cmp_lg_u32 s2, 0")
    a("s_cbranch_scc1 %s" % Lni)
    a("s_memrealtime s[24:25]")
    a("s_waitcnt lgkmcnt(0)")
    a("s_or_b32 s24, s24, 1")
    a("v_mov_b32 v20, s24")
    a("v_mov_b32 v21, s25")
    a("buffer_store_dwordx2 v[20:21], v17, s[92:95], 0 offen sc1")
    a("v_lshlrev_b32 v18, 8, v1")
    a("v_add_u32 v18, 4096, v18")
    a("s_movk_i32 s24, 16384")
    a("buffer_store_dword v17, v18, s[76:79], 0 offen sc1")
    a("buffer_store_dword v17, v18, s[76:79], s24 offen sc1")
    a("s_waitcnt vmcnt(0)")
    a("v_mov_b32 v18, 1")
    a("buffer_store_dword v18, v17, s[92:95], 0 offen offset:8 sc1")
    a.label(Lni)
    a("s_sleep 12")
    Lq = a.newlabel("U_nq")
    Lqd = a.newlabel("U_nqd")
    a("s_mov_b32 s31, 0x100000")
    a.label(Lq)
    a("buffer_load_dwordx2 v[20:21], v17, s[92:95], 0 offen sc1")
    a("s_waitcnt vmcnt(0)")
    a("v_readfirstlane_b32 s30, v20")
    a("s_nop 3")
    a("s_cmp_lg_u32 s30, 0")
    a("s_cbranch_scc1 %s" % Lqd)
    a("s_sleep 5")
    a("s_sub_u32 s31, s31, 1")
    a("s_cmp_lg_u32 s31, 0")
    a("s_cbranch_scc1 %s" % Lq)
    a.label(Lqd)
    a("ds_write_b64 v15, v[20:21] offset:16")
    lds_wait(a, 18, 15, 0, 4, "U_ln", 2)
    a("s_sleep 8")
    a("s_movk_i32 s24, 8")
    poll(a, 18, 17, 92, "s24", chk_ge(1), "U_ini", 8)
    a("s_branch U_lp0d")
    a.label("U_lp0a")
    if TLBPF:
        Lnt = a.newlabel("U_ntlb")
        a("s_cmp_lg_u32 s17, 1")
        a("s_cbranch_scc1 %s" % Lnt)
        srd(a, 64, 10, 11, 0x2600000)
        srd(a, 68, P_OUT, P_OUT + 1, 2048 * 2560)
        a("v_lshlrev_b32 v18, 20, v1")
        a("buffer_load_dword v19, v18, s[64:67], 0 offen")
        a("buffer_load_dword v20, v18, s[68:71], 0 offen")
        a.label(Lnt)
    a("s_cmp_lt_u32 s17, 2")
    a("s_cbranch_scc1 U_lp0d")
    a("s_cmp_eq_u32 s17, 3")
    a("s_cbranch_scc1 U_lp0c")
    a("s_cmp_ge_u32 s2, 240")
    a("s_cbranch_scc1 U_lp0d")
    if TRLATE:
        lds_wait(a, 18, 15, 0, 4, "U_ln", 2)
    a("s_mul_hi_u32 s28, s2, 0x%x" % ((1 << 32) // 24 + 1))
    a("s_mul_i32 s29, s28, 24")
    a("s_sub_u32 s29, s2, s29")
    a("s_mul_i32 s22, s29, %d" % (64 * 1280))
    a("s_lshl_b32 s23, s28, 7")
    a("s_add_u32 s22, s22, s23")
    a("v_lshrrev_b32 v18, 2, v3")
    a("v_and_b32 v19, 3, v3")
    a("v_lshlrev_b32 v18, 5, v18")
    a("v_lshl_add_u32 v18, v19, 2, v18")
    a("v_mul_u32_u24 v18, 1280, v18")
    a("v_lshl_add_u32 v18, v2, 4, v18")
    srd(a, 72, P_W2, P_W2 + 1, 1536 * 1280)
    for j in range(8):
        a("s_add_u32 s24, s22, %d" % ((j if j < 4 else 12 + j) * 1280))
        a("buffer_load_dwordx4 v[%d:%d], v18, s[72:75], s24 offen" % (180 + 4 * j, 183 + 4 * j))
    a("v_mul_u32_u24 v11, %d, v2" % (8 * 3072))
    a("v_lshl_add_u32 v11, v3, 4, v11")
    a("s_mul_i32 s23, s28, %d" % (64 * 3072))
    a("s_lshl_b32 s24, s29, 7")
    a("s_add_u32 s23, s23, s24")
    srd_off(a, 68, 10, 11, WS_W2T, 640 * 3072)
    a("s_mov_b32 s26, 0x05040100")
    a("s_mov_b32 s27, 0x07060302")
    a("s_waitcnt vmcnt(0)")
    for i in range(8):
        for m in range(4):
            a("v_perm_b32 v%d, v%d, v%d, s%d" % (212 + 4 * i + m, 180 + 4 * (2 * m + 1) + (i >> 1), 180 + 4 * (2 * m) + (i >> 1), 26 + (i & 1)))
    for i in range(8):
        a("s_add_u32 s24, s23, %d" % (i * 3072))
        a("buffer_store_dwordx4 v[%d:%d], v11, s[68:71], s24 offen sc1" % (212 + 4 * i, 215 + 4 * i))
    a("s_branch U_lp0d")
    a.label("U_lp0c")
    srd(a, 64, P_LRE, P_LRE + 1, 1280)
    srd(a, 68, P_LIM, P_LIM + 1, 1280)
    srd(a, 72, P_LDT, P_LDT + 1, 1280)
    a("s_mul_i32 s20, s14, 80")
    a("v_lshlrev_b32 v18, 1, v3")
    for c in range(5):
        a("buffer_load_ushort v%d, v18, s[64:67], s20 offen offset:%d" % (160 + 3 * c, c * 16))
        a("buffer_load_ushort v%d, v18, s[68:71], s20 offen offset:%d" % (160 + 3 * c + 1, c * 16))
        a("buffer_load_ushort v%d, v18, s[72:75], s20 offen offset:%d" % (160 + 3 * c + 2, c * 16))
    T = 160
    a("v_and_b32 v12, 8, v7")
    a("v_lshlrev_b32 v12, 28, v12")
    a("v_xor_b32 v12, 0x80000000, v12")
    a("v_lshlrev_b32 v13, 3, v6")
    a("v_cvt_f32_u32 v13, v13")
    a("v_mul_u32_u24 v10, 48, v7")
    a("v_add_u32 v10, %d, v10" % (MISC + 2048))
    a("v_lshlrev_b32 v11, 3, v1")
    a("v_add_u32 v11, %d, v11" % (MISC + 6144))
    a("s_waitcnt vmcnt(0)")
    ZR, ZI, W0 = 96, 101, 108
    CT = lambda c, k: 180 + 12 * c + k

    def cpow_all(n, dst):
        ns = n if isinstance(n, str) else fh(n)
        for c in range(5):
            t = W0 + 4 * c
            a("v_mul_f32 v%d, %s, v%d" % (t, ns, ZR + c))
            a("v_mul_f32 v%d, %s, v%d" % (t + 1, ns, ZI + c))
            a("v_exp_f32 v%d, v%d" % (t, t))
            a("v_fract_f32 v%d, v%d" % (t + 1, t + 1))
            a("v_cos_f32 v%d, v%d" % (t + 2, t + 1))
            a("v_sin_f32 v%d, v%d" % (t + 3, t + 1))
        a("s_nop 0")
        for c in range(5):
            t = W0 + 4 * c
            a("v_mul_f32 v%d, v%d, v%d" % (dst(c), t, t + 2))
            a("v_mul_f32 v%d, v%d, v%d" % (dst(c) + 1, t, t + 3))
    for c in range(5):
        lre, lim, ldt = T + 3 * c, T + 3 * c + 1, T + 3 * c + 2
        a("v_lshlrev_b32 v%d, 16, v%d" % (lre, lre))
        a("v_lshlrev_b32 v%d, 16, v%d" % (lim, lim))
        a("v_lshlrev_b32 v%d, 16, v%d" % (ldt, ldt))
        a("v_mul_f32 v%d, %s, v%d" % (ldt, fh(LOG2E), ldt))
        a("v_exp_f32 v%d, v%d" % (ldt, ldt))
        a("s_nop 0")
        a("v_cvt_pk_bf16_f32 v%d, v%d, v%d" % (ldt, ldt, ldt))
        a("v_and_b32 v%d, 0xffff0000, v%d" % (ldt, ldt))
        a("v_mul_f32 v%d, v%d, v%d" % (ZR + c, ldt, lre))
        a("v_mul_f32 v%d, v%d, v%d" % (ZI + c, ldt, lim))
        a("v_mul_f32 v%d, %s, v%d" % (ZR + c, fh(LOG2E), ZR + c))
        a("v_mul_f32 v%d, 0.15915494, v%d" % (ZI + c, ZI + c))
    cpow_all(1.0, lambda c: CT(c, 0))
    for c in range(5):
        lre, lim = T + 3 * c, T + 3 * c + 1
        t = W0 + 4 * c
        a("v_add_f32 v%d, -1.0, v%d" % (t, CT(c, 0)))
        a("v_mul_f32 v%d, v%d, v%d" % (t + 1, lre, lre))
        a("v_fmac_f32 v%d, v%d, v%d" % (t + 1, lim, lim))
        a("v_rcp_f32 v%d, v%d" % (t + 2, t + 1))
        a("s_nop 0")
        a("v_fma_f32 v%d, -v%d, v%d, 1.0" % (t + 3, t + 1, t + 2))
        a("v_fma_f32 v%d, v%d, v%d, v%d" % (t + 2, t + 3, t + 2, t + 2))
        a("v_mul_f32 v%d, v%d, v%d" % (CT(c, 2), t, lre))
        a("v_fmac_f32 v%d, v%d, v%d" % (CT(c, 2), CT(c, 1), lim))
        a("v_mul_f32 v%d, v%d, v%d" % (CT(c, 3), CT(c, 1), lre))
        a("v_fma_f32 v%d, -v%d, v%d, v%d" % (CT(c, 3), t, lim, CT(c, 3)))
        a("v_mul_f32 v%d, v%d, v%d" % (CT(c, 2), CT(c, 2), t + 2))
        a("v_mul_f32 v%d, v%d, v%d" % (CT(c, 3), CT(c, 3), t + 2))
    for n, k in ((8.0, 4), (32.0, 6), (128.0, 8), (512.0, 10)):
        cpow_all(n, lambda c: CT(c, k))
    for c in range(5):
        for k in (1, 3, 5, 7, 9, 11):
            a("v_xor_b32 v%d, v12, v%d" % (CT(c, k), CT(c, k)))
        for k in range(3):
            a("ds_write_b128 v10, v[%d:%d] offset:%d" % (CT(c, 4 * k), CT(c, 4 * k + 3), c * 768 + k * 16))
    for w in range(4):
        AT = lambda c: 130 + 10 * (w & 1) + 2 * c
        cpow_all("v13", AT)
        for c in range(5):
            a("v_xor_b32 v%d, v12, v%d" % (AT(c) + 1, AT(c) + 1))
            a("ds_write_b64 v11, v[%d:%d] offset:%d" % (AT(c), AT(c) + 1, w * 2560 + c * 512))
        if w < 3:
            a("v_add_f32 v13, 0x42000000, v13")
    a.label("U_lp0d")
    a("s_mul_i32 s24, s14, 192")
    srd_off(a, 68, P_W1, P_W1 + 1, "s24", 640 * 3072 - 15 * 192)
    a("v_lshrrev_b32 v10, 2, v1")
    a("v_and_b32 v11, 3, v10")
    a("v_lshrrev_b32 v12, 2, v10")
    a("v_and_b32 v12, 1, v12")
    a("v_lshrrev_b32 v13, 3, v10")
    a("v_lshl_add_u32 v11, v12, 3, v11")
    a("v_lshl_add_u32 v11, v13, 2, v11")
    a("v_mul_u32_u24 v22, 3072, v11")
    a("v_lshrrev_b32 v13, 1, v1")
    a("v_and_b32 v13, 1, v13")
    a("v_xor_b32 v13, v13, v12")
    a("v_lshl_add_u32 v22, v13, 5, v22")
    a("v_and_b32 v13, 1, v1")
    a("v_lshl_add_u32 v22, v13, 4, v22")
    a("s_mul_i32 s3, s17, %d" % (16 * 3072))
    a("s_lshl_b32 s4, s17, 10")

    def free_part(s):
        sl = s % NS
        if s < 10:
            for p in range(3):
                a("s_add_u32 m0, s4, %d" % (sl * SLOT + 16384 + p * 4096))
                a("s_add_u32 s6, s3, %d" % (s * 64 * 3072 + p * 64))
                a("buffer_load_dwordx4 v22, s[68:71], s6 offen lds")
            n = 3
        elif s < 20:
            for i in range(3):
                a("s_add_u32 m0, s4, %d" % (sl * SLOT + 16384 + i * 4096))
                a("s_add_u32 s6, s5, %d" % (i * 20480 + (s - 10) * 128))
                a("buffer_load_dwordx4 v5, s[72:75], s6 offen lds")
            n = 3
        else:
            for i in range(5):
                a("s_add_u32 m0, s46, %d" % (sl * SLOT + 8192 + i * 2048))
                if s < 32:
                    a("s_add_u32 s6, s7, %d" % (i * 16 * 3072 + (s - 20) * 256))
                    a("buffer_load_dwordx4 v16, s[84:87], s6 offen sc1 lds")
                else:
                    s3 = s - 32
                    sr = 92 if s3 < 5 else 96
                    a("s_add_u32 s6, s8, %d" % (i * 16 * 1280 + (s3 % 5) * 256))
                    a("buffer_load_dwordx4 v5, s[%d:%d], s6 offen lds" % (sr, sr + 3))
            n = 5
        vm.issue(("F", s), n)

    def dep_part(s):
        sl = s % NS
        for i in range(4):
            if s < 20:
                a("s_add_u32 m0, s4, %d" % (sl * SLOT + i * 4096))
                a("s_add_u32 s6, s47, %d" % (i * 40960 + (s % 10) * 128))
                a("buffer_load_dwordx4 v5, s[64:67], s6 offen sc1 lds")
            elif s < 32:
                a("s_add_u32 m0, s46, %d" % (sl * SLOT + i * 2048))
                a("s_add_u32 s6, s50, %d" % (i * 1024 + (s - 20) * 16384))
                a("buffer_load_dwordx4 v21, s[80:83], s6 offen sc1 lds")
            else:
                a("s_add_u32 m0, s46, %d" % (sl * SLOT + i * 2048))
                a("s_add_u32 s6, s9, %d" % (i * 1024 + (s - 32) * 8192))
                a("buffer_load_dwordx4 v10, s[88:91], s6 offen sc1 lds")
        vm.issue(("D", s), 4)
    a("s_mul_i32 s24, s13, %d" % (128 * 1280))
    a("s_add_u32 s24, s24, %d" % WS_XN)
    srd_off(a, 64, 10, 11, "s24", 128 * 1280)
    a("s_cmp_eq_u32 s18, 0")
    a("s_cselect_b32 s24, s%d, s%d" % (P_BRE, P_BIM))
    a("s_cselect_b32 s25, s%d, s%d" % (P_BRE + 1, P_BIM + 1))
    a("s_mul_i32 s26, s14, %d" % (40 * 1280))
    srd_off(a, 72, 24, 25, "s26", 40 * 1280)
    a("s_mul_i32 s24, s15, 196608")
    a("s_add_u32 s24, s24, %d" % WS_H1)
    srd_off(a, 80, 10, 11, "s24", 196608)
    a("s_mul_i32 s24, s16, %d" % (80 * 3072))
    a("s_add_u32 s24, s24, %d" % WS_W2T)
    srd_off(a, 84, 10, 11, "s24", 80 * 3072)
    a("s_mul_i32 s24, s15, 163840")
    a("s_add_u32 s24, s24, %d" % WS_HT)
    srd_off(a, 88, 10, 11, "s24", 163840)
    a("s_lshr_b32 s24, s2, 3")
    a("s_and_b32 s25, s2, 7")
    a("v_lshlrev_b32 v18, 7, v1")
    Lpf1 = a.newlabel("U_pf1")
    Lpf3 = a.newlabel("U_pf3")
    Lpfd = a.newlabel("U_pfd")
    a("s_cmp_eq_u32 s17, 3")
    a("s_cbranch_scc1 %s" % Lpf3)
    a("s_cmp_lg_u32 s17, 0")
    a("s_cbranch_scc1 %s" % Lpf1)
    a("s_lshr_b32 s25, s25, 1")
    a("s_mul_i32 s25, s25, 204800")
    a("s_mul_i32 s26, s24, 6400")
    a("s_add_u32 s25, s25, s26")
    srd_off(a, 92, P_BRE, P_BRE + 1, "s25", 6400)
    srd_off(a, 96, P_BIM, P_BIM + 1, "s25", 6400)
    a("buffer_load_dword v19, v18, s[92:95], 0 offen")
    a("buffer_load_dword v20, v18, s[96:99], 0 offen")
    a("s_branch %s" % Lpfd)
    a.label(Lpf1)
    a("s_lshr_b32 s25, s25, 2")
    a("s_mul_i32 s25, s25, 409600")
    a("s_mul_i32 s26, s24, 12800")
    a("s_add_u32 s25, s25, s26")
    a("s_cmp_eq_u32 s17, 1")
    a("s_cselect_b32 s26, s%d, s%d" % (P_CRE, P_CIM))
    a("s_cselect_b32 s27, s%d, s%d" % (P_CRE + 1, P_CIM + 1))
    srd_off(a, 92, 26, 27, "s25", 12800)
    a("s_movk_i32 s26, 8192")
    a("buffer_load_dword v19, v18, s[92:95], 0 offen")
    a("buffer_load_dword v20, v18, s[92:95], s26 offen")
    a("s_branch %s" % Lpfd)
    a.label(Lpf3)
    a("s_lshr_b32 s25, s25, 1")
    a("s_mul_i32 s25, s25, 768")
    a("s_mul_i32 s26, s24, %d" % (20 * 3072))
    a("s_add_u32 s25, s25, s26")
    srd_off(a, 92, P_W1, P_W1 + 1, "s25", 20 * 3072 - 2304)
    a("v_mul_u32_u24 v19, 43, v1")
    a("v_lshrrev_b32 v19, 8, v19")
    a("v_mul_u32_u24 v20, 6, v19")
    a("v_sub_u32 v20, v1, v20")
    a("v_mul_u32_u24 v19, 3072, v19")
    a("v_lshl_add_u32 v18, v20, 7, v19")
    a("s_movk_i32 s26, %d" % (10 * 3072))
    a("buffer_load_dword v19, v18, s[92:95], 0 offen")
    a("buffer_load_dword v20, v18, s[92:95], s26 offen")
    a.label(Lpfd)
    vm.issue("pf", 2)
    a("s_cmp_eq_u32 s18, 0")
    a("s_cselect_b32 s24, s%d, s%d" % (P_B2, P_DSK))
    a("s_cselect_b32 s25, s%d, s%d" % (P_B2 + 1, P_DSK + 1))
    a("s_mul_i32 s26, s16, 160")
    srd_off(a, 92, 24, 25, "s26", 160)
    a("v_lshlrev_b32 v18, 4, v1")
    a("v_cmp_gt_u32 vcc, 16, v1")
    a("s_and_saveexec_b64 s[26:27], vcc")
    a("s_lshl_b32 s24, s18, 8")
    a("s_add_u32 m0, s24, %d" % (MISC + 1536))
    a("s_nop 0")
    a("buffer_load_dwordx4 v18, s[92:95], 0 offen lds")
    a("s_mov_b64 exec, -1")
    vm.issue("bd", 1)
    a("s_mul_i32 s24, s16, %d" % (80 * 1280))
    srd_off(a, 92, P_CRE, P_CRE + 1, "s24", 80 * 1280)
    srd_off(a, 96, P_CIM, P_CIM + 1, "s24", 80 * 1280)
    a("v_mul_u32_u24 v5, 1280, v2")
    a("v_lshl_add_u32 v5, v4, 4, v5")
    a("v_mul_u32_u24 v16, 3072, v2")
    a("v_lshl_add_u32 v16, v4, 4, v16")
    a("v_and_b32 v10, 1, v6")
    a("s_lshl_b32 s24, s18, 1")
    a("v_or_b32 v10, s24, v10")
    a("v_lshrrev_b32 v11, 1, v3")
    a("v_xor_b32 v11, v10, v11")
    a("v_lshrrev_b32 v10, 1, v11")
    a("v_mul_u32_u24 v10, 81920, v10")
    a("v_lshl_add_u32 v10, v2, 6, v10")
    a("v_and_b32 v11, 1, v11")
    a("v_lshl_add_u32 v10, v11, 5, v10")
    a("v_and_b32 v11, 1, v1")
    a("v_lshl_add_u32 v10, v11, 4, v10")
    a("v_lshrrev_b32 v21, 2, v4")
    a("v_lshlrev_b32 v21, 12, v21")
    a("v_lshl_add_u32 v21, v2, 6, v21")
    a("v_and_b32 v11, 3, v4")
    a("v_lshl_add_u32 v21, v11, 4, v21")
    a("s_mul_i32 s47, s17, 10240")
    a("s_mul_i32 s5, s19, 10240")
    a("s_lshl_b32 s50, s19, 13")
    a("s_lshl_b32 s24, s18, 9")
    a("s_add_u32 s50, s50, s24")
    a("s_lshl_b32 s9, s19, 12")
    a("s_add_u32 s9, s9, s24")
    a("s_mul_i32 s7, s18, %d" % (8 * 3072))
    a("s_lshl_b32 s24, s19, 7")
    a("s_add_u32 s7, s7, s24")
    a("s_mul_i32 s8, s18, %d" % (8 * 1280))
    a("s_add_u32 s8, s8, s24")
    a("s_mul_i32 s46, s19, %d" % SUB)
    a("s_lshl_b32 s24, s18, 10")
    a("s_add_u32 s46, s46, s24")

    def gate(soff_code, target, word, first=False):
        Lnp = a.newlabel("U_gnp")
        Lgo = a.newlabel("U_ggo")
        a("s_cmp_lg_u32 s17, 0")
        a("s_cbranch_scc1 %s" % Lnp)
        a("v_mov_b32 v23, 1")
        soff_code()
        poll(a, 18, 17, 76, "s24", chk_ge(target), "U_g", 3)
        a("ds_write_b32 v15, v23 offset:%d" % word)
        a("s_branch %s" % Lgo)
        a.label(Lnp)
        lds_wait(a, 18, 15, word, 1, "U_gw", 1)
        a.label(Lgo)

    st()
    lds_wait(a, 18, 15, 4, 1, "U_gx", 1)
    st()

    def phase(s0, s1, nxt_free_to):
        for k in range(2):
            if s0 == 0:
                free_part(s0 + k)
            dep_part(s0 + k)
        vm.wait(("D", s0))
        st()
        a("s_barrier")
        for k in range(2, 4):
            if s0 == 0:
                free_part(s0 + k)
            dep_part(s0 + k)
        for s in range(s0, s1):
            if s + 1 < s1:
                vm.wait(("D", s + 1))
            if s == ESTAGE:
                vm.wait("Emark")
            if s == 41:
                vm.drain()
            a("s_barrier")
            if STAMP and s % 2 == 1:
                st()
            n = s + NS
            if s == 1:
                Lsk = a.newlabel("U_w2s")
                a("s_cmp_lg_u32 s17, 2")
                a("s_cbranch_scc1 %s" % Lsk)
                a("s_cmp_ge_u32 s2, 240")
                a("s_cbranch_scc1 %s" % Lsk)
                a("s_lshl_b32 s24, s28, 8")
                a("s_add_u32 s24, s24, %d" % F_W2)
                signal(18, 19, "s24")
                a.label(Lsk)
            if s == ESTAGE - 3:
                a("s_lshl_b32 s26, 1, s13")
                a("s_sub_u32 s26, s26, 1")
                a("s_lshl_b32 s27, s14, 8")
                a("s_add_u32 s27, s27, %d" % F_E)
                a("buffer_load_dword v20, v17, s[76:79], s27 offen sc1")
                vm.issue("pollE", 1)
            if s == ESTAGE - 2:
                def chkE(sr):
                    a("s_and_b32 s%d, s%d, s26" % (sr, sr))
                    a("s_cmp_eq_u32 s%d, s26" % sr)
                vm.wait("pollE")
                Lok = a.newlabel("U_eok")
                a("v_readfirstlane_b32 s30, v20")
                a("s_nop 3")
                chkE(30)
                a("s_cbranch_scc1 %s" % Lok)
                poll(a, 20, 17, 76, "s27", chkE, "U_e", 2)
                a.label(Lok)
                a("s_mul_i32 s24, s14, 5120")
                a("s_add_u32 s24, s24, %d" % WS_ET)
                srd_off(a, 64, 10, 11, "s24", 5120)
                a("v_lshlrev_b32 v18, 4, v1")
                a("s_add_u32 m0, s4, %d" % (MISC + 6144 + 5120))
                a("s_nop 0")
                a("buffer_load_dwordx4 v18, s[64:67], s4 offen sc1 lds")
                Lsk = a.newlabel("U_e5")
                a("s_cmp_lg_u32 s17, 0")
                a("s_cbranch_scc1 %s" % Lsk)
                a("s_mov_b32 m0, %d" % (MISC + 6144 + 5120 + 4096))
                a("s_movk_i32 s24, 4096")
                a("buffer_load_dwordx4 v18, s[64:67], s24 offen sc1 lds")
                a.label(Lsk)
                vm.issue("E", 1)
                vm.issue("Emark", 0)
            if s == 38:
                a("s_lshl_b32 s24, s15, 6")
                a("s_mul_i32 s24, s24, 1280")
                a("s_mul_i32 s25, s16, 160")
                a("s_add_u32 s24, s24, s25")
                srd_off(a, 64, P_X, P_X + 1, "s24", 64 * 1280 - 1120)
                a("s_add_u32 s24, s24, %d" % WS_XN)
                srd_off(a, 68, 10, 11, "s24", 64 * 1280 - 1120)
                a("s_lshl_b32 s24, s17, 6")
                for i in range(3):
                    a("v_add_u32 v18, s24, v1")
                    if i:
                        a("v_add_u32 v18, %d, v18" % (256 * i))
                    a("v_mul_u32_u24 v19, 6554, v18")
                    a("v_lshrrev_b32 v19, 16, v19")
                    a("v_mul_u32_u24 v20, 10, v19")
                    a("v_sub_u32 v20, v18, v20")
                    a("v_mul_u32_u24 v23, 1280, v19")
                    a("v_lshl_add_u32 v23, v20, 4, v23")
                    a("v_and_b32 v24, 0xffe3, v19")
                    a("v_lshrrev_b32 v25, 2, v19")
                    a("v_and_b32 v25, 1, v25")
                    a("v_lshl_add_u32 v24, v25, 4, v24")
                    a("v_lshrrev_b32 v25, 3, v19")
                    a("v_and_b32 v25, 3, v25")
                    a("v_lshl_add_u32 v24, v25, 2, v24")
                    a("v_mul_u32_u24 v24, 1280, v24")
                    a("v_lshl_add_u32 v24, v20, 4, v24")
                    if i < 2:
                        a("s_add_u32 m0, s4, %d" % (2 * SLOT + i * 4096))
                        a("s_nop 0")
                        a("buffer_load_dwordx4 v23, s[64:67], 0 offen lds")
                        a("s_add_u32 m0, s4, %d" % (2 * SLOT + 10240 + i * 4096))
                        a("s_nop 0")
                        a("buffer_load_dwordx4 v24, s[68:71], 0 offen sc1 lds")
                    else:
                        Lsk = a.newlabel("U_x3")
                        a("s_cmp_ge_u32 s17, 2")
                        a("s_cbranch_scc1 %s" % Lsk)
                        a("s_add_u32 m0, s4, %d" % (2 * SLOT + i * 4096))
                        a("s_nop 0")
                        a("buffer_load_dwordx4 v23, s[64:67], 0 offen lds")
                        a("s_add_u32 m0, s4, %d" % (2 * SLOT + 10240 + i * 4096))
                        a("s_nop 0")
                        a("buffer_load_dwordx4 v24, s[68:71], 0 offen sc1 lds")
                        a.label(Lsk)
                vm.issue("X", 4)
            if n < s1:
                if n == 31:
                    a("s_lshl_b32 s25, s15, 8")
                    a("s_add_u32 s25, s25, %d" % F_HT)
                    a("buffer_load_dword v19, v17, s[76:79], s25 offen sc1")
                    vm.issue("pollHT", 1)
                if n == 19:
                    a("s_mul_i32 s25, s16, 80")
                    a("s_add_u32 s26, s25, 79")
                    a("s_lshr_b32 s25, s25, 6")
                    a("s_lshr_b32 s26, s26, 6")
                    a("s_lshl_b32 s25, s25, 8")
                    a("s_lshl_b32 s26, s26, 8")
                    a("s_add_u32 s25, s25, %d" % F_W2)
                    a("s_add_u32 s26, s26, %d" % F_W2)
                    a("buffer_load_dword v19, v17, s[76:79], s25 offen sc1")
                    a("buffer_load_dword v20, v17, s[76:79], s26 offen sc1")
                    vm.issue("pollW2", 2)
                free_part(n)
                if n == 32:
                    vm.wait("pollHT")
                    Lok = a.newlabel("U_htok")
                    a("v_readfirstlane_b32 s30, v19")
                    a("s_nop 3")
                    a("s_cmp_ge_u32 s30, 32")
                    a("s_cbranch_scc1 %s" % Lok)
                    poll(a, 19, 17, 76, "s25", chk_ge(32), "U_ht")
                    a.label(Lok)
                dep_part(n)
            elif n < nxt_free_to:
                if n == 20:
                    vm.wait("pollW2")
                    Lok = a.newlabel("U_w2ok")
                    a("v_min_u32 v19, v19, v20")
                    a("s_nop 0")
                    a("v_readfirstlane_b32 s30, v19")
                    a("s_nop 3")
                    a("s_cmp_ge_u32 s30, 24")
                    a("s_cbranch_scc1 %s" % Lok)
                    poll(a, 19, 17, 76, "s25", chk_ge(24), "U_w2")
                    poll(a, 19, 17, 76, "s26", chk_ge(24), "U_w2")
                    a.label(Lok)
                free_part(n)
    phase(0, 20, 24)
    st()

    def h1off():
        a("s_lshl_b32 s24, s15, 8")
        a("s_add_u32 s24, s24, %d" % F_H1)
    gate(h1off, 32, 12)
    st()
    phase(20, 42, 42)
    st.flush()
    a.label(Lend)
    a("s_endpgm")
    a.label("U_code_end")
    return name, 256


if __name__ == "__main__":
    a = Asm()
    nm, vg = gen_uni(a)
    hdr = open("cdna_kernels/%s.s.ref" % NAME).read().split("\n")
    hdr = [l for l in hdr if l.startswith(";") and "@launch" not in l]
    out = "\n".join(hdr) + "\n; @launch grid=(256,1,1) block=(512,1,1) lds=163840\n"
    out += '.amdgcn_target "amdgcn-amd-amdhsa--gfx950"\n.text\n' + a.text()
    out += '.section .rodata,"a"\n.p2align 6\n' + kernel_desc(nm, vg)
    open(sys.argv[1] if len(sys.argv) > 1 else "cdna_kernels/%s.s" % NAME, "w").write(out)
```

```python
import sys, os, math
from gen import Asm, srd, srd_off, kernel_header, kernel_desc, fh, KA, LOG2E, DPP8, NAME
import gen

WS_XN = 0x0000000
WS_W2T = 0x0500000
WS_FLG = 0x0780000
WS_H1 = 0x0800000
WS_ET = 0x0F00000
WS_HT = 0x2000000
WS_DBG = 0x3000000
F_XN, F_H1, F_E, F_HT, F_W2, F_SIZE = 0, 4096, 12288, 16384, 24576, 27136

STAMP = int(os.environ.get("STAMP", "0"))
NS = 4
L2T = int(os.environ.get("L2T", "0"))
LPRIO = int(os.environ.get("LPRIO", "0"))
CPRIO = int(os.environ.get("CPRIO", "0"))
ALLLATE = int(os.environ.get("ALLLATE", "1"))
TRLATE = int(os.environ.get("TRLATE", "0"))
CLATE = int(os.environ.get("CLATE", "1"))
TLBPF = int(os.environ.get("TLBPF", "0"))
OUTFLAG = os.environ.get("OUTFLAG", "nt")
ESTAGE = int(os.environ.get("ESTAGE", "24"))
RATE1 = eval(os.environ.get("RATE1", "(3, 50)"))
RATE2 = eval(os.environ.get("RATE2", "(4, 100)"))
RATE3 = eval(os.environ.get("RATE3", "(2, 16)"))
PRE20 = int(os.environ.get("PRE20", "260"))
CODE_SIZE = 42000
CODEPF = int(os.environ.get("CODEPF", "1"))
SLOT = 36864
SUB = 18432
MISC = 147456

P_X, P_LRE, P_LIM, P_BRE, P_BIM, P_CRE, P_CIM, P_LDT, P_DSK, P_W1, P_B1, P_W2, P_B2, P_OUT, P_DBG = \
    32, 34, 36, 38, 40, 42, 44, 46, 48, 52, 54, 56, 58, 60, 62


class Stamper:
    def __init__(self, a):
        self.a = a
        self.n = 0

    def __call__(self, real=False):
        if not STAMP:
            return
        a = self.a
        assert self.n < 64
        if self.n == 0 and not real:
            a("v_mov_b32 v255, 0")
            self(True)
        a("s_memrealtime s[100:101]" if real else "s_memtime s[100:101]")
        a("s_waitcnt lgkmcnt(0)")
        a("v_writelane_b32 v255, s100, %d" % self.n)
        self.n += 1

    def flush(self):
        if not STAMP:
            return
        a = self.a
        self()
        self(True)
        a("s_mov_b64 exec, -1")
        a("s_lshl_b32 s100, s2, 3")
        a("s_add_u32 s100, s100, s12")
        a("s_lshl_b32 s100, s100, 8")
        a("s_add_u32 s100, s100, 0x%x" % (WS_DBG + 0x100000))
        srd_off(a, 96, 10, 11, "s100", 256)
        a("v_and_b32 v254, 63, v0")
        a("v_lshlrev_b32 v254, 2, v254")
        a("buffer_store_dword v255, v254, s[96:99], 0 offen")


class VM:
    def __init__(self, a):
        self.a = a
        self.q = []

    def issue(self, tag, n):
        self.q.append((tag, n))

    def wait(self, tag):
        idxs = [i for i, (t, n) in enumerate(self.q) if t == tag]
        if not idxs:
            return
        idx = max(idxs)
        rest = sum(n for t, n in self.q[idx + 1:])
        assert rest <= 63, rest
        self.a("s_waitcnt vmcnt(%d)" % rest)
        self.q = self.q[idx + 1:]

    def drain(self):
        self.a("s_waitcnt vmcnt(0)")
        self.q = []


def interleave(ms, rs):
    out = []
    ri = 0
    for m in ms:
        out.append(m)
        if ri < len(rs):
            out.append(rs[ri])
            ri += 1
    return out + rs[ri:]


def poll(a, vreg, vzero, sflg, soff, check, lbl, slp=4):
    Lp = a.newlabel(lbl + "_poll")
    Ld = a.newlabel(lbl + "_done")
    a("s_mov_b32 s31, 0x100000")
    a.label(Lp)
    a("buffer_load_dword v%d, v%d, s[%d:%d], %s offen sc1" % (vreg, vzero, sflg, sflg + 3, soff))
    a("s_waitcnt vmcnt(0)")
    a("v_readfirstlane_b32 s30, v%d" % vreg)
    a("s_nop 3")
    check(30)
    a("s_cbranch_scc1 %s" % Ld)
    a("s_sleep %d" % slp)
    a("s_sub_u32 s31, s31, 1")
    a("s_cmp_lg_u32 s31, 0")
    a("s_cbranch_scc1 %s" % Lp)
    a.label(Ld)


def lds_wait(a, vtmp, vaddr, off, val, lbl, slp=1):
    Lw = a.newlabel(lbl)
    Ld = a.newlabel(lbl + "d")
    a("s_mov_b32 s31, 0x1000000")
    a.label(Lw)
    a("ds_read_b32 v%d, v%d offset:%d" % (vtmp, vaddr, off))
    a("s_waitcnt lgkmcnt(0)")
    a("v_readfirstlane_b32 s30, v%d" % vtmp)
    a("s_sub_u32 s31, s31, 1")
    a("s_cbranch_scc1 %s" % Ld)
    a("s_nop 1")
    a("s_cmp_ge_u32 s30, %d" % val)
    a("s_cbranch_scc1 %s" % Ld)
    if slp:
        a("s_sleep %d" % slp)
    a("s_branch %s" % Lw)
    a.label(Ld)


def cmul_add(a, items):
    for (d, lr, li, s, ad) in items:
        if ad is None:
            a("v_mul_f32 v%d, v%d, v%d" % (d, lr, s))
        else:
            a("v_fma_f32 v%d, v%d, v%d, v%d" % (d, lr, s, ad))
    if len(items) < 2:
        a("s_nop 1")
    for (d, lr, li, s, ad) in items:
        a("v_fmac_f32_dpp v%d, v%d, v%d %s" % (d, s, li, DPP8))


def gelu_units(a, units, tmp, vK1, sK2, sLO, sHI, sMask):
    P = []
    for ui, (rA, rB, b, d) in enumerate(units):
        for h, r in enumerate((rA, rA + 2, rB, rB + 2)):
            P.append((r, b + 2 * h, d + h, tmp + 8 * ui + 2 * h))
    for (r, b, d, t) in P:
        a("v_cvt_pk_bf16_f32 v%d, v%d, v%d" % (d, r, r + 1))
    for (r, b, d, t) in P:
        a("v_dot2_f32_bf16 v%d, v%d, s%d, v%d" % (r, d, sLO, b))
        a("v_dot2_f32_bf16 v%d, v%d, s%d, v%d" % (r + 1, d, sHI, b + 1))
    a("s_nop 1")
    for (r, b, d, t) in P:
        a("v_cvt_pk_bf16_f32 v%d, v%d, v%d" % (d, r, r + 1))
    for (r, b, d, t) in P:
        a("v_lshlrev_b32 v%d, 16, v%d" % (r, d))
        a("v_and_b32 v%d, s%d, v%d" % (r + 1, sMask, d))
    for (r, b, d, t) in P:
        a("v_pk_mul_f32 v[%d:%d], v[%d:%d], v[%d:%d]" % (t, t + 1, r, r + 1, r, r + 1))
    for (r, b, d, t) in P:
        a("v_pk_fma_f32 v[%d:%d], v[%d:%d], s[%d:%d], v[%d:%d]" % (t, t + 1, t, t + 1, sK2, sK2 + 1, vK1, vK1 + 1))
    for (r, b, d, t) in P:
        a("v_pk_mul_f32 v[%d:%d], v[%d:%d], v[%d:%d]" % (t, t + 1, t, t + 1, r, r + 1))
    for (r, b, d, t) in P:
        a("v_exp_f32 v%d, v%d" % (t, t))
        a("v_exp_f32 v%d, v%d" % (t + 1, t + 1))
    a("s_nop 0")
    for (r, b, d, t) in P:
        a("v_pk_add_f32 v[%d:%d], v[%d:%d], 1.0" % (t, t + 1, t, t + 1))
    for (r, b, d, t) in P:
        a("v_rcp_f32 v%d, v%d" % (t, t))
        a("v_rcp_f32 v%d, v%d" % (t + 1, t + 1))
    a("s_nop 0")
    for (r, b, d, t) in P:
        a("v_pk_mul_f32 v[%d:%d], v[%d:%d], v[%d:%d]" % (r, r + 1, r, r + 1, t, t + 1))
    for (r, b, d, t) in P:
        a("v_cvt_pk_bf16_f32 v%d, v%d, v%d" % (d, r, r + 1))


def gen_uni(a):
    name = NAME + "_kernel"
    kernel_header(a, name)
    st = Stamper(a)
    Lend = a.newlabel("U_end")
    Lld = a.newlabel("U_ld")
    a("s_cmp_ge_u32 s2, 256")
    a("s_cbranch_scc1 %s" % Lend)
    if CODEPF:
        a("s_getpc_b64 s[4:5]")
        a.label("U_code_start")
        a("s_lshr_b32 s6, s2, 3")
        a("s_lshl_b32 s6, s6, 11")
        a("v_and_b32 v1, 15, v0")
        a("v_lshlrev_b32 v1, 7, v1")
        a("v_add_u32 v1, s6, v1")
        a("v_min_u32 v1, 0x%x, v1" % CODE_SIZE)
        a("v_cmp_gt_u32 vcc, 16, v0")
        a("s_and_saveexec_b64 s[6:7], vcc")
        a("s_cbranch_execz U_cpf")
        a("global_load_dword v30, v1, s[4:5]")
        a.label("U_cpf")
        a("s_mov_b64 exec, -1")
    a("s_load_dwordx16 s[32:47], s[0:1], 0")
    a("s_load_dwordx16 s[48:63], s[0:1], 64")
    a("s_load_dwordx2 s[10:11], s[0:1], 128")
    a("v_lshrrev_b32 v2, 6, v0")
    a("v_and_b32 v1, 63, v0")
    a("s_nop 0")
    a("v_readfirstlane_b32 s12, v2")
    a("s_lshr_b32 s20, s2, 3")
    a("s_and_b32 s21, s20, 7")
    a("s_lshr_b32 s20, s20, 3")
    a("s_and_b32 s13, s2, 1")
    a("s_lshl_b32 s13, s13, 3")
    a("s_add_u32 s13, s13, s21")
    a("s_lshr_b32 s14, s2, 1")
    a("s_and_b32 s14, s14, 3")
    a("s_lshl_b32 s14, s14, 2")
    a("s_add_u32 s14, s14, s20")
    a("s_and_b32 s15, s2, 3")
    a("s_lshl_b32 s15, s15, 3")
    a("s_add_u32 s15, s15, s21")
    a("s_lshr_b32 s16, s2, 2")
    a("s_and_b32 s16, s16, 1")
    a("s_lshl_b32 s16, s16, 2")
    a("s_add_u32 s16, s16, s20")
    a("s_and_b32 s17, s12, 3")
    a("s_and_b32 s18, s17, 1")
    a("s_lshr_b32 s19, s17, 1")
    a("v_lshrrev_b32 v2, 3, v1")
    a("v_and_b32 v3, 7, v1")
    a("v_lshrrev_b32 v6, 4, v1")
    a("v_and_b32 v7, 15, v1")
    a("v_xor_b32 v4, v6, v3")
    a("v_lshlrev_b32 v8, 7, v7")
    a("v_lshl_add_u32 v8, v4, 4, v8")
    a("v_xor_b32 v9, 64, v8")
    a("v_xor_b32 v4, v2, v3")
    a("s_waitcnt lgkmcnt(0)")
    srd_off(a, 76, 10, 11, WS_FLG, F_SIZE)
    a("v_mov_b32 v15, %d" % MISC)
    for i in range(4):
        a("v_mov_b32 v%d, 0" % (10 + i))
    a("ds_write_b128 v15, v[10:13]")
    a("ds_write_b128 v15, v[10:13] offset:16")
    a("s_waitcnt lgkmcnt(0)")
    a("s_barrier")
    st()
    srd(a, 92, P_DBG, P_DBG + 1, 256)
    a("v_mov_b32 v17, 0")
    n0 = st.n
    a("s_cmp_ge_u32 s12, 4")
    a("s_cbranch_scc1 %s" % Lld)
    X0, XF, S0 = 76, 88, 112
    a("s_lshl_b32 s20, s13, 7")
    a("s_lshl_b32 s21, s14, 3")
    a("s_add_u32 s20, s20, s21")
    a("s_lshl_b32 s21, s17, 1")
    a("s_add_u32 s20, s20, s21")
    a("s_mul_i32 s20, s20, 1280")
    a("s_lshl_b32 s21, s13, 7")
    a("s_lshr_b32 s22, s14, 2")
    a("s_lshl_b32 s22, s22, 5")
    a("s_add_u32 s21, s21, s22")
    a("s_lshl_b32 s22, s19, 4")
    a("s_add_u32 s21, s21, s22")
    a("s_and_b32 s22, s14, 3")
    a("s_lshl_b32 s22, s22, 2")
    a("s_add_u32 s21, s21, s22")
    a("s_lshl_b32 s22, s18, 1")
    a("s_add_u32 s21, s21, s22")
    a("s_mul_i32 s21, s21, 1280")
    a("s_add_u32 s21, s21, %d" % WS_XN)
    srd_off(a, 64, P_X, P_X + 1, "s20", 2560)
    srd_off(a, 68, 10, 11, "s21", 2560)
    a("v_lshrrev_b32 v11, 5, v1")
    a("v_and_b32 v12, 31, v1")
    a("v_mul_u32_u24 v10, 1280, v11")
    a("v_lshl_add_u32 v10, v12, 4, v10")
    a("v_cmp_gt_u32 s[26:27], 16, v12")
    a("v_mov_b32 v13, 0x10000")
    a("s_nop 0")
    a("v_cndmask_b32 v13, v13, v10, s[26:27]")
    a("buffer_load_dwordx4 v[%d:%d], v10, s[64:67], 0 offen" % (X0, X0 + 3))
    a("buffer_load_dwordx4 v[%d:%d], v10, s[64:67], 0 offen offset:512" % (X0 + 4, X0 + 7))
    a("buffer_load_dwordx4 v[%d:%d], v13, s[64:67], 0 offen offset:1024" % (X0 + 8, X0 + 11))
    a("s_mov_b32 s24, 0xffff0000")
    for i in range(12):
        if i == 0:
            a("s_waitcnt vmcnt(0)")
        a("v_lshlrev_b32 v%d, 16, v%d" % (XF + 2 * i, X0 + i))
        a("v_and_b32 v%d, s24, v%d" % (XF + 2 * i + 1, X0 + i))

    def pk(op, d, x, y, z=None):
        if z is None:
            a("v_pk_%s_f32 v[%d:%d], v[%d:%d], v[%d:%d]" % (op, d, d + 1, x, x + 1, y, y + 1))
        else:
            a("v_pk_%s_f32 v[%d:%d], v[%d:%d], v[%d:%d], v[%d:%d]" % (op, d, d + 1, x, x + 1, y, y + 1, z, z + 1))

    def allreduce32(r):
        for sh in (8, 4, 2, 1):
            a("s_nop 1")
            a("v_add_f32_dpp v%d, v%d, v%d row_ror:%d row_mask:0xf bank_mask:0xf" % (r, r, r, sh))
        a("ds_swizzle_b32 v%d, v%d offset:0x401F" % (r + 1, r))
        a("s_waitcnt lgkmcnt(0)")
        a("v_add_f32 v%d, v%d, v%d" % (r, r, r + 1))
    pk("add", S0, XF, XF + 2)
    pk("add", S0 + 2, XF + 4, XF + 6)
    for i in range(4, 12):
        pk("add", S0 + 2 * (i & 1), S0 + 2 * (i & 1), XF + 2 * i)
    pk("add", S0, S0, S0 + 2)
    a("v_add_f32 v%d, v%d, v%d" % (S0, S0, S0 + 1))
    allreduce32(S0)
    a("v_mul_f32 v%d, %s, v%d" % (S0, fh(-1.0 / 640), S0))
    a("v_mov_b32 v%d, v%d" % (S0 + 1, S0))
    for i in range(12):
        t = S0 + 4 + 2 * (i & 1)
        q = S0 + 8 + 2 * (i >> 3)
        pk("add", t, XF + 2 * i, S0)
        if i % 8 == 0:
            pk("mul", q, t, t)
        else:
            pk("fma", q, t, t, q)
    a("v_add_f32 v%d, v%d, v%d" % (S0 + 8, S0 + 8, S0 + 9))
    a("v_add_f32 v%d, v%d, v%d" % (S0 + 10, S0 + 10, S0 + 11))
    a("v_cndmask_b32 v%d, 0, v%d, s[26:27]" % (S0 + 10, S0 + 10))
    a("v_add_f32 v%d, v%d, v%d" % (S0 + 8, S0 + 8, S0 + 10))
    allreduce32(S0 + 8)
    V = S0 + 8
    a("v_mul_f32 v%d, %s, v%d" % (V, fh(1.0 / 640), V))
    a("v_cvt_pk_bf16_f32 v%d, v%d, v%d" % (S0 + 2, S0, V))
    a("v_lshlrev_b32 v%d, 16, v%d" % (S0, S0 + 2))
    a("v_mov_b32 v%d, v%d" % (S0 + 1, S0))
    a("v_and_b32 v%d, s24, v%d" % (V, S0 + 2))
    a("v_add_f32 v%d, %s, v%d" % (V, fh(1e-5), V))
    a("v_cvt_pk_bf16_f32 v%d, v%d, v%d" % (V, V, V))
    a("v_and_b32 v%d, s24, v%d" % (V, V))
    a("v_sqrt_f32 v%d, v%d" % (V, V))
    a("s_nop 0")
    a("v_cvt_pk_bf16_f32 v%d, v%d, v%d" % (V, V, V))
    a("v_and_b32 v%d, s24, v%d" % (V, V))
    RS = S0 + 4
    a("v_rcp_f32 v%d, v%d" % (RS, V))
    a("s_nop 0")
    a("v_fma_f32 v%d, -v%d, v%d, 1.0" % (RS + 2, V, RS))
    a("v_fma_f32 v%d, v%d, v%d, v%d" % (RS, RS + 2, RS, RS))
    a("v_mov_b32 v%d, v%d" % (RS + 1, RS))
    a("v_sub_f32 v%d, 0, v%d" % (V, V))
    a("v_mov_b32 v%d, v%d" % (V + 1, V))
    for i in range(12):
        pk("add", XF + 2 * i, XF + 2 * i, S0)
    for i in range(12):
        a("v_cvt_pk_bf16_f32 v%d, v%d, v%d" % (X0 + i, XF + 2 * i, XF + 2 * i + 1))
    Q = 124
    for i in range(12):
        x = XF + 2 * i
        q = Q + 4 * (i & 3)
        a("v_lshlrev_b32 v%d, 16, v%d" % (x, X0 + i))
        a("v_and_b32 v%d, s24, v%d" % (x + 1, X0 + i))
        pk("mul", q, x, RS)
        pk("fma", q + 2, q, V, x)
        pk("fma", q, q + 2, RS, q)
        a("v_cvt_pk_bf16_f32 v%d, v%d, v%d" % (X0 + i, q, q + 1))
    a("buffer_store_dwordx4 v[%d:%d], v10, s[68:71], 0 offen sc1" % (X0, X0 + 3))
    a("buffer_store_dwordx4 v[%d:%d], v10, s[68:71], 0 offen offset:512 sc1" % (X0 + 4, X0 + 7))
    a("buffer_store_dwordx4 v[%d:%d], v13, s[68:71], 0 offen offset:1024 sc1" % (X0 + 8, X0 + 11))
    st()
    a("s_waitcnt vmcnt(0)")
    a("v_mov_b32 v16, 1")
    a("v_cmp_eq_u32 vcc, 0, v1")
    a("s_and_saveexec_b64 s[26:27], vcc")
    a("ds_add_rtn_u32 v18, v15, v16")
    a("s_waitcnt lgkmcnt(0)")
    a("v_readfirstlane_b32 s20, v18")
    a("s_nop 3")
    Lns = a.newlabel("U_nsig")
    a("s_cmp_lg_u32 s20, 3")
    a("s_cbranch_scc1 %s" % Lns)
    lds_wait(a, 18, 15, 16, 1, "U_iw", 1)
    a("ds_read_b64 v[20:21], v15 offset:16")
    a("s_lshl_b32 s20, s13, 8")
    a("s_lshl_b32 s21, s14, 3")
    a("s_add_u32 s20, s20, s21")
    a("s_waitcnt lgkmcnt(0)")
    a("buffer_store_dwordx2 v[20:21], v17, s[76:79], s20 offen sc1")
    a.label(Lns)
    a("s_mov_b64 exec, -1")
    st()

    def signal(vd, vz, soff, op="add", val="1"):
        a("v_cmp_eq_u32 vcc, 0, v1")
        a("s_and_saveexec_b64 s[30:31], vcc")
        a("v_mov_b32 v%d, %s" % (vd, val))
        a("v_mov_b32 v%d, 0" % vz)
        a("buffer_atomic_%s v%d, v%d, s[76:79], %s offen" % (op, vd, vz, soff))
        a("s_mov_b64 exec, -1")

    def chk_ge(n):
        return lambda sr: a("s_cmp_ge_u32 s%d, %d" % (sr, n))

    def wait_init(vt, vz, sdbg):
        a("s_waitcnt vmcnt(0)")

    ACCF, BRAW, ACCS, ADR, CON = 16, 64, 140, 228, 16
    ACC2, ACC3 = 180, 140
    Lp0b = a.newlabel("U_p0b")
    Lp0c = a.newlabel("U_p0c")
    Lp0d = a.newlabel("U_p0d")
    np0 = st.n
    K = lambda c, k: CON + 11 * c + k
    a("s_cmp_lg_u32 s17, 0")
    a("s_cbranch_scc1 %s" % Lp0d)
    lds_wait(a, 18, 15, 16, 1, "U_iw", 1)
    a("ds_read_b64 v[20:21], v15 offset:16")
    a("s_lshl_b32 s24, s13, 8")
    a("v_lshlrev_b32 v19, 3, v7")
    a("s_mov_b32 s31, 0x100000")
    Lq = a.newlabel("U_xq")
    Lqd = a.newlabel("U_xqd")
    a.label(Lq)
    a("buffer_load_dwordx2 v[22:23], v19, s[76:79], s24 offen sc1")
    a("s_waitcnt vmcnt(0) lgkmcnt(0)")
    a("v_cmp_eq_u64 vcc, v[20:21], v[22:23]")
    a("s_nop 3")
    a("s_cmp_eq_u64 vcc, -1")
    a("s_cbranch_scc1 %s" % Lqd)
    a("s_sleep 2")
    a("s_sub_u32 s31, s31, 1")
    a("s_cmp_lg_u32 s31, 0")
    a("s_cbranch_scc1 %s" % Lq)
    a.label(Lqd)
    a("ds_write_b32 v15, v16 offset:4")
    a.label(Lp0d)
    srd(a, 80, P_B1, P_B1 + 1, 3072)
    a("s_mul_i32 s21, s14, 192")
    a("v_lshlrev_b32 v11, 3, v6")
    for nt in range(6):
        a("buffer_load_dwordx2 v[%d:%d], v11, s[80:83], s21 offen offset:%d" % (BRAW + 2 * nt, BRAW + 2 * nt + 1, nt * 32))

    a("v_lshrrev_b32 v10, 2, v7")
    a("v_and_b32 v11, 3, v7")
    a("v_lshrrev_b32 v12, 1, v6")
    a("v_and_b32 v13, 1, v6")
    a("v_lshlrev_b32 v12, 4, v12")
    a("v_lshl_add_u32 v12, v13, 2, v12")
    a("v_add_u32 v12, v12, v10")
    a("v_lshlrev_b32 v12, 6, v12")
    a("v_lshl_add_u32 v12, v13, 5, v12")
    a("v_lshl_add_u32 v12, v11, 3, v12")
    a("v_xor_b32 v13, 32, v12")
    a("s_lshl_b32 s20, s17, 12")
    for sl in range(NS):
        a("s_add_u32 s21, s20, %d" % (sl * SLOT))
        a("v_add_u32 v%d, s21, v8" % (ADR + 6 * sl))
        a("v_add_u32 v%d, s21, v9" % (ADR + 6 * sl + 1))
        a("v_add_u32 v%d, %d, v12" % (ADR + 6 * sl + 2, sl * SLOT + 16384))
        a("v_add_u32 v%d, %d, v13" % (ADR + 6 * sl + 3, sl * SLOT + 16384))
        a("v_add_u32 v%d, %d, v8" % (ADR + 6 * sl + 4, sl * SLOT + 16384))
        a("v_add_u32 v%d, %d, v9" % (ADR + 6 * sl + 5, sl * SLOT + 16384))
    a("v_lshlrev_b32 v5, 2, v7")
    a("s_waitcnt lgkmcnt(0)")

    def nsub(s):
        return 4 if 20 <= s < 32 else 2

    def fbase(s, sset):
        if s < 20:
            return 76 + 32 * sset
        if s < 32:
            return 76 + 24 * sset
        return (16, 76)[sset]

    def reads(s, sub, sset):
        sl = s % NS
        A = ADR + 6 * sl
        b0 = fbase(s, sset)
        out = []
        if s < 10:
            b = b0
            for k, i in [("N", 0), ("T", 0), ("T", 1), ("N", 1), ("N", 2), ("N", 3), ("N", 4), ("N", 5)]:
                if k == "T":
                    out.append("ds_read_b128 v[%d:%d], v%d offset:%d" % (b + 4 * i, b + 4 * i + 3, A + sub, i * 2048))
                else:
                    o = (i >> 1) * 4096 + sub * 2048
                    r = b + 8 + 4 * i
                    out.append("ds_read_b64_tr_b16 v[%d:%d], v%d offset:%d" % (r, r + 1, A + 2 + (i & 1), o))
                    out.append("ds_read_b64_tr_b16 v[%d:%d], v%d offset:%d" % (r + 2, r + 3, A + 2 + (i & 1), o + 512))
        elif s < 20:
            b = b0
            for k, i in [("N", 0), ("T", 0), ("T", 1), ("N", 1), ("N", 2), ("N", 3), ("N", 4)]:
                if k == "T":
                    out.append("ds_read_b128 v[%d:%d], v%d offset:%d" % (b + 4 * i, b + 4 * i + 3, A + sub, i * 2048))
                else:
                    out.append("ds_read_b128 v[%d:%d], v%d offset:%d" % (b + 8 + 4 * i, b + 11 + 4 * i, A + 4 + sub, i * 2048))
        else:
            steps = [(sub >> 1, sub & 1, b0)] if s < 32 else [(sub, 0, b0), (sub, 1, b0 + 24)]
            for (sb, ks, b) in steps:
                so = sb * SUB
                for k, i in [("D", 0), ("T", 0), ("D", 1), ("D", 2), ("D", 3), ("D", 4)]:
                    if k == "T":
                        if s < 32:
                            out.append("ds_read_b128 v[%d:%d], v%d offset:%d" % (b, b + 3, A + ks, so))
                        else:
                            out.append("ds_read_b64_tr_b16 v[%d:%d], v%d offset:%d" % (b, b + 1, A + 2, so + ks * 4096))
                            out.append("ds_read_b64_tr_b16 v[%d:%d], v%d offset:%d" % (b + 2, b + 3, A + 2, so + ks * 4096 + 512))
                    else:
                        out.append("ds_read_b128 v[%d:%d], v%d offset:%d" % (b + 4 + 4 * i, b + 7 + 4 * i, A + 4 + ks, so + i * 2048))
        return out

    def mf(d, av, bv, first):
        return "v_mfma_f32_16x16x32_bf16 v[%d:%d], v[%d:%d], v[%d:%d], %s" % (
            d, d + 3, av, av + 3, bv, bv + 3, "0" if first else "v[%d:%d]" % (d, d + 3))

    def mfmas(s, sub, sset):
        out = []
        b = fbase(s, sset)
        if s < 10:
            for nt in range(6):
                for j in range(2):
                    out.append(mf(ACCF + (j * 6 + nt) * 4, b + 8 + 4 * nt, b + 4 * j, s == 0 and sub == 0))
        elif s < 20:
            for c in range(5):
                for j in range(2):
                    out.append(mf(ACCS + (c * 2 + j) * 4, b + 4 * j, b + 8 + 4 * c, s == 10 and sub == 0))
        elif s < 32:
            for dt in range(5):
                out.append(mf(ACC2 + dt * 4, b + 4 + 4 * dt, b, s == 20 and sub == 0))
        else:
            for ks in range(2):
                for dt in range(5):
                    out.append(mf(ACC3 + dt * 4, b + 24 * ks + 4 + 4 * dt, b + 24 * ks, s == 32 and sub == 0 and ks == 0))
        return out

    class BG:
        def __init__(self):
            self.q = []
            self.cur = None

        def __call__(self, line):
            Asm()(line)
            if self.cur is not None:
                self.cur.append("    " + line)
            else:
                self.q.append(["    " + line])

        def label(self, name):
            self.cur.append(name + ":")

        def newlabel(self, p):
            return a.newlabel(p)

        def begin(self):
            self.cur = []

        def end(self):
            self.q.append(self.cur)
            self.cur = None

        def bar(self, n=1):
            self.q.append(("BAR", n))

        def at(self, s):
            self.q.append(("AT", s))

        def emit(self, budget, s):
            while self.q and budget > 0:
                h = self.q[0]
                if isinstance(h, tuple):
                    if h[0] == "AT" and s >= h[1]:
                        self.q.pop(0)
                        continue
                    return
                a.lines += h
                budget -= len(h)
                self.q.pop(0)

        def barrier_passed(self):
            if self.q and isinstance(self.q[0], tuple) and self.q[0][0] == "BAR":
                n = self.q[0][1] - 1
                self.q.pop(0)
                if n > 0:
                    self.q.insert(0, ("BAR", n))
    b = BG()

    def bsignal(vd, vz, soff, op="add", val="1"):
        b("v_cmp_eq_u32 vcc, 0, v1")
        b("s_and_saveexec_b64 s[30:31], vcc")
        b("v_mov_b32 v%d, %s" % (vd, val))
        b("v_mov_b32 v%d, 0" % vz)
        b("buffer_atomic_%s v%d, v%d, s[76:79], %s offen" % (op, vd, vz, soff))
        b("s_mov_b64 exec, -1")
        b("s_nop 3")

    b.at(10)
    b("s_waitcnt vmcnt(0)")
    b("s_lshl_b32 s24, s13, 1")
    b("s_add_u32 s24, s24, s19")
    b("s_lshl_b32 s29, s24, 8")
    b("s_add_u32 s29, s29, %d" % F_H1)
    b("s_mul_i32 s24, s24, 196608")
    b("s_mul_i32 s25, s14, 12288")
    b("s_add_u32 s24, s24, s25")
    b("s_lshl_b32 s25, s18, 11")
    b("s_add_u32 s24, s24, s25")
    b("s_add_u32 s24, s24, %d" % WS_H1)
    b.begin()
    srd_off(b, 20, 10, 11, "s24", 12288)
    b.end()
    b("v_lshrrev_b32 v10, 2, v7")
    b("v_and_b32 v11, 3, v7")
    b("v_lshl_add_u32 v10, v10, 3, v11")
    b("v_lshlrev_b32 v10, 6, v10")
    b("v_lshl_add_u32 v10, v6, 4, v10")
    b("s_mov_b32 s24, 0xffff0000")
    b("s_mov_b32 s25, 0x00003f80")
    b("s_mov_b32 s26, %s" % fh(-2 * math.sqrt(2 / math.pi) * LOG2E * 0.044715))
    b("s_mov_b32 s27, s26")
    b("s_mov_b32 s28, 0x3f800000")
    b("v_mov_b32 v12, %s" % fh(-2 * math.sqrt(2 / math.pi) * LOG2E))
    b("v_mov_b32 v13, v12")
    BF, DST, TMP = 180, 188, 212
    for aa in range(3):
        for i in range(4):
            b("v_lshlrev_b32 v%d, 16, v%d" % (BF + 2 * i, BRAW + 4 * aa + i))
            b("v_and_b32 v%d, s24, v%d" % (BF + 2 * i + 1, BRAW + 4 * aa + i))
        d0 = DST + 8 * aa
        units = [(ACCF + (j * 6 + 2 * aa) * 4, ACCF + (j * 6 + 2 * aa + 1) * 4, BF, d0 + 4 * j) for j in range(2)]
        gelu_units(b, units, TMP, 12, 26, 25, 28, 24)
        b("s_mov_b32 s88, %d" % (aa * 4096))
        for j in range(2):
            b("buffer_store_dwordx4 v[%d:%d], v10, s[20:23], s88 offen offset:%d sc1" % (d0 + 4 * j, d0 + 4 * j + 3, j * 256))
    b("v_mul_u32_u24 v14, 48, v7")
    b("v_add_u32 v14, %d, v14" % (MISC + 2048))
    b("s_mul_i32 s20, s17, 2560")
    b("s_add_u32 s20, s20, %d" % (MISC + 6144))
    b("v_lshl_add_u32 v13, v1, 3, s20")
    for c in range(5):
        for k in range(8):
            b("ds_read_b32 v%d, v14 offset:%d" % (K(c, k), c * 768 + k * 4))
        b("ds_read_b32 v%d, v13 offset:%d" % (K(c, 8), c * 512))
        b("ds_read_b32 v%d, v13 offset:%d" % (K(c, 9), c * 512 + 4))
    b.bar(1)
    b.begin()
    b("s_waitcnt vmcnt(0)")
    bsignal(10, 11, "s29")
    b.end()
    b.bar(1)
    EB = MISC + 6144
    b("s_mul_i32 s20, s17, 1280")
    b("s_add_u32 s20, s20, %d" % EB)
    b("v_lshl_add_u32 v13, v1, 2, s20")
    b("v_mov_b32 v12, 0")
    for i in range(5):
        b("ds_write_b32 v13, v12 offset:%d" % (i * 256))

    b.at(20)
    G = lambda c, i: ACCS + c * 8 + i
    EQ = lambda c, q: 200 + 4 * c + q
    EWL = list(range(124, 140)) + list(range(220, 224))
    EW = lambda c, q: EWL[4 * c + q]
    TM = 71
    for i in range(8):
        for c in range(5):
            b("v_mul_f32 v%d, v%d, v%d" % (TM + c, K(c, 2), G(c, i)))
        for c in range(5):
            b("v_fmac_f32_dpp v%d, v%d, v%d %s" % (TM + c, G(c, i), K(c, 3), DPP8))
        if i == 0:
            for c in range(5):
                b("v_mov_b32 v%d, v%d" % (G(c, 0), TM + c))
        else:
            for c in range(5):
                b("v_fma_f32 v%d, v%d, v%d, v%d" % (G(c, i), K(c, 0), G(c, i - 1), TM + c))
            for c in range(5):
                b("v_fmac_f32_dpp v%d, v%d, v%d %s" % (G(c, i), G(c, i - 1), K(c, 1), DPP8))
    for q in range(4):
        b("v_add_u32 v%d, %d, v5" % (10 + q, q * 64))
    for q in range(4):
        for c in range(5):
            b("ds_bpermute_b32 v%d, v%d, v%d" % (EQ(c, q), 10 + q, G(c, 7)))
    b("s_waitcnt lgkmcnt(0)")
    cmul_add(b, [(EW(c, 1), K(c, 4), K(c, 5), EQ(c, 0), EQ(c, 1)) for c in range(5)])
    for q in range(2, 4):
        cmul_add(b, [(EW(c, q), K(c, 4), K(c, 5), EW(c, q - 1), EQ(c, q)) for c in range(5)])
    b("s_mul_i32 s20, s17, 320")
    b("s_add_u32 s20, s20, %d" % (MISC + 256))
    b("v_add_u32 v%d, s20, v5" % TM)
    for c in range(5):
        b("ds_write_b32 v%d, v%d offset:%d" % (TM, EW(c, 3), c * 64))
    b.bar(1)
    if L2T:
        b("s_lshr_b32 s20, s2, 6")
        b("s_lshl_b32 s20, s20, 2")
        b("s_add_u32 s20, s20, s17")
        b("s_mul_i32 s20, s20, 12288")
        b("s_mul_i32 s21, s15, 196608")
        b("s_add_u32 s20, s20, s21")
        b("s_add_u32 s20, s20, %d" % WS_H1)
        b.begin()
        srd_off(b, 64, 10, 11, "s20", 12288)
        b.end()
        b("v_lshlrev_b32 v224, 7, v1")
        b("s_movk_i32 s21, 8192")
        b("buffer_load_dword v225, v224, s[64:67], 0 offen sc1")
        b("buffer_load_dword v226, v224, s[64:67], s21 offen sc1")
        b("s_lshr_b32 s20, s2, 3")
        b("s_and_b32 s20, s20, 7")
        b("s_lshl_b32 s20, s20, 2")
        b("s_add_u32 s20, s20, s17")
        b("s_mul_i32 s22, s20, 7680")
        b("s_mul_i32 s21, s16, 245760")
        b("s_add_u32 s22, s22, s21")
        b("s_add_u32 s22, s22, %d" % WS_W2T)
        b.begin()
        srd_off(b, 64, 10, 11, "s22", 7680)
        b.end()
        b("buffer_load_dword v227, v224, s[64:67], 0 offen sc1")
    b("v_add_u32 v%d, %d, v5" % (TM, MISC + 256))
    for w in range(4):
        for c in range(5):
            b("ds_read_b32 v%d, v%d offset:%d" % (EW(c, w), TM, w * 320 + c * 64))
    b("s_mul_i32 s20, s14, 5120")
    b("s_add_u32 s20, s20, %d" % WS_ET)
    b.begin()
    srd_off(b, 68, 10, 11, "s20", 5120)
    b.end()
    b("s_waitcnt lgkmcnt(0)")
    for w in range(1, 4):
        cmul_add(b, [(EW(c, w), K(c, 6), K(c, 7), EW(c, w - 1), EW(c, w)) for c in range(5)])
    b.begin()
    Lnp = a.newlabel("U_nopub")
    b("s_cmp_lg_u32 s17, 0")
    b("s_cbranch_scc1 %s" % Lnp)
    b("s_mul_i32 s20, s13, 320")
    b("v_cmp_gt_u32 vcc, 16, v1")
    b("s_and_saveexec_b64 s[30:31], vcc")
    for c in range(5):
        b("buffer_store_dword v%d, v5, s[68:71], s20 offen offset:%d sc1" % (EW(c, 3), c * 64))
    b("s_mov_b64 exec, -1")
    b("s_nop 3")
    b.label(Lnp)
    b.end()
    for w in range(1, 4):
        b.begin()
        b("s_cmp_eq_u32 s17, %d" % w)
        b("s_cselect_b64 s[%d:%d], -1, 0" % (80 + 2 * w, 81 + 2 * w))
        b.end()
    for c in range(5):
        b("v_cndmask_b32 v%d, 0, v%d, s[82:83]" % (K(c, 10), EW(c, 0)))
    for c in range(5):
        b("v_cndmask_b32 v%d, v%d, v%d, s[84:85]" % (K(c, 10), K(c, 10), EW(c, 1)))
    for c in range(5):
        b("v_cndmask_b32 v%d, v%d, v%d, s[86:87]" % (K(c, 10), K(c, 10), EW(c, 2)))
    cmul_add(b, [(EW(c, 0), K(c, 4), K(c, 5), K(c, 10), EQ(c, 0)) for c in range(5)])
    for q in range(1, 3):
        cmul_add(b, [(EW(c, q), K(c, 4), K(c, 5), EW(c, q - 1), EQ(c, q)) for c in range(5)])
    b.begin()
    Lnp = a.newlabel("U_nosig")
    b("s_cmp_lg_u32 s17, 0")
    b("s_cbranch_scc1 %s" % Lnp)
    b("s_waitcnt vmcnt(0)")
    b("s_lshl_b32 s20, 1, s13")
    b("s_lshl_b32 s21, s14, 8")
    b("s_add_u32 s21, s21, %d" % F_E)
    bsignal(TM, TM + 1, "s21", "or", "s20")
    b.label(Lnp)
    b.end()
    b("v_cmp_eq_u32 s[82:83], 1, v6")
    b("v_cmp_eq_u32 s[84:85], 2, v6")
    b("v_cmp_eq_u32 s[86:87], 3, v6")
    b("s_nop 1")
    for q in range(3):
        for c in range(5):
            b("v_cndmask_b32 v%d, v%d, v%d, s[%d:%d]" % (K(c, 10), K(c, 10), EW(c, q), 82 + 2 * q, 83 + 2 * q))
    for c in range(5):
        for k in range(4):
            b("ds_read_b32 v%d, v14 offset:%d" % (K(c, 4 + k), c * 768 + 32 + k * 4))
    b("s_lshl_b32 s20, s13, 1")
    b("s_add_u32 s20, s20, s19")
    b("s_lshl_b32 s29, s20, 8")
    b("s_add_u32 s29, s29, %d" % F_HT)
    b("s_mul_i32 s20, s20, 163840")
    b("s_mul_i32 s21, s18, 81920")
    b("s_add_u32 s20, s20, s21")
    b("s_add_u32 s20, s20, %d" % WS_HT)
    b.begin()
    srd_off(b, 72, 10, 11, "s20", 81920)
    b.end()
    b("v_lshrrev_b32 v%d, 3, v7" % TM)
    b("v_mul_u32_u24 v%d, 640, v%d" % (TM + 1, TM))
    b("v_add_u32 v%d, v%d, v3" % (TM + 1, TM + 1))
    b("v_lshlrev_b32 v%d, 6, v%d" % (TM + 1, TM + 1))
    b("v_lshl_add_u32 v%d, v6, 4, v%d" % (TM + 1, TM + 1))
    b("v_mul_u32_u24 v%d, 0x8000, v%d" % (TM, TM))
    b("v_lshl_add_u32 v%d, v%d, 16, v%d" % (TM, TM, TM))
    b("s_mul_i32 s20, s14, 2560")
    b("v_lshl_add_u32 v%d, v6, 2, s13" % (TM + 2))
    b("v_mul_u32_u24 v%d, 320, v%d" % (TM + 2, TM + 2))
    b("v_add_u32 v%d, v%d, v5" % (TM + 2, TM + 2))
    b("v_add_u32 v%d, %d, v%d" % (TM + 2, EB, TM + 2))
    b.at(ESTAGE + 0.5)
    for e in range(4):
        for c in range(5):
            b("ds_read_b32 v%d, v%d offset:%d" % (EW(c, e), TM + 2, e * 320 + c * 64))
    b("s_waitcnt lgkmcnt(0)")
    for e in range(1, 4):
        cmul_add(b, [(EW(c, e), K(c, 4), K(c, 5), EW(c, e - 1), EW(c, e)) for c in range(5)])
    b("s_nop 0")
    for c in range(5):
        for q in range(4):
            b("ds_bpermute_b32 v%d, v%d, v%d" % (EQ(c, q), 10 + q, EW(c, 3)))
    b("s_waitcnt lgkmcnt(0)")
    for q in range(1, 4):
        cmul_add(b, [(EQ(c, q), K(c, 6), K(c, 7), EQ(c, q - 1), EQ(c, q)) for c in range(5)])
    cmul_add(b, [(K(c, 10), K(c, 8), K(c, 9), EQ(c, 3), K(c, 10)) for c in range(5)])
    CC = lambda c, i: 124 + 2 * c + i
    for i in range(8):
        cmul_add(b, [(CC(c, i & 1), K(c, 0), K(c, 1), K(c, 10) if i == 0 else CC(c, (i - 1) & 1), None) for c in range(5)])
        if i & 1:
            for c in range(5):
                u = G(c, i - 1)
                b("v_pk_add_f32 v[%d:%d], v[%d:%d], v[%d:%d]" % (u, u + 1, u, u + 1, CC(c, 0), CC(c, 1)))
    for c in range(5):
        for j in range(4):
            b("v_cvt_pk_bf16_f32 v%d, v%d, v%d" % (EQ(c, j), G(c, 2 * j), G(c, 2 * j + 1)))
    for c in range(5):
        for j in range(4):
            b("v_xor_b32 v%d, v%d, v%d" % (EQ(c, j), TM, EQ(c, j)))
        b("buffer_store_dwordx4 v[%d:%d], v%d, s[72:75], s20 offen offset:%d sc1" % (EQ(c, 0), EQ(c, 3), TM + 1, c * 512))
    b("s_lshl_b32 s21, s15, 6")
    b("s_lshl_b32 s22, s17, 4")
    b("s_add_u32 s21, s21, s22")
    b("s_mul_i32 s22, s21, 1280")
    b("s_mul_i32 s23, s16, 160")
    b("s_add_u32 s22, s22, s23")
    b.begin()
    srd(b, 80, P_OUT, P_OUT + 1, 2048 * 2560)
    b.end()
    b("v_mul_u32_u24 v15, 2560, v7")
    b("v_lshl_add_u32 v15, v6, 4, v15")
    b("s_lshl_b32 s27, s22, 1")
    b("s_mov_b32 s20, 0xffff0000")
    b("s_mov_b32 s21, 0x00003f80")
    b("s_mov_b32 s26, 0x3f800000")
    b("s_mov_b32 s88, %s" % fh(-LOG2E))
    b("s_mov_b32 s89, s88")
    b("v_lshlrev_b32 v14, 3, v6")
    b("v_add_u32 v14, %d, v14" % (MISC + 1536))
    b("s_mul_i32 s22, s17, 2560")
    b("s_add_u32 s22, s22, %d" % (2 * SLOT))
    b("v_mul_u32_u24 v10, 160, v7")
    b("v_lshl_add_u32 v10, v6, 3, v10")
    b("v_add_u32 v10, s22, v10")
    b.bar(1)
    b.begin()
    b("s_waitcnt vmcnt(0)")
    bsignal(12, 13, "s29")
    b.end()
    if L2T:
        b("s_lshr_b32 s22, s2, 3")
        b("s_and_b32 s22, s22, 7")
        b("s_lshl_b32 s22, s22, 1")
        b("s_add_u32 s22, s22, s18")
        b("s_mul_i32 s22, s22, 6400")
        b("s_mul_i32 s23, s16, 102400")
        b("s_add_u32 s22, s22, s23")
        b.begin()
        b("s_cmp_eq_u32 s19, 0")
        b("s_cselect_b32 s24, s%d, s%d" % (P_CRE, P_CIM))
        b("s_cselect_b32 s25, s%d, s%d" % (P_CRE + 1, P_CIM + 1))
        srd_off(b, 64, 24, 25, "s22", 6400)
        b.end()
        b("buffer_load_dword v225, v224, s[64:67], 0 offen")
    T0, T1, PK = 160, 200, 64
    DFL = list(range(124, 140)) + list(range(220, 224))
    b.at(32.5)
    for dt in range(5):
        b("ds_read_b64 v[%d:%d], v14 offset:%d" % (PK + 2 * dt, PK + 2 * dt + 1, dt * 32))
        b("ds_read_b64 v[%d:%d], v14 offset:%d" % (T0 + 2 * dt, T0 + 2 * dt + 1, 256 + dt * 32))
    b("s_waitcnt lgkmcnt(0)")
    for i in range(10):
        b("v_lshlrev_b32 v%d, 16, v%d" % (T1 + 2 * i, PK + i))
        b("v_and_b32 v%d, s20, v%d" % (T1 + 2 * i + 1, PK + i))
        b("v_lshlrev_b32 v%d, 16, v%d" % (DFL[2 * i], T0 + i))
        b("v_and_b32 v%d, s20, v%d" % (DFL[2 * i + 1], T0 + i))
    for i in range(10):
        b("v_cvt_pk_bf16_f32 v%d, v%d, v%d" % (PK + i, ACC2 + 2 * i, ACC2 + 2 * i + 1))
    for i in range(10):
        b("v_dot2_f32_bf16 v%d, v%d, s21, v%d" % (ACC2 + 2 * i, PK + i, T1 + 2 * i))
        b("v_dot2_f32_bf16 v%d, v%d, s26, v%d" % (ACC2 + 2 * i + 1, PK + i, T1 + 2 * i + 1))
    b("s_nop 1")
    for i in range(10):
        b("v_cvt_pk_bf16_f32 v%d, v%d, v%d" % (PK + i, ACC2 + 2 * i, ACC2 + 2 * i + 1))
    for i in range(10):
        b("v_lshlrev_b32 v%d, 16, v%d" % (ACC2 + 2 * i, PK + i))
        b("v_and_b32 v%d, s20, v%d" % (ACC2 + 2 * i + 1, PK + i))
    for i in range(10):
        b("v_pk_mul_f32 v[%d:%d], v[%d:%d], s[88:89]" % (T0 + 2 * i, T0 + 2 * i + 1, ACC2 + 2 * i, ACC2 + 2 * i + 1))
    for i in range(20):
        b("v_exp_f32 v%d, v%d" % (T0 + i, T0 + i))
    b("s_nop 0")
    for i in range(10):
        b("v_pk_add_f32 v[%d:%d], v[%d:%d], 1.0" % (T0 + 2 * i, T0 + 2 * i + 1, T0 + 2 * i, T0 + 2 * i + 1))
    for i in range(20):
        b("v_rcp_f32 v%d, v%d" % (T0 + i, T0 + i))
    b("s_nop 0")
    for i in range(10):
        b("v_pk_mul_f32 v[%d:%d], v[%d:%d], v[%d:%d]" % (ACC2 + 2 * i, ACC2 + 2 * i + 1, ACC2 + 2 * i, ACC2 + 2 * i + 1, T0 + 2 * i, T0 + 2 * i + 1))
    for i in range(10):
        b("v_cvt_pk_bf16_f32 v%d, v%d, v%d" % (PK + i, ACC2 + 2 * i, ACC2 + 2 * i + 1))
    for i in range(10):
        b("v_lshlrev_b32 v%d, 16, v%d" % (T0 + 2 * i, PK + i))
        b("v_and_b32 v%d, s20, v%d" % (T0 + 2 * i + 1, PK + i))
    b.at(41.5)
    RX, RN = 200, 64
    for dt in range(5):
        b("ds_read_b64 v[%d:%d], v10 offset:%d" % (RN + 2 * dt, RN + 2 * dt + 1, 10240 + dt * 32))
    for dt in range(5):
        b("ds_read_b64 v[%d:%d], v10 offset:%d" % (RX + 2 * dt, RX + 2 * dt + 1, dt * 32))
    b("s_waitcnt lgkmcnt(0)")
    for i in range(10):
        b("v_lshlrev_b32 v%d, 16, v%d" % (ACC2 + 2 * i, RN + i))
        b("v_and_b32 v%d, s20, v%d" % (ACC2 + 2 * i + 1, RN + i))
    for i in range(10):
        b("v_pk_mul_f32 v[%d:%d], v[%d:%d], v[%d:%d]" % (ACC2 + 2 * i, ACC2 + 2 * i + 1, ACC2 + 2 * i, ACC2 + 2 * i + 1, DFL[2 * i], DFL[2 * i + 1]))
    for i in range(10):
        b("v_cvt_pk_bf16_f32 v%d, v%d, v%d" % (RN + i, ACC2 + 2 * i, ACC2 + 2 * i + 1))
    for i in range(10):
        b("v_lshlrev_b32 v%d, 16, v%d" % (ACC2 + 2 * i, RN + i))
        b("v_and_b32 v%d, s20, v%d" % (ACC2 + 2 * i + 1, RN + i))
    for i in reversed(range(10)):
        b("v_and_b32 v%d, s20, v%d" % (T1 + 2 * i + 1, RX + i))
        b("v_lshlrev_b32 v%d, 16, v%d" % (T1 + 2 * i, RX + i))

    def p23_addr():
        t0, t1, t2 = 10, 11, 12
        a("v_lshrrev_b32 v%d, 2, v7" % t0)
        a("v_and_b32 v%d, 3, v7" % t1)
        a("v_lshl_add_u32 v%d, v6, 3, v%d" % (t2, t0))
        a("v_lshlrev_b32 v%d, 7, v%d" % (t2, t2))
        a("v_lshl_add_u32 v%d, v%d, 3, v%d" % (t2, t1, t2))
        a("v_lshrrev_b32 v%d, 1, v%d" % (t0, t0))
        a("v_and_b32 v%d, 1, v6" % t1)
        a("v_lshl_add_u32 v%d, v%d, 1, v%d" % (t0, t1, t0))
        a("v_xor_b32 v%d, s17, v%d" % (t0, t0))
        a("v_lshl_add_u32 v%d, v%d, 5, v%d" % (t2, t0, t2))
        a("s_lshl_b32 s20, s17, 11")
        for sl in range(NS):
            a("s_add_u32 s21, s20, %d" % (sl * SLOT))
            a("v_add_u32 v%d, s21, v8" % (ADR + 6 * sl))
            a("v_add_u32 v%d, s21, v9" % (ADR + 6 * sl + 1))
            a("v_add_u32 v%d, %d, v%d" % (ADR + 6 * sl + 2, sl * SLOT, t2))
            a("v_add_u32 v%d, %d, v8" % (ADR + 6 * sl + 4, sl * SLOT + 8192))
            a("v_add_u32 v%d, %d, v9" % (ADR + 6 * sl + 5, sl * SLOT + 8192))

    def rate(s):
        if s < 20:
            return RATE1
        if s < 32:
            return RATE2
        return RATE3

    def run(s0, s1):
        st()
        a("s_waitcnt lgkmcnt(0)")
        a("s_barrier")
        b.barrier_passed()
        st()
        for r in reads(s0, 0, 0):
            a(r)
        for s in range(s0, s1):
            n = nsub(s)
            for sub in range(n):
                cur = sub & 1
                pos = s
                a("s_waitcnt lgkmcnt(0)")
                if sub == n - 1:
                    a("s_barrier")
                    b.barrier_passed()
                    pos = s + 0.5
                    if s == 31:
                        assert b.q[0] == ("AT", 32.5), b.q[0]
                    if os.environ.get("BGDBG"):
                        print("after B_%d: queue len %d head %s" % (s, len(b.q), b.q[0] if b.q else None))
                    if STAMP and s % 2 == 1:
                        st()
                    rs = reads(s + 1, 0, 1 - cur) if s + 1 < s1 else []
                else:
                    rs = reads(s, sub + 1, 1 - cur)
                per, burst = rate(s)
                ms = mfmas(s, sub, cur)
                ri = 0
                step = max(1, -(-len(rs) // len(ms)))
                for m in ms:
                    a(m)
                    for r in rs[ri:ri + step]:
                        a(r)
                    ri += step
                    b.emit(per, pos)
                for r in rs[ri:]:
                    a(r)
                b.emit(burst, pos)
    if CPRIO:
        a("s_setprio %d" % CPRIO)
    run(0, 20)
    b.emit(10000, 19.9)
    assert isinstance(b.q[0], tuple) and b.q[0] == ("AT", 20), b.q[0]
    p23_addr()
    a("s_nop 4")
    b.emit(PRE20, 20)
    run(20, 42)
    b.emit(10000, 42)
    assert not b.q, b.q[0]
    st()
    a("s_nop 7")
    for i in range(10):
        r = ACC3 + 2 * i
        a("v_pk_fma_f32 v[%d:%d], v[%d:%d], 2.0, v[%d:%d]" % (r, r + 1, r, r + 1, ACC2 + 2 * i, ACC2 + 2 * i + 1))
    for i in range(10):
        r = ACC3 + 2 * i
        a("v_pk_mul_f32 v[%d:%d], v[%d:%d], v[%d:%d]" % (r, r + 1, r, r + 1, T0 + 2 * i, T0 + 2 * i + 1))
    for i in range(10):
        r = ACC3 + 2 * i
        a("v_pk_add_f32 v[%d:%d], v[%d:%d], v[%d:%d]" % (r, r + 1, r, r + 1, T1 + 2 * i, T1 + 2 * i + 1))
    for dt in range(5):
        a("buffer_store_dwordx4 v[%d:%d], v15, s[80:83], s27 offen offset:%d %s" % (ACC3 + 4 * dt, ACC3 + 4 * dt + 3, dt * 64, OUTFLAG))
    st.flush()
    a("s_endpgm")

    a.label(Lld)
    st.n = n0
    vm = VM(a)
    a("s_cmp_lg_u32 s17, 0")
    a("s_cbranch_scc1 U_lp0a")
    Lni = a.newlabel("U_noinit")
    a("s_cmp_lg_u32 s2, 0")
    a("s_cbranch_scc1 %s" % Lni)
    a("s_memrealtime s[24:25]")
    a("s_waitcnt lgkmcnt(0)")
    a("s_or_b32 s24, s24, 1")
    a("v_mov_b32 v20, s24")
    a("v_mov_b32 v21, s25")
    a("buffer_store_dwordx2 v[20:21], v17, s[92:95], 0 offen sc1")
    a("v_lshlrev_b32 v18, 8, v1")
    a("v_add_u32 v18, 4096, v18")
    a("s_movk_i32 s24, 16384")
    a("buffer_store_dword v17, v18, s[76:79], 0 offen sc1")
    a("buffer_store_dword v17, v18, s[76:79], s24 offen sc1")
    a("s_waitcnt vmcnt(0)")
    a("v_mov_b32 v18, 1")
    a("buffer_store_dword v18, v17, s[92:95], 0 offen offset:8 sc1")
    a.label(Lni)
    a("s_sleep 12")
    Lq = a.newlabel("U_nq")
    Lqd = a.newlabel("U_nqd")
    a("s_mov_b32 s31, 0x100000")
    a.label(Lq)
    a("buffer_load_dwordx2 v[20:21], v17, s[92:95], 0 offen sc1")
    a("s_waitcnt vmcnt(0)")
    a("v_readfirstlane_b32 s30, v20")
    a("s_nop 3")
    a("s_cmp_lg_u32 s30, 0")
    a("s_cbranch_scc1 %s" % Lqd)
    a("s_sleep 5")
    a("s_sub_u32 s31, s31, 1")
    a("s_cmp_lg_u32 s31, 0")
    a("s_cbranch_scc1 %s" % Lq)
    a.label(Lqd)
    a("ds_write_b64 v15, v[20:21] offset:16")
    lds_wait(a, 18, 15, 0, 4, "U_ln", 2)
    a("s_sleep 8")
    a("s_movk_i32 s24, 8")
    poll(a, 18, 17, 92, "s24", chk_ge(1), "U_ini", 8)
    a("s_branch U_lp0d")
    a.label("U_lp0a")
    if TLBPF:
        Lnt = a.newlabel("U_ntlb")
        a("s_cmp_lg_u32 s17, 1")
        a("s_cbranch_scc1 %s" % Lnt)
        srd(a, 64, 10, 11, 0x2600000)
        srd(a, 68, P_OUT, P_OUT + 1, 2048 * 2560)
        a("v_lshlrev_b32 v18, 20, v1")
        a("buffer_load_dword v19, v18, s[64:67], 0 offen")
        a("buffer_load_dword v20, v18, s[68:71], 0 offen")
        a.label(Lnt)
    a("s_cmp_lt_u32 s17, 2")
    a("s_cbranch_scc1 U_lp0d")
    a("s_cmp_eq_u32 s17, 3")
    a("s_cbranch_scc1 U_lp0c")
    a("s_cmp_ge_u32 s2, 240")
    a("s_cbranch_scc1 U_lp0d")
    if TRLATE:
        lds_wait(a, 18, 15, 0, 4, "U_ln", 2)
    a("s_mul_hi_u32 s28, s2, 0x%x" % ((1 << 32) // 24 + 1))
    a("s_mul_i32 s29, s28, 24")
    a("s_sub_u32 s29, s2, s29")
    a("s_mul_i32 s22, s29, %d" % (64 * 1280))
    a("s_lshl_b32 s23, s28, 7")
    a("s_add_u32 s22, s22, s23")
    a("v_lshrrev_b32 v18, 2, v3")
    a("v_and_b32 v19, 3, v3")
    a("v_lshlrev_b32 v18, 5, v18")
    a("v_lshl_add_u32 v18, v19, 2, v18")
    a("v_mul_u32_u24 v18, 1280, v18")
    a("v_lshl_add_u32 v18, v2, 4, v18")
    srd(a, 72, P_W2, P_W2 + 1, 1536 * 1280)
    for j in range(8):
        a("s_add_u32 s24, s22, %d" % ((j if j < 4 else 12 + j) * 1280))
        a("buffer_load_dwordx4 v[%d:%d], v18, s[72:75], s24 offen" % (180 + 4 * j, 183 + 4 * j))
    a("v_mul_u32_u24 v11, %d, v2" % (8 * 3072))
    a("v_lshl_add_u32 v11, v3, 4, v11")
    a("s_mul_i32 s23, s28, %d" % (64 * 3072))
    a("s_lshl_b32 s24, s29, 7")
    a("s_add_u32 s23, s23, s24")
    srd_off(a, 68, 10, 11, WS_W2T, 640 * 3072)
    a("s_mov_b32 s26, 0x05040100")
    a("s_mov_b32 s27, 0x07060302")
    a("s_waitcnt vmcnt(0)")
    for i in range(8):
        for m in range(4):
            a("v_perm_b32 v%d, v%d, v%d, s%d" % (212 + 4 * i + m, 180 + 4 * (2 * m + 1) + (i >> 1), 180 + 4 * (2 * m) + (i >> 1), 26 + (i & 1)))
    for i in range(8):
        a("s_add_u32 s24, s23, %d" % (i * 3072))
        a("buffer_store_dwordx4 v[%d:%d], v11, s[68:71], s24 offen sc1" % (212 + 4 * i, 215 + 4 * i))
    a("s_branch U_lp0d")
    a.label("U_lp0c")
    srd(a, 64, P_LRE, P_LRE + 1, 1280)
    srd(a, 68, P_LIM, P_LIM + 1, 1280)
    srd(a, 72, P_LDT, P_LDT + 1, 1280)
    a("s_mul_i32 s20, s14, 80")
    a("v_lshlrev_b32 v18, 1, v3")
    for c in range(5):
        a("buffer_load_ushort v%d, v18, s[64:67], s20 offen offset:%d" % (160 + 3 * c, c * 16))
        a("buffer_load_ushort v%d, v18, s[68:71], s20 offen offset:%d" % (160 + 3 * c + 1, c * 16))
        a("buffer_load_ushort v%d, v18, s[72:75], s20 offen offset:%d" % (160 + 3 * c + 2, c * 16))
    T = 160
    a("v_and_b32 v12, 8, v7")
    a("v_lshlrev_b32 v12, 28, v12")
    a("v_xor_b32 v12, 0x80000000, v12")
    a("v_lshlrev_b32 v13, 3, v6")
    a("v_cvt_f32_u32 v13, v13")
    a("v_mul_u32_u24 v10, 48, v7")
    a("v_add_u32 v10, %d, v10" % (MISC + 2048))
    a("v_lshlrev_b32 v11, 3, v1")
    a("v_add_u32 v11, %d, v11" % (MISC + 6144))
    a("s_waitcnt vmcnt(0)")
    ZR, ZI, W0 = 96, 101, 108
    CT = lambda c, k: 180 + 12 * c + k

    def cpow_all(n, dst):
        ns = n if isinstance(n, str) else fh(n)
        for c in range(5):
            t = W0 + 4 * c
            a("v_mul_f32 v%d, %s, v%d" % (t, ns, ZR + c))
            a("v_mul_f32 v%d, %s, v%d" % (t + 1, ns, ZI + c))
            a("v_exp_f32 v%d, v%d" % (t, t))
            a("v_fract_f32 v%d, v%d" % (t + 1, t + 1))
            a("v_cos_f32 v%d, v%d" % (t + 2, t + 1))
            a("v_sin_f32 v%d, v%d" % (t + 3, t + 1))
        a("s_nop 0")
        for c in range(5):
            t = W0 + 4 * c
            a("v_mul_f32 v%d, v%d, v%d" % (dst(c), t, t + 2))
            a("v_mul_f32 v%d, v%d, v%d" % (dst(c) + 1, t, t + 3))
    for c in range(5):
        lre, lim, ldt = T + 3 * c, T + 3 * c + 1, T + 3 * c + 2
        a("v_lshlrev_b32 v%d, 16, v%d" % (lre, lre))
        a("v_lshlrev_b32 v%d, 16, v%d" % (lim, lim))
        a("v_lshlrev_b32 v%d, 16, v%d" % (ldt, ldt))
        a("v_mul_f32 v%d, %s, v%d" % (ldt, fh(LOG2E), ldt))
        a("v_exp_f32 v%d, v%d" % (ldt, ldt))
        a("s_nop 0")
        a("v_cvt_pk_bf16_f32 v%d, v%d, v%d" % (ldt, ldt, ldt))
        a("v_and_b32 v%d, 0xffff0000, v%d" % (ldt, ldt))
        a("v_mul_f32 v%d, v%d, v%d" % (ZR + c, ldt, lre))
        a("v_mul_f32 v%d, v%d, v%d" % (ZI + c, ldt, lim))
        a("v_mul_f32 v%d, %s, v%d" % (ZR + c, fh(LOG2E), ZR + c))
        a("v_mul_f32 v%d, 0.15915494, v%d" % (ZI + c, ZI + c))
    cpow_all(1.0, lambda c: CT(c, 0))
    for c in range(5):
        lre, lim = T + 3 * c, T + 3 * c + 1
        t = W0 + 4 * c
        a("v_add_f32 v%d, -1.0, v%d" % (t, CT(c, 0)))
        a("v_mul_f32 v%d, v%d, v%d" % (t + 1, lre, lre))
        a("v_fmac_f32 v%d, v%d, v%d" % (t + 1, lim, lim))
        a("v_rcp_f32 v%d, v%d" % (t + 2, t + 1))
        a("s_nop 0")
        a("v_fma_f32 v%d, -v%d, v%d, 1.0" % (t + 3, t + 1, t + 2))
        a("v_fma_f32 v%d, v%d, v%d, v%d" % (t + 2, t + 3, t + 2, t + 2))
        a("v_mul_f32 v%d, v%d, v%d" % (CT(c, 2), t, lre))
        a("v_fmac_f32 v%d, v%d, v%d" % (CT(c, 2), CT(c, 1), lim))
        a("v_mul_f32 v%d, v%d, v%d" % (CT(c, 3), CT(c, 1), lre))
        a("v_fma_f32 v%d, -v%d, v%d, v%d" % (CT(c, 3), t, lim, CT(c, 3)))
        a("v_mul_f32 v%d, v%d, v%d" % (CT(c, 2), CT(c, 2), t + 2))
        a("v_mul_f32 v%d, v%d, v%d" % (CT(c, 3), CT(c, 3), t + 2))
    for n, k in ((8.0, 4), (32.0, 6), (128.0, 8), (512.0, 10)):
        cpow_all(n, lambda c: CT(c, k))
    for c in range(5):
        for k in (1, 3, 5, 7, 9, 11):
            a("v_xor_b32 v%d, v12, v%d" % (CT(c, k), CT(c, k)))
        for k in range(3):
            a("ds_write_b128 v10, v[%d:%d] offset:%d" % (CT(c, 4 * k), CT(c, 4 * k + 3), c * 768 + k * 16))
    for w in range(4):
        AT = lambda c: 130 + 10 * (w & 1) + 2 * c
        cpow_all("v13", AT)
        for c in range(5):
            a("v_xor_b32 v%d, v12, v%d" % (AT(c) + 1, AT(c) + 1))
            a("ds_write_b64 v11, v[%d:%d] offset:%d" % (AT(c), AT(c) + 1, w * 2560 + c * 512))
        if w < 3:
            a("v_add_f32 v13, 0x42000000, v13")
    a.label("U_lp0d")
    a("s_mul_i32 s24, s14, 192")
    srd_off(a, 68, P_W1, P_W1 + 1, "s24", 640 * 3072 - 15 * 192)
    a("v_lshrrev_b32 v10, 2, v1")
    a("v_and_b32 v11, 3, v10")
    a("v_lshrrev_b32 v12, 2, v10")
    a("v_and_b32 v12, 1, v12")
    a("v_lshrrev_b32 v13, 3, v10")
    a("v_lshl_add_u32 v11, v12, 3, v11")
    a("v_lshl_add_u32 v11, v13, 2, v11")
    a("v_mul_u32_u24 v22, 3072, v11")
    a("v_lshrrev_b32 v13, 1, v1")
    a("v_and_b32 v13, 1, v13")
    a("v_xor_b32 v13, v13, v12")
    a("v_lshl_add_u32 v22, v13, 5, v22")
    a("v_and_b32 v13, 1, v1")
    a("v_lshl_add_u32 v22, v13, 4, v22")
    a("s_mul_i32 s3, s17, %d" % (16 * 3072))
    a("s_lshl_b32 s4, s17, 10")

    def kidx(s):
        return s if s < 10 else (s - 4 if s < 14 else s - 14)

    def free_part(s):
        sl = s % NS
        if s < 10:
            for p in range(3):
                a("s_add_u32 m0, s4, %d" % (sl * SLOT + 16384 + p * 4096))
                a("s_add_u32 s6, s3, %d" % (s * 64 * 3072 + p * 64))
                a("buffer_load_dwordx4 v22, s[68:71], s6 offen lds")
            n = 3
        elif s < 20:
            for i in range(3):
                a("s_add_u32 m0, s4, %d" % (sl * SLOT + 16384 + i * 4096))
                a("s_add_u32 s6, s5, %d" % (i * 20480 + kidx(s) * 128))
                a("buffer_load_dwordx4 v5, s[72:75], s6 offen lds")
            n = 3
        else:
            for i in range(5):
                a("s_add_u32 m0, s46, %d" % (sl * SLOT + 8192 + i * 2048))
                if s < 32:
                    a("s_add_u32 s6, s7, %d" % (i * 16 * 3072 + (s - 20) * 256))
                    a("buffer_load_dwordx4 v16, s[84:87], s6 offen sc1 lds")
                else:
                    s3 = s - 32
                    sr = 92 if s3 < 5 else 96
                    a("s_add_u32 s6, s8, %d" % (i * 16 * 1280 + (s3 % 5) * 256))
                    a("buffer_load_dwordx4 v5, s[%d:%d], s6 offen lds" % (sr, sr + 3))
            n = 5
        vm.issue(("F", s), n)

    def dep_part(s):
        sl = s % NS
        if 10 <= s < 14:
            vm.issue(("D", s), 0)
            return
        for i in range(4):
            if s < 20:
                a("s_add_u32 m0, s4, %d" % (sl * SLOT + i * 4096))
                a("s_add_u32 s6, s47, %d" % (i * 40960 + kidx(s) * 128))
                a("buffer_load_dwordx4 v5, s[64:67], s6 offen sc1 lds")
            elif s < 32:
                a("s_add_u32 m0, s46, %d" % (sl * SLOT + i * 2048))
                a("s_add_u32 s6, s50, %d" % (i * 1024 + (s - 20) * 16384))
                a("buffer_load_dwordx4 v21, s[80:83], s6 offen sc1 lds")
            else:
                a("s_add_u32 m0, s46, %d" % (sl * SLOT + i * 2048))
                a("s_add_u32 s6, s9, %d" % (i * 1024 + (s - 32) * 8192))
                a("buffer_load_dwordx4 v10, s[88:91], s6 offen sc1 lds")
        vm.issue(("D", s), 4)
    a("s_mul_i32 s24, s13, %d" % (128 * 1280))
    a("s_add_u32 s24, s24, %d" % WS_XN)
    srd_off(a, 64, 10, 11, "s24", 128 * 1280)
    a("s_cmp_eq_u32 s18, 0")
    a("s_cselect_b32 s24, s%d, s%d" % (P_BRE, P_BIM))
    a("s_cselect_b32 s25, s%d, s%d" % (P_BRE + 1, P_BIM + 1))
    a("s_mul_i32 s26, s14, %d" % (40 * 1280))
    srd_off(a, 72, 24, 25, "s26", 40 * 1280)
    a("s_mul_i32 s24, s15, 196608")
    a("s_add_u32 s24, s24, %d" % WS_H1)
    srd_off(a, 80, 10, 11, "s24", 196608)
    a("s_mul_i32 s24, s16, %d" % (80 * 3072))
    a("s_add_u32 s24, s24, %d" % WS_W2T)
    srd_off(a, 84, 10, 11, "s24", 80 * 3072)
    a("s_mul_i32 s24, s15, 163840")
    a("s_add_u32 s24, s24, %d" % WS_HT)
    srd_off(a, 88, 10, 11, "s24", 163840)
    a("s_lshr_b32 s24, s2, 3")
    a("s_and_b32 s25, s2, 7")
    a("v_lshlrev_b32 v18, 7, v1")
    Lpf1 = a.newlabel("U_pf1")
    Lpf3 = a.newlabel("U_pf3")
    Lpfd = a.newlabel("U_pfd")
    a("s_cmp_eq_u32 s17, 3")
    a("s_cbranch_scc1 %s" % Lpf3)
    a("s_cmp_lg_u32 s17, 0")
    a("s_cbranch_scc1 %s" % Lpf1)
    a("s_lshr_b32 s25, s25, 1")
    a("s_mul_i32 s25, s25, 204800")
    a("s_mul_i32 s26, s24, 6400")
    a("s_add_u32 s25, s25, s26")
    srd_off(a, 92, P_BRE, P_BRE + 1, "s25", 6400)
    srd_off(a, 96, P_BIM, P_BIM + 1, "s25", 6400)
    a("buffer_load_dword v19, v18, s[92:95], 0 offen")
    a("buffer_load_dword v20, v18, s[96:99], 0 offen")
    a("s_branch %s" % Lpfd)
    a.label(Lpf1)
    a("s_lshr_b32 s25, s25, 2")
    a("s_mul_i32 s25, s25, 409600")
    a("s_mul_i32 s26, s24, 12800")
    a("s_add_u32 s25, s25, s26")
    a("s_cmp_eq_u32 s17, 1")
    a("s_cselect_b32 s26, s%d, s%d" % (P_CRE, P_CIM))
    a("s_cselect_b32 s27, s%d, s%d" % (P_CRE + 1, P_CIM + 1))
    srd_off(a, 92, 26, 27, "s25", 12800)
    a("s_movk_i32 s26, 8192")
    a("buffer_load_dword v19, v18, s[92:95], 0 offen")
    a("buffer_load_dword v20, v18, s[92:95], s26 offen")
    a("s_branch %s" % Lpfd)
    a.label(Lpf3)
    a("s_lshr_b32 s25, s25, 1")
    a("s_mul_i32 s25, s25, 768")
    a("s_mul_i32 s26, s24, %d" % (20 * 3072))
    a("s_add_u32 s25, s25, s26")
    srd_off(a, 92, P_W1, P_W1 + 1, "s25", 20 * 3072 - 2304)
    a("v_mul_u32_u24 v19, 43, v1")
    a("v_lshrrev_b32 v19, 8, v19")
    a("v_mul_u32_u24 v20, 6, v19")
    a("v_sub_u32 v20, v1, v20")
    a("v_mul_u32_u24 v19, 3072, v19")
    a("v_lshl_add_u32 v18, v20, 7, v19")
    a("s_movk_i32 s26, %d" % (10 * 3072))
    a("buffer_load_dword v19, v18, s[92:95], 0 offen")
    a("buffer_load_dword v20, v18, s[92:95], s26 offen")
    a.label(Lpfd)
    vm.issue("pf", 2)
    a("s_cmp_eq_u32 s18, 0")
    a("s_cselect_b32 s24, s%d, s%d" % (P_B2, P_DSK))
    a("s_cselect_b32 s25, s%d, s%d" % (P_B2 + 1, P_DSK + 1))
    a("s_mul_i32 s26, s16, 160")
    srd_off(a, 92, 24, 25, "s26", 160)
    a("v_lshlrev_b32 v18, 4, v1")
    a("v_cmp_gt_u32 vcc, 16, v1")
    a("s_and_saveexec_b64 s[26:27], vcc")
    a("s_lshl_b32 s24, s18, 8")
    a("s_add_u32 m0, s24, %d" % (MISC + 1536))
    a("s_nop 0")
    a("buffer_load_dwordx4 v18, s[92:95], 0 offen lds")
    a("s_mov_b64 exec, -1")
    vm.issue("bd", 1)
    a("s_mul_i32 s24, s16, %d" % (80 * 1280))
    srd_off(a, 92, P_CRE, P_CRE + 1, "s24", 80 * 1280)
    srd_off(a, 96, P_CIM, P_CIM + 1, "s24", 80 * 1280)
    a("v_mul_u32_u24 v5, 1280, v2")
    a("v_lshl_add_u32 v5, v4, 4, v5")
    a("v_mul_u32_u24 v16, 3072, v2")
    a("v_lshl_add_u32 v16, v4, 4, v16")
    a("v_and_b32 v10, 1, v6")
    a("s_lshl_b32 s24, s18, 1")
    a("v_or_b32 v10, s24, v10")
    a("v_lshrrev_b32 v11, 1, v3")
    a("v_xor_b32 v11, v10, v11")
    a("v_lshrrev_b32 v10, 1, v11")
    a("v_mul_u32_u24 v10, 81920, v10")
    a("v_lshl_add_u32 v10, v2, 6, v10")
    a("v_and_b32 v11, 1, v11")
    a("v_lshl_add_u32 v10, v11, 5, v10")
    a("v_and_b32 v11, 1, v1")
    a("v_lshl_add_u32 v10, v11, 4, v10")
    a("v_lshrrev_b32 v21, 2, v4")
    a("v_lshlrev_b32 v21, 12, v21")
    a("v_lshl_add_u32 v21, v2, 6, v21")
    a("v_and_b32 v11, 3, v4")
    a("v_lshl_add_u32 v21, v11, 4, v21")
    a("s_mul_i32 s47, s17, 10240")
    a("s_mul_i32 s5, s19, 10240")
    a("s_lshl_b32 s50, s19, 13")
    a("s_lshl_b32 s24, s18, 9")
    a("s_add_u32 s50, s50, s24")
    a("s_lshl_b32 s9, s19, 12")
    a("s_add_u32 s9, s9, s24")
    a("s_mul_i32 s7, s18, %d" % (8 * 3072))
    a("s_lshl_b32 s24, s19, 7")
    a("s_add_u32 s7, s7, s24")
    a("s_mul_i32 s8, s18, %d" % (8 * 1280))
    a("s_add_u32 s8, s8, s24")
    a("s_mul_i32 s46, s19, %d" % SUB)
    a("s_lshl_b32 s24, s18, 10")
    a("s_add_u32 s46, s46, s24")

    def gate(soff_code, target, word, first=False):
        Lnp = a.newlabel("U_gnp")
        Lgo = a.newlabel("U_ggo")
        a("s_cmp_lg_u32 s17, 0")
        a("s_cbranch_scc1 %s" % Lnp)
        a("v_mov_b32 v23, 1")
        soff_code()
        poll(a, 18, 17, 76, "s24", chk_ge(target), "U_g", 3)
        a("ds_write_b32 v15, v23 offset:%d" % word)
        a("s_branch %s" % Lgo)
        a.label(Lnp)
        lds_wait(a, 18, 15, word, 1, "U_gw", 1)
        a.label(Lgo)

    st()
    lds_wait(a, 18, 15, 4, 1, "U_gx", 1)
    if LPRIO:
        a("s_setprio %d" % LPRIO)
    st()

    def phase(s0, s1, nxt_free_to):
        for k in range(2):
            if s0 == 0:
                free_part(s0 + k)
            dep_part(s0 + k)
        vm.wait(("D", s0))
        st()
        a("s_barrier")
        for k in range(2, 4):
            if s0 == 0:
                free_part(s0 + k)
            dep_part(s0 + k)
        for s in range(s0, s1):
            if s + 1 < s1:
                vm.wait(("D", s + 1))
            if s == ESTAGE:
                vm.wait("Emark")
            if s == 41:
                vm.drain()
            a("s_barrier")
            if STAMP and s % 2 == 1:
                st()
            n = s + NS
            if s == 1:
                Lsk = a.newlabel("U_w2s")
                a("s_cmp_lg_u32 s17, 2")
                a("s_cbranch_scc1 %s" % Lsk)
                a("s_cmp_ge_u32 s2, 240")
                a("s_cbranch_scc1 %s" % Lsk)
                a("s_lshl_b32 s24, s28, 8")
                a("s_add_u32 s24, s24, %d" % F_W2)
                signal(18, 19, "s24")
                a.label(Lsk)
            if s == ESTAGE - 3:
                a("s_lshl_b32 s26, 1, s13")
                a("s_sub_u32 s26, s26, 1")
                a("s_lshl_b32 s27, s14, 8")
                a("s_add_u32 s27, s27, %d" % F_E)
                a("buffer_load_dword v20, v17, s[76:79], s27 offen sc1")
                vm.issue("pollE", 1)
            if s == ESTAGE - 2:
                def chkE(sr):
                    a("s_and_b32 s%d, s%d, s26" % (sr, sr))
                    a("s_cmp_eq_u32 s%d, s26" % sr)
                vm.wait("pollE")
                Lok = a.newlabel("U_eok")
                a("v_readfirstlane_b32 s30, v20")
                a("s_nop 3")
                chkE(30)
                a("s_cbranch_scc1 %s" % Lok)
                poll(a, 20, 17, 76, "s27", chkE, "U_e", 2)
                a.label(Lok)
                a("s_mul_i32 s24, s14, 5120")
                a("s_add_u32 s24, s24, %d" % WS_ET)
                srd_off(a, 64, 10, 11, "s24", 5120)
                a("v_lshlrev_b32 v18, 4, v1")
                a("s_add_u32 m0, s4, %d" % (MISC + 6144 + 5120))
                a("s_nop 0")
                a("buffer_load_dwordx4 v18, s[64:67], s4 offen sc1 lds")
                Lsk = a.newlabel("U_e5")
                a("s_cmp_lg_u32 s17, 0")
                a("s_cbranch_scc1 %s" % Lsk)
                a("s_mov_b32 m0, %d" % (MISC + 6144 + 5120 + 4096))
                a("s_movk_i32 s24, 4096")
                a("buffer_load_dwordx4 v18, s[64:67], s24 offen sc1 lds")
                a.label(Lsk)
                vm.issue("E", 1)
                vm.issue("Emark", 0)
            if s == 38:
                a("s_lshl_b32 s24, s15, 6")
                a("s_mul_i32 s24, s24, 1280")
                a("s_mul_i32 s25, s16, 160")
                a("s_add_u32 s24, s24, s25")
                srd_off(a, 64, P_X, P_X + 1, "s24", 64 * 1280 - 1120)
                a("s_add_u32 s24, s24, %d" % WS_XN)
                srd_off(a, 68, 10, 11, "s24", 64 * 1280 - 1120)
                a("s_lshl_b32 s24, s17, 6")
                for i in range(3):
                    a("v_add_u32 v18, s24, v1")
                    if i:
                        a("v_add_u32 v18, %d, v18" % (256 * i))
                    a("v_mul_u32_u24 v19, 6554, v18")
                    a("v_lshrrev_b32 v19, 16, v19")
                    a("v_mul_u32_u24 v20, 10, v19")
                    a("v_sub_u32 v20, v18, v20")
                    a("v_mul_u32_u24 v23, 1280, v19")
                    a("v_lshl_add_u32 v23, v20, 4, v23")
                    a("v_and_b32 v24, 0xffe3, v19")
                    a("v_lshrrev_b32 v25, 2, v19")
                    a("v_and_b32 v25, 1, v25")
                    a("v_lshl_add_u32 v24, v25, 4, v24")
                    a("v_lshrrev_b32 v25, 3, v19")
                    a("v_and_b32 v25, 3, v25")
                    a("v_lshl_add_u32 v24, v25, 2, v24")
                    a("v_mul_u32_u24 v24, 1280, v24")
                    a("v_lshl_add_u32 v24, v20, 4, v24")
                    if i < 2:
                        a("s_add_u32 m0, s4, %d" % (2 * SLOT + i * 4096))
                        a("s_nop 0")
                        a("buffer_load_dwordx4 v23, s[64:67], 0 offen lds")
                        a("s_add_u32 m0, s4, %d" % (2 * SLOT + 10240 + i * 4096))
                        a("s_nop 0")
                        a("buffer_load_dwordx4 v24, s[68:71], 0 offen sc1 lds")
                    else:
                        Lsk = a.newlabel("U_x3")
                        a("s_cmp_ge_u32 s17, 2")
                        a("s_cbranch_scc1 %s" % Lsk)
                        a("s_add_u32 m0, s4, %d" % (2 * SLOT + i * 4096))
                        a("s_nop 0")
                        a("buffer_load_dwordx4 v23, s[64:67], 0 offen lds")
                        a("s_add_u32 m0, s4, %d" % (2 * SLOT + 10240 + i * 4096))
                        a("s_nop 0")
                        a("buffer_load_dwordx4 v24, s[68:71], 0 offen sc1 lds")
                        a.label(Lsk)
                vm.issue("X", 4)
            if n < s1:
                if n == 31:
                    a("s_lshl_b32 s25, s15, 8")
                    a("s_add_u32 s25, s25, %d" % F_HT)
                    a("buffer_load_dword v19, v17, s[76:79], s25 offen sc1")
                    vm.issue("pollHT", 1)
                if n == 19:
                    a("s_mul_i32 s25, s16, 80")
                    a("s_add_u32 s26, s25, 79")
                    a("s_lshr_b32 s25, s25, 6")
                    a("s_lshr_b32 s26, s26, 6")
                    a("s_lshl_b32 s25, s25, 8")
                    a("s_lshl_b32 s26, s26, 8")
                    a("s_add_u32 s25, s25, %d" % F_W2)
                    a("s_add_u32 s26, s26, %d" % F_W2)
                    a("buffer_load_dword v19, v17, s[76:79], s25 offen sc1")
                    a("buffer_load_dword v20, v17, s[76:79], s26 offen sc1")
                    vm.issue("pollW2", 2)
                free_part(n)
                if n == 32:
                    vm.wait("pollHT")
                    Lok = a.newlabel("U_htok")
                    a("v_readfirstlane_b32 s30, v19")
                    a("s_nop 3")
                    a("s_cmp_ge_u32 s30, 32")
                    a("s_cbranch_scc1 %s" % Lok)
                    poll(a, 19, 17, 76, "s25", chk_ge(32), "U_ht")
                    a.label(Lok)
                dep_part(n)
            elif n < nxt_free_to:
                if n == 20:
                    vm.wait("pollW2")
                    Lok = a.newlabel("U_w2ok")
                    a("v_min_u32 v19, v19, v20")
                    a("s_nop 0")
                    a("v_readfirstlane_b32 s30, v19")
                    a("s_nop 3")
                    a("s_cmp_ge_u32 s30, 24")
                    a("s_cbranch_scc1 %s" % Lok)
                    poll(a, 19, 17, 76, "s25", chk_ge(24), "U_w2")
                    poll(a, 19, 17, 76, "s26", chk_ge(24), "U_w2")
                    a.label(Lok)
                free_part(n)
    phase(0, 20, 24)
    st()

    def h1off():
        a("s_lshl_b32 s24, s15, 8")
        a("s_add_u32 s24, s24, %d" % F_H1)
    gate(h1off, 32, 12)
    st()
    phase(20, 42, 42)
    st.flush()
    a.label(Lend)
    a("s_endpgm")
    a.label("U_code_end")
    return name, 256


if __name__ == "__main__":
    a = Asm()
    nm, vg = gen_uni(a)
    hdr = open("cdna_kernels/%s.s.ref" % NAME).read().split("\n")
    hdr = [l for l in hdr if l.startswith(";") and "@launch" not in l]
    out = "\n".join(hdr) + "\n; @launch grid=(256,1,1) block=(512,1,1) lds=163840\n"
    out += '.amdgcn_target "amdgcn-amd-amdhsa--gfx950"\n.text\n' + a.text()
    out += '.section .rodata,"a"\n.p2align 6\n' + kernel_desc(nm, vg)
    open(sys.argv[1] if len(sys.argv) > 1 else "cdna_kernels/%s.s" % NAME, "w").write(out)
```

```python
import sys, os, math
from gen import Asm, srd, srd_off, kernel_header, kernel_desc, fh, KA, LOG2E, DPP8, NAME
import gen

WS_XN = 0x0000000
WS_W2T = 0x0500000
WS_FLG = 0x0780000
WS_H1 = 0x0800000
WS_ET = 0x0F00000
WS_HT = 0x2000000
WS_DBG = 0x3000000
F_XN, F_H1, F_E, F_HT, F_W2, F_SIZE = 0, 4096, 12288, 16384, 24576, 27136

STAMP = int(os.environ.get("STAMP", "0"))
NS = 4
BARH1 = int(os.environ.get("BARH1", "2"))
BARHT = int(os.environ.get("BARHT", "1"))
L2T = int(os.environ.get("L2T", "0"))
LPRIO = int(os.environ.get("LPRIO", "0"))
CPRIO = int(os.environ.get("CPRIO", "0"))
ALLLATE = int(os.environ.get("ALLLATE", "1"))
TRLATE = int(os.environ.get("TRLATE", "0"))
CLATE = int(os.environ.get("CLATE", "1"))
TLBPF = int(os.environ.get("TLBPF", "0"))
OUTFLAG = os.environ.get("OUTFLAG", "nt")
ESTAGE = int(os.environ.get("ESTAGE", "24"))
RATE1 = eval(os.environ.get("RATE1", "(3, 50)"))
RATE2 = eval(os.environ.get("RATE2", "(4, 100)"))
RATE3 = eval(os.environ.get("RATE3", "(2, 16)"))
PRE20 = int(os.environ.get("PRE20", "260"))
CODE_SIZE = 42000
CODEPF = int(os.environ.get("CODEPF", "1"))
SLOT = 36864
SUB = 18432
MISC = 147456

P_X, P_LRE, P_LIM, P_BRE, P_BIM, P_CRE, P_CIM, P_LDT, P_DSK, P_W1, P_B1, P_W2, P_B2, P_OUT, P_DBG = \
    32, 34, 36, 38, 40, 42, 44, 46, 48, 52, 54, 56, 58, 60, 62


class Stamper:
    def __init__(self, a):
        self.a = a
        self.n = 0

    def __call__(self, real=False):
        if not STAMP:
            return
        a = self.a
        assert self.n < 64
        if self.n == 0 and not real:
            a("v_mov_b32 v255, 0")
            self(True)
        a("s_memrealtime s[100:101]" if real else "s_memtime s[100:101]")
        a("s_waitcnt lgkmcnt(0)")
        a("v_writelane_b32 v255, s100, %d" % self.n)
        self.n += 1

    def flush(self):
        if not STAMP:
            return
        a = self.a
        self()
        self(True)
        a("s_mov_b64 exec, -1")
        a("s_lshl_b32 s100, s2, 3")
        a("s_add_u32 s100, s100, s12")
        a("s_lshl_b32 s100, s100, 8")
        a("s_add_u32 s100, s100, 0x%x" % (WS_DBG + 0x100000))
        srd_off(a, 96, 10, 11, "s100", 256)
        a("v_and_b32 v254, 63, v0")
        a("v_lshlrev_b32 v254, 2, v254")
        a("buffer_store_dword v255, v254, s[96:99], 0 offen")


class VM:
    def __init__(self, a):
        self.a = a
        self.q = []

    def issue(self, tag, n):
        self.q.append((tag, n))

    def wait(self, tag):
        idxs = [i for i, (t, n) in enumerate(self.q) if t == tag]
        if not idxs:
            return
        idx = max(idxs)
        rest = sum(n for t, n in self.q[idx + 1:])
        assert rest <= 63, rest
        self.a("s_waitcnt vmcnt(%d)" % rest)
        self.q = self.q[idx + 1:]

    def drain(self):
        self.a("s_waitcnt vmcnt(0)")
        self.q = []


def interleave(ms, rs):
    out = []
    ri = 0
    for m in ms:
        out.append(m)
        if ri < len(rs):
            out.append(rs[ri])
            ri += 1
    return out + rs[ri:]


def poll(a, vreg, vzero, sflg, soff, check, lbl, slp=4):
    Lp = a.newlabel(lbl + "_poll")
    Ld = a.newlabel(lbl + "_done")
    a("s_mov_b32 s31, 0x100000")
    a.label(Lp)
    a("buffer_load_dword v%d, v%d, s[%d:%d], %s offen sc1" % (vreg, vzero, sflg, sflg + 3, soff))
    a("s_waitcnt vmcnt(0)")
    a("v_readfirstlane_b32 s30, v%d" % vreg)
    a("s_nop 3")
    check(30)
    a("s_cbranch_scc1 %s" % Ld)
    a("s_sleep %d" % slp)
    a("s_sub_u32 s31, s31, 1")
    a("s_cmp_lg_u32 s31, 0")
    a("s_cbranch_scc1 %s" % Lp)
    a.label(Ld)


def lds_wait(a, vtmp, vaddr, off, val, lbl, slp=1):
    Lw = a.newlabel(lbl)
    Ld = a.newlabel(lbl + "d")
    a("s_mov_b32 s31, 0x1000000")
    a.label(Lw)
    a("ds_read_b32 v%d, v%d offset:%d" % (vtmp, vaddr, off))
    a("s_waitcnt lgkmcnt(0)")
    a("v_readfirstlane_b32 s30, v%d" % vtmp)
    a("s_sub_u32 s31, s31, 1")
    a("s_cbranch_scc1 %s" % Ld)
    a("s_nop 1")
    a("s_cmp_ge_u32 s30, %d" % val)
    a("s_cbranch_scc1 %s" % Ld)
    if slp:
        a("s_sleep %d" % slp)
    a("s_branch %s" % Lw)
    a.label(Ld)


def cmul_add(a, items):
    for (d, lr, li, s, ad) in items:
        if ad is None:
            a("v_mul_f32 v%d, v%d, v%d" % (d, lr, s))
        else:
            a("v_fma_f32 v%d, v%d, v%d, v%d" % (d, lr, s, ad))
    if len(items) < 2:
        a("s_nop 1")
    for (d, lr, li, s, ad) in items:
        a("v_fmac_f32_dpp v%d, v%d, v%d %s" % (d, s, li, DPP8))


def gelu_units(a, units, tmp, vK1, sK2, sLO, sHI, sMask):
    P = []
    for ui, (rA, rB, b, d) in enumerate(units):
        for h, r in enumerate((rA, rA + 2, rB, rB + 2)):
            P.append((r, b + 2 * h, d + h, tmp + 8 * ui + 2 * h))
    for (r, b, d, t) in P:
        a("v_cvt_pk_bf16_f32 v%d, v%d, v%d" % (d, r, r + 1))
    for (r, b, d, t) in P:
        a("v_dot2_f32_bf16 v%d, v%d, s%d, v%d" % (r, d, sLO, b))
        a("v_dot2_f32_bf16 v%d, v%d, s%d, v%d" % (r + 1, d, sHI, b + 1))
    a("s_nop 1")
    for (r, b, d, t) in P:
        a("v_cvt_pk_bf16_f32 v%d, v%d, v%d" % (d, r, r + 1))
    for (r, b, d, t) in P:
        a("v_lshlrev_b32 v%d, 16, v%d" % (r, d))
        a("v_and_b32 v%d, s%d, v%d" % (r + 1, sMask, d))
    for (r, b, d, t) in P:
        a("v_pk_mul_f32 v[%d:%d], v[%d:%d], v[%d:%d]" % (t, t + 1, r, r + 1, r, r + 1))
    for (r, b, d, t) in P:
        a("v_pk_fma_f32 v[%d:%d], v[%d:%d], s[%d:%d], v[%d:%d]" % (t, t + 1, t, t + 1, sK2, sK2 + 1, vK1, vK1 + 1))
    for (r, b, d, t) in P:
        a("v_pk_mul_f32 v[%d:%d], v[%d:%d], v[%d:%d]" % (t, t + 1, t, t + 1, r, r + 1))
    for (r, b, d, t) in P:
        a("v_exp_f32 v%d, v%d" % (t, t))
        a("v_exp_f32 v%d, v%d" % (t + 1, t + 1))
    a("s_nop 0")
    for (r, b, d, t) in P:
        a("v_pk_add_f32 v[%d:%d], v[%d:%d], 1.0" % (t, t + 1, t, t + 1))
    for (r, b, d, t) in P:
        a("v_rcp_f32 v%d, v%d" % (t, t))
        a("v_rcp_f32 v%d, v%d" % (t + 1, t + 1))
    a("s_nop 0")
    for (r, b, d, t) in P:
        a("v_pk_mul_f32 v[%d:%d], v[%d:%d], v[%d:%d]" % (r, r + 1, r, r + 1, t, t + 1))
    for (r, b, d, t) in P:
        a("v_cvt_pk_bf16_f32 v%d, v%d, v%d" % (d, r, r + 1))


def gen_uni(a):
    name = NAME + "_kernel"
    kernel_header(a, name)
    st = Stamper(a)
    Lend = a.newlabel("U_end")
    Lld = a.newlabel("U_ld")
    a("s_cmp_ge_u32 s2, 256")
    a("s_cbranch_scc1 %s" % Lend)
    if CODEPF:
        a("s_getpc_b64 s[4:5]")
        a.label("U_code_start")
        a("s_lshr_b32 s6, s2, 3")
        a("s_lshl_b32 s6, s6, 11")
        a("v_and_b32 v1, 15, v0")
        a("v_lshlrev_b32 v1, 7, v1")
        a("v_add_u32 v1, s6, v1")
        a("v_min_u32 v1, 0x%x, v1" % CODE_SIZE)
        a("v_cmp_gt_u32 vcc, 16, v0")
        a("s_and_saveexec_b64 s[6:7], vcc")
        a("s_cbranch_execz U_cpf")
        a("global_load_dword v30, v1, s[4:5]")
        a.label("U_cpf")
        a("s_mov_b64 exec, -1")
    a("s_load_dwordx16 s[32:47], s[0:1], 0")
    a("s_load_dwordx16 s[48:63], s[0:1], 64")
    a("s_load_dwordx2 s[10:11], s[0:1], 128")
    a("v_lshrrev_b32 v2, 6, v0")
    a("v_and_b32 v1, 63, v0")
    a("s_nop 0")
    a("v_readfirstlane_b32 s12, v2")
    a("s_lshr_b32 s20, s2, 3")
    a("s_and_b32 s21, s20, 7")
    a("s_lshr_b32 s20, s20, 3")
    a("s_and_b32 s13, s2, 1")
    a("s_lshl_b32 s13, s13, 3")
    a("s_add_u32 s13, s13, s21")
    a("s_lshr_b32 s14, s2, 1")
    a("s_and_b32 s14, s14, 3")
    a("s_lshl_b32 s14, s14, 2")
    a("s_add_u32 s14, s14, s20")
    a("s_and_b32 s15, s2, 3")
    a("s_lshl_b32 s15, s15, 3")
    a("s_add_u32 s15, s15, s21")
    a("s_lshr_b32 s16, s2, 2")
    a("s_and_b32 s16, s16, 1")
    a("s_lshl_b32 s16, s16, 2")
    a("s_add_u32 s16, s16, s20")
    a("s_and_b32 s17, s12, 3")
    a("s_and_b32 s18, s17, 1")
    a("s_lshr_b32 s19, s17, 1")
    a("v_lshrrev_b32 v2, 3, v1")
    a("v_and_b32 v3, 7, v1")
    a("v_lshrrev_b32 v6, 4, v1")
    a("v_and_b32 v7, 15, v1")
    a("v_xor_b32 v4, v6, v3")
    a("v_lshlrev_b32 v8, 7, v7")
    a("v_lshl_add_u32 v8, v4, 4, v8")
    a("v_xor_b32 v9, 64, v8")
    a("v_xor_b32 v4, v2, v3")
    a("s_waitcnt lgkmcnt(0)")
    srd_off(a, 76, 10, 11, WS_FLG, F_SIZE)
    def lds_clear():
        a("v_mov_b32 v15, %d" % MISC)
        for i in range(4):
            a("v_mov_b32 v%d, 0" % (24 + i))
        a("ds_write_b128 v15, v[24:27]")
        a("ds_write_b128 v15, v[24:27] offset:16")
        a("s_waitcnt lgkmcnt(0)")
        a("s_barrier")
    st()
    srd(a, 92, P_DBG, P_DBG + 1, 256)
    a("v_mov_b32 v17, 0")
    n0 = st.n
    a("s_cmp_ge_u32 s12, 4")
    a("s_cbranch_scc1 %s" % Lld)
    X0, XF, S0 = 76, 88, 112
    a("s_lshl_b32 s20, s13, 7")
    a("s_lshl_b32 s21, s14, 3")
    a("s_add_u32 s20, s20, s21")
    a("s_lshl_b32 s21, s17, 1")
    a("s_add_u32 s20, s20, s21")
    a("s_mul_i32 s20, s20, 1280")
    a("s_lshl_b32 s21, s13, 7")
    a("s_lshr_b32 s22, s14, 2")
    a("s_lshl_b32 s22, s22, 5")
    a("s_add_u32 s21, s21, s22")
    a("s_lshl_b32 s22, s19, 4")
    a("s_add_u32 s21, s21, s22")
    a("s_and_b32 s22, s14, 3")
    a("s_lshl_b32 s22, s22, 2")
    a("s_add_u32 s21, s21, s22")
    a("s_lshl_b32 s22, s18, 1")
    a("s_add_u32 s21, s21, s22")
    a("s_mul_i32 s21, s21, 1280")
    a("s_add_u32 s21, s21, %d" % WS_XN)
    srd_off(a, 64, P_X, P_X + 1, "s20", 2560)
    srd_off(a, 68, 10, 11, "s21", 2560)
    a("v_lshrrev_b32 v11, 5, v1")
    a("v_and_b32 v12, 31, v1")
    a("v_mul_u32_u24 v10, 1280, v11")
    a("v_lshl_add_u32 v10, v12, 4, v10")
    a("v_cmp_gt_u32 s[26:27], 16, v12")
    a("v_mov_b32 v13, 0x10000")
    a("s_nop 0")
    a("v_cndmask_b32 v13, v13, v10, s[26:27]")
    a("buffer_load_dwordx4 v[%d:%d], v10, s[64:67], 0 offen" % (X0, X0 + 3))
    a("buffer_load_dwordx4 v[%d:%d], v10, s[64:67], 0 offen offset:512" % (X0 + 4, X0 + 7))
    a("buffer_load_dwordx4 v[%d:%d], v13, s[64:67], 0 offen offset:1024" % (X0 + 8, X0 + 11))
    lds_clear()
    a("s_mov_b32 s24, 0xffff0000")
    for i in range(12):
        if i == 0:
            a("s_waitcnt vmcnt(0)")
        a("v_lshlrev_b32 v%d, 16, v%d" % (XF + 2 * i, X0 + i))
        a("v_and_b32 v%d, s24, v%d" % (XF + 2 * i + 1, X0 + i))

    def pk(op, d, x, y, z=None):
        if z is None:
            a("v_pk_%s_f32 v[%d:%d], v[%d:%d], v[%d:%d]" % (op, d, d + 1, x, x + 1, y, y + 1))
        else:
            a("v_pk_%s_f32 v[%d:%d], v[%d:%d], v[%d:%d], v[%d:%d]" % (op, d, d + 1, x, x + 1, y, y + 1, z, z + 1))

    def allreduce32(r):
        for sh in (8, 4, 2, 1):
            a("s_nop 1")
            a("v_add_f32_dpp v%d, v%d, v%d row_ror:%d row_mask:0xf bank_mask:0xf" % (r, r, r, sh))
        a("ds_swizzle_b32 v%d, v%d offset:0x401F" % (r + 1, r))
        a("s_waitcnt lgkmcnt(0)")
        a("v_add_f32 v%d, v%d, v%d" % (r, r, r + 1))
    pk("add", S0, XF, XF + 2)
    pk("add", S0 + 2, XF + 4, XF + 6)
    for i in range(4, 12):
        pk("add", S0 + 2 * (i & 1), S0 + 2 * (i & 1), XF + 2 * i)
    pk("add", S0, S0, S0 + 2)
    a("v_add_f32 v%d, v%d, v%d" % (S0, S0, S0 + 1))
    allreduce32(S0)
    a("v_mul_f32 v%d, %s, v%d" % (S0, fh(-1.0 / 640), S0))
    a("v_mov_b32 v%d, v%d" % (S0 + 1, S0))
    for i in range(12):
        t = S0 + 4 + 2 * (i & 1)
        q = S0 + 8 + 2 * (i >> 3)
        pk("add", t, XF + 2 * i, S0)
        if i % 8 == 0:
            pk("mul", q, t, t)
        else:
            pk("fma", q, t, t, q)
    a("v_add_f32 v%d, v%d, v%d" % (S0 + 8, S0 + 8, S0 + 9))
    a("v_add_f32 v%d, v%d, v%d" % (S0 + 10, S0 + 10, S0 + 11))
    a("v_cndmask_b32 v%d, 0, v%d, s[26:27]" % (S0 + 10, S0 + 10))
    a("v_add_f32 v%d, v%d, v%d" % (S0 + 8, S0 + 8, S0 + 10))
    allreduce32(S0 + 8)
    V = S0 + 8
    a("v_mul_f32 v%d, %s, v%d" % (V, fh(1.0 / 640), V))
    a("v_cvt_pk_bf16_f32 v%d, v%d, v%d" % (S0 + 2, S0, V))
    a("v_lshlrev_b32 v%d, 16, v%d" % (S0, S0 + 2))
    a("v_mov_b32 v%d, v%d" % (S0 + 1, S0))
    a("v_and_b32 v%d, s24, v%d" % (V, S0 + 2))
    a("v_add_f32 v%d, %s, v%d" % (V, fh(1e-5), V))
    a("v_cvt_pk_bf16_f32 v%d, v%d, v%d" % (V, V, V))
    a("v_and_b32 v%d, s24, v%d" % (V, V))
    a("v_sqrt_f32 v%d, v%d" % (V, V))
    a("s_nop 0")
    a("v_cvt_pk_bf16_f32 v%d, v%d, v%d" % (V, V, V))
    a("v_and_b32 v%d, s24, v%d" % (V, V))
    RS = S0 + 4
    a("v_rcp_f32 v%d, v%d" % (RS, V))
    a("s_nop 0")
    a("v_fma_f32 v%d, -v%d, v%d, 1.0" % (RS + 2, V, RS))
    a("v_fma_f32 v%d, v%d, v%d, v%d" % (RS, RS + 2, RS, RS))
    a("v_mov_b32 v%d, v%d" % (RS + 1, RS))
    a("v_sub_f32 v%d, 0, v%d" % (V, V))
    a("v_mov_b32 v%d, v%d" % (V + 1, V))
    for i in range(12):
        pk("add", XF + 2 * i, XF + 2 * i, S0)
    for i in range(12):
        a("v_cvt_pk_bf16_f32 v%d, v%d, v%d" % (X0 + i, XF + 2 * i, XF + 2 * i + 1))
    Q = 124
    for i in range(12):
        x = XF + 2 * i
        q = Q + 4 * (i & 3)
        a("v_lshlrev_b32 v%d, 16, v%d" % (x, X0 + i))
        a("v_and_b32 v%d, s24, v%d" % (x + 1, X0 + i))
        pk("mul", q, x, RS)
        pk("fma", q + 2, q, V, x)
        pk("fma", q, q + 2, RS, q)
        a("v_cvt_pk_bf16_f32 v%d, v%d, v%d" % (X0 + i, q, q + 1))
    a("buffer_store_dwordx4 v[%d:%d], v10, s[68:71], 0 offen sc1" % (X0, X0 + 3))
    a("buffer_store_dwordx4 v[%d:%d], v10, s[68:71], 0 offen offset:512 sc1" % (X0 + 4, X0 + 7))
    a("buffer_store_dwordx4 v[%d:%d], v13, s[68:71], 0 offen offset:1024 sc1" % (X0 + 8, X0 + 11))
    st()
    a("s_waitcnt vmcnt(0)")
    a("v_mov_b32 v16, 1")
    a("v_cmp_eq_u32 vcc, 0, v1")
    a("s_and_saveexec_b64 s[26:27], vcc")
    a("ds_add_rtn_u32 v18, v15, v16")
    a("s_waitcnt lgkmcnt(0)")
    a("v_readfirstlane_b32 s20, v18")
    a("s_nop 3")
    Lns = a.newlabel("U_nsig")
    a("s_cmp_lg_u32 s20, 3")
    a("s_cbranch_scc1 %s" % Lns)
    lds_wait(a, 18, 15, 16, 1, "U_iw", 1)
    a("ds_read_b64 v[20:21], v15 offset:16")
    a("s_lshl_b32 s20, s13, 8")
    a("s_lshl_b32 s21, s14, 3")
    a("s_add_u32 s20, s20, s21")
    a("s_waitcnt lgkmcnt(0)")
    a("buffer_store_dwordx2 v[20:21], v17, s[76:79], s20 offen sc1")
    a.label(Lns)
    a("s_mov_b64 exec, -1")
    st()

    def signal(vd, vz, soff, op="add", val="1"):
        a("v_cmp_eq_u32 vcc, 0, v1")
        a("s_and_saveexec_b64 s[30:31], vcc")
        a("v_mov_b32 v%d, %s" % (vd, val))
        a("v_mov_b32 v%d, 0" % vz)
        a("buffer_atomic_%s v%d, v%d, s[76:79], %s offen" % (op, vd, vz, soff))
        a("s_mov_b64 exec, -1")

    def chk_ge(n):
        return lambda sr: a("s_cmp_ge_u32 s%d, %d" % (sr, n))

    def wait_init(vt, vz, sdbg):
        a("s_waitcnt vmcnt(0)")

    ACCF, BRAW, ACCS, ADR, CON = 16, 64, 140, 228, 16
    ACC2, ACC3 = 180, 140
    Lp0b = a.newlabel("U_p0b")
    Lp0c = a.newlabel("U_p0c")
    Lp0d = a.newlabel("U_p0d")
    np0 = st.n
    K = lambda c, k: CON + 11 * c + k
    a("s_cmp_lg_u32 s17, 0")
    a("s_cbranch_scc1 %s" % Lp0d)
    lds_wait(a, 18, 15, 16, 1, "U_iw", 1)
    a("ds_read_b64 v[20:21], v15 offset:16")
    a("s_lshl_b32 s24, s13, 8")
    a("v_lshlrev_b32 v19, 3, v7")
    a("s_mov_b32 s31, 0x100000")
    Lq = a.newlabel("U_xq")
    Lqd = a.newlabel("U_xqd")
    a.label(Lq)
    a("buffer_load_dwordx2 v[22:23], v19, s[76:79], s24 offen sc1")
    a("s_waitcnt vmcnt(0) lgkmcnt(0)")
    a("v_cmp_eq_u64 vcc, v[20:21], v[22:23]")
    a("s_nop 3")
    a("s_cmp_eq_u64 vcc, -1")
    a("s_cbranch_scc1 %s" % Lqd)
    a("s_sleep 2")
    a("s_sub_u32 s31, s31, 1")
    a("s_cmp_lg_u32 s31, 0")
    a("s_cbranch_scc1 %s" % Lq)
    a.label(Lqd)
    a("ds_write_b32 v15, v16 offset:4")
    a.label(Lp0d)
    srd(a, 80, P_B1, P_B1 + 1, 3072)
    a("s_mul_i32 s21, s14, 192")
    a("v_lshlrev_b32 v11, 3, v6")
    for nt in range(6):
        a("buffer_load_dwordx2 v[%d:%d], v11, s[80:83], s21 offen offset:%d" % (BRAW + 2 * nt, BRAW + 2 * nt + 1, nt * 32))

    a("v_lshrrev_b32 v10, 2, v7")
    a("v_and_b32 v11, 3, v7")
    a("v_lshrrev_b32 v12, 1, v6")
    a("v_and_b32 v13, 1, v6")
    a("v_lshlrev_b32 v12, 4, v12")
    a("v_lshl_add_u32 v12, v13, 2, v12")
    a("v_add_u32 v12, v12, v10")
    a("v_lshlrev_b32 v12, 6, v12")
    a("v_lshl_add_u32 v12, v13, 5, v12")
    a("v_lshl_add_u32 v12, v11, 3, v12")
    a("v_xor_b32 v13, 32, v12")
    a("s_lshl_b32 s20, s17, 12")
    for sl in range(NS):
        a("s_add_u32 s21, s20, %d" % (sl * SLOT))
        a("v_add_u32 v%d, s21, v8" % (ADR + 6 * sl))
        a("v_add_u32 v%d, s21, v9" % (ADR + 6 * sl + 1))
        a("v_add_u32 v%d, %d, v12" % (ADR + 6 * sl + 2, sl * SLOT + 16384))
        a("v_add_u32 v%d, %d, v13" % (ADR + 6 * sl + 3, sl * SLOT + 16384))
        a("v_add_u32 v%d, %d, v8" % (ADR + 6 * sl + 4, sl * SLOT + 16384))
        a("v_add_u32 v%d, %d, v9" % (ADR + 6 * sl + 5, sl * SLOT + 16384))
    a("v_lshlrev_b32 v5, 2, v7")
    a("s_waitcnt lgkmcnt(0)")

    def nsub(s):
        return 4 if 20 <= s < 32 else 2

    def fbase(s, sset):
        if s < 20:
            return 76 + 32 * sset
        if s < 32:
            return 76 + 24 * sset
        return (16, 76)[sset]

    def reads(s, sub, sset):
        sl = s % NS
        A = ADR + 6 * sl
        b0 = fbase(s, sset)
        out = []
        if s < 10:
            b = b0
            for k, i in [("N", 0), ("T", 0), ("T", 1), ("N", 1), ("N", 2), ("N", 3), ("N", 4), ("N", 5)]:
                if k == "T":
                    out.append("ds_read_b128 v[%d:%d], v%d offset:%d" % (b + 4 * i, b + 4 * i + 3, A + sub, i * 2048))
                else:
                    o = (i >> 1) * 4096 + sub * 2048
                    r = b + 8 + 4 * i
                    out.append("ds_read_b64_tr_b16 v[%d:%d], v%d offset:%d" % (r, r + 1, A + 2 + (i & 1), o))
                    out.append("ds_read_b64_tr_b16 v[%d:%d], v%d offset:%d" % (r + 2, r + 3, A + 2 + (i & 1), o + 512))
        elif s < 20:
            b = b0
            for k, i in [("N", 0), ("T", 0), ("T", 1), ("N", 1), ("N", 2), ("N", 3), ("N", 4)]:
                if k == "T":
                    out.append("ds_read_b128 v[%d:%d], v%d offset:%d" % (b + 4 * i, b + 4 * i + 3, A + sub, i * 2048))
                else:
                    out.append("ds_read_b128 v[%d:%d], v%d offset:%d" % (b + 8 + 4 * i, b + 11 + 4 * i, A + 4 + sub, i * 2048))
        else:
            steps = [(sub >> 1, sub & 1, b0)] if s < 32 else [(sub, 0, b0), (sub, 1, b0 + 24)]
            for (sb, ks, b) in steps:
                so = sb * SUB
                for k, i in [("D", 0), ("T", 0), ("D", 1), ("D", 2), ("D", 3), ("D", 4)]:
                    if k == "T":
                        if s < 32:
                            out.append("ds_read_b128 v[%d:%d], v%d offset:%d" % (b, b + 3, A + ks, so))
                        else:
                            out.append("ds_read_b64_tr_b16 v[%d:%d], v%d offset:%d" % (b, b + 1, A + 2, so + ks * 4096))
                            out.append("ds_read_b64_tr_b16 v[%d:%d], v%d offset:%d" % (b + 2, b + 3, A + 2, so + ks * 4096 + 512))
                    else:
                        out.append("ds_read_b128 v[%d:%d], v%d offset:%d" % (b + 4 + 4 * i, b + 7 + 4 * i, A + 4 + ks, so + i * 2048))
        return out

    def mf(d, av, bv, first):
        return "v_mfma_f32_16x16x32_bf16 v[%d:%d], v[%d:%d], v[%d:%d], %s" % (
            d, d + 3, av, av + 3, bv, bv + 3, "0" if first else "v[%d:%d]" % (d, d + 3))

    def mfmas(s, sub, sset):
        out = []
        b = fbase(s, sset)
        if s < 10:
            for nt in range(6):
                for j in range(2):
                    out.append(mf(ACCF + (j * 6 + nt) * 4, b + 8 + 4 * nt, b + 4 * j, s == 0 and sub == 0))
        elif s < 20:
            for c in range(5):
                for j in range(2):
                    out.append(mf(ACCS + (c * 2 + j) * 4, b + 4 * j, b + 8 + 4 * c, s == 10 and sub == 0))
        elif s < 32:
            for dt in range(5):
                out.append(mf(ACC2 + dt * 4, b + 4 + 4 * dt, b, s == 20 and sub == 0))
        else:
            for ks in range(2):
                for dt in range(5):
                    out.append(mf(ACC3 + dt * 4, b + 24 * ks + 4 + 4 * dt, b + 24 * ks, s == 32 and sub == 0 and ks == 0))
        return out

    class BG:
        def __init__(self):
            self.q = []
            self.cur = None

        def __call__(self, line):
            Asm()(line)
            if self.cur is not None:
                self.cur.append("    " + line)
            else:
                self.q.append(["    " + line])

        def label(self, name):
            self.cur.append(name + ":")

        def newlabel(self, p):
            return a.newlabel(p)

        def begin(self):
            self.cur = []

        def end(self):
            self.q.append(self.cur)
            self.cur = None

        def bar(self, n=1):
            self.q.append(("BAR", n))

        def at(self, s):
            self.q.append(("AT", s))

        def emit(self, budget, s):
            while self.q and budget > 0:
                h = self.q[0]
                if isinstance(h, tuple):
                    if h[0] == "AT" and s >= h[1]:
                        self.q.pop(0)
                        continue
                    return
                a.lines += h
                budget -= len(h)
                self.q.pop(0)

        def barrier_passed(self):
            if self.q and isinstance(self.q[0], tuple) and self.q[0][0] == "BAR":
                n = self.q[0][1] - 1
                self.q.pop(0)
                if n > 0:
                    self.q.insert(0, ("BAR", n))
    b = BG()

    def bsignal(vd, vz, soff, op="add", val="1"):
        b("v_cmp_eq_u32 vcc, 0, v1")
        b("s_and_saveexec_b64 s[30:31], vcc")
        b("v_mov_b32 v%d, %s" % (vd, val))
        b("v_mov_b32 v%d, 0" % vz)
        b("buffer_atomic_%s v%d, v%d, s[76:79], %s offen" % (op, vd, vz, soff))
        b("s_mov_b64 exec, -1")
        b("s_nop 3")

    b.at(10)
    b("s_waitcnt vmcnt(0)")
    b("s_lshl_b32 s24, s13, 1")
    b("s_add_u32 s24, s24, s19")
    b("s_lshl_b32 s29, s24, 8")
    b("s_add_u32 s29, s29, %d" % F_H1)
    b("s_mul_i32 s24, s24, 196608")
    b("s_mul_i32 s25, s14, 12288")
    b("s_add_u32 s24, s24, s25")
    b("s_lshl_b32 s25, s18, 11")
    b("s_add_u32 s24, s24, s25")
    b("s_add_u32 s24, s24, %d" % WS_H1)
    b.begin()
    srd_off(b, 20, 10, 11, "s24", 12288)
    b.end()
    b("v_lshrrev_b32 v10, 2, v7")
    b("v_and_b32 v11, 3, v7")
    b("v_lshl_add_u32 v10, v10, 3, v11")
    b("v_lshlrev_b32 v10, 6, v10")
    b("v_lshl_add_u32 v10, v6, 4, v10")
    b("s_mov_b32 s24, 0xffff0000")
    b("s_mov_b32 s25, 0x00003f80")
    b("s_mov_b32 s26, %s" % fh(-2 * math.sqrt(2 / math.pi) * LOG2E * 0.044715))
    b("s_mov_b32 s27, s26")
    b("s_mov_b32 s28, 0x3f800000")
    b("v_mov_b32 v12, %s" % fh(-2 * math.sqrt(2 / math.pi) * LOG2E))
    b("v_mov_b32 v13, v12")
    BF, DST, TMP = 180, 188, 212
    for aa in range(3):
        for i in range(4):
            b("v_lshlrev_b32 v%d, 16, v%d" % (BF + 2 * i, BRAW + 4 * aa + i))
            b("v_and_b32 v%d, s24, v%d" % (BF + 2 * i + 1, BRAW + 4 * aa + i))
        d0 = DST + 8 * aa
        units = [(ACCF + (j * 6 + 2 * aa) * 4, ACCF + (j * 6 + 2 * aa + 1) * 4, BF, d0 + 4 * j) for j in range(2)]
        gelu_units(b, units, TMP, 12, 26, 25, 28, 24)
        b("s_mov_b32 s88, %d" % (aa * 4096))
        for j in range(2):
            b("buffer_store_dwordx4 v[%d:%d], v10, s[20:23], s88 offen offset:%d sc1" % (d0 + 4 * j, d0 + 4 * j + 3, j * 256))
    b("v_mul_u32_u24 v14, 48, v7")
    b("v_add_u32 v14, %d, v14" % (MISC + 2048))
    b("s_mul_i32 s20, s17, 2560")
    b("s_add_u32 s20, s20, %d" % (MISC + 6144))
    b("v_lshl_add_u32 v13, v1, 3, s20")
    for c in range(5):
        for k in range(8):
            b("ds_read_b32 v%d, v14 offset:%d" % (K(c, k), c * 768 + k * 4))
        b("ds_read_b32 v%d, v13 offset:%d" % (K(c, 8), c * 512))
        b("ds_read_b32 v%d, v13 offset:%d" % (K(c, 9), c * 512 + 4))
    b.bar(BARH1)
    b.begin()
    b("s_waitcnt vmcnt(0)")
    bsignal(10, 11, "s29")
    b.end()
    b.bar(1)
    EB = MISC + 6144
    b("s_mul_i32 s20, s17, 1280")
    b("s_add_u32 s20, s20, %d" % EB)
    b("v_lshl_add_u32 v13, v1, 2, s20")
    b("v_mov_b32 v12, 0")
    for i in range(5):
        b("ds_write_b32 v13, v12 offset:%d" % (i * 256))

    b.at(20)
    G = lambda c, i: ACCS + c * 8 + i
    EQ = lambda c, q: 200 + 4 * c + q
    EWL = list(range(124, 140)) + list(range(220, 224))
    EW = lambda c, q: EWL[4 * c + q]
    TM = 71
    for i in range(8):
        for c in range(5):
            b("v_mul_f32 v%d, v%d, v%d" % (TM + c, K(c, 2), G(c, i)))
        for c in range(5):
            b("v_fmac_f32_dpp v%d, v%d, v%d %s" % (TM + c, G(c, i), K(c, 3), DPP8))
        if i == 0:
            for c in range(5):
                b("v_mov_b32 v%d, v%d" % (G(c, 0), TM + c))
        else:
            for c in range(5):
                b("v_fma_f32 v%d, v%d, v%d, v%d" % (G(c, i), K(c, 0), G(c, i - 1), TM + c))
            for c in range(5):
                b("v_fmac_f32_dpp v%d, v%d, v%d %s" % (G(c, i), G(c, i - 1), K(c, 1), DPP8))
    for q in range(4):
        b("v_add_u32 v%d, %d, v5" % (10 + q, q * 64))
    for q in range(4):
        for c in range(5):
            b("ds_bpermute_b32 v%d, v%d, v%d" % (EQ(c, q), 10 + q, G(c, 7)))
    b("s_waitcnt lgkmcnt(0)")
    cmul_add(b, [(EW(c, 1), K(c, 4), K(c, 5), EQ(c, 0), EQ(c, 1)) for c in range(5)])
    for q in range(2, 4):
        cmul_add(b, [(EW(c, q), K(c, 4), K(c, 5), EW(c, q - 1), EQ(c, q)) for c in range(5)])
    b("s_mul_i32 s20, s17, 320")
    b("s_add_u32 s20, s20, %d" % (MISC + 256))
    b("v_add_u32 v%d, s20, v5" % TM)
    for c in range(5):
        b("ds_write_b32 v%d, v%d offset:%d" % (TM, EW(c, 3), c * 64))
    b.bar(1)
    if L2T:
        b("s_lshr_b32 s20, s2, 6")
        b("s_lshl_b32 s20, s20, 2")
        b("s_add_u32 s20, s20, s17")
        b("s_mul_i32 s20, s20, 12288")
        b("s_mul_i32 s21, s15, 196608")
        b("s_add_u32 s20, s20, s21")
        b("s_add_u32 s20, s20, %d" % WS_H1)
        b.begin()
        srd_off(b, 64, 10, 11, "s20", 12288)
        b.end()
        b("v_lshlrev_b32 v224, 7, v1")
        b("s_movk_i32 s21, 8192")
        b("buffer_load_dword v225, v224, s[64:67], 0 offen sc1")
        b("buffer_load_dword v226, v224, s[64:67], s21 offen sc1")
        b("s_lshr_b32 s20, s2, 3")
        b("s_and_b32 s20, s20, 7")
        b("s_lshl_b32 s20, s20, 2")
        b("s_add_u32 s20, s20, s17")
        b("s_mul_i32 s22, s20, 7680")
        b("s_mul_i32 s21, s16, 245760")
        b("s_add_u32 s22, s22, s21")
        b("s_add_u32 s22, s22, %d" % WS_W2T)
        b.begin()
        srd_off(b, 64, 10, 11, "s22", 7680)
        b.end()
        b("buffer_load_dword v227, v224, s[64:67], 0 offen sc1")
    b("v_add_u32 v%d, %d, v5" % (TM, MISC + 256))
    for w in range(4):
        for c in range(5):
            b("ds_read_b32 v%d, v%d offset:%d" % (EW(c, w), TM, w * 320 + c * 64))
    b("s_mul_i32 s20, s14, 5120")
    b("s_add_u32 s20, s20, %d" % WS_ET)
    b.begin()
    srd_off(b, 68, 10, 11, "s20", 5120)
    b.end()
    b("s_waitcnt lgkmcnt(0)")
    for w in range(1, 4):
        cmul_add(b, [(EW(c, w), K(c, 6), K(c, 7), EW(c, w - 1), EW(c, w)) for c in range(5)])
    b.begin()
    Lnp = a.newlabel("U_nopub")
    b("s_cmp_lg_u32 s17, 0")
    b("s_cbranch_scc1 %s" % Lnp)
    b("s_mul_i32 s20, s13, 320")
    b("v_cmp_gt_u32 vcc, 16, v1")
    b("s_and_saveexec_b64 s[30:31], vcc")
    for c in range(5):
        b("buffer_store_dword v%d, v5, s[68:71], s20 offen offset:%d sc1" % (EW(c, 3), c * 64))
    b("s_mov_b64 exec, -1")
    b("s_nop 3")
    b.label(Lnp)
    b.end()
    for w in range(1, 4):
        b.begin()
        b("s_cmp_eq_u32 s17, %d" % w)
        b("s_cselect_b64 s[%d:%d], -1, 0" % (80 + 2 * w, 81 + 2 * w))
        b.end()
    for c in range(5):
        b("v_cndmask_b32 v%d, 0, v%d, s[82:83]" % (K(c, 10), EW(c, 0)))
    for c in range(5):
        b("v_cndmask_b32 v%d, v%d, v%d, s[84:85]" % (K(c, 10), K(c, 10), EW(c, 1)))
    for c in range(5):
        b("v_cndmask_b32 v%d, v%d, v%d, s[86:87]" % (K(c, 10), K(c, 10), EW(c, 2)))
    cmul_add(b, [(EW(c, 0), K(c, 4), K(c, 5), K(c, 10), EQ(c, 0)) for c in range(5)])
    for q in range(1, 3):
        cmul_add(b, [(EW(c, q), K(c, 4), K(c, 5), EW(c, q - 1), EQ(c, q)) for c in range(5)])
    b.begin()
    Lnp = a.newlabel("U_nosig")
    b("s_cmp_lg_u32 s17, 0")
    b("s_cbranch_scc1 %s" % Lnp)
    b("s_waitcnt vmcnt(0)")
    b("s_lshl_b32 s20, 1, s13")
    b("s_lshl_b32 s21, s14, 8")
    b("s_add_u32 s21, s21, %d" % F_E)
    bsignal(TM, TM + 1, "s21", "or", "s20")
    b.label(Lnp)
    b.end()
    b("v_cmp_eq_u32 s[82:83], 1, v6")
    b("v_cmp_eq_u32 s[84:85], 2, v6")
    b("v_cmp_eq_u32 s[86:87], 3, v6")
    b("s_nop 1")
    for q in range(3):
        for c in range(5):
            b("v_cndmask_b32 v%d, v%d, v%d, s[%d:%d]" % (K(c, 10), K(c, 10), EW(c, q), 82 + 2 * q, 83 + 2 * q))
    for c in range(5):
        for k in range(4):
            b("ds_read_b32 v%d, v14 offset:%d" % (K(c, 4 + k), c * 768 + 32 + k * 4))
    b("s_lshl_b32 s20, s13, 1")
    b("s_add_u32 s20, s20, s19")
    b("s_lshl_b32 s29, s20, 8")
    b("s_add_u32 s29, s29, %d" % F_HT)
    b("s_mul_i32 s20, s20, 163840")
    b("s_mul_i32 s21, s18, 81920")
    b("s_add_u32 s20, s20, s21")
    b("s_add_u32 s20, s20, %d" % WS_HT)
    b.begin()
    srd_off(b, 72, 10, 11, "s20", 81920)
    b.end()
    b("v_lshrrev_b32 v%d, 3, v7" % TM)
    b("v_mul_u32_u24 v%d, 640, v%d" % (TM + 1, TM))
    b("v_add_u32 v%d, v%d, v3" % (TM + 1, TM + 1))
    b("v_lshlrev_b32 v%d, 6, v%d" % (TM + 1, TM + 1))
    b("v_lshl_add_u32 v%d, v6, 4, v%d" % (TM + 1, TM + 1))
    b("v_mul_u32_u24 v%d, 0x8000, v%d" % (TM, TM))
    b("v_lshl_add_u32 v%d, v%d, 16, v%d" % (TM, TM, TM))
    b("s_mul_i32 s20, s14, 2560")
    b("v_lshl_add_u32 v%d, v6, 2, s13" % (TM + 2))
    b("v_mul_u32_u24 v%d, 320, v%d" % (TM + 2, TM + 2))
    b("v_add_u32 v%d, v%d, v5" % (TM + 2, TM + 2))
    b("v_add_u32 v%d, %d, v%d" % (TM + 2, EB, TM + 2))
    b.at(ESTAGE + 0.5)
    for e in range(4):
        for c in range(5):
            b("ds_read_b32 v%d, v%d offset:%d" % (EW(c, e), TM + 2, e * 320 + c * 64))
    b("s_waitcnt lgkmcnt(0)")
    for e in range(1, 4):
        cmul_add(b, [(EW(c, e), K(c, 4), K(c, 5), EW(c, e - 1), EW(c, e)) for c in range(5)])
    b("s_nop 0")
    for c in range(5):
        for q in range(4):
            b("ds_bpermute_b32 v%d, v%d, v%d" % (EQ(c, q), 10 + q, EW(c, 3)))
    b("s_waitcnt lgkmcnt(0)")
    for q in range(1, 4):
        cmul_add(b, [(EQ(c, q), K(c, 6), K(c, 7), EQ(c, q - 1), EQ(c, q)) for c in range(5)])
    cmul_add(b, [(K(c, 10), K(c, 8), K(c, 9), EQ(c, 3), K(c, 10)) for c in range(5)])
    CC = lambda c, i: 124 + 2 * c + i
    for i in range(8):
        cmul_add(b, [(CC(c, i & 1), K(c, 0), K(c, 1), K(c, 10) if i == 0 else CC(c, (i - 1) & 1), None) for c in range(5)])
        if i & 1:
            for c in range(5):
                u = G(c, i - 1)
                b("v_pk_add_f32 v[%d:%d], v[%d:%d], v[%d:%d]" % (u, u + 1, u, u + 1, CC(c, 0), CC(c, 1)))
    for c in range(5):
        for j in range(4):
            b("v_cvt_pk_bf16_f32 v%d, v%d, v%d" % (EQ(c, j), G(c, 2 * j), G(c, 2 * j + 1)))
    for c in range(5):
        for j in range(4):
            b("v_xor_b32 v%d, v%d, v%d" % (EQ(c, j), TM, EQ(c, j)))
        b("buffer_store_dwordx4 v[%d:%d], v%d, s[72:75], s20 offen offset:%d sc1" % (EQ(c, 0), EQ(c, 3), TM + 1, c * 512))
    b("s_lshl_b32 s21, s15, 6")
    b("s_lshl_b32 s22, s17, 4")
    b("s_add_u32 s21, s21, s22")
    b("s_mul_i32 s22, s21, 1280")
    b("s_mul_i32 s23, s16, 160")
    b("s_add_u32 s22, s22, s23")
    b.begin()
    srd(b, 80, P_OUT, P_OUT + 1, 2048 * 2560)
    b.end()
    b("v_mul_u32_u24 v15, 2560, v7")
    b("v_lshl_add_u32 v15, v6, 4, v15")
    b("s_lshl_b32 s27, s22, 1")
    b("s_mov_b32 s20, 0xffff0000")
    b("s_mov_b32 s21, 0x00003f80")
    b("s_mov_b32 s26, 0x3f800000")
    b("s_mov_b32 s88, %s" % fh(-LOG2E))
    b("s_mov_b32 s89, s88")
    b("v_lshlrev_b32 v14, 3, v6")
    b("v_add_u32 v14, %d, v14" % (MISC + 1536))
    b("s_mul_i32 s22, s17, 2560")
    b("s_add_u32 s22, s22, %d" % (2 * SLOT))
    b("v_mul_u32_u24 v10, 160, v7")
    b("v_lshl_add_u32 v10, v6, 3, v10")
    b("v_add_u32 v10, s22, v10")
    b.bar(BARHT)
    b.begin()
    b("s_waitcnt vmcnt(0)")
    bsignal(12, 13, "s29")
    b.end()
    if L2T:
        b("s_lshr_b32 s22, s2, 3")
        b("s_and_b32 s22, s22, 7")
        b("s_lshl_b32 s22, s22, 1")
        b("s_add_u32 s22, s22, s18")
        b("s_mul_i32 s22, s22, 6400")
        b("s_mul_i32 s23, s16, 102400")
        b("s_add_u32 s22, s22, s23")
        b.begin()
        b("s_cmp_eq_u32 s19, 0")
        b("s_cselect_b32 s24, s%d, s%d" % (P_CRE, P_CIM))
        b("s_cselect_b32 s25, s%d, s%d" % (P_CRE + 1, P_CIM + 1))
        srd_off(b, 64, 24, 25, "s22", 6400)
        b.end()
        b("buffer_load_dword v225, v224, s[64:67], 0 offen")
    T0, T1, PK = 160, 200, 64
    DFL = list(range(124, 140)) + list(range(220, 224))
    b.at(32.5)
    for dt in range(5):
        b("ds_read_b64 v[%d:%d], v14 offset:%d" % (PK + 2 * dt, PK + 2 * dt + 1, dt * 32))
        b("ds_read_b64 v[%d:%d], v14 offset:%d" % (T0 + 2 * dt, T0 + 2 * dt + 1, 256 + dt * 32))
    b("s_waitcnt lgkmcnt(0)")
    for i in range(10):
        b("v_lshlrev_b32 v%d, 16, v%d" % (T1 + 2 * i, PK + i))
        b("v_and_b32 v%d, s20, v%d" % (T1 + 2 * i + 1, PK + i))
        b("v_lshlrev_b32 v%d, 16, v%d" % (DFL[2 * i], T0 + i))
        b("v_and_b32 v%d, s20, v%d" % (DFL[2 * i + 1], T0 + i))
    for i in range(10):
        b("v_cvt_pk_bf16_f32 v%d, v%d, v%d" % (PK + i, ACC2 + 2 * i, ACC2 + 2 * i + 1))
    for i in range(10):
        b("v_dot2_f32_bf16 v%d, v%d, s21, v%d" % (ACC2 + 2 * i, PK + i, T1 + 2 * i))
        b("v_dot2_f32_bf16 v%d, v%d, s26, v%d" % (ACC2 + 2 * i + 1, PK + i, T1 + 2 * i + 1))
    b("s_nop 1")
    for i in range(10):
        b("v_cvt_pk_bf16_f32 v%d, v%d, v%d" % (PK + i, ACC2 + 2 * i, ACC2 + 2 * i + 1))
    for i in range(10):
        b("v_lshlrev_b32 v%d, 16, v%d" % (ACC2 + 2 * i, PK + i))
        b("v_and_b32 v%d, s20, v%d" % (ACC2 + 2 * i + 1, PK + i))
    for i in range(10):
        b("v_pk_mul_f32 v[%d:%d], v[%d:%d], s[88:89]" % (T0 + 2 * i, T0 + 2 * i + 1, ACC2 + 2 * i, ACC2 + 2 * i + 1))
    for i in range(20):
        b("v_exp_f32 v%d, v%d" % (T0 + i, T0 + i))
    b("s_nop 0")
    for i in range(10):
        b("v_pk_add_f32 v[%d:%d], v[%d:%d], 1.0" % (T0 + 2 * i, T0 + 2 * i + 1, T0 + 2 * i, T0 + 2 * i + 1))
    for i in range(20):
        b("v_rcp_f32 v%d, v%d" % (T0 + i, T0 + i))
    b("s_nop 0")
    for i in range(10):
        b("v_pk_mul_f32 v[%d:%d], v[%d:%d], v[%d:%d]" % (ACC2 + 2 * i, ACC2 + 2 * i + 1, ACC2 + 2 * i, ACC2 + 2 * i + 1, T0 + 2 * i, T0 + 2 * i + 1))
    for i in range(10):
        b("v_cvt_pk_bf16_f32 v%d, v%d, v%d" % (PK + i, ACC2 + 2 * i, ACC2 + 2 * i + 1))
    for i in range(10):
        b("v_lshlrev_b32 v%d, 16, v%d" % (T0 + 2 * i, PK + i))
        b("v_and_b32 v%d, s20, v%d" % (T0 + 2 * i + 1, PK + i))
    b.at(41.5)
    RX, RN = 200, 64
    for dt in range(5):
        b("ds_read_b64 v[%d:%d], v10 offset:%d" % (RN + 2 * dt, RN + 2 * dt + 1, 10240 + dt * 32))
    for dt in range(5):
        b("ds_read_b64 v[%d:%d], v10 offset:%d" % (RX + 2 * dt, RX + 2 * dt + 1, dt * 32))
    b("s_waitcnt lgkmcnt(0)")
    for i in range(10):
        b("v_lshlrev_b32 v%d, 16, v%d" % (ACC2 + 2 * i, RN + i))
        b("v_and_b32 v%d, s20, v%d" % (ACC2 + 2 * i + 1, RN + i))
    for i in range(10):
        b("v_pk_mul_f32 v[%d:%d], v[%d:%d], v[%d:%d]" % (ACC2 + 2 * i, ACC2 + 2 * i + 1, ACC2 + 2 * i, ACC2 + 2 * i + 1, DFL[2 * i], DFL[2 * i + 1]))
    for i in range(10):
        b("v_cvt_pk_bf16_f32 v%d, v%d, v%d" % (RN + i, ACC2 + 2 * i, ACC2 + 2 * i + 1))
    for i in range(10):
        b("v_lshlrev_b32 v%d, 16, v%d" % (ACC2 + 2 * i, RN + i))
        b("v_and_b32 v%d, s20, v%d" % (ACC2 + 2 * i + 1, RN + i))
    for i in reversed(range(10)):
        b("v_and_b32 v%d, s20, v%d" % (T1 + 2 * i + 1, RX + i))
        b("v_lshlrev_b32 v%d, 16, v%d" % (T1 + 2 * i, RX + i))

    def p23_addr():
        t0, t1, t2 = 10, 11, 12
        a("v_lshrrev_b32 v%d, 2, v7" % t0)
        a("v_and_b32 v%d, 3, v7" % t1)
        a("v_lshl_add_u32 v%d, v6, 3, v%d" % (t2, t0))
        a("v_lshlrev_b32 v%d, 7, v%d" % (t2, t2))
        a("v_lshl_add_u32 v%d, v%d, 3, v%d" % (t2, t1, t2))
        a("v_lshrrev_b32 v%d, 1, v%d" % (t0, t0))
        a("v_and_b32 v%d, 1, v6" % t1)
        a("v_lshl_add_u32 v%d, v%d, 1, v%d" % (t0, t1, t0))
        a("v_xor_b32 v%d, s17, v%d" % (t0, t0))
        a("v_lshl_add_u32 v%d, v%d, 5, v%d" % (t2, t0, t2))
        a("s_lshl_b32 s20, s17, 11")
        for sl in range(NS):
            a("s_add_u32 s21, s20, %d" % (sl * SLOT))
            a("v_add_u32 v%d, s21, v8" % (ADR + 6 * sl))
            a("v_add_u32 v%d, s21, v9" % (ADR + 6 * sl + 1))
            a("v_add_u32 v%d, %d, v%d" % (ADR + 6 * sl + 2, sl * SLOT, t2))
            a("v_add_u32 v%d, %d, v8" % (ADR + 6 * sl + 4, sl * SLOT + 8192))
            a("v_add_u32 v%d, %d, v9" % (ADR + 6 * sl + 5, sl * SLOT + 8192))

    def rate(s):
        if s < 20:
            return RATE1
        if s < 32:
            return RATE2
        return RATE3

    def run(s0, s1):
        st()
        a("s_waitcnt lgkmcnt(0)")
        a("s_barrier")
        b.barrier_passed()
        st()
        for r in reads(s0, 0, 0):
            a(r)
        for s in range(s0, s1):
            n = nsub(s)
            for sub in range(n):
                cur = sub & 1
                pos = s
                a("s_waitcnt lgkmcnt(0)")
                if sub == n - 1:
                    a("s_barrier")
                    b.barrier_passed()
                    pos = s + 0.5
                    if s == 31:
                        assert b.q[0] == ("AT", 32.5), b.q[0]
                    if os.environ.get("BGDBG"):
                        print("after B_%d: queue len %d head %s" % (s, len(b.q), b.q[0] if b.q else None))
                    if STAMP and s % 2 == 1:
                        st()
                    rs = reads(s + 1, 0, 1 - cur) if s + 1 < s1 else []
                else:
                    rs = reads(s, sub + 1, 1 - cur)
                per, burst = rate(s)
                ms = mfmas(s, sub, cur)
                ri = 0
                step = max(1, -(-len(rs) // len(ms)))
                for m in ms:
                    a(m)
                    for r in rs[ri:ri + step]:
                        a(r)
                    ri += step
                    b.emit(per, pos)
                for r in rs[ri:]:
                    a(r)
                b.emit(burst, pos)
    if CPRIO:
        a("s_setprio %d" % CPRIO)
    run(0, 20)
    b.emit(10000, 19.9)
    assert isinstance(b.q[0], tuple) and b.q[0] == ("AT", 20), b.q[0]
    p23_addr()
    a("s_nop 4")
    b.emit(PRE20, 20)
    run(20, 42)
    b.emit(10000, 42)
    assert not b.q, b.q[0]
    st()
    a("s_nop 7")
    for i in range(10):
        r = ACC3 + 2 * i
        a("v_pk_fma_f32 v[%d:%d], v[%d:%d], 2.0, v[%d:%d]" % (r, r + 1, r, r + 1, ACC2 + 2 * i, ACC2 + 2 * i + 1))
    for i in range(10):
        r = ACC3 + 2 * i
        a("v_pk_mul_f32 v[%d:%d], v[%d:%d], v[%d:%d]" % (r, r + 1, r, r + 1, T0 + 2 * i, T0 + 2 * i + 1))
    for i in range(10):
        r = ACC3 + 2 * i
        a("v_pk_add_f32 v[%d:%d], v[%d:%d], v[%d:%d]" % (r, r + 1, r, r + 1, T1 + 2 * i, T1 + 2 * i + 1))
    for dt in range(5):
        a("buffer_store_dwordx4 v[%d:%d], v15, s[80:83], s27 offen offset:%d %s" % (ACC3 + 4 * dt, ACC3 + 4 * dt + 3, dt * 64, OUTFLAG))
    st.flush()
    a("s_endpgm")

    a.label(Lld)
    st.n = n0
    vm = VM(a)
    Lnn = a.newlabel("U_nonon")
    a("s_add_u32 s24, s2, s17")
    a("s_cmp_lg_u32 s24, 0")
    a("s_cbranch_scc1 %s" % Lnn)
    a("s_memrealtime s[24:25]")
    a("s_waitcnt lgkmcnt(0)")
    a("s_or_b32 s24, s24, 1")
    a("v_mov_b32 v20, s24")
    a("v_mov_b32 v21, s25")
    a("buffer_store_dwordx2 v[20:21], v17, s[92:95], 0 offen sc1")
    a.label(Lnn)
    lds_clear()
    a("s_cmp_lg_u32 s17, 0")
    a("s_cbranch_scc1 U_lp0a")
    Lni = a.newlabel("U_noinit")
    a("s_cmp_lg_u32 s2, 0")
    a("s_cbranch_scc1 %s" % Lni)
    a("v_lshlrev_b32 v18, 8, v1")
    a("v_add_u32 v18, 4096, v18")
    a("s_movk_i32 s24, 16384")
    a("buffer_store_dword v17, v18, s[76:79], 0 offen sc1")
    a("buffer_store_dword v17, v18, s[76:79], s24 offen sc1")
    a("s_waitcnt vmcnt(0)")
    a("v_mov_b32 v18, 1")
    a("buffer_store_dword v18, v17, s[92:95], 0 offen offset:8 sc1")
    a.label(Lni)
    a("s_sleep 12")
    Lq = a.newlabel("U_nq")
    Lqd = a.newlabel("U_nqd")
    a("s_mov_b32 s31, 0x100000")
    a.label(Lq)
    a("buffer_load_dwordx2 v[20:21], v17, s[92:95], 0 offen sc1")
    a("s_waitcnt vmcnt(0)")
    a("v_readfirstlane_b32 s30, v20")
    a("s_nop 3")
    a("s_cmp_lg_u32 s30, 0")
    a("s_cbranch_scc1 %s" % Lqd)
    a("s_sleep 5")
    a("s_sub_u32 s31, s31, 1")
    a("s_cmp_lg_u32 s31, 0")
    a("s_cbranch_scc1 %s" % Lq)
    a.label(Lqd)
    a("ds_write_b64 v15, v[20:21] offset:16")
    lds_wait(a, 18, 15, 0, 4, "U_ln", 2)
    a("s_sleep 8")
    a("s_movk_i32 s24, 8")
    poll(a, 18, 17, 92, "s24", chk_ge(1), "U_ini", 8)
    a("s_branch U_lp0d")
    a.label("U_lp0a")
    if TLBPF:
        Lnt = a.newlabel("U_ntlb")
        a("s_cmp_lg_u32 s17, 1")
        a("s_cbranch_scc1 %s" % Lnt)
        srd(a, 64, 10, 11, 0x2600000)
        srd(a, 68, P_OUT, P_OUT + 1, 2048 * 2560)
        a("v_lshlrev_b32 v18, 20, v1")
        a("buffer_load_dword v19, v18, s[64:67], 0 offen")
        a("buffer_load_dword v20, v18, s[68:71], 0 offen")
        a.label(Lnt)
    a("s_cmp_lt_u32 s17, 2")
    a("s_cbranch_scc1 U_lp0d")
    a("s_cmp_eq_u32 s17, 3")
    a("s_cbranch_scc1 U_lp0c")
    a("s_cmp_ge_u32 s2, 240")
    a("s_cbranch_scc1 U_lp0d")
    if TRLATE:
        lds_wait(a, 18, 15, 0, 4, "U_ln", 2)
    a("s_mul_hi_u32 s28, s2, 0x%x" % ((1 << 32) // 24 + 1))
    a("s_mul_i32 s29, s28, 24")
    a("s_sub_u32 s29, s2, s29")
    a("s_mul_i32 s22, s29, %d" % (64 * 1280))
    a("s_lshl_b32 s23, s28, 7")
    a("s_add_u32 s22, s22, s23")
    a("v_lshrrev_b32 v18, 2, v3")
    a("v_and_b32 v19, 3, v3")
    a("v_lshlrev_b32 v18, 5, v18")
    a("v_lshl_add_u32 v18, v19, 2, v18")
    a("v_mul_u32_u24 v18, 1280, v18")
    a("v_lshl_add_u32 v18, v2, 4, v18")
    srd(a, 72, P_W2, P_W2 + 1, 1536 * 1280)
    for j in range(8):
        a("s_add_u32 s24, s22, %d" % ((j if j < 4 else 12 + j) * 1280))
        a("buffer_load_dwordx4 v[%d:%d], v18, s[72:75], s24 offen" % (180 + 4 * j, 183 + 4 * j))
    a("v_mul_u32_u24 v11, %d, v2" % (8 * 3072))
    a("v_lshl_add_u32 v11, v3, 4, v11")
    a("s_mul_i32 s23, s28, %d" % (64 * 3072))
    a("s_lshl_b32 s24, s29, 7")
    a("s_add_u32 s23, s23, s24")
    srd_off(a, 68, 10, 11, WS_W2T, 640 * 3072)
    a("s_mov_b32 s26, 0x05040100")
    a("s_mov_b32 s27, 0x07060302")
    a("s_waitcnt vmcnt(0)")
    for i in range(8):
        for m in range(4):
            a("v_perm_b32 v%d, v%d, v%d, s%d" % (212 + 4 * i + m, 180 + 4 * (2 * m + 1) + (i >> 1), 180 + 4 * (2 * m) + (i >> 1), 26 + (i & 1)))
    for i in range(8):
        a("s_add_u32 s24, s23, %d" % (i * 3072))
        a("buffer_store_dwordx4 v[%d:%d], v11, s[68:71], s24 offen sc1" % (212 + 4 * i, 215 + 4 * i))
    a("s_branch U_lp0d")
    a.label("U_lp0c")
    srd(a, 64, P_LRE, P_LRE + 1, 1280)
    srd(a, 68, P_LIM, P_LIM + 1, 1280)
    srd(a, 72, P_LDT, P_LDT + 1, 1280)
    a("s_mul_i32 s20, s14, 80")
    a("v_lshlrev_b32 v18, 1, v3")
    for c in range(5):
        a("buffer_load_ushort v%d, v18, s[64:67], s20 offen offset:%d" % (160 + 3 * c, c * 16))
        a("buffer_load_ushort v%d, v18, s[68:71], s20 offen offset:%d" % (160 + 3 * c + 1, c * 16))
        a("buffer_load_ushort v%d, v18, s[72:75], s20 offen offset:%d" % (160 + 3 * c + 2, c * 16))
    T = 160
    a("v_and_b32 v12, 8, v7")
    a("v_lshlrev_b32 v12, 28, v12")
    a("v_xor_b32 v12, 0x80000000, v12")
    a("v_lshlrev_b32 v13, 3, v6")
    a("v_cvt_f32_u32 v13, v13")
    a("v_mul_u32_u24 v10, 48, v7")
    a("v_add_u32 v10, %d, v10" % (MISC + 2048))
    a("v_lshlrev_b32 v11, 3, v1")
    a("v_add_u32 v11, %d, v11" % (MISC + 6144))
    a("s_waitcnt vmcnt(0)")
    ZR, ZI, W0 = 96, 101, 108
    CT = lambda c, k: 180 + 12 * c + k

    def cpow_all(n, dst):
        ns = n if isinstance(n, str) else fh(n)
        for c in range(5):
            t = W0 + 4 * c
            a("v_mul_f32 v%d, %s, v%d" % (t, ns, ZR + c))
            a("v_mul_f32 v%d, %s, v%d" % (t + 1, ns, ZI + c))
            a("v_exp_f32 v%d, v%d" % (t, t))
            a("v_fract_f32 v%d, v%d" % (t + 1, t + 1))
            a("v_cos_f32 v%d, v%d" % (t + 2, t + 1))
            a("v_sin_f32 v%d, v%d" % (t + 3, t + 1))
        a("s_nop 0")
        for c in range(5):
            t = W0 + 4 * c
            a("v_mul_f32 v%d, v%d, v%d" % (dst(c), t, t + 2))
            a("v_mul_f32 v%d, v%d, v%d" % (dst(c) + 1, t, t + 3))
    for c in range(5):
        lre, lim, ldt = T + 3 * c, T + 3 * c + 1, T + 3 * c + 2
        a("v_lshlrev_b32 v%d, 16, v%d" % (lre, lre))
        a("v_lshlrev_b32 v%d, 16, v%d" % (lim, lim))
        a("v_lshlrev_b32 v%d, 16, v%d" % (ldt, ldt))
        a("v_mul_f32 v%d, %s, v%d" % (ldt, fh(LOG2E), ldt))
        a("v_exp_f32 v%d, v%d" % (ldt, ldt))
        a("s_nop 0")
        a("v_cvt_pk_bf16_f32 v%d, v%d, v%d" % (ldt, ldt, ldt))
        a("v_and_b32 v%d, 0xffff0000, v%d" % (ldt, ldt))
        a("v_mul_f32 v%d, v%d, v%d" % (ZR + c, ldt, lre))
        a("v_mul_f32 v%d, v%d, v%d" % (ZI + c, ldt, lim))
        a("v_mul_f32 v%d, %s, v%d" % (ZR + c, fh(LOG2E), ZR + c))
        a("v_mul_f32 v%d, 0.15915494, v%d" % (ZI + c, ZI + c))
    cpow_all(1.0, lambda c: CT(c, 0))
    for c in range(5):
        lre, lim = T + 3 * c, T + 3 * c + 1
        t = W0 + 4 * c
        a("v_add_f32 v%d, -1.0, v%d" % (t, CT(c, 0)))
        a("v_mul_f32 v%d, v%d, v%d" % (t + 1, lre, lre))
        a("v_fmac_f32 v%d, v%d, v%d" % (t + 1, lim, lim))
        a("v_rcp_f32 v%d, v%d" % (t + 2, t + 1))
        a("s_nop 0")
        a("v_fma_f32 v%d, -v%d, v%d, 1.0" % (t + 3, t + 1, t + 2))
        a("v_fma_f32 v%d, v%d, v%d, v%d" % (t + 2, t + 3, t + 2, t + 2))
        a("v_mul_f32 v%d, v%d, v%d" % (CT(c, 2), t, lre))
        a("v_fmac_f32 v%d, v%d, v%d" % (CT(c, 2), CT(c, 1), lim))
        a("v_mul_f32 v%d, v%d, v%d" % (CT(c, 3), CT(c, 1), lre))
        a("v_fma_f32 v%d, -v%d, v%d, v%d" % (CT(c, 3), t, lim, CT(c, 3)))
        a("v_mul_f32 v%d, v%d, v%d" % (CT(c, 2), CT(c, 2), t + 2))
        a("v_mul_f32 v%d, v%d, v%d" % (CT(c, 3), CT(c, 3), t + 2))
    for n, k in ((8.0, 4), (32.0, 6), (128.0, 8), (512.0, 10)):
        cpow_all(n, lambda c: CT(c, k))
    for c in range(5):
        for k in (1, 3, 5, 7, 9, 11):
            a("v_xor_b32 v%d, v12, v%d" % (CT(c, k), CT(c, k)))
        for k in range(3):
            a("ds_write_b128 v10, v[%d:%d] offset:%d" % (CT(c, 4 * k), CT(c, 4 * k + 3), c * 768 + k * 16))
    for w in range(4):
        AT = lambda c: 130 + 10 * (w & 1) + 2 * c
        cpow_all("v13", AT)
        for c in range(5):
            a("v_xor_b32 v%d, v12, v%d" % (AT(c) + 1, AT(c) + 1))
            a("ds_write_b64 v11, v[%d:%d] offset:%d" % (AT(c), AT(c) + 1, w * 2560 + c * 512))
        if w < 3:
            a("v_add_f32 v13, 0x42000000, v13")
    a.label("U_lp0d")
    a("s_mul_i32 s24, s14, 192")
    srd_off(a, 68, P_W1, P_W1 + 1, "s24", 640 * 3072 - 15 * 192)
    a("v_lshrrev_b32 v10, 2, v1")
    a("v_and_b32 v11, 3, v10")
    a("v_lshrrev_b32 v12, 2, v10")
    a("v_and_b32 v12, 1, v12")
    a("v_lshrrev_b32 v13, 3, v10")
    a("v_lshl_add_u32 v11, v12, 3, v11")
    a("v_lshl_add_u32 v11, v13, 2, v11")
    a("v_mul_u32_u24 v22, 3072, v11")
    a("v_lshrrev_b32 v13, 1, v1")
    a("v_and_b32 v13, 1, v13")
    a("v_xor_b32 v13, v13, v12")
    a("v_lshl_add_u32 v22, v13, 5, v22")
    a("v_and_b32 v13, 1, v1")
    a("v_lshl_add_u32 v22, v13, 4, v22")
    a("s_mul_i32 s3, s17, %d" % (16 * 3072))
    a("s_lshl_b32 s4, s17, 10")

    def kidx(s):
        return s if s < 10 else (s - 4 if s < 14 else s - 14)

    def free_part(s):
        sl = s % NS
        if s < 10:
            for p in range(3):
                a("s_add_u32 m0, s4, %d" % (sl * SLOT + 16384 + p * 4096))
                a("s_add_u32 s6, s3, %d" % (s * 64 * 3072 + p * 64))
                a("buffer_load_dwordx4 v22, s[68:71], s6 offen lds")
            n = 3
        elif s < 20:
            for i in range(3):
                a("s_add_u32 m0, s4, %d" % (sl * SLOT + 16384 + i * 4096))
                a("s_add_u32 s6, s5, %d" % (i * 20480 + kidx(s) * 128))
                a("buffer_load_dwordx4 v5, s[72:75], s6 offen lds")
            n = 3
        else:
            for i in range(5):
                a("s_add_u32 m0, s46, %d" % (sl * SLOT + 8192 + i * 2048))
                if s < 32:
                    a("s_add_u32 s6, s7, %d" % (i * 16 * 3072 + (s - 20) * 256))
                    a("buffer_load_dwordx4 v16, s[84:87], s6 offen sc1 lds")
                else:
                    s3 = s - 32
                    sr = 92 if s3 < 5 else 96
                    a("s_add_u32 s6, s8, %d" % (i * 16 * 1280 + (s3 % 5) * 256))
                    a("buffer_load_dwordx4 v5, s[%d:%d], s6 offen lds" % (sr, sr + 3))
            n = 5
        vm.issue(("F", s), n)

    def dep_part(s):
        sl = s % NS
        if 10 <= s < 14:
            vm.issue(("D", s), 0)
            return
        for i in range(4):
            if s < 20:
                a("s_add_u32 m0, s4, %d" % (sl * SLOT + i * 4096))
                a("s_add_u32 s6, s47, %d" % (i * 40960 + kidx(s) * 128))
                a("buffer_load_dwordx4 v5, s[64:67], s6 offen sc1 lds")
            elif s < 32:
                a("s_add_u32 m0, s46, %d" % (sl * SLOT + i * 2048))
                a("s_add_u32 s6, s50, %d" % (i * 1024 + (s - 20) * 16384))
                a("buffer_load_dwordx4 v21, s[80:83], s6 offen sc1 lds")
            else:
                a("s_add_u32 m0, s46, %d" % (sl * SLOT + i * 2048))
                a("s_add_u32 s6, s9, %d" % (i * 1024 + (s - 32) * 8192))
                a("buffer_load_dwordx4 v10, s[88:91], s6 offen sc1 lds")
        vm.issue(("D", s), 4)
    a("s_mul_i32 s24, s13, %d" % (128 * 1280))
    a("s_add_u32 s24, s24, %d" % WS_XN)
    srd_off(a, 64, 10, 11, "s24", 128 * 1280)
    a("s_cmp_eq_u32 s18, 0")
    a("s_cselect_b32 s24, s%d, s%d" % (P_BRE, P_BIM))
    a("s_cselect_b32 s25, s%d, s%d" % (P_BRE + 1, P_BIM + 1))
    a("s_mul_i32 s26, s14, %d" % (40 * 1280))
    srd_off(a, 72, 24, 25, "s26", 40 * 1280)
    a("s_mul_i32 s24, s15, 196608")
    a("s_add_u32 s24, s24, %d" % WS_H1)
    srd_off(a, 80, 10, 11, "s24", 196608)
    a("s_mul_i32 s24, s16, %d" % (80 * 3072))
    a("s_add_u32 s24, s24, %d" % WS_W2T)
    srd_off(a, 84, 10, 11, "s24", 80 * 3072)
    a("s_mul_i32 s24, s15, 163840")
    a("s_add_u32 s24, s24, %d" % WS_HT)
    srd_off(a, 88, 10, 11, "s24", 163840)
    a("s_lshr_b32 s24, s2, 3")
    a("s_and_b32 s25, s2, 7")
    a("v_lshlrev_b32 v18, 7, v1")
    Lpf1 = a.newlabel("U_pf1")
    Lpf3 = a.newlabel("U_pf3")
    Lpfd = a.newlabel("U_pfd")
    a("s_cmp_eq_u32 s17, 3")
    a("s_cbranch_scc1 %s" % Lpf3)
    a("s_cmp_lg_u32 s17, 0")
    a("s_cbranch_scc1 %s" % Lpf1)
    a("s_lshr_b32 s25, s25, 1")
    a("s_mul_i32 s25, s25, 204800")
    a("s_mul_i32 s26, s24, 6400")
    a("s_add_u32 s25, s25, s26")
    srd_off(a, 92, P_BRE, P_BRE + 1, "s25", 6400)
    srd_off(a, 96, P_BIM, P_BIM + 1, "s25", 6400)
    a("buffer_load_dword v19, v18, s[92:95], 0 offen")
    a("buffer_load_dword v20, v18, s[96:99], 0 offen")
    a("s_branch %s" % Lpfd)
    a.label(Lpf1)
    a("s_lshr_b32 s25, s25, 2")
    a("s_mul_i32 s25, s25, 409600")
    a("s_mul_i32 s26, s24, 12800")
    a("s_add_u32 s25, s25, s26")
    a("s_cmp_eq_u32 s17, 1")
    a("s_cselect_b32 s26, s%d, s%d" % (P_CRE, P_CIM))
    a("s_cselect_b32 s27, s%d, s%d" % (P_CRE + 1, P_CIM + 1))
    srd_off(a, 92, 26, 27, "s25", 12800)
    a("s_movk_i32 s26, 8192")
    a("buffer_load_dword v19, v18, s[92:95], 0 offen")
    a("buffer_load_dword v20, v18, s[92:95], s26 offen")
    a("s_branch %s" % Lpfd)
    a.label(Lpf3)
    a("s_lshr_b32 s25, s25, 1")
    a("s_mul_i32 s25, s25, 768")
    a("s_mul_i32 s26, s24, %d" % (20 * 3072))
    a("s_add_u32 s25, s25, s26")
    srd_off(a, 92, P_W1, P_W1 + 1, "s25", 20 * 3072 - 2304)
    a("v_mul_u32_u24 v19, 43, v1")
    a("v_lshrrev_b32 v19, 8, v19")
    a("v_mul_u32_u24 v20, 6, v19")
    a("v_sub_u32 v20, v1, v20")
    a("v_mul_u32_u24 v19, 3072, v19")
    a("v_lshl_add_u32 v18, v20, 7, v19")
    a("s_movk_i32 s26, %d" % (10 * 3072))
    a("buffer_load_dword v19, v18, s[92:95], 0 offen")
    a("buffer_load_dword v20, v18, s[92:95], s26 offen")
    a.label(Lpfd)
    vm.issue("pf", 2)
    a("s_cmp_eq_u32 s18, 0")
    a("s_cselect_b32 s24, s%d, s%d" % (P_B2, P_DSK))
    a("s_cselect_b32 s25, s%d, s%d" % (P_B2 + 1, P_DSK + 1))
    a("s_mul_i32 s26, s16, 160")
    srd_off(a, 92, 24, 25, "s26", 160)
    a("v_lshlrev_b32 v18, 4, v1")
    a("v_cmp_gt_u32 vcc, 16, v1")
    a("s_and_saveexec_b64 s[26:27], vcc")
    a("s_lshl_b32 s24, s18, 8")
    a("s_add_u32 m0, s24, %d" % (MISC + 1536))
    a("s_nop 0")
    a("buffer_load_dwordx4 v18, s[92:95], 0 offen lds")
    a("s_mov_b64 exec, -1")
    vm.issue("bd", 1)
    a("s_mul_i32 s24, s16, %d" % (80 * 1280))
    srd_off(a, 92, P_CRE, P_CRE + 1, "s24", 80 * 1280)
    srd_off(a, 96, P_CIM, P_CIM + 1, "s24", 80 * 1280)
    a("v_mul_u32_u24 v5, 1280, v2")
    a("v_lshl_add_u32 v5, v4, 4, v5")
    a("v_mul_u32_u24 v16, 3072, v2")
    a("v_lshl_add_u32 v16, v4, 4, v16")
    a("v_and_b32 v10, 1, v6")
    a("s_lshl_b32 s24, s18, 1")
    a("v_or_b32 v10, s24, v10")
    a("v_lshrrev_b32 v11, 1, v3")
    a("v_xor_b32 v11, v10, v11")
    a("v_lshrrev_b32 v10, 1, v11")
    a("v_mul_u32_u24 v10, 81920, v10")
    a("v_lshl_add_u32 v10, v2, 6, v10")
    a("v_and_b32 v11, 1, v11")
    a("v_lshl_add_u32 v10, v11, 5, v10")
    a("v_and_b32 v11, 1, v1")
    a("v_lshl_add_u32 v10, v11, 4, v10")
    a("v_lshrrev_b32 v21, 2, v4")
    a("v_lshlrev_b32 v21, 12, v21")
    a("v_lshl_add_u32 v21, v2, 6, v21")
    a("v_and_b32 v11, 3, v4")
    a("v_lshl_add_u32 v21, v11, 4, v21")
    a("s_mul_i32 s47, s17, 10240")
    a("s_mul_i32 s5, s19, 10240")
    a("s_lshl_b32 s50, s19, 13")
    a("s_lshl_b32 s24, s18, 9")
    a("s_add_u32 s50, s50, s24")
    a("s_lshl_b32 s9, s19, 12")
    a("s_add_u32 s9, s9, s24")
    a("s_mul_i32 s7, s18, %d" % (8 * 3072))
    a("s_lshl_b32 s24, s19, 7")
    a("s_add_u32 s7, s7, s24")
    a("s_mul_i32 s8, s18, %d" % (8 * 1280))
    a("s_add_u32 s8, s8, s24")
    a("s_mul_i32 s46, s19, %d" % SUB)
    a("s_lshl_b32 s24, s18, 10")
    a("s_add_u32 s46, s46, s24")

    def gate(soff_code, target, word, first=False):
        Lnp = a.newlabel("U_gnp")
        Lgo = a.newlabel("U_ggo")
        a("s_cmp_lg_u32 s17, 0")
        a("s_cbranch_scc1 %s" % Lnp)
        a("v_mov_b32 v23, 1")
        soff_code()
        poll(a, 18, 17, 76, "s24", chk_ge(target), "U_g", 3)
        a("ds_write_b32 v15, v23 offset:%d" % word)
        a("s_branch %s" % Lgo)
        a.label(Lnp)
        lds_wait(a, 18, 15, word, 1, "U_gw", 1)
        a.label(Lgo)

    st()
    lds_wait(a, 18, 15, 4, 1, "U_gx", 1)
    if LPRIO:
        a("s_setprio %d" % LPRIO)
    st()

    def phase(s0, s1, nxt_free_to):
        for k in range(2):
            if s0 == 0:
                free_part(s0 + k)
            dep_part(s0 + k)
        vm.wait(("D", s0))
        st()
        a("s_barrier")
        for k in range(2, 4):
            if s0 == 0:
                free_part(s0 + k)
            dep_part(s0 + k)
        for s in range(s0, s1):
            if s + 1 < s1:
                vm.wait(("D", s + 1))
            if s == ESTAGE:
                vm.wait("Emark")
            if s == 41:
                vm.drain()
            a("s_barrier")
            if STAMP and s % 2 == 1:
                st()
            n = s + NS
            if s == 1:
                Lsk = a.newlabel("U_w2s")
                a("s_cmp_lg_u32 s17, 2")
                a("s_cbranch_scc1 %s" % Lsk)
                a("s_cmp_ge_u32 s2, 240")
                a("s_cbranch_scc1 %s" % Lsk)
                a("s_lshl_b32 s24, s28, 8")
                a("s_add_u32 s24, s24, %d" % F_W2)
                signal(18, 19, "s24")
                a.label(Lsk)
            if s == ESTAGE - 3:
                a("s_lshl_b32 s26, 1, s13")
                a("s_sub_u32 s26, s26, 1")
                a("s_lshl_b32 s27, s14, 8")
                a("s_add_u32 s27, s27, %d" % F_E)
                a("buffer_load_dword v20, v17, s[76:79], s27 offen sc1")
                vm.issue("pollE", 1)
            if s == ESTAGE - 2:
                def chkE(sr):
                    a("s_and_b32 s%d, s%d, s26" % (sr, sr))
                    a("s_cmp_eq_u32 s%d, s26" % sr)
                vm.wait("pollE")
                Lok = a.newlabel("U_eok")
                a("v_readfirstlane_b32 s30, v20")
                a("s_nop 3")
                chkE(30)
                a("s_cbranch_scc1 %s" % Lok)
                poll(a, 20, 17, 76, "s27", chkE, "U_e", 2)
                a.label(Lok)
                a("s_mul_i32 s24, s14, 5120")
                a("s_add_u32 s24, s24, %d" % WS_ET)
                srd_off(a, 64, 10, 11, "s24", 5120)
                a("v_lshlrev_b32 v18, 4, v1")
                a("s_add_u32 m0, s4, %d" % (MISC + 6144 + 5120))
                a("s_nop 0")
                a("buffer_load_dwordx4 v18, s[64:67], s4 offen sc1 lds")
                Lsk = a.newlabel("U_e5")
                a("s_cmp_lg_u32 s17, 0")
                a("s_cbranch_scc1 %s" % Lsk)
                a("s_mov_b32 m0, %d" % (MISC + 6144 + 5120 + 4096))
                a("s_movk_i32 s24, 4096")
                a("buffer_load_dwordx4 v18, s[64:67], s24 offen sc1 lds")
                a.label(Lsk)
                vm.issue("E", 1)
                vm.issue("Emark", 0)
            if s == 38:
                a("s_lshl_b32 s24, s15, 6")
                a("s_mul_i32 s24, s24, 1280")
                a("s_mul_i32 s25, s16, 160")
                a("s_add_u32 s24, s24, s25")
                srd_off(a, 64, P_X, P_X + 1, "s24", 64 * 1280 - 1120)
                a("s_add_u32 s24, s24, %d" % WS_XN)
                srd_off(a, 68, 10, 11, "s24", 64 * 1280 - 1120)
                a("s_lshl_b32 s24, s17, 6")
                for i in range(3):
                    a("v_add_u32 v18, s24, v1")
                    if i:
                        a("v_add_u32 v18, %d, v18" % (256 * i))
                    a("v_mul_u32_u24 v19, 6554, v18")
                    a("v_lshrrev_b32 v19, 16, v19")
                    a("v_mul_u32_u24 v20, 10, v19")
                    a("v_sub_u32 v20, v18, v20")
                    a("v_mul_u32_u24 v23, 1280, v19")
                    a("v_lshl_add_u32 v23, v20, 4, v23")
                    a("v_and_b32 v24, 0xffe3, v19")
                    a("v_lshrrev_b32 v25, 2, v19")
                    a("v_and_b32 v25, 1, v25")
                    a("v_lshl_add_u32 v24, v25, 4, v24")
                    a("v_lshrrev_b32 v25, 3, v19")
                    a("v_and_b32 v25, 3, v25")
                    a("v_lshl_add_u32 v24, v25, 2, v24")
                    a("v_mul_u32_u24 v24, 1280, v24")
                    a("v_lshl_add_u32 v24, v20, 4, v24")
                    if i < 2:
                        a("s_add_u32 m0, s4, %d" % (2 * SLOT + i * 4096))
                        a("s_nop 0")
                        a("buffer_load_dwordx4 v23, s[64:67], 0 offen lds")
                        a("s_add_u32 m0, s4, %d" % (2 * SLOT + 10240 + i * 4096))
                        a("s_nop 0")
                        a("buffer_load_dwordx4 v24, s[68:71], 0 offen sc1 lds")
                    else:
                        Lsk = a.newlabel("U_x3")
                        a("s_cmp_ge_u32 s17, 2")
                        a("s_cbranch_scc1 %s" % Lsk)
                        a("s_add_u32 m0, s4, %d" % (2 * SLOT + i * 4096))
                        a("s_nop 0")
                        a("buffer_load_dwordx4 v23, s[64:67], 0 offen lds")
                        a("s_add_u32 m0, s4, %d" % (2 * SLOT + 10240 + i * 4096))
                        a("s_nop 0")
                        a("buffer_load_dwordx4 v24, s[68:71], 0 offen sc1 lds")
                        a.label(Lsk)
                vm.issue("X", 4)
            if n < s1:
                if n == 31:
                    a("s_lshl_b32 s25, s15, 8")
                    a("s_add_u32 s25, s25, %d" % F_HT)
                    a("buffer_load_dword v19, v17, s[76:79], s25 offen sc1")
                    vm.issue("pollHT", 1)
                if n == 19:
                    a("s_mul_i32 s25, s16, 80")
                    a("s_add_u32 s26, s25, 79")
                    a("s_lshr_b32 s25, s25, 6")
                    a("s_lshr_b32 s26, s26, 6")
                    a("s_lshl_b32 s25, s25, 8")
                    a("s_lshl_b32 s26, s26, 8")
                    a("s_add_u32 s25, s25, %d" % F_W2)
                    a("s_add_u32 s26, s26, %d" % F_W2)
                    a("buffer_load_dword v19, v17, s[76:79], s25 offen sc1")
                    a("buffer_load_dword v20, v17, s[76:79], s26 offen sc1")
                    vm.issue("pollW2", 2)
                free_part(n)
                if n == 32:
                    vm.wait("pollHT")
                    Lok = a.newlabel("U_htok")
                    a("v_readfirstlane_b32 s30, v19")
                    a("s_nop 3")
                    a("s_cmp_ge_u32 s30, 32")
                    a("s_cbranch_scc1 %s" % Lok)
                    poll(a, 19, 17, 76, "s25", chk_ge(32), "U_ht")
                    a.label(Lok)
                dep_part(n)
            elif n < nxt_free_to:
                if n == 20:
                    vm.wait("pollW2")
                    Lok = a.newlabel("U_w2ok")
                    a("v_min_u32 v19, v19, v20")
                    a("s_nop 0")
                    a("v_readfirstlane_b32 s30, v19")
                    a("s_nop 3")
                    a("s_cmp_ge_u32 s30, 24")
                    a("s_cbranch_scc1 %s" % Lok)
                    poll(a, 19, 17, 76, "s25", chk_ge(24), "U_w2")
                    poll(a, 19, 17, 76, "s26", chk_ge(24), "U_w2")
                    a.label(Lok)
                free_part(n)
    phase(0, 20, 24)
    st()

    def h1off():
        a("s_lshl_b32 s24, s15, 8")
        a("s_add_u32 s24, s24, %d" % F_H1)
    gate(h1off, 32, 12)
    st()
    phase(20, 42, 42)
    st.flush()
    a.label(Lend)
    a("s_endpgm")
    a.label("U_code_end")
    return name, 256


if __name__ == "__main__":
    a = Asm()
    nm, vg = gen_uni(a)
    hdr = open("cdna_kernels/%s.s.ref" % NAME).read().split("\n")
    hdr = [l for l in hdr if l.startswith(";") and "@launch" not in l]
    out = "\n".join(hdr) + "\n; @launch grid=(256,1,1) block=(512,1,1) lds=163840\n"
    out += '.amdgcn_target "amdgcn-amd-amdhsa--gfx950"\n.text\n' + a.text()
    out += '.section .rodata,"a"\n.p2align 6\n' + kernel_desc(nm, vg)
    open(sys.argv[1] if len(sys.argv) > 1 else "cdna_kernels/%s.s" % NAME, "w").write(out)
```

```python
import sys, os, math
from gen import Asm, srd, srd_off, kernel_header, kernel_desc, fh, KA, LOG2E, DPP8, NAME
import gen

WS_XN = 0x0000000
WS_W2T = 0x0500000
WS_FLG = 0x0780000
WS_H1 = 0x0800000
WS_ET = 0x0F00000
WS_HT = 0x2000000
WS_DBG = 0x3000000
F_XN, F_H1, F_E, F_HT, F_W2, F_SIZE = 0, 4096, 12288, 16384, 24576, 27136

STAMP = int(os.environ.get("STAMP", "0"))
NS = 4
BARH1 = int(os.environ.get("BARH1", "2"))
BARHT = int(os.environ.get("BARHT", "1"))
L2T = int(os.environ.get("L2T", "0"))
LPRIO = int(os.environ.get("LPRIO", "0"))
CPRIO = int(os.environ.get("CPRIO", "0"))
ALLLATE = int(os.environ.get("ALLLATE", "1"))
TRLATE = int(os.environ.get("TRLATE", "0"))
CLATE = int(os.environ.get("CLATE", "1"))
TLBPF = int(os.environ.get("TLBPF", "0"))
OUTFLAG = os.environ.get("OUTFLAG", "nt")
ESTAGE = int(os.environ.get("ESTAGE", "24"))
RATE1 = eval(os.environ.get("RATE1", "(3, 50)"))
RATE2 = eval(os.environ.get("RATE2", "(4, 100)"))
RATE3 = eval(os.environ.get("RATE3", "(2, 16)"))
PRE20 = int(os.environ.get("PRE20", "260"))
CODE_SIZE = 42600
CODEPF = int(os.environ.get("CODEPF", "1"))
SLOT = 36864
SUB = 18432
MISC = 147456

P_X, P_LRE, P_LIM, P_BRE, P_BIM, P_CRE, P_CIM, P_LDT, P_DSK, P_W1, P_B1, P_W2, P_B2, P_OUT, P_DBG = \
    32, 34, 36, 38, 40, 42, 44, 46, 48, 52, 54, 56, 58, 60, 62


class Stamper:
    def __init__(self, a):
        self.a = a
        self.n = 0

    def __call__(self, real=False):
        if not STAMP:
            return
        a = self.a
        assert self.n < 64
        if self.n == 0 and not real:
            a("v_mov_b32 v255, 0")
            self(True)
        a("s_memrealtime s[100:101]" if real else "s_memtime s[100:101]")
        a("s_waitcnt lgkmcnt(0)")
        a("v_writelane_b32 v255, s100, %d" % self.n)
        self.n += 1

    def flush(self):
        if not STAMP:
            return
        a = self.a
        self()
        self(True)
        a("s_mov_b64 exec, -1")
        a("s_lshl_b32 s100, s2, 3")
        a("s_add_u32 s100, s100, s12")
        a("s_lshl_b32 s100, s100, 8")
        a("s_add_u32 s100, s100, 0x%x" % (WS_DBG + 0x100000))
        srd_off(a, 96, 10, 11, "s100", 256)
        a("v_and_b32 v254, 63, v0")
        a("v_lshlrev_b32 v254, 2, v254")
        a("buffer_store_dword v255, v254, s[96:99], 0 offen")


class VM:
    def __init__(self, a):
        self.a = a
        self.q = []

    def issue(self, tag, n):
        self.q.append((tag, n))

    def wait(self, tag):
        idxs = [i for i, (t, n) in enumerate(self.q) if t == tag]
        if not idxs:
            return
        idx = max(idxs)
        rest = sum(n for t, n in self.q[idx + 1:])
        assert rest <= 63, rest
        self.a("s_waitcnt vmcnt(%d)" % rest)
        self.q = self.q[idx + 1:]

    def drain(self):
        self.a("s_waitcnt vmcnt(0)")
        self.q = []


def interleave(ms, rs):
    out = []
    ri = 0
    for m in ms:
        out.append(m)
        if ri < len(rs):
            out.append(rs[ri])
            ri += 1
    return out + rs[ri:]


def poll(a, vreg, vzero, sflg, soff, check, lbl, slp=4):
    Lp = a.newlabel(lbl + "_poll")
    Ld = a.newlabel(lbl + "_done")
    a("s_mov_b32 s31, 0x100000")
    a.label(Lp)
    a("buffer_load_dword v%d, v%d, s[%d:%d], %s offen sc1" % (vreg, vzero, sflg, sflg + 3, soff))
    a("s_waitcnt vmcnt(0)")
    a("v_readfirstlane_b32 s30, v%d" % vreg)
    a("s_nop 3")
    check(30)
    a("s_cbranch_scc1 %s" % Ld)
    a("s_sleep %d" % slp)
    a("s_sub_u32 s31, s31, 1")
    a("s_cmp_lg_u32 s31, 0")
    a("s_cbranch_scc1 %s" % Lp)
    a.label(Ld)


def lds_wait(a, vtmp, vaddr, off, val, lbl, slp=1):
    Lw = a.newlabel(lbl)
    Ld = a.newlabel(lbl + "d")
    a("s_mov_b32 s31, 0x1000000")
    a.label(Lw)
    a("ds_read_b32 v%d, v%d offset:%d" % (vtmp, vaddr, off))
    a("s_waitcnt lgkmcnt(0)")
    a("v_readfirstlane_b32 s30, v%d" % vtmp)
    a("s_sub_u32 s31, s31, 1")
    a("s_cbranch_scc1 %s" % Ld)
    a("s_nop 1")
    a("s_cmp_ge_u32 s30, %d" % val)
    a("s_cbranch_scc1 %s" % Ld)
    if slp:
        a("s_sleep %d" % slp)
    a("s_branch %s" % Lw)
    a.label(Ld)


def cmul_add(a, items):
    for (d, lr, li, s, ad) in items:
        if ad is None:
            a("v_mul_f32 v%d, v%d, v%d" % (d, lr, s))
        else:
            a("v_fma_f32 v%d, v%d, v%d, v%d" % (d, lr, s, ad))
    if len(items) < 2:
        a("s_nop 1")
    for (d, lr, li, s, ad) in items:
        a("v_fmac_f32_dpp v%d, v%d, v%d %s" % (d, s, li, DPP8))


def gelu_units(a, units, tmp, vK1, sK2, sLO, sHI, sMask):
    P = []
    for ui, (rA, rB, b, d) in enumerate(units):
        for h, r in enumerate((rA, rA + 2, rB, rB + 2)):
            P.append((r, b + 2 * h, d + h, tmp + 8 * ui + 2 * h))
    for (r, b, d, t) in P:
        a("v_cvt_pk_bf16_f32 v%d, v%d, v%d" % (d, r, r + 1))
    for (r, b, d, t) in P:
        a("v_dot2_f32_bf16 v%d, v%d, s%d, v%d" % (r, d, sLO, b))
        a("v_dot2_f32_bf16 v%d, v%d, s%d, v%d" % (r + 1, d, sHI, b + 1))
    a("s_nop 1")
    for (r, b, d, t) in P:
        a("v_cvt_pk_bf16_f32 v%d, v%d, v%d" % (d, r, r + 1))
    for (r, b, d, t) in P:
        a("v_lshlrev_b32 v%d, 16, v%d" % (r, d))
        a("v_and_b32 v%d, s%d, v%d" % (r + 1, sMask, d))
    for (r, b, d, t) in P:
        a("v_pk_mul_f32 v[%d:%d], v[%d:%d], v[%d:%d]" % (t, t + 1, r, r + 1, r, r + 1))
    for (r, b, d, t) in P:
        a("v_pk_fma_f32 v[%d:%d], v[%d:%d], s[%d:%d], v[%d:%d]" % (t, t + 1, t, t + 1, sK2, sK2 + 1, vK1, vK1 + 1))
    for (r, b, d, t) in P:
        a("v_pk_mul_f32 v[%d:%d], v[%d:%d], v[%d:%d]" % (t, t + 1, t, t + 1, r, r + 1))
    for (r, b, d, t) in P:
        a("v_exp_f32 v%d, v%d" % (t, t))
        a("v_exp_f32 v%d, v%d" % (t + 1, t + 1))
    a("s_nop 0")
    for (r, b, d, t) in P:
        a("v_pk_add_f32 v[%d:%d], v[%d:%d], 1.0" % (t, t + 1, t, t + 1))
    for (r, b, d, t) in P:
        a("v_rcp_f32 v%d, v%d" % (t, t))
        a("v_rcp_f32 v%d, v%d" % (t + 1, t + 1))
    a("s_nop 0")
    for (r, b, d, t) in P:
        a("v_pk_mul_f32 v[%d:%d], v[%d:%d], v[%d:%d]" % (r, r + 1, r, r + 1, t, t + 1))
    for (r, b, d, t) in P:
        a("v_cvt_pk_bf16_f32 v%d, v%d, v%d" % (d, r, r + 1))


def gen_uni(a):
    name = NAME + "_kernel"
    kernel_header(a, name)
    st = Stamper(a)
    Lend = a.newlabel("U_end")
    Lld = a.newlabel("U_ld")
    a("s_cmp_ge_u32 s2, 256")
    a("s_cbranch_scc1 %s" % Lend)
    X0, XF, S0 = 76, 88, 112
    a("s_load_dwordx16 s[32:47], s[0:1], 0")
    a("s_load_dwordx16 s[48:63], s[0:1], 64")
    a("s_load_dwordx2 s[10:11], s[0:1], 128")
    if CODEPF:
        a("s_getpc_b64 s[4:5]")
        a("s_lshr_b32 s6, s2, 3")
        a("s_lshl_b32 s6, s6, 11")
        a("v_subrev_u32 v1, 320, v0")
        a("v_cmp_gt_u32 vcc, 16, v1")
        a("v_lshlrev_b32 v1, 7, v1")
        a("v_add_u32 v1, s6, v1")
        a("v_min_u32 v1, 0x%x, v1" % CODE_SIZE)
        a("s_and_saveexec_b64 s[6:7], vcc")
        a("s_cbranch_execz U_cpf")
        a("global_load_dword v30, v1, s[4:5]")
        a.label("U_cpf")
        a("s_mov_b64 exec, -1")
    a("s_lshr_b32 s20, s2, 3")
    a("s_and_b32 s21, s20, 7")
    a("s_lshr_b32 s20, s20, 3")
    a("s_and_b32 s13, s2, 1")
    a("s_lshl_b32 s13, s13, 3")
    a("s_add_u32 s13, s13, s21")
    a("s_lshr_b32 s14, s2, 1")
    a("s_and_b32 s14, s14, 3")
    a("s_lshl_b32 s14, s14, 2")
    a("s_add_u32 s14, s14, s20")
    a("s_lshl_b32 s22, s13, 4")
    a("s_add_u32 s22, s22, s14")
    a("s_mul_i32 s22, s22, 10240")
    a("v_lshrrev_b32 v11, 5, v0")
    a("v_and_b32 v12, 31, v0")
    a("v_mul_u32_u24 v10, 1280, v11")
    a("v_lshl_add_u32 v10, v12, 4, v10")
    a("v_cmp_gt_u32 s[26:27], 16, v12")
    a("v_mov_b32 v13, 0x10000")
    a("v_mov_b32 v17, 0")
    a("v_cndmask_b32 v13, v13, v10, s[26:27]")
    a("s_waitcnt lgkmcnt(0)")
    srd_off(a, 64, P_X, P_X + 1, "s22", 10240)
    a("buffer_load_dwordx4 v[%d:%d], v10, s[64:67], 0 offen" % (X0, X0 + 3))
    a("buffer_load_dwordx4 v[%d:%d], v10, s[64:67], 0 offen offset:512" % (X0 + 4, X0 + 7))
    a("buffer_load_dwordx4 v[%d:%d], v13, s[64:67], 0 offen offset:1024" % (X0 + 8, X0 + 11))
    srd(a, 92, P_DBG, P_DBG + 1, 256)
    Lnn = a.newlabel("U_nonon")
    a("s_cmp_lg_u32 s2, 0")
    a("s_cbranch_scc1 %s" % Lnn)
    a("s_memrealtime s[24:25]")
    a("v_cmp_eq_u32 vcc, 256, v0")
    a("s_and_saveexec_b64 s[6:7], vcc")
    a("s_cbranch_execz %s" % Lnn)
    a("s_waitcnt lgkmcnt(0)")
    a("s_or_b32 s24, s24, 1")
    a("v_mov_b32 v20, s24")
    a("v_mov_b32 v21, s25")
    a("buffer_store_dwordx2 v[20:21], v17, s[92:95], 0 offen sc1")
    a.label(Lnn)
    a("s_mov_b64 exec, -1")
    a("v_lshrrev_b32 v2, 6, v0")
    a("v_and_b32 v1, 63, v0")
    a("s_nop 0")
    a("v_readfirstlane_b32 s12, v2")
    a("s_and_b32 s15, s2, 3")
    a("s_lshl_b32 s15, s15, 3")
    a("s_add_u32 s15, s15, s21")
    a("s_lshr_b32 s16, s2, 2")
    a("s_and_b32 s16, s16, 1")
    a("s_lshl_b32 s16, s16, 2")
    a("s_add_u32 s16, s16, s20")
    a("s_and_b32 s17, s12, 3")
    a("s_and_b32 s18, s17, 1")
    a("s_lshr_b32 s19, s17, 1")
    a("v_lshrrev_b32 v2, 3, v1")
    a("v_and_b32 v3, 7, v1")
    a("v_lshrrev_b32 v6, 4, v1")
    a("v_and_b32 v7, 15, v1")
    a("v_xor_b32 v4, v6, v3")
    a("v_lshlrev_b32 v8, 7, v7")
    a("v_lshl_add_u32 v8, v4, 4, v8")
    a("v_xor_b32 v9, 64, v8")
    a("v_xor_b32 v4, v2, v3")
    a("s_waitcnt lgkmcnt(0)")
    srd_off(a, 76, 10, 11, WS_FLG, F_SIZE)
    def lds_clear():
        a("v_mov_b32 v15, %d" % MISC)
        for i in range(4):
            a("v_mov_b32 v%d, 0" % (24 + i))
        a("ds_write_b128 v15, v[24:27]")
        a("ds_write_b128 v15, v[24:27] offset:16")
        a("s_waitcnt lgkmcnt(0)")
        a("s_barrier")
    st()
    n0 = st.n
    a("s_cmp_ge_u32 s12, 4")
    a("s_cbranch_scc1 %s" % Lld)
    a("s_lshl_b32 s21, s13, 7")
    a("s_lshr_b32 s22, s14, 2")
    a("s_lshl_b32 s22, s22, 5")
    a("s_add_u32 s21, s21, s22")
    a("s_lshl_b32 s22, s19, 4")
    a("s_add_u32 s21, s21, s22")
    a("s_and_b32 s22, s14, 3")
    a("s_lshl_b32 s22, s22, 2")
    a("s_add_u32 s21, s21, s22")
    a("s_lshl_b32 s22, s18, 1")
    a("s_add_u32 s21, s21, s22")
    a("s_mul_i32 s21, s21, 1280")
    a("s_add_u32 s21, s21, %d" % WS_XN)
    srd_off(a, 68, 10, 11, "s21", 2560)
    a("s_mul_i32 s20, s17, 2560")
    a("v_subrev_u32 v10, s20, v10")
    a("v_subrev_u32 v13, s20, v13")
    lds_clear()
    a("s_mov_b32 s24, 0xffff0000")
    for i in range(12):
        if i == 0:
            a("s_waitcnt vmcnt(0)")
        a("v_lshlrev_b32 v%d, 16, v%d" % (XF + 2 * i, X0 + i))
        a("v_and_b32 v%d, s24, v%d" % (XF + 2 * i + 1, X0 + i))

    def pk(op, d, x, y, z=None):
        if z is None:
            a("v_pk_%s_f32 v[%d:%d], v[%d:%d], v[%d:%d]" % (op, d, d + 1, x, x + 1, y, y + 1))
        else:
            a("v_pk_%s_f32 v[%d:%d], v[%d:%d], v[%d:%d], v[%d:%d]" % (op, d, d + 1, x, x + 1, y, y + 1, z, z + 1))

    def allreduce32(r):
        for sh in (8, 4, 2, 1):
            a("s_nop 1")
            a("v_add_f32_dpp v%d, v%d, v%d row_ror:%d row_mask:0xf bank_mask:0xf" % (r, r, r, sh))
        a("ds_swizzle_b32 v%d, v%d offset:0x401F" % (r + 1, r))
        a("s_waitcnt lgkmcnt(0)")
        a("v_add_f32 v%d, v%d, v%d" % (r, r, r + 1))
    pk("add", S0, XF, XF + 2)
    pk("add", S0 + 2, XF + 4, XF + 6)
    for i in range(4, 12):
        pk("add", S0 + 2 * (i & 1), S0 + 2 * (i & 1), XF + 2 * i)
    pk("add", S0, S0, S0 + 2)
    a("v_add_f32 v%d, v%d, v%d" % (S0, S0, S0 + 1))
    allreduce32(S0)
    a("v_mul_f32 v%d, %s, v%d" % (S0, fh(-1.0 / 640), S0))
    a("v_mov_b32 v%d, v%d" % (S0 + 1, S0))
    for i in range(12):
        t = S0 + 4 + 2 * (i & 1)
        q = S0 + 8 + 2 * (i >> 3)
        pk("add", t, XF + 2 * i, S0)
        if i % 8 == 0:
            pk("mul", q, t, t)
        else:
            pk("fma", q, t, t, q)
    a("v_add_f32 v%d, v%d, v%d" % (S0 + 8, S0 + 8, S0 + 9))
    a("v_add_f32 v%d, v%d, v%d" % (S0 + 10, S0 + 10, S0 + 11))
    a("v_cndmask_b32 v%d, 0, v%d, s[26:27]" % (S0 + 10, S0 + 10))
    a("v_add_f32 v%d, v%d, v%d" % (S0 + 8, S0 + 8, S0 + 10))
    allreduce32(S0 + 8)
    V = S0 + 8
    a("v_mul_f32 v%d, %s, v%d" % (V, fh(1.0 / 640), V))
    a("v_cvt_pk_bf16_f32 v%d, v%d, v%d" % (S0 + 2, S0, V))
    a("v_lshlrev_b32 v%d, 16, v%d" % (S0, S0 + 2))
    a("v_mov_b32 v%d, v%d" % (S0 + 1, S0))
    a("v_and_b32 v%d, s24, v%d" % (V, S0 + 2))
    a("v_add_f32 v%d, %s, v%d" % (V, fh(1e-5), V))
    a("v_cvt_pk_bf16_f32 v%d, v%d, v%d" % (V, V, V))
    a("v_and_b32 v%d, s24, v%d" % (V, V))
    a("v_sqrt_f32 v%d, v%d" % (V, V))
    a("s_nop 0")
    a("v_cvt_pk_bf16_f32 v%d, v%d, v%d" % (V, V, V))
    a("v_and_b32 v%d, s24, v%d" % (V, V))
    RS = S0 + 4
    a("v_rcp_f32 v%d, v%d" % (RS, V))
    a("s_nop 0")
    a("v_fma_f32 v%d, -v%d, v%d, 1.0" % (RS + 2, V, RS))
    a("v_fma_f32 v%d, v%d, v%d, v%d" % (RS, RS + 2, RS, RS))
    a("v_mov_b32 v%d, v%d" % (RS + 1, RS))
    a("v_sub_f32 v%d, 0, v%d" % (V, V))
    a("v_mov_b32 v%d, v%d" % (V + 1, V))
    for i in range(12):
        pk("add", XF + 2 * i, XF + 2 * i, S0)
    for i in range(12):
        a("v_cvt_pk_bf16_f32 v%d, v%d, v%d" % (X0 + i, XF + 2 * i, XF + 2 * i + 1))
    Q = 124
    for i in range(12):
        x = XF + 2 * i
        q = Q + 4 * (i & 3)
        a("v_lshlrev_b32 v%d, 16, v%d" % (x, X0 + i))
        a("v_and_b32 v%d, s24, v%d" % (x + 1, X0 + i))
        pk("mul", q, x, RS)
        pk("fma", q + 2, q, V, x)
        pk("fma", q, q + 2, RS, q)
        a("v_cvt_pk_bf16_f32 v%d, v%d, v%d" % (X0 + i, q, q + 1))
    a("buffer_store_dwordx4 v[%d:%d], v10, s[68:71], 0 offen sc1" % (X0, X0 + 3))
    a("buffer_store_dwordx4 v[%d:%d], v10, s[68:71], 0 offen offset:512 sc1" % (X0 + 4, X0 + 7))
    a("buffer_store_dwordx4 v[%d:%d], v13, s[68:71], 0 offen offset:1024 sc1" % (X0 + 8, X0 + 11))
    st()
    a("s_waitcnt vmcnt(0)")
    a("v_mov_b32 v16, 1")
    a("v_cmp_eq_u32 vcc, 0, v1")
    a("s_and_saveexec_b64 s[26:27], vcc")
    a("ds_add_rtn_u32 v18, v15, v16")
    a("s_waitcnt lgkmcnt(0)")
    a("v_readfirstlane_b32 s20, v18")
    a("s_nop 3")
    Lns = a.newlabel("U_nsig")
    a("s_cmp_lg_u32 s20, 3")
    a("s_cbranch_scc1 %s" % Lns)
    lds_wait(a, 18, 15, 16, 1, "U_iw", 1)
    a("ds_read_b64 v[20:21], v15 offset:16")
    a("s_lshl_b32 s20, s13, 8")
    a("s_lshl_b32 s21, s14, 3")
    a("s_add_u32 s20, s20, s21")
    a("s_waitcnt lgkmcnt(0)")
    a("buffer_store_dwordx2 v[20:21], v17, s[76:79], s20 offen sc1")
    a.label(Lns)
    a("s_mov_b64 exec, -1")
    st()

    def signal(vd, vz, soff, op="add", val="1"):
        a("v_cmp_eq_u32 vcc, 0, v1")
        a("s_and_saveexec_b64 s[30:31], vcc")
        a("v_mov_b32 v%d, %s" % (vd, val))
        a("v_mov_b32 v%d, 0" % vz)
        a("buffer_atomic_%s v%d, v%d, s[76:79], %s offen" % (op, vd, vz, soff))
        a("s_mov_b64 exec, -1")

    def chk_ge(n):
        return lambda sr: a("s_cmp_ge_u32 s%d, %d" % (sr, n))

    def wait_init(vt, vz, sdbg):
        a("s_waitcnt vmcnt(0)")

    ACCF, BRAW, ACCS, ADR, CON = 16, 64, 140, 228, 16
    ACC2, ACC3 = 180, 140
    Lp0b = a.newlabel("U_p0b")
    Lp0c = a.newlabel("U_p0c")
    Lp0d = a.newlabel("U_p0d")
    np0 = st.n
    K = lambda c, k: CON + 11 * c + k
    a("s_cmp_lg_u32 s17, 0")
    a("s_cbranch_scc1 %s" % Lp0d)
    lds_wait(a, 18, 15, 16, 1, "U_iw", 1)
    a("ds_read_b64 v[20:21], v15 offset:16")
    a("s_lshl_b32 s24, s13, 8")
    a("v_lshlrev_b32 v19, 3, v7")
    a("s_mov_b32 s31, 0x100000")
    Lq = a.newlabel("U_xq")
    Lqd = a.newlabel("U_xqd")
    a.label(Lq)
    a("buffer_load_dwordx2 v[22:23], v19, s[76:79], s24 offen sc1")
    a("s_waitcnt vmcnt(0) lgkmcnt(0)")
    a("v_cmp_eq_u64 vcc, v[20:21], v[22:23]")
    a("s_nop 3")
    a("s_cmp_eq_u64 vcc, -1")
    a("s_cbranch_scc1 %s" % Lqd)
    a("s_sleep 2")
    a("s_sub_u32 s31, s31, 1")
    a("s_cmp_lg_u32 s31, 0")
    a("s_cbranch_scc1 %s" % Lq)
    a.label(Lqd)
    a("ds_write_b32 v15, v16 offset:4")
    a.label(Lp0d)
    srd(a, 80, P_B1, P_B1 + 1, 3072)
    a("s_mul_i32 s21, s14, 192")
    a("v_lshlrev_b32 v11, 3, v6")
    for nt in range(6):
        a("buffer_load_dwordx2 v[%d:%d], v11, s[80:83], s21 offen offset:%d" % (BRAW + 2 * nt, BRAW + 2 * nt + 1, nt * 32))

    a("v_lshrrev_b32 v10, 2, v7")
    a("v_and_b32 v11, 3, v7")
    a("v_lshrrev_b32 v12, 1, v6")
    a("v_and_b32 v13, 1, v6")
    a("v_lshlrev_b32 v12, 4, v12")
    a("v_lshl_add_u32 v12, v13, 2, v12")
    a("v_add_u32 v12, v12, v10")
    a("v_lshlrev_b32 v12, 6, v12")
    a("v_lshl_add_u32 v12, v13, 5, v12")
    a("v_lshl_add_u32 v12, v11, 3, v12")
    a("v_xor_b32 v13, 32, v12")
    a("s_lshl_b32 s20, s17, 12")
    for sl in range(NS):
        a("s_add_u32 s21, s20, %d" % (sl * SLOT))
        a("v_add_u32 v%d, s21, v8" % (ADR + 6 * sl))
        a("v_add_u32 v%d, s21, v9" % (ADR + 6 * sl + 1))
        a("v_add_u32 v%d, %d, v12" % (ADR + 6 * sl + 2, sl * SLOT + 16384))
        a("v_add_u32 v%d, %d, v13" % (ADR + 6 * sl + 3, sl * SLOT + 16384))
        a("v_add_u32 v%d, %d, v8" % (ADR + 6 * sl + 4, sl * SLOT + 16384))
        a("v_add_u32 v%d, %d, v9" % (ADR + 6 * sl + 5, sl * SLOT + 16384))
    a("v_lshlrev_b32 v5, 2, v7")
    a("s_waitcnt lgkmcnt(0)")

    def nsub(s):
        return 4 if 20 <= s < 32 else 2

    def fbase(s, sset):
        if s < 20:
            return 76 + 32 * sset
        if s < 32:
            return 76 + 24 * sset
        return (16, 76)[sset]

    def reads(s, sub, sset):
        sl = s % NS
        A = ADR + 6 * sl
        b0 = fbase(s, sset)
        out = []
        if s < 10:
            b = b0
            for k, i in [("N", 0), ("T", 0), ("T", 1), ("N", 1), ("N", 2), ("N", 3), ("N", 4), ("N", 5)]:
                if k == "T":
                    out.append("ds_read_b128 v[%d:%d], v%d offset:%d" % (b + 4 * i, b + 4 * i + 3, A + sub, i * 2048))
                else:
                    o = (i >> 1) * 4096 + sub * 2048
                    r = b + 8 + 4 * i
                    out.append("ds_read_b64_tr_b16 v[%d:%d], v%d offset:%d" % (r, r + 1, A + 2 + (i & 1), o))
                    out.append("ds_read_b64_tr_b16 v[%d:%d], v%d offset:%d" % (r + 2, r + 3, A + 2 + (i & 1), o + 512))
        elif s < 20:
            b = b0
            for k, i in [("N", 0), ("T", 0), ("T", 1), ("N", 1), ("N", 2), ("N", 3), ("N", 4)]:
                if k == "T":
                    out.append("ds_read_b128 v[%d:%d], v%d offset:%d" % (b + 4 * i, b + 4 * i + 3, A + sub, i * 2048))
                else:
                    out.append("ds_read_b128 v[%d:%d], v%d offset:%d" % (b + 8 + 4 * i, b + 11 + 4 * i, A + 4 + sub, i * 2048))
        else:
            steps = [(sub >> 1, sub & 1, b0)] if s < 32 else [(sub, 0, b0), (sub, 1, b0 + 24)]
            for (sb, ks, b) in steps:
                so = sb * SUB
                for k, i in [("D", 0), ("T", 0), ("D", 1), ("D", 2), ("D", 3), ("D", 4)]:
                    if k == "T":
                        if s < 32:
                            out.append("ds_read_b128 v[%d:%d], v%d offset:%d" % (b, b + 3, A + ks, so))
                        else:
                            out.append("ds_read_b64_tr_b16 v[%d:%d], v%d offset:%d" % (b, b + 1, A + 2, so + ks * 4096))
                            out.append("ds_read_b64_tr_b16 v[%d:%d], v%d offset:%d" % (b + 2, b + 3, A + 2, so + ks * 4096 + 512))
                    else:
                        out.append("ds_read_b128 v[%d:%d], v%d offset:%d" % (b + 4 + 4 * i, b + 7 + 4 * i, A + 4 + ks, so + i * 2048))
        return out

    def mf(d, av, bv, first):
        return "v_mfma_f32_16x16x32_bf16 v[%d:%d], v[%d:%d], v[%d:%d], %s" % (
            d, d + 3, av, av + 3, bv, bv + 3, "0" if first else "v[%d:%d]" % (d, d + 3))

    def mfmas(s, sub, sset):
        out = []
        b = fbase(s, sset)
        if s < 10:
            for nt in range(6):
                for j in range(2):
                    out.append(mf(ACCF + (j * 6 + nt) * 4, b + 8 + 4 * nt, b + 4 * j, s == 0 and sub == 0))
        elif s < 20:
            for c in range(5):
                for j in range(2):
                    out.append(mf(ACCS + (c * 2 + j) * 4, b + 4 * j, b + 8 + 4 * c, s == 10 and sub == 0))
        elif s < 32:
            for dt in range(5):
                out.append(mf(ACC2 + dt * 4, b + 4 + 4 * dt, b, s == 20 and sub == 0))
        else:
            for ks in range(2):
                for dt in range(5):
                    out.append(mf(ACC3 + dt * 4, b + 24 * ks + 4 + 4 * dt, b + 24 * ks, s == 32 and sub == 0 and ks == 0))
        return out

    class BG:
        def __init__(self):
            self.q = []
            self.cur = None

        def __call__(self, line):
            Asm()(line)
            if self.cur is not None:
                self.cur.append("    " + line)
            else:
                self.q.append(["    " + line])

        def label(self, name):
            self.cur.append(name + ":")

        def newlabel(self, p):
            return a.newlabel(p)

        def begin(self):
            self.cur = []

        def end(self):
            self.q.append(self.cur)
            self.cur = None

        def bar(self, n=1):
            self.q.append(("BAR", n))

        def at(self, s):
            self.q.append(("AT", s))

        def emit(self, budget, s):
            while self.q and budget > 0:
                h = self.q[0]
                if isinstance(h, tuple):
                    if h[0] == "AT" and s >= h[1]:
                        self.q.pop(0)
                        continue
                    return
                a.lines += h
                budget -= len(h)
                self.q.pop(0)

        def barrier_passed(self):
            if self.q and isinstance(self.q[0], tuple) and self.q[0][0] == "BAR":
                n = self.q[0][1] - 1
                self.q.pop(0)
                if n > 0:
                    self.q.insert(0, ("BAR", n))
    b = BG()

    def bsignal(vd, vz, soff, op="add", val="1"):
        b("v_cmp_eq_u32 vcc, 0, v1")
        b("s_and_saveexec_b64 s[30:31], vcc")
        b("v_mov_b32 v%d, %s" % (vd, val))
        b("v_mov_b32 v%d, 0" % vz)
        b("buffer_atomic_%s v%d, v%d, s[76:79], %s offen" % (op, vd, vz, soff))
        b("s_mov_b64 exec, -1")
        b("s_nop 3")

    b.at(10)
    b("s_waitcnt vmcnt(0)")
    b("s_lshl_b32 s24, s13, 1")
    b("s_add_u32 s24, s24, s19")
    b("s_lshl_b32 s29, s24, 8")
    b("s_add_u32 s29, s29, %d" % F_H1)
    b("s_mul_i32 s24, s24, 196608")
    b("s_mul_i32 s25, s14, 12288")
    b("s_add_u32 s24, s24, s25")
    b("s_lshl_b32 s25, s18, 11")
    b("s_add_u32 s24, s24, s25")
    b("s_add_u32 s24, s24, %d" % WS_H1)
    b.begin()
    srd_off(b, 20, 10, 11, "s24", 12288)
    b.end()
    b("v_lshrrev_b32 v10, 2, v7")
    b("v_and_b32 v11, 3, v7")
    b("v_lshl_add_u32 v10, v10, 3, v11")
    b("v_lshlrev_b32 v10, 6, v10")
    b("v_lshl_add_u32 v10, v6, 4, v10")
    b("s_mov_b32 s24, 0xffff0000")
    b("s_mov_b32 s25, 0x00003f80")
    b("s_mov_b32 s26, %s" % fh(-2 * math.sqrt(2 / math.pi) * LOG2E * 0.044715))
    b("s_mov_b32 s27, s26")
    b("s_mov_b32 s28, 0x3f800000")
    b("v_mov_b32 v12, %s" % fh(-2 * math.sqrt(2 / math.pi) * LOG2E))
    b("v_mov_b32 v13, v12")
    BF, DST, TMP = 180, 188, 212
    for aa in range(3):
        for i in range(4):
            b("v_lshlrev_b32 v%d, 16, v%d" % (BF + 2 * i, BRAW + 4 * aa + i))
            b("v_and_b32 v%d, s24, v%d" % (BF + 2 * i + 1, BRAW + 4 * aa + i))
        d0 = DST + 8 * aa
        units = [(ACCF + (j * 6 + 2 * aa) * 4, ACCF + (j * 6 + 2 * aa + 1) * 4, BF, d0 + 4 * j) for j in range(2)]
        gelu_units(b, units, TMP, 12, 26, 25, 28, 24)
        b("s_mov_b32 s88, %d" % (aa * 4096))
        for j in range(2):
            b("buffer_store_dwordx4 v[%d:%d], v10, s[20:23], s88 offen offset:%d sc1" % (d0 + 4 * j, d0 + 4 * j + 3, j * 256))
    b("v_mul_u32_u24 v14, 48, v7")
    b("v_add_u32 v14, %d, v14" % (MISC + 2048))
    b("s_mul_i32 s20, s17, 2560")
    b("s_add_u32 s20, s20, %d" % (MISC + 6144))
    b("v_lshl_add_u32 v13, v1, 3, s20")
    for c in range(5):
        for k in range(8):
            b("ds_read_b32 v%d, v14 offset:%d" % (K(c, k), c * 768 + k * 4))
        b("ds_read_b32 v%d, v13 offset:%d" % (K(c, 8), c * 512))
        b("ds_read_b32 v%d, v13 offset:%d" % (K(c, 9), c * 512 + 4))
    b.bar(BARH1)
    b.begin()
    b("s_waitcnt vmcnt(0)")
    bsignal(10, 11, "s29")
    b.end()
    b.bar(1)
    EB = MISC + 6144
    b("s_mul_i32 s20, s17, 1280")
    b("s_add_u32 s20, s20, %d" % EB)
    b("v_lshl_add_u32 v13, v1, 2, s20")
    b("v_mov_b32 v12, 0")
    for i in range(5):
        b("ds_write_b32 v13, v12 offset:%d" % (i * 256))

    b.at(20)
    G = lambda c, i: ACCS + c * 8 + i
    EQ = lambda c, q: 200 + 4 * c + q
    EWL = list(range(124, 140)) + list(range(220, 224))
    EW = lambda c, q: EWL[4 * c + q]
    TM = 71
    for i in range(8):
        for c in range(5):
            b("v_mul_f32 v%d, v%d, v%d" % (TM + c, K(c, 2), G(c, i)))
        for c in range(5):
            b("v_fmac_f32_dpp v%d, v%d, v%d %s" % (TM + c, G(c, i), K(c, 3), DPP8))
        if i == 0:
            for c in range(5):
                b("v_mov_b32 v%d, v%d" % (G(c, 0), TM + c))
        else:
            for c in range(5):
                b("v_fma_f32 v%d, v%d, v%d, v%d" % (G(c, i), K(c, 0), G(c, i - 1), TM + c))
            for c in range(5):
                b("v_fmac_f32_dpp v%d, v%d, v%d %s" % (G(c, i), G(c, i - 1), K(c, 1), DPP8))
    for q in range(4):
        b("v_add_u32 v%d, %d, v5" % (10 + q, q * 64))
    for q in range(4):
        for c in range(5):
            b("ds_bpermute_b32 v%d, v%d, v%d" % (EQ(c, q), 10 + q, G(c, 7)))
    b("s_waitcnt lgkmcnt(0)")
    cmul_add(b, [(EW(c, 1), K(c, 4), K(c, 5), EQ(c, 0), EQ(c, 1)) for c in range(5)])
    for q in range(2, 4):
        cmul_add(b, [(EW(c, q), K(c, 4), K(c, 5), EW(c, q - 1), EQ(c, q)) for c in range(5)])
    b("s_mul_i32 s20, s17, 320")
    b("s_add_u32 s20, s20, %d" % (MISC + 256))
    b("v_add_u32 v%d, s20, v5" % TM)
    for c in range(5):
        b("ds_write_b32 v%d, v%d offset:%d" % (TM, EW(c, 3), c * 64))
    b.bar(1)
    if L2T:
        b("s_lshr_b32 s20, s2, 6")
        b("s_lshl_b32 s20, s20, 2")
        b("s_add_u32 s20, s20, s17")
        b("s_mul_i32 s20, s20, 12288")
        b("s_mul_i32 s21, s15, 196608")
        b("s_add_u32 s20, s20, s21")
        b("s_add_u32 s20, s20, %d" % WS_H1)
        b.begin()
        srd_off(b, 64, 10, 11, "s20", 12288)
        b.end()
        b("v_lshlrev_b32 v224, 7, v1")
        b("s_movk_i32 s21, 8192")
        b("buffer_load_dword v225, v224, s[64:67], 0 offen sc1")
        b("buffer_load_dword v226, v224, s[64:67], s21 offen sc1")
        b("s_lshr_b32 s20, s2, 3")
        b("s_and_b32 s20, s20, 7")
        b("s_lshl_b32 s20, s20, 2")
        b("s_add_u32 s20, s20, s17")
        b("s_mul_i32 s22, s20, 7680")
        b("s_mul_i32 s21, s16, 245760")
        b("s_add_u32 s22, s22, s21")
        b("s_add_u32 s22, s22, %d" % WS_W2T)
        b.begin()
        srd_off(b, 64, 10, 11, "s22", 7680)
        b.end()
        b("buffer_load_dword v227, v224, s[64:67], 0 offen sc1")
    b("v_add_u32 v%d, %d, v5" % (TM, MISC + 256))
    for w in range(4):
        for c in range(5):
            b("ds_read_b32 v%d, v%d offset:%d" % (EW(c, w), TM, w * 320 + c * 64))
    b("s_mul_i32 s20, s14, 5120")
    b("s_add_u32 s20, s20, %d" % WS_ET)
    b.begin()
    srd_off(b, 68, 10, 11, "s20", 5120)
    b.end()
    b("s_waitcnt lgkmcnt(0)")
    for w in range(1, 4):
        cmul_add(b, [(EW(c, w), K(c, 6), K(c, 7), EW(c, w - 1), EW(c, w)) for c in range(5)])
    b.begin()
    Lnp = a.newlabel("U_nopub")
    b("s_cmp_lg_u32 s17, 0")
    b("s_cbranch_scc1 %s" % Lnp)
    b("s_mul_i32 s20, s13, 320")
    b("v_cmp_gt_u32 vcc, 16, v1")
    b("s_and_saveexec_b64 s[30:31], vcc")
    for c in range(5):
        b("buffer_store_dword v%d, v5, s[68:71], s20 offen offset:%d sc1" % (EW(c, 3), c * 64))
    b("s_mov_b64 exec, -1")
    b("s_nop 3")
    b.label(Lnp)
    b.end()
    for w in range(1, 4):
        b.begin()
        b("s_cmp_eq_u32 s17, %d" % w)
        b("s_cselect_b64 s[%d:%d], -1, 0" % (80 + 2 * w, 81 + 2 * w))
        b.end()
    for c in range(5):
        b("v_cndmask_b32 v%d, 0, v%d, s[82:83]" % (K(c, 10), EW(c, 0)))
    for c in range(5):
        b("v_cndmask_b32 v%d, v%d, v%d, s[84:85]" % (K(c, 10), K(c, 10), EW(c, 1)))
    for c in range(5):
        b("v_cndmask_b32 v%d, v%d, v%d, s[86:87]" % (K(c, 10), K(c, 10), EW(c, 2)))
    cmul_add(b, [(EW(c, 0), K(c, 4), K(c, 5), K(c, 10), EQ(c, 0)) for c in range(5)])
    for q in range(1, 3):
        cmul_add(b, [(EW(c, q), K(c, 4), K(c, 5), EW(c, q - 1), EQ(c, q)) for c in range(5)])
    b.begin()
    Lnp = a.newlabel("U_nosig")
    b("s_cmp_lg_u32 s17, 0")
    b("s_cbranch_scc1 %s" % Lnp)
    b("s_waitcnt vmcnt(0)")
    b("s_lshl_b32 s20, 1, s13")
    b("s_lshl_b32 s21, s14, 8")
    b("s_add_u32 s21, s21, %d" % F_E)
    bsignal(TM, TM + 1, "s21", "or", "s20")
    b.label(Lnp)
    b.end()
    b("v_cmp_eq_u32 s[82:83], 1, v6")
    b("v_cmp_eq_u32 s[84:85], 2, v6")
    b("v_cmp_eq_u32 s[86:87], 3, v6")
    b("s_nop 1")
    for q in range(3):
        for c in range(5):
            b("v_cndmask_b32 v%d, v%d, v%d, s[%d:%d]" % (K(c, 10), K(c, 10), EW(c, q), 82 + 2 * q, 83 + 2 * q))
    for c in range(5):
        for k in range(4):
            b("ds_read_b32 v%d, v14 offset:%d" % (K(c, 4 + k), c * 768 + 32 + k * 4))
    b("s_lshl_b32 s20, s13, 1")
    b("s_add_u32 s20, s20, s19")
    b("s_lshl_b32 s29, s20, 8")
    b("s_add_u32 s29, s29, %d" % F_HT)
    b("s_mul_i32 s20, s20, 163840")
    b("s_mul_i32 s21, s18, 81920")
    b("s_add_u32 s20, s20, s21")
    b("s_add_u32 s20, s20, %d" % WS_HT)
    b.begin()
    srd_off(b, 72, 10, 11, "s20", 81920)
    b.end()
    b("v_lshrrev_b32 v%d, 3, v7" % TM)
    b("v_mul_u32_u24 v%d, 640, v%d" % (TM + 1, TM))
    b("v_add_u32 v%d, v%d, v3" % (TM + 1, TM + 1))
    b("v_lshlrev_b32 v%d, 6, v%d" % (TM + 1, TM + 1))
    b("v_lshl_add_u32 v%d, v6, 4, v%d" % (TM + 1, TM + 1))
    b("v_mul_u32_u24 v%d, 0x8000, v%d" % (TM, TM))
    b("v_lshl_add_u32 v%d, v%d, 16, v%d" % (TM, TM, TM))
    b("s_mul_i32 s20, s14, 2560")
    b("v_lshl_add_u32 v%d, v6, 2, s13" % (TM + 2))
    b("v_mul_u32_u24 v%d, 320, v%d" % (TM + 2, TM + 2))
    b("v_add_u32 v%d, v%d, v5" % (TM + 2, TM + 2))
    b("v_add_u32 v%d, %d, v%d" % (TM + 2, EB, TM + 2))
    b.at(ESTAGE + 0.5)
    for e in range(4):
        for c in range(5):
            b("ds_read_b32 v%d, v%d offset:%d" % (EW(c, e), TM + 2, e * 320 + c * 64))
    b("s_waitcnt lgkmcnt(0)")
    for e in range(1, 4):
        cmul_add(b, [(EW(c, e), K(c, 4), K(c, 5), EW(c, e - 1), EW(c, e)) for c in range(5)])
    b("s_nop 0")
    for c in range(5):
        for q in range(4):
            b("ds_bpermute_b32 v%d, v%d, v%d" % (EQ(c, q), 10 + q, EW(c, 3)))
    b("s_waitcnt lgkmcnt(0)")
    for q in range(1, 4):
        cmul_add(b, [(EQ(c, q), K(c, 6), K(c, 7), EQ(c, q - 1), EQ(c, q)) for c in range(5)])
    cmul_add(b, [(K(c, 10), K(c, 8), K(c, 9), EQ(c, 3), K(c, 10)) for c in range(5)])
    CC = lambda c, i: 124 + 2 * c + i
    for i in range(8):
        cmul_add(b, [(CC(c, i & 1), K(c, 0), K(c, 1), K(c, 10) if i == 0 else CC(c, (i - 1) & 1), None) for c in range(5)])
        if i & 1:
            for c in range(5):
                u = G(c, i - 1)
                b("v_pk_add_f32 v[%d:%d], v[%d:%d], v[%d:%d]" % (u, u + 1, u, u + 1, CC(c, 0), CC(c, 1)))
    for c in range(5):
        for j in range(4):
            b("v_cvt_pk_bf16_f32 v%d, v%d, v%d" % (EQ(c, j), G(c, 2 * j), G(c, 2 * j + 1)))
    for c in range(5):
        for j in range(4):
            b("v_xor_b32 v%d, v%d, v%d" % (EQ(c, j), TM, EQ(c, j)))
        b("buffer_store_dwordx4 v[%d:%d], v%d, s[72:75], s20 offen offset:%d sc1" % (EQ(c, 0), EQ(c, 3), TM + 1, c * 512))
    b("s_lshl_b32 s21, s15, 6")
    b("s_lshl_b32 s22, s17, 4")
    b("s_add_u32 s21, s21, s22")
    b("s_mul_i32 s22, s21, 1280")
    b("s_mul_i32 s23, s16, 160")
    b("s_add_u32 s22, s22, s23")
    b.begin()
    srd(b, 80, P_OUT, P_OUT + 1, 2048 * 2560)
    b.end()
    b("v_mul_u32_u24 v15, 2560, v7")
    b("v_lshl_add_u32 v15, v6, 4, v15")
    b("s_lshl_b32 s27, s22, 1")
    b("s_mov_b32 s20, 0xffff0000")
    b("s_mov_b32 s21, 0x00003f80")
    b("s_mov_b32 s26, 0x3f800000")
    b("s_mov_b32 s88, %s" % fh(-LOG2E))
    b("s_mov_b32 s89, s88")
    b("v_lshlrev_b32 v14, 3, v6")
    b("v_add_u32 v14, %d, v14" % (MISC + 1536))
    b("s_mul_i32 s22, s17, 2560")
    b("s_add_u32 s22, s22, %d" % (2 * SLOT))
    b("v_mul_u32_u24 v10, 160, v7")
    b("v_lshl_add_u32 v10, v6, 3, v10")
    b("v_add_u32 v10, s22, v10")
    b.bar(BARHT)
    b.begin()
    b("s_waitcnt vmcnt(0)")
    bsignal(12, 13, "s29")
    b.end()
    if L2T:
        b("s_lshr_b32 s22, s2, 3")
        b("s_and_b32 s22, s22, 7")
        b("s_lshl_b32 s22, s22, 1")
        b("s_add_u32 s22, s22, s18")
        b("s_mul_i32 s22, s22, 6400")
        b("s_mul_i32 s23, s16, 102400")
        b("s_add_u32 s22, s22, s23")
        b.begin()
        b("s_cmp_eq_u32 s19, 0")
        b("s_cselect_b32 s24, s%d, s%d" % (P_CRE, P_CIM))
        b("s_cselect_b32 s25, s%d, s%d" % (P_CRE + 1, P_CIM + 1))
        srd_off(b, 64, 24, 25, "s22", 6400)
        b.end()
        b("buffer_load_dword v225, v224, s[64:67], 0 offen")
    T0, T1, PK = 160, 200, 64
    DFL = list(range(124, 140)) + list(range(220, 224))
    b.at(32.5)
    for dt in range(5):
        b("ds_read_b64 v[%d:%d], v14 offset:%d" % (PK + 2 * dt, PK + 2 * dt + 1, dt * 32))
        b("ds_read_b64 v[%d:%d], v14 offset:%d" % (T0 + 2 * dt, T0 + 2 * dt + 1, 256 + dt * 32))
    b("s_waitcnt lgkmcnt(0)")
    for i in range(10):
        b("v_lshlrev_b32 v%d, 16, v%d" % (T1 + 2 * i, PK + i))
        b("v_and_b32 v%d, s20, v%d" % (T1 + 2 * i + 1, PK + i))
        b("v_lshlrev_b32 v%d, 16, v%d" % (DFL[2 * i], T0 + i))
        b("v_and_b32 v%d, s20, v%d" % (DFL[2 * i + 1], T0 + i))
    for i in range(10):
        b("v_cvt_pk_bf16_f32 v%d, v%d, v%d" % (PK + i, ACC2 + 2 * i, ACC2 + 2 * i + 1))
    for i in range(10):
        b("v_dot2_f32_bf16 v%d, v%d, s21, v%d" % (ACC2 + 2 * i, PK + i, T1 + 2 * i))
        b("v_dot2_f32_bf16 v%d, v%d, s26, v%d" % (ACC2 + 2 * i + 1, PK + i, T1 + 2 * i + 1))
    b("s_nop 1")
    for i in range(10):
        b("v_cvt_pk_bf16_f32 v%d, v%d, v%d" % (PK + i, ACC2 + 2 * i, ACC2 + 2 * i + 1))
    for i in range(10):
        b("v_lshlrev_b32 v%d, 16, v%d" % (ACC2 + 2 * i, PK + i))
        b("v_and_b32 v%d, s20, v%d" % (ACC2 + 2 * i + 1, PK + i))
    for i in range(10):
        b("v_pk_mul_f32 v[%d:%d], v[%d:%d], s[88:89]" % (T0 + 2 * i, T0 + 2 * i + 1, ACC2 + 2 * i, ACC2 + 2 * i + 1))
    for i in range(20):
        b("v_exp_f32 v%d, v%d" % (T0 + i, T0 + i))
    b("s_nop 0")
    for i in range(10):
        b("v_pk_add_f32 v[%d:%d], v[%d:%d], 1.0" % (T0 + 2 * i, T0 + 2 * i + 1, T0 + 2 * i, T0 + 2 * i + 1))
    for i in range(20):
        b("v_rcp_f32 v%d, v%d" % (T0 + i, T0 + i))
    b("s_nop 0")
    for i in range(10):
        b("v_pk_mul_f32 v[%d:%d], v[%d:%d], v[%d:%d]" % (ACC2 + 2 * i, ACC2 + 2 * i + 1, ACC2 + 2 * i, ACC2 + 2 * i + 1, T0 + 2 * i, T0 + 2 * i + 1))
    for i in range(10):
        b("v_cvt_pk_bf16_f32 v%d, v%d, v%d" % (PK + i, ACC2 + 2 * i, ACC2 + 2 * i + 1))
    for i in range(10):
        b("v_lshlrev_b32 v%d, 16, v%d" % (T0 + 2 * i, PK + i))
        b("v_and_b32 v%d, s20, v%d" % (T0 + 2 * i + 1, PK + i))
    b.at(41.5)
    RX, RN = 200, 64
    for dt in range(5):
        b("ds_read_b64 v[%d:%d], v10 offset:%d" % (RN + 2 * dt, RN + 2 * dt + 1, 10240 + dt * 32))
    for dt in range(5):
        b("ds_read_b64 v[%d:%d], v10 offset:%d" % (RX + 2 * dt, RX + 2 * dt + 1, dt * 32))
    b("s_waitcnt lgkmcnt(0)")
    for i in range(10):
        b("v_lshlrev_b32 v%d, 16, v%d" % (ACC2 + 2 * i, RN + i))
        b("v_and_b32 v%d, s20, v%d" % (ACC2 + 2 * i + 1, RN + i))
    for i in range(10):
        b("v_pk_mul_f32 v[%d:%d], v[%d:%d], v[%d:%d]" % (ACC2 + 2 * i, ACC2 + 2 * i + 1, ACC2 + 2 * i, ACC2 + 2 * i + 1, DFL[2 * i], DFL[2 * i + 1]))
    for i in range(10):
        b("v_cvt_pk_bf16_f32 v%d, v%d, v%d" % (RN + i, ACC2 + 2 * i, ACC2 + 2 * i + 1))
    for i in range(10):
        b("v_lshlrev_b32 v%d, 16, v%d" % (ACC2 + 2 * i, RN + i))
        b("v_and_b32 v%d, s20, v%d" % (ACC2 + 2 * i + 1, RN + i))
    for i in reversed(range(10)):
        b("v_and_b32 v%d, s20, v%d" % (T1 + 2 * i + 1, RX + i))
        b("v_lshlrev_b32 v%d, 16, v%d" % (T1 + 2 * i, RX + i))

    def p23_addr():
        t0, t1, t2 = 10, 11, 12
        a("v_lshrrev_b32 v%d, 2, v7" % t0)
        a("v_and_b32 v%d, 3, v7" % t1)
        a("v_lshl_add_u32 v%d, v6, 3, v%d" % (t2, t0))
        a("v_lshlrev_b32 v%d, 7, v%d" % (t2, t2))
        a("v_lshl_add_u32 v%d, v%d, 3, v%d" % (t2, t1, t2))
        a("v_lshrrev_b32 v%d, 1, v%d" % (t0, t0))
        a("v_and_b32 v%d, 1, v6" % t1)
        a("v_lshl_add_u32 v%d, v%d, 1, v%d" % (t0, t1, t0))
        a("v_xor_b32 v%d, s17, v%d" % (t0, t0))
        a("v_lshl_add_u32 v%d, v%d, 5, v%d" % (t2, t0, t2))
        a("s_lshl_b32 s20, s17, 11")
        for sl in range(NS):
            a("s_add_u32 s21, s20, %d" % (sl * SLOT))
            a("v_add_u32 v%d, s21, v8" % (ADR + 6 * sl))
            a("v_add_u32 v%d, s21, v9" % (ADR + 6 * sl + 1))
            a("v_add_u32 v%d, %d, v%d" % (ADR + 6 * sl + 2, sl * SLOT, t2))
            a("v_add_u32 v%d, %d, v8" % (ADR + 6 * sl + 4, sl * SLOT + 8192))
            a("v_add_u32 v%d, %d, v9" % (ADR + 6 * sl + 5, sl * SLOT + 8192))

    def rate(s):
        if s < 20:
            return RATE1
        if s < 32:
            return RATE2
        return RATE3

    def run(s0, s1):
        st()
        a("s_waitcnt lgkmcnt(0)")
        a("s_barrier")
        b.barrier_passed()
        st()
        for r in reads(s0, 0, 0):
            a(r)
        for s in range(s0, s1):
            n = nsub(s)
            for sub in range(n):
                cur = sub & 1
                pos = s
                a("s_waitcnt lgkmcnt(0)")
                if sub == n - 1:
                    a("s_barrier")
                    b.barrier_passed()
                    pos = s + 0.5
                    if s == 31:
                        assert b.q[0] == ("AT", 32.5), b.q[0]
                    if os.environ.get("BGDBG"):
                        print("after B_%d: queue len %d head %s" % (s, len(b.q), b.q[0] if b.q else None))
                    if STAMP and s % 2 == 1:
                        st()
                    rs = reads(s + 1, 0, 1 - cur) if s + 1 < s1 else []
                else:
                    rs = reads(s, sub + 1, 1 - cur)
                per, burst = rate(s)
                ms = mfmas(s, sub, cur)
                ri = 0
                step = max(1, -(-len(rs) // len(ms)))
                for m in ms:
                    a(m)
                    for r in rs[ri:ri + step]:
                        a(r)
                    ri += step
                    b.emit(per, pos)
                for r in rs[ri:]:
                    a(r)
                b.emit(burst, pos)
    if CPRIO:
        a("s_setprio %d" % CPRIO)
    run(0, 20)
    b.emit(10000, 19.9)
    assert isinstance(b.q[0], tuple) and b.q[0] == ("AT", 20), b.q[0]
    p23_addr()
    a("s_nop 4")
    b.emit(PRE20, 20)
    run(20, 42)
    b.emit(10000, 42)
    assert not b.q, b.q[0]
    st()
    a("s_nop 7")
    for i in range(10):
        r = ACC3 + 2 * i
        a("v_pk_fma_f32 v[%d:%d], v[%d:%d], 2.0, v[%d:%d]" % (r, r + 1, r, r + 1, ACC2 + 2 * i, ACC2 + 2 * i + 1))
    for i in range(10):
        r = ACC3 + 2 * i
        a("v_pk_mul_f32 v[%d:%d], v[%d:%d], v[%d:%d]" % (r, r + 1, r, r + 1, T0 + 2 * i, T0 + 2 * i + 1))
    for i in range(10):
        r = ACC3 + 2 * i
        a("v_pk_add_f32 v[%d:%d], v[%d:%d], v[%d:%d]" % (r, r + 1, r, r + 1, T1 + 2 * i, T1 + 2 * i + 1))
    for dt in range(5):
        a("buffer_store_dwordx4 v[%d:%d], v15, s[80:83], s27 offen offset:%d %s" % (ACC3 + 4 * dt, ACC3 + 4 * dt + 3, dt * 64, OUTFLAG))
    st.flush()
    a("s_endpgm")

    a.label(Lld)
    st.n = n0
    vm = VM(a)
    lds_clear()
    a("s_cmp_lg_u32 s17, 0")
    a("s_cbranch_scc1 U_lp0a")
    Lni = a.newlabel("U_noinit")
    a("s_cmp_lg_u32 s2, 0")
    a("s_cbranch_scc1 %s" % Lni)
    a("v_lshlrev_b32 v18, 8, v1")
    a("v_add_u32 v18, 4096, v18")
    a("s_movk_i32 s24, 16384")
    a("buffer_store_dword v17, v18, s[76:79], 0 offen sc1")
    a("buffer_store_dword v17, v18, s[76:79], s24 offen sc1")
    a("s_waitcnt vmcnt(0)")
    a("v_mov_b32 v18, 1")
    a("buffer_store_dword v18, v17, s[92:95], 0 offen offset:8 sc1")
    a.label(Lni)
    a("s_sleep 12")
    Lq = a.newlabel("U_nq")
    Lqd = a.newlabel("U_nqd")
    a("s_mov_b32 s31, 0x100000")
    a.label(Lq)
    a("buffer_load_dwordx2 v[20:21], v17, s[92:95], 0 offen sc1")
    a("s_waitcnt vmcnt(0)")
    a("v_readfirstlane_b32 s30, v20")
    a("s_nop 3")
    a("s_cmp_lg_u32 s30, 0")
    a("s_cbranch_scc1 %s" % Lqd)
    a("s_sleep 5")
    a("s_sub_u32 s31, s31, 1")
    a("s_cmp_lg_u32 s31, 0")
    a("s_cbranch_scc1 %s" % Lq)
    a.label(Lqd)
    a("ds_write_b64 v15, v[20:21] offset:16")
    lds_wait(a, 18, 15, 0, 4, "U_ln", 2)
    a("s_sleep 8")
    a("s_movk_i32 s24, 8")
    poll(a, 18, 17, 92, "s24", chk_ge(1), "U_ini", 8)
    a("s_branch U_lp0d")
    a.label("U_lp0a")
    if TLBPF:
        Lnt = a.newlabel("U_ntlb")
        a("s_cmp_lg_u32 s17, 1")
        a("s_cbranch_scc1 %s" % Lnt)
        srd(a, 64, 10, 11, 0x2600000)
        srd(a, 68, P_OUT, P_OUT + 1, 2048 * 2560)
        a("v_lshlrev_b32 v18, 20, v1")
        a("buffer_load_dword v19, v18, s[64:67], 0 offen")
        a("buffer_load_dword v20, v18, s[68:71], 0 offen")
        a.label(Lnt)
    a("s_cmp_lt_u32 s17, 2")
    a("s_cbranch_scc1 U_lp0d")
    a("s_cmp_eq_u32 s17, 3")
    a("s_cbranch_scc1 U_lp0c")
    a("s_cmp_ge_u32 s2, 240")
    a("s_cbranch_scc1 U_lp0d")
    if TRLATE:
        lds_wait(a, 18, 15, 0, 4, "U_ln", 2)
    a("s_mul_hi_u32 s28, s2, 0x%x" % ((1 << 32) // 24 + 1))
    a("s_mul_i32 s29, s28, 24")
    a("s_sub_u32 s29, s2, s29")
    a("s_mul_i32 s22, s29, %d" % (64 * 1280))
    a("s_lshl_b32 s23, s28, 7")
    a("s_add_u32 s22, s22, s23")
    a("v_lshrrev_b32 v18, 2, v3")
    a("v_and_b32 v19, 3, v3")
    a("v_lshlrev_b32 v18, 5, v18")
    a("v_lshl_add_u32 v18, v19, 2, v18")
    a("v_mul_u32_u24 v18, 1280, v18")
    a("v_lshl_add_u32 v18, v2, 4, v18")
    srd(a, 72, P_W2, P_W2 + 1, 1536 * 1280)
    for j in range(8):
        a("s_add_u32 s24, s22, %d" % ((j if j < 4 else 12 + j) * 1280))
        a("buffer_load_dwordx4 v[%d:%d], v18, s[72:75], s24 offen" % (180 + 4 * j, 183 + 4 * j))
    a("v_mul_u32_u24 v11, %d, v2" % (8 * 3072))
    a("v_lshl_add_u32 v11, v3, 4, v11")
    a("s_mul_i32 s23, s28, %d" % (64 * 3072))
    a("s_lshl_b32 s24, s29, 7")
    a("s_add_u32 s23, s23, s24")
    srd_off(a, 68, 10, 11, WS_W2T, 640 * 3072)
    a("s_mov_b32 s26, 0x05040100")
    a("s_mov_b32 s27, 0x07060302")
    a("s_waitcnt vmcnt(0)")
    for i in range(8):
        for m in range(4):
            a("v_perm_b32 v%d, v%d, v%d, s%d" % (212 + 4 * i + m, 180 + 4 * (2 * m + 1) + (i >> 1), 180 + 4 * (2 * m) + (i >> 1), 26 + (i & 1)))
    for i in range(8):
        a("s_add_u32 s24, s23, %d" % (i * 3072))
        a("buffer_store_dwordx4 v[%d:%d], v11, s[68:71], s24 offen sc1" % (212 + 4 * i, 215 + 4 * i))
    a("s_branch U_lp0d")
    a.label("U_lp0c")
    srd(a, 64, P_LRE, P_LRE + 1, 1280)
    srd(a, 68, P_LIM, P_LIM + 1, 1280)
    srd(a, 72, P_LDT, P_LDT + 1, 1280)
    a("s_mul_i32 s20, s14, 80")
    a("v_lshlrev_b32 v18, 1, v3")
    for c in range(5):
        a("buffer_load_ushort v%d, v18, s[64:67], s20 offen offset:%d" % (160 + 3 * c, c * 16))
        a("buffer_load_ushort v%d, v18, s[68:71], s20 offen offset:%d" % (160 + 3 * c + 1, c * 16))
        a("buffer_load_ushort v%d, v18, s[72:75], s20 offen offset:%d" % (160 + 3 * c + 2, c * 16))
    T = 160
    a("v_and_b32 v12, 8, v7")
    a("v_lshlrev_b32 v12, 28, v12")
    a("v_xor_b32 v12, 0x80000000, v12")
    a("v_lshlrev_b32 v13, 3, v6")
    a("v_cvt_f32_u32 v13, v13")
    a("v_mul_u32_u24 v10, 48, v7")
    a("v_add_u32 v10, %d, v10" % (MISC + 2048))
    a("v_lshlrev_b32 v11, 3, v1")
    a("v_add_u32 v11, %d, v11" % (MISC + 6144))
    a("s_waitcnt vmcnt(0)")
    ZR, ZI, W0 = 96, 101, 108
    CT = lambda c, k: 180 + 12 * c + k

    def cpow_all(n, dst):
        ns = n if isinstance(n, str) else fh(n)
        for c in range(5):
            t = W0 + 4 * c
            a("v_mul_f32 v%d, %s, v%d" % (t, ns, ZR + c))
            a("v_mul_f32 v%d, %s, v%d" % (t + 1, ns, ZI + c))
            a("v_exp_f32 v%d, v%d" % (t, t))
            a("v_fract_f32 v%d, v%d" % (t + 1, t + 1))
            a("v_cos_f32 v%d, v%d" % (t + 2, t + 1))
            a("v_sin_f32 v%d, v%d" % (t + 3, t + 1))
        a("s_nop 0")
        for c in range(5):
            t = W0 + 4 * c
            a("v_mul_f32 v%d, v%d, v%d" % (dst(c), t, t + 2))
            a("v_mul_f32 v%d, v%d, v%d" % (dst(c) + 1, t, t + 3))
    for c in range(5):
        lre, lim, ldt = T + 3 * c, T + 3 * c + 1, T + 3 * c + 2
        a("v_lshlrev_b32 v%d, 16, v%d" % (lre, lre))
        a("v_lshlrev_b32 v%d, 16, v%d" % (lim, lim))
        a("v_lshlrev_b32 v%d, 16, v%d" % (ldt, ldt))
        a("v_mul_f32 v%d, %s, v%d" % (ldt, fh(LOG2E), ldt))
        a("v_exp_f32 v%d, v%d" % (ldt, ldt))
        a("s_nop 0")
        a("v_cvt_pk_bf16_f32 v%d, v%d, v%d" % (ldt, ldt, ldt))
        a("v_and_b32 v%d, 0xffff0000, v%d" % (ldt, ldt))
        a("v_mul_f32 v%d, v%d, v%d" % (ZR + c, ldt, lre))
        a("v_mul_f32 v%d, v%d, v%d" % (ZI + c, ldt, lim))
        a("v_mul_f32 v%d, %s, v%d" % (ZR + c, fh(LOG2E), ZR + c))
        a("v_mul_f32 v%d, 0.15915494, v%d" % (ZI + c, ZI + c))
    cpow_all(1.0, lambda c: CT(c, 0))
    for c in range(5):
        lre, lim = T + 3 * c, T + 3 * c + 1
        t = W0 + 4 * c
        a("v_add_f32 v%d, -1.0, v%d" % (t, CT(c, 0)))
        a("v_mul_f32 v%d, v%d, v%d" % (t + 1, lre, lre))
        a("v_fmac_f32 v%d, v%d, v%d" % (t + 1, lim, lim))
        a("v_rcp_f32 v%d, v%d" % (t + 2, t + 1))
        a("s_nop 0")
        a("v_fma_f32 v%d, -v%d, v%d, 1.0" % (t + 3, t + 1, t + 2))
        a("v_fma_f32 v%d, v%d, v%d, v%d" % (t + 2, t + 3, t + 2, t + 2))
        a("v_mul_f32 v%d, v%d, v%d" % (CT(c, 2), t, lre))
        a("v_fmac_f32 v%d, v%d, v%d" % (CT(c, 2), CT(c, 1), lim))
        a("v_mul_f32 v%d, v%d, v%d" % (CT(c, 3), CT(c, 1), lre))
        a("v_fma_f32 v%d, -v%d, v%d, v%d" % (CT(c, 3), t, lim, CT(c, 3)))
        a("v_mul_f32 v%d, v%d, v%d" % (CT(c, 2), CT(c, 2), t + 2))
        a("v_mul_f32 v%d, v%d, v%d" % (CT(c, 3), CT(c, 3), t + 2))
    for n, k in ((8.0, 4), (32.0, 6), (128.0, 8), (512.0, 10)):
        cpow_all(n, lambda c: CT(c, k))
    for c in range(5):
        for k in (1, 3, 5, 7, 9, 11):
            a("v_xor_b32 v%d, v12, v%d" % (CT(c, k), CT(c, k)))
        for k in range(3):
            a("ds_write_b128 v10, v[%d:%d] offset:%d" % (CT(c, 4 * k), CT(c, 4 * k + 3), c * 768 + k * 16))
    for w in range(4):
        AT = lambda c: 130 + 10 * (w & 1) + 2 * c
        cpow_all("v13", AT)
        for c in range(5):
            a("v_xor_b32 v%d, v12, v%d" % (AT(c) + 1, AT(c) + 1))
            a("ds_write_b64 v11, v[%d:%d] offset:%d" % (AT(c), AT(c) + 1, w * 2560 + c * 512))
        if w < 3:
            a("v_add_f32 v13, 0x42000000, v13")
    a.label("U_lp0d")
    a("s_mul_i32 s24, s14, 192")
    srd_off(a, 68, P_W1, P_W1 + 1, "s24", 640 * 3072 - 15 * 192)
    a("v_lshrrev_b32 v10, 2, v1")
    a("v_and_b32 v11, 3, v10")
    a("v_lshrrev_b32 v12, 2, v10")
    a("v_and_b32 v12, 1, v12")
    a("v_lshrrev_b32 v13, 3, v10")
    a("v_lshl_add_u32 v11, v12, 3, v11")
    a("v_lshl_add_u32 v11, v13, 2, v11")
    a("v_mul_u32_u24 v22, 3072, v11")
    a("v_lshrrev_b32 v13, 1, v1")
    a("v_and_b32 v13, 1, v13")
    a("v_xor_b32 v13, v13, v12")
    a("v_lshl_add_u32 v22, v13, 5, v22")
    a("v_and_b32 v13, 1, v1")
    a("v_lshl_add_u32 v22, v13, 4, v22")
    a("s_mul_i32 s3, s17, %d" % (16 * 3072))
    a("s_lshl_b32 s4, s17, 10")

    def kidx(s):
        return s if s < 10 else (s - 4 if s < 14 else s - 14)

    def free_part(s):
        sl = s % NS
        if s < 10:
            for p in range(3):
                a("s_add_u32 m0, s4, %d" % (sl * SLOT + 16384 + p * 4096))
                a("s_add_u32 s6, s3, %d" % (s * 64 * 3072 + p * 64))
                a("buffer_load_dwordx4 v22, s[68:71], s6 offen lds")
            n = 3
        elif s < 20:
            for i in range(3):
                a("s_add_u32 m0, s4, %d" % (sl * SLOT + 16384 + i * 4096))
                a("s_add_u32 s6, s5, %d" % (i * 20480 + kidx(s) * 128))
                a("buffer_load_dwordx4 v5, s[72:75], s6 offen lds")
            n = 3
        else:
            for i in range(5):
                a("s_add_u32 m0, s46, %d" % (sl * SLOT + 8192 + i * 2048))
                if s < 32:
                    a("s_add_u32 s6, s7, %d" % (i * 16 * 3072 + (s - 20) * 256))
                    a("buffer_load_dwordx4 v16, s[84:87], s6 offen sc1 lds")
                else:
                    s3 = s - 32
                    sr = 92 if s3 < 5 else 96
                    a("s_add_u32 s6, s8, %d" % (i * 16 * 1280 + (s3 % 5) * 256))
                    a("buffer_load_dwordx4 v5, s[%d:%d], s6 offen lds" % (sr, sr + 3))
            n = 5
        vm.issue(("F", s), n)

    def dep_part(s):
        sl = s % NS
        if 10 <= s < 14:
            vm.issue(("D", s), 0)
            return
        for i in range(4):
            if s < 20:
                a("s_add_u32 m0, s4, %d" % (sl * SLOT + i * 4096))
                a("s_add_u32 s6, s47, %d" % (i * 40960 + kidx(s) * 128))
                a("buffer_load_dwordx4 v5, s[64:67], s6 offen sc1 lds")
            elif s < 32:
                a("s_add_u32 m0, s46, %d" % (sl * SLOT + i * 2048))
                a("s_add_u32 s6, s50, %d" % (i * 1024 + (s - 20) * 16384))
                a("buffer_load_dwordx4 v21, s[80:83], s6 offen sc1 lds")
            else:
                a("s_add_u32 m0, s46, %d" % (sl * SLOT + i * 2048))
                a("s_add_u32 s6, s9, %d" % (i * 1024 + (s - 32) * 8192))
                a("buffer_load_dwordx4 v10, s[88:91], s6 offen sc1 lds")
        vm.issue(("D", s), 4)
    a("s_mul_i32 s24, s13, %d" % (128 * 1280))
    a("s_add_u32 s24, s24, %d" % WS_XN)
    srd_off(a, 64, 10, 11, "s24", 128 * 1280)
    a("s_cmp_eq_u32 s18, 0")
    a("s_cselect_b32 s24, s%d, s%d" % (P_BRE, P_BIM))
    a("s_cselect_b32 s25, s%d, s%d" % (P_BRE + 1, P_BIM + 1))
    a("s_mul_i32 s26, s14, %d" % (40 * 1280))
    srd_off(a, 72, 24, 25, "s26", 40 * 1280)
    a("s_mul_i32 s24, s15, 196608")
    a("s_add_u32 s24, s24, %d" % WS_H1)
    srd_off(a, 80, 10, 11, "s24", 196608)
    a("s_mul_i32 s24, s16, %d" % (80 * 3072))
    a("s_add_u32 s24, s24, %d" % WS_W2T)
    srd_off(a, 84, 10, 11, "s24", 80 * 3072)
    a("s_mul_i32 s24, s15, 163840")
    a("s_add_u32 s24, s24, %d" % WS_HT)
    srd_off(a, 88, 10, 11, "s24", 163840)
    a("s_lshr_b32 s24, s2, 3")
    a("s_and_b32 s25, s2, 7")
    a("v_lshlrev_b32 v18, 7, v1")
    Lpf1 = a.newlabel("U_pf1")
    Lpf3 = a.newlabel("U_pf3")
    Lpfd = a.newlabel("U_pfd")
    a("s_cmp_eq_u32 s17, 3")
    a("s_cbranch_scc1 %s" % Lpf3)
    a("s_cmp_lg_u32 s17, 0")
    a("s_cbranch_scc1 %s" % Lpf1)
    a("s_lshr_b32 s25, s25, 1")
    a("s_mul_i32 s25, s25, 204800")
    a("s_mul_i32 s26, s24, 6400")
    a("s_add_u32 s25, s25, s26")
    srd_off(a, 92, P_BRE, P_BRE + 1, "s25", 6400)
    srd_off(a, 96, P_BIM, P_BIM + 1, "s25", 6400)
    a("buffer_load_dword v19, v18, s[92:95], 0 offen")
    a("buffer_load_dword v20, v18, s[96:99], 0 offen")
    a("s_branch %s" % Lpfd)
    a.label(Lpf1)
    a("s_lshr_b32 s25, s25, 2")
    a("s_mul_i32 s25, s25, 409600")
    a("s_mul_i32 s26, s24, 12800")
    a("s_add_u32 s25, s25, s26")
    a("s_cmp_eq_u32 s17, 1")
    a("s_cselect_b32 s26, s%d, s%d" % (P_CRE, P_CIM))
    a("s_cselect_b32 s27, s%d, s%d" % (P_CRE + 1, P_CIM + 1))
    srd_off(a, 92, 26, 27, "s25", 12800)
    a("s_movk_i32 s26, 8192")
    a("buffer_load_dword v19, v18, s[92:95], 0 offen")
    a("buffer_load_dword v20, v18, s[92:95], s26 offen")
    a("s_branch %s" % Lpfd)
    a.label(Lpf3)
    a("s_lshr_b32 s25, s25, 1")
    a("s_mul_i32 s25, s25, 768")
    a("s_mul_i32 s26, s24, %d" % (20 * 3072))
    a("s_add_u32 s25, s25, s26")
    srd_off(a, 92, P_W1, P_W1 + 1, "s25", 20 * 3072 - 2304)
    a("v_mul_u32_u24 v19, 43, v1")
    a("v_lshrrev_b32 v19, 8, v19")
    a("v_mul_u32_u24 v20, 6, v19")
    a("v_sub_u32 v20, v1, v20")
    a("v_mul_u32_u24 v19, 3072, v19")
    a("v_lshl_add_u32 v18, v20, 7, v19")
    a("s_movk_i32 s26, %d" % (10 * 3072))
    a("buffer_load_dword v19, v18, s[92:95], 0 offen")
    a("buffer_load_dword v20, v18, s[92:95], s26 offen")
    a.label(Lpfd)
    vm.issue("pf", 2)
    a("s_cmp_eq_u32 s18, 0")
    a("s_cselect_b32 s24, s%d, s%d" % (P_B2, P_DSK))
    a("s_cselect_b32 s25, s%d, s%d" % (P_B2 + 1, P_DSK + 1))
    a("s_mul_i32 s26, s16, 160")
    srd_off(a, 92, 24, 25, "s26", 160)
    a("v_lshlrev_b32 v18, 4, v1")
    a("v_cmp_gt_u32 vcc, 16, v1")
    a("s_and_saveexec_b64 s[26:27], vcc")
    a("s_lshl_b32 s24, s18, 8")
    a("s_add_u32 m0, s24, %d" % (MISC + 1536))
    a("s_nop 0")
    a("buffer_load_dwordx4 v18, s[92:95], 0 offen lds")
    a("s_mov_b64 exec, -1")
    vm.issue("bd", 1)
    a("s_mul_i32 s24, s16, %d" % (80 * 1280))
    srd_off(a, 92, P_CRE, P_CRE + 1, "s24", 80 * 1280)
    srd_off(a, 96, P_CIM, P_CIM + 1, "s24", 80 * 1280)
    a("v_mul_u32_u24 v5, 1280, v2")
    a("v_lshl_add_u32 v5, v4, 4, v5")
    a("v_mul_u32_u24 v16, 3072, v2")
    a("v_lshl_add_u32 v16, v4, 4, v16")
    a("v_and_b32 v10, 1, v6")
    a("s_lshl_b32 s24, s18, 1")
    a("v_or_b32 v10, s24, v10")
    a("v_lshrrev_b32 v11, 1, v3")
    a("v_xor_b32 v11, v10, v11")
    a("v_lshrrev_b32 v10, 1, v11")
    a("v_mul_u32_u24 v10, 81920, v10")
    a("v_lshl_add_u32 v10, v2, 6, v10")
    a("v_and_b32 v11, 1, v11")
    a("v_lshl_add_u32 v10, v11, 5, v10")
    a("v_and_b32 v11, 1, v1")
    a("v_lshl_add_u32 v10, v11, 4, v10")
    a("v_lshrrev_b32 v21, 2, v4")
    a("v_lshlrev_b32 v21, 12, v21")
    a("v_lshl_add_u32 v21, v2, 6, v21")
    a("v_and_b32 v11, 3, v4")
    a("v_lshl_add_u32 v21, v11, 4, v21")
    a("s_mul_i32 s47, s17, 10240")
    a("s_mul_i32 s5, s19, 10240")
    a("s_lshl_b32 s50, s19, 13")
    a("s_lshl_b32 s24, s18, 9")
    a("s_add_u32 s50, s50, s24")
    a("s_lshl_b32 s9, s19, 12")
    a("s_add_u32 s9, s9, s24")
    a("s_mul_i32 s7, s18, %d" % (8 * 3072))
    a("s_lshl_b32 s24, s19, 7")
    a("s_add_u32 s7, s7, s24")
    a("s_mul_i32 s8, s18, %d" % (8 * 1280))
    a("s_add_u32 s8, s8, s24")
    a("s_mul_i32 s46, s19, %d" % SUB)
    a("s_lshl_b32 s24, s18, 10")
    a("s_add_u32 s46, s46, s24")

    def gate(soff_code, target, word, first=False):
        Lnp = a.newlabel("U_gnp")
        Lgo = a.newlabel("U_ggo")
        a("s_cmp_lg_u32 s17, 0")
        a("s_cbranch_scc1 %s" % Lnp)
        a("v_mov_b32 v23, 1")
        soff_code()
        poll(a, 18, 17, 76, "s24", chk_ge(target), "U_g", 3)
        a("ds_write_b32 v15, v23 offset:%d" % word)
        a("s_branch %s" % Lgo)
        a.label(Lnp)
        lds_wait(a, 18, 15, word, 1, "U_gw", 1)
        a.label(Lgo)

    st()
    lds_wait(a, 18, 15, 4, 1, "U_gx", 1)
    if LPRIO:
        a("s_setprio %d" % LPRIO)
    st()

    def phase(s0, s1, nxt_free_to):
        for k in range(2):
            if s0 == 0:
                free_part(s0 + k)
            dep_part(s0 + k)
        vm.wait(("D", s0))
        st()
        a("s_barrier")
        for k in range(2, 4):
            if s0 == 0:
                free_part(s0 + k)
            dep_part(s0 + k)
        for s in range(s0, s1):
            if s + 1 < s1:
                vm.wait(("D", s + 1))
            if s == ESTAGE:
                vm.wait("Emark")
            if s == 41:
                vm.drain()
            a("s_barrier")
            if STAMP and s % 2 == 1:
                st()
            n = s + NS
            if s == 1:
                Lsk = a.newlabel("U_w2s")
                a("s_cmp_lg_u32 s17, 2")
                a("s_cbranch_scc1 %s" % Lsk)
                a("s_cmp_ge_u32 s2, 240")
                a("s_cbranch_scc1 %s" % Lsk)
                a("s_lshl_b32 s24, s28, 8")
                a("s_add_u32 s24, s24, %d" % F_W2)
                signal(18, 19, "s24")
                a.label(Lsk)
            if s == ESTAGE - 3:
                a("s_lshl_b32 s26, 1, s13")
                a("s_sub_u32 s26, s26, 1")
                a("s_lshl_b32 s27, s14, 8")
                a("s_add_u32 s27, s27, %d" % F_E)
                a("buffer_load_dword v20, v17, s[76:79], s27 offen sc1")
                vm.issue("pollE", 1)
            if s == ESTAGE - 2:
                def chkE(sr):
                    a("s_and_b32 s%d, s%d, s26" % (sr, sr))
                    a("s_cmp_eq_u32 s%d, s26" % sr)
                vm.wait("pollE")
                Lok = a.newlabel("U_eok")
                a("v_readfirstlane_b32 s30, v20")
                a("s_nop 3")
                chkE(30)
                a("s_cbranch_scc1 %s" % Lok)
                poll(a, 20, 17, 76, "s27", chkE, "U_e", 2)
                a.label(Lok)
                a("s_mul_i32 s24, s14, 5120")
                a("s_add_u32 s24, s24, %d" % WS_ET)
                srd_off(a, 64, 10, 11, "s24", 5120)
                a("v_lshlrev_b32 v18, 4, v1")
                a("s_add_u32 m0, s4, %d" % (MISC + 6144 + 5120))
                a("s_nop 0")
                a("buffer_load_dwordx4 v18, s[64:67], s4 offen sc1 lds")
                Lsk = a.newlabel("U_e5")
                a("s_cmp_lg_u32 s17, 0")
                a("s_cbranch_scc1 %s" % Lsk)
                a("s_mov_b32 m0, %d" % (MISC + 6144 + 5120 + 4096))
                a("s_movk_i32 s24, 4096")
                a("buffer_load_dwordx4 v18, s[64:67], s24 offen sc1 lds")
                a.label(Lsk)
                vm.issue("E", 1)
                vm.issue("Emark", 0)
            if s == 38:
                a("s_lshl_b32 s24, s15, 6")
                a("s_mul_i32 s24, s24, 1280")
                a("s_mul_i32 s25, s16, 160")
                a("s_add_u32 s24, s24, s25")
                srd_off(a, 64, P_X, P_X + 1, "s24", 64 * 1280 - 1120)
                a("s_add_u32 s24, s24, %d" % WS_XN)
                srd_off(a, 68, 10, 11, "s24", 64 * 1280 - 1120)
                a("s_lshl_b32 s24, s17, 6")
                for i in range(3):
                    a("v_add_u32 v18, s24, v1")
                    if i:
                        a("v_add_u32 v18, %d, v18" % (256 * i))
                    a("v_mul_u32_u24 v19, 6554, v18")
                    a("v_lshrrev_b32 v19, 16, v19")
                    a("v_mul_u32_u24 v20, 10, v19")
                    a("v_sub_u32 v20, v18, v20")
                    a("v_mul_u32_u24 v23, 1280, v19")
                    a("v_lshl_add_u32 v23, v20, 4, v23")
                    a("v_and_b32 v24, 0xffe3, v19")
                    a("v_lshrrev_b32 v25, 2, v19")
                    a("v_and_b32 v25, 1, v25")
                    a("v_lshl_add_u32 v24, v25, 4, v24")
                    a("v_lshrrev_b32 v25, 3, v19")
                    a("v_and_b32 v25, 3, v25")
                    a("v_lshl_add_u32 v24, v25, 2, v24")
                    a("v_mul_u32_u24 v24, 1280, v24")
                    a("v_lshl_add_u32 v24, v20, 4, v24")
                    if i < 2:
                        a("s_add_u32 m0, s4, %d" % (2 * SLOT + i * 4096))
                        a("s_nop 0")
                        a("buffer_load_dwordx4 v23, s[64:67], 0 offen lds")
                        a("s_add_u32 m0, s4, %d" % (2 * SLOT + 10240 + i * 4096))
                        a("s_nop 0")
                        a("buffer_load_dwordx4 v24, s[68:71], 0 offen sc1 lds")
                    else:
                        Lsk = a.newlabel("U_x3")
                        a("s_cmp_ge_u32 s17, 2")
                        a("s_cbranch_scc1 %s" % Lsk)
                        a("s_add_u32 m0, s4, %d" % (2 * SLOT + i * 4096))
                        a("s_nop 0")
                        a("buffer_load_dwordx4 v23, s[64:67], 0 offen lds")
                        a("s_add_u32 m0, s4, %d" % (2 * SLOT + 10240 + i * 4096))
                        a("s_nop 0")
                        a("buffer_load_dwordx4 v24, s[68:71], 0 offen sc1 lds")
                        a.label(Lsk)
                vm.issue("X", 4)
            if n < s1:
                if n == 31:
                    a("s_lshl_b32 s25, s15, 8")
                    a("s_add_u32 s25, s25, %d" % F_HT)
                    a("buffer_load_dword v19, v17, s[76:79], s25 offen sc1")
                    vm.issue("pollHT", 1)
                if n == 19:
                    a("s_mul_i32 s25, s16, 80")
                    a("s_add_u32 s26, s25, 79")
                    a("s_lshr_b32 s25, s25, 6")
                    a("s_lshr_b32 s26, s26, 6")
                    a("s_lshl_b32 s25, s25, 8")
                    a("s_lshl_b32 s26, s26, 8")
                    a("s_add_u32 s25, s25, %d" % F_W2)
                    a("s_add_u32 s26, s26, %d" % F_W2)
                    a("buffer_load_dword v19, v17, s[76:79], s25 offen sc1")
                    a("buffer_load_dword v20, v17, s[76:79], s26 offen sc1")
                    vm.issue("pollW2", 2)
                free_part(n)
                if n == 32:
                    vm.wait("pollHT")
                    Lok = a.newlabel("U_htok")
                    a("v_readfirstlane_b32 s30, v19")
                    a("s_nop 3")
                    a("s_cmp_ge_u32 s30, 32")
                    a("s_cbranch_scc1 %s" % Lok)
                    poll(a, 19, 17, 76, "s25", chk_ge(32), "U_ht")
                    a.label(Lok)
                dep_part(n)
            elif n < nxt_free_to:
                if n == 20:
                    vm.wait("pollW2")
                    Lok = a.newlabel("U_w2ok")
                    a("v_min_u32 v19, v19, v20")
                    a("s_nop 0")
                    a("v_readfirstlane_b32 s30, v19")
                    a("s_nop 3")
                    a("s_cmp_ge_u32 s30, 24")
                    a("s_cbranch_scc1 %s" % Lok)
                    poll(a, 19, 17, 76, "s25", chk_ge(24), "U_w2")
                    poll(a, 19, 17, 76, "s26", chk_ge(24), "U_w2")
                    a.label(Lok)
                free_part(n)
    phase(0, 20, 24)
    st()

    def h1off():
        a("s_lshl_b32 s24, s15, 8")
        a("s_add_u32 s24, s24, %d" % F_H1)
    gate(h1off, 32, 12)
    st()
    phase(20, 42, 42)
    st.flush()
    a.label(Lend)
    a("s_endpgm")
    a.label("U_code_end")
    return name, 256


if __name__ == "__main__":
    a = Asm()
    nm, vg = gen_uni(a)
    hdr = open("cdna_kernels/%s.s.ref" % NAME).read().split("\n")
    hdr = [l for l in hdr if l.startswith(";") and "@launch" not in l]
    out = "\n".join(hdr) + "\n; @launch grid=(256,1,1) block=(512,1,1) lds=163840\n"
    out += '.amdgcn_target "amdgcn-amd-amdhsa--gfx950"\n.text\n' + a.text()
    out += '.section .rodata,"a"\n.p2align 6\n' + kernel_desc(nm, vg)
    open(sys.argv[1] if len(sys.argv) > 1 else "cdna_kernels/%s.s" % NAME, "w").write(out)
```

```python
import sys, os, math
from gen import Asm, srd, srd_off, kernel_header, kernel_desc, fh, KA, LOG2E, DPP8, NAME
import gen

WS_XN = 0x0000000
WS_W2T = 0x0500000
WS_FLG = 0x0780000
WS_H1 = 0x0800000
WS_ET = 0x0F00000
WS_HT = 0x2000000
WS_DBG = 0x3000000
F_XN, F_H1, F_E, F_HT, F_W2, F_SIZE = 0, 4096, 12288, 16384, 24576, 27136

STAMP = int(os.environ.get("STAMP", "0"))
NS = 4
PFMAP = eval(os.environ.get("PFMAP", '[["B"], ["Cr"], ["Ci"], ["W"]]'))
PFLATE = int(os.environ.get("PFLATE", "0"))
PREF = int(os.environ.get("PREF", "0"))
BARH1 = int(os.environ.get("BARH1", "2"))
BARHT = int(os.environ.get("BARHT", "1"))
L2T = int(os.environ.get("L2T", "0"))
LPRIO = int(os.environ.get("LPRIO", "0"))
CPRIO = int(os.environ.get("CPRIO", "0"))
ALLLATE = int(os.environ.get("ALLLATE", "1"))
TRLATE = int(os.environ.get("TRLATE", "0"))
CLATE = int(os.environ.get("CLATE", "1"))
TLBPF = int(os.environ.get("TLBPF", "0"))
OUTFLAG = os.environ.get("OUTFLAG", "nt")
ESTAGE = int(os.environ.get("ESTAGE", "24"))
RATE1 = eval(os.environ.get("RATE1", "(3, 50)"))
RATE2 = eval(os.environ.get("RATE2", "(4, 100)"))
RATE3 = eval(os.environ.get("RATE3", "(2, 16)"))
PRE20 = int(os.environ.get("PRE20", "260"))
CODE_SIZE = 42000
CODEPF = int(os.environ.get("CODEPF", "1"))
SLOT = 36864
SUB = 18432
MISC = 147456

P_X, P_LRE, P_LIM, P_BRE, P_BIM, P_CRE, P_CIM, P_LDT, P_DSK, P_W1, P_B1, P_W2, P_B2, P_OUT, P_DBG = \
    32, 34, 36, 38, 40, 42, 44, 46, 48, 52, 54, 56, 58, 60, 62


class Stamper:
    def __init__(self, a):
        self.a = a
        self.n = 0

    def __call__(self, real=False):
        if not STAMP:
            return
        a = self.a
        assert self.n < 64
        if self.n == 0 and not real:
            a("v_mov_b32 v255, 0")
            self(True)
        a("s_memrealtime s[100:101]" if real else "s_memtime s[100:101]")
        a("s_waitcnt lgkmcnt(0)")
        a("v_writelane_b32 v255, s100, %d" % self.n)
        self.n += 1

    def flush(self):
        if not STAMP:
            return
        a = self.a
        self()
        self(True)
        a("s_mov_b64 exec, -1")
        a("s_lshl_b32 s100, s2, 3")
        a("s_add_u32 s100, s100, s12")
        a("s_lshl_b32 s100, s100, 8")
        a("s_add_u32 s100, s100, 0x%x" % (WS_DBG + 0x100000))
        srd_off(a, 96, 10, 11, "s100", 256)
        a("v_and_b32 v254, 63, v0")
        a("v_lshlrev_b32 v254, 2, v254")
        a("buffer_store_dword v255, v254, s[96:99], 0 offen")


class VM:
    def __init__(self, a):
        self.a = a
        self.q = []

    def issue(self, tag, n):
        self.q.append((tag, n))

    def wait(self, tag):
        idxs = [i for i, (t, n) in enumerate(self.q) if t == tag]
        if not idxs:
            return
        idx = max(idxs)
        rest = sum(n for t, n in self.q[idx + 1:])
        assert rest <= 63, rest
        self.a("s_waitcnt vmcnt(%d)" % rest)
        self.q = self.q[idx + 1:]

    def drain(self):
        self.a("s_waitcnt vmcnt(0)")
        self.q = []


def interleave(ms, rs):
    out = []
    ri = 0
    for m in ms:
        out.append(m)
        if ri < len(rs):
            out.append(rs[ri])
            ri += 1
    return out + rs[ri:]


def poll(a, vreg, vzero, sflg, soff, check, lbl, slp=4):
    Lp = a.newlabel(lbl + "_poll")
    Ld = a.newlabel(lbl + "_done")
    a("s_mov_b32 s31, 0x100000")
    a.label(Lp)
    a("buffer_load_dword v%d, v%d, s[%d:%d], %s offen sc1" % (vreg, vzero, sflg, sflg + 3, soff))
    a("s_waitcnt vmcnt(0)")
    a("v_readfirstlane_b32 s30, v%d" % vreg)
    a("s_nop 3")
    check(30)
    a("s_cbranch_scc1 %s" % Ld)
    a("s_sleep %d" % slp)
    a("s_sub_u32 s31, s31, 1")
    a("s_cmp_lg_u32 s31, 0")
    a("s_cbranch_scc1 %s" % Lp)
    a.label(Ld)


def lds_wait(a, vtmp, vaddr, off, val, lbl, slp=1):
    Lw = a.newlabel(lbl)
    Ld = a.newlabel(lbl + "d")
    a("s_mov_b32 s31, 0x1000000")
    a.label(Lw)
    a("ds_read_b32 v%d, v%d offset:%d" % (vtmp, vaddr, off))
    a("s_waitcnt lgkmcnt(0)")
    a("v_readfirstlane_b32 s30, v%d" % vtmp)
    a("s_sub_u32 s31, s31, 1")
    a("s_cbranch_scc1 %s" % Ld)
    a("s_nop 1")
    a("s_cmp_ge_u32 s30, %d" % val)
    a("s_cbranch_scc1 %s" % Ld)
    if slp:
        a("s_sleep %d" % slp)
    a("s_branch %s" % Lw)
    a.label(Ld)


def cmul_add(a, items):
    for (d, lr, li, s, ad) in items:
        if ad is None:
            a("v_mul_f32 v%d, v%d, v%d" % (d, lr, s))
        else:
            a("v_fma_f32 v%d, v%d, v%d, v%d" % (d, lr, s, ad))
    if len(items) < 2:
        a("s_nop 1")
    for (d, lr, li, s, ad) in items:
        a("v_fmac_f32_dpp v%d, v%d, v%d %s" % (d, s, li, DPP8))


def gelu_units(a, units, tmp, vK1, sK2, sLO, sHI, sMask):
    P = []
    for ui, (rA, rB, b, d) in enumerate(units):
        for h, r in enumerate((rA, rA + 2, rB, rB + 2)):
            P.append((r, b + 2 * h, d + h, tmp + 8 * ui + 2 * h))
    for (r, b, d, t) in P:
        a("v_cvt_pk_bf16_f32 v%d, v%d, v%d" % (d, r, r + 1))
    for (r, b, d, t) in P:
        a("v_dot2_f32_bf16 v%d, v%d, s%d, v%d" % (r, d, sLO, b))
        a("v_dot2_f32_bf16 v%d, v%d, s%d, v%d" % (r + 1, d, sHI, b + 1))
    a("s_nop 1")
    for (r, b, d, t) in P:
        a("v_cvt_pk_bf16_f32 v%d, v%d, v%d" % (d, r, r + 1))
    for (r, b, d, t) in P:
        a("v_lshlrev_b32 v%d, 16, v%d" % (r, d))
        a("v_and_b32 v%d, s%d, v%d" % (r + 1, sMask, d))
    for (r, b, d, t) in P:
        a("v_pk_mul_f32 v[%d:%d], v[%d:%d], v[%d:%d]" % (t, t + 1, r, r + 1, r, r + 1))
    for (r, b, d, t) in P:
        a("v_pk_fma_f32 v[%d:%d], v[%d:%d], s[%d:%d], v[%d:%d]" % (t, t + 1, t, t + 1, sK2, sK2 + 1, vK1, vK1 + 1))
    for (r, b, d, t) in P:
        a("v_pk_mul_f32 v[%d:%d], v[%d:%d], v[%d:%d]" % (t, t + 1, t, t + 1, r, r + 1))
    for (r, b, d, t) in P:
        a("v_exp_f32 v%d, v%d" % (t, t))
        a("v_exp_f32 v%d, v%d" % (t + 1, t + 1))
    a("s_nop 0")
    for (r, b, d, t) in P:
        a("v_pk_add_f32 v[%d:%d], v[%d:%d], 1.0" % (t, t + 1, t, t + 1))
    for (r, b, d, t) in P:
        a("v_rcp_f32 v%d, v%d" % (t, t))
        a("v_rcp_f32 v%d, v%d" % (t + 1, t + 1))
    a("s_nop 0")
    for (r, b, d, t) in P:
        a("v_pk_mul_f32 v[%d:%d], v[%d:%d], v[%d:%d]" % (r, r + 1, r, r + 1, t, t + 1))
    for (r, b, d, t) in P:
        a("v_cvt_pk_bf16_f32 v%d, v%d, v%d" % (d, r, r + 1))


def gen_uni(a):
    name = NAME + "_kernel"
    kernel_header(a, name)
    st = Stamper(a)
    Lend = a.newlabel("U_end")
    Lld = a.newlabel("U_ld")
    a("s_cmp_ge_u32 s2, 256")
    a("s_cbranch_scc1 %s" % Lend)
    X0, XF, S0 = 76, 88, 112
    a("s_load_dwordx16 s[32:47], s[0:1], 0")
    a("s_load_dwordx16 s[48:63], s[0:1], 64")
    a("s_load_dwordx2 s[10:11], s[0:1], 128")
    if CODEPF:
        a("s_getpc_b64 s[4:5]")
        a("s_lshr_b32 s6, s2, 3")
        a("s_lshl_b32 s6, s6, 11")
        a("v_subrev_u32 v1, 320, v0")
        a("v_cmp_gt_u32 vcc, 16, v1")
        a("v_lshlrev_b32 v1, 7, v1")
        a("v_add_u32 v1, s6, v1")
        a("v_min_u32 v1, 0x%x, v1" % CODE_SIZE)
        a("s_and_saveexec_b64 s[6:7], vcc")
        a("s_cbranch_execz U_cpf")
        a("global_load_dword v30, v1, s[4:5]")
        a.label("U_cpf")
        a("s_mov_b64 exec, -1")
    a("s_lshr_b32 s20, s2, 3")
    a("s_and_b32 s21, s20, 7")
    a("s_lshr_b32 s20, s20, 3")
    a("s_and_b32 s13, s2, 1")
    a("s_lshl_b32 s13, s13, 3")
    a("s_add_u32 s13, s13, s21")
    a("s_lshr_b32 s14, s2, 1")
    a("s_and_b32 s14, s14, 3")
    a("s_lshl_b32 s14, s14, 2")
    a("s_add_u32 s14, s14, s20")
    a("s_lshl_b32 s22, s13, 4")
    a("s_add_u32 s22, s22, s14")
    a("s_mul_i32 s22, s22, 10240")
    a("v_lshrrev_b32 v11, 5, v0")
    a("v_and_b32 v12, 31, v0")
    a("v_mul_u32_u24 v10, 1280, v11")
    a("v_lshl_add_u32 v10, v12, 4, v10")
    a("v_cmp_gt_u32 s[26:27], 16, v12")
    a("v_mov_b32 v13, 0x10000")
    a("v_mov_b32 v17, 0")
    a("v_cndmask_b32 v13, v13, v10, s[26:27]")
    a("s_waitcnt lgkmcnt(0)")
    srd_off(a, 64, P_X, P_X + 1, "s22", 10240)
    a("buffer_load_dwordx4 v[%d:%d], v10, s[64:67], 0 offen" % (X0, X0 + 3))
    a("buffer_load_dwordx4 v[%d:%d], v10, s[64:67], 0 offen offset:512" % (X0 + 4, X0 + 7))
    a("buffer_load_dwordx4 v[%d:%d], v13, s[64:67], 0 offen offset:1024" % (X0 + 8, X0 + 11))
    srd(a, 92, P_DBG, P_DBG + 1, 256)
    Lnn = a.newlabel("U_nonon")
    a("s_cmp_lg_u32 s2, 0")
    a("s_cbranch_scc1 %s" % Lnn)
    a("s_memrealtime s[24:25]")
    a("v_cmp_eq_u32 vcc, 256, v0")
    a("s_and_saveexec_b64 s[6:7], vcc")
    a("s_cbranch_execz %s" % Lnn)
    a("s_waitcnt lgkmcnt(0)")
    a("s_or_b32 s24, s24, 1")
    a("v_mov_b32 v20, s24")
    a("v_mov_b32 v21, s25")
    a("buffer_store_dwordx2 v[20:21], v17, s[92:95], 0 offen sc1")
    a.label(Lnn)
    a("s_mov_b64 exec, -1")
    a("v_lshrrev_b32 v2, 6, v0")
    a("v_and_b32 v1, 63, v0")
    a("s_nop 0")
    a("v_readfirstlane_b32 s12, v2")
    a("s_and_b32 s15, s2, 3")
    a("s_lshl_b32 s15, s15, 3")
    a("s_add_u32 s15, s15, s21")
    a("s_lshr_b32 s16, s2, 2")
    a("s_and_b32 s16, s16, 1")
    a("s_lshl_b32 s16, s16, 2")
    a("s_add_u32 s16, s16, s20")
    a("s_and_b32 s17, s12, 3")
    a("s_and_b32 s18, s17, 1")
    a("s_lshr_b32 s19, s17, 1")
    a("v_lshrrev_b32 v2, 3, v1")
    a("v_and_b32 v3, 7, v1")
    a("v_lshrrev_b32 v6, 4, v1")
    a("v_and_b32 v7, 15, v1")
    a("v_xor_b32 v4, v6, v3")
    a("v_lshlrev_b32 v8, 7, v7")
    a("v_lshl_add_u32 v8, v4, 4, v8")
    a("v_xor_b32 v9, 64, v8")
    a("v_xor_b32 v4, v2, v3")
    a("s_waitcnt lgkmcnt(0)")
    srd_off(a, 76, 10, 11, WS_FLG, F_SIZE)
    def lds_clear():
        a("v_mov_b32 v15, %d" % MISC)
        for i in range(4):
            a("v_mov_b32 v%d, 0" % (24 + i))
        a("ds_write_b128 v15, v[24:27]")
        a("ds_write_b128 v15, v[24:27] offset:16")
        a("s_waitcnt lgkmcnt(0)")
        a("s_barrier")
    st()
    n0 = st.n
    a("s_cmp_ge_u32 s12, 4")
    a("s_cbranch_scc1 %s" % Lld)
    a("s_lshl_b32 s21, s13, 7")
    a("s_lshr_b32 s22, s14, 2")
    a("s_lshl_b32 s22, s22, 5")
    a("s_add_u32 s21, s21, s22")
    a("s_lshl_b32 s22, s19, 4")
    a("s_add_u32 s21, s21, s22")
    a("s_and_b32 s22, s14, 3")
    a("s_lshl_b32 s22, s22, 2")
    a("s_add_u32 s21, s21, s22")
    a("s_lshl_b32 s22, s18, 1")
    a("s_add_u32 s21, s21, s22")
    a("s_mul_i32 s21, s21, 1280")
    a("s_add_u32 s21, s21, %d" % WS_XN)
    srd_off(a, 68, 10, 11, "s21", 2560)
    a("s_mul_i32 s20, s17, 2560")
    a("v_subrev_u32 v10, s20, v10")
    a("v_subrev_u32 v13, s20, v13")
    lds_clear()
    a("s_mov_b32 s24, 0xffff0000")
    for i in range(12):
        if i == 0:
            a("s_waitcnt vmcnt(0)")
        a("v_lshlrev_b32 v%d, 16, v%d" % (XF + 2 * i, X0 + i))
        a("v_and_b32 v%d, s24, v%d" % (XF + 2 * i + 1, X0 + i))

    def pk(op, d, x, y, z=None):
        if z is None:
            a("v_pk_%s_f32 v[%d:%d], v[%d:%d], v[%d:%d]" % (op, d, d + 1, x, x + 1, y, y + 1))
        else:
            a("v_pk_%s_f32 v[%d:%d], v[%d:%d], v[%d:%d], v[%d:%d]" % (op, d, d + 1, x, x + 1, y, y + 1, z, z + 1))

    def allreduce32(r):
        for sh in (8, 4, 2, 1):
            a("s_nop 1")
            a("v_add_f32_dpp v%d, v%d, v%d row_ror:%d row_mask:0xf bank_mask:0xf" % (r, r, r, sh))
        a("ds_swizzle_b32 v%d, v%d offset:0x401F" % (r + 1, r))
        a("s_waitcnt lgkmcnt(0)")
        a("v_add_f32 v%d, v%d, v%d" % (r, r, r + 1))
    pk("add", S0, XF, XF + 2)
    pk("add", S0 + 2, XF + 4, XF + 6)
    for i in range(4, 12):
        pk("add", S0 + 2 * (i & 1), S0 + 2 * (i & 1), XF + 2 * i)
    pk("add", S0, S0, S0 + 2)
    a("v_add_f32 v%d, v%d, v%d" % (S0, S0, S0 + 1))
    allreduce32(S0)
    a("v_mul_f32 v%d, %s, v%d" % (S0, fh(-1.0 / 640), S0))
    a("v_mov_b32 v%d, v%d" % (S0 + 1, S0))
    for i in range(12):
        t = S0 + 4 + 2 * (i & 1)
        q = S0 + 8 + 2 * (i >> 3)
        pk("add", t, XF + 2 * i, S0)
        if i % 8 == 0:
            pk("mul", q, t, t)
        else:
            pk("fma", q, t, t, q)
    a("v_add_f32 v%d, v%d, v%d" % (S0 + 8, S0 + 8, S0 + 9))
    a("v_add_f32 v%d, v%d, v%d" % (S0 + 10, S0 + 10, S0 + 11))
    a("v_cndmask_b32 v%d, 0, v%d, s[26:27]" % (S0 + 10, S0 + 10))
    a("v_add_f32 v%d, v%d, v%d" % (S0 + 8, S0 + 8, S0 + 10))
    allreduce32(S0 + 8)
    V = S0 + 8
    a("v_mul_f32 v%d, %s, v%d" % (V, fh(1.0 / 640), V))
    a("v_cvt_pk_bf16_f32 v%d, v%d, v%d" % (S0 + 2, S0, V))
    a("v_lshlrev_b32 v%d, 16, v%d" % (S0, S0 + 2))
    a("v_mov_b32 v%d, v%d" % (S0 + 1, S0))
    a("v_and_b32 v%d, s24, v%d" % (V, S0 + 2))
    a("v_add_f32 v%d, %s, v%d" % (V, fh(1e-5), V))
    a("v_cvt_pk_bf16_f32 v%d, v%d, v%d" % (V, V, V))
    a("v_and_b32 v%d, s24, v%d" % (V, V))
    a("v_sqrt_f32 v%d, v%d" % (V, V))
    a("s_nop 0")
    a("v_cvt_pk_bf16_f32 v%d, v%d, v%d" % (V, V, V))
    a("v_and_b32 v%d, s24, v%d" % (V, V))
    RS = S0 + 4
    a("v_rcp_f32 v%d, v%d" % (RS, V))
    a("s_nop 0")
    a("v_fma_f32 v%d, -v%d, v%d, 1.0" % (RS + 2, V, RS))
    a("v_fma_f32 v%d, v%d, v%d, v%d" % (RS, RS + 2, RS, RS))
    a("v_mov_b32 v%d, v%d" % (RS + 1, RS))
    a("v_sub_f32 v%d, 0, v%d" % (V, V))
    a("v_mov_b32 v%d, v%d" % (V + 1, V))
    for i in range(12):
        pk("add", XF + 2 * i, XF + 2 * i, S0)
    for i in range(12):
        a("v_cvt_pk_bf16_f32 v%d, v%d, v%d" % (X0 + i, XF + 2 * i, XF + 2 * i + 1))
    Q = 124
    for i in range(12):
        x = XF + 2 * i
        q = Q + 4 * (i & 3)
        a("v_lshlrev_b32 v%d, 16, v%d" % (x, X0 + i))
        a("v_and_b32 v%d, s24, v%d" % (x + 1, X0 + i))
        pk("mul", q, x, RS)
        pk("fma", q + 2, q, V, x)
        pk("fma", q, q + 2, RS, q)
        a("v_cvt_pk_bf16_f32 v%d, v%d, v%d" % (X0 + i, q, q + 1))
    a("buffer_store_dwordx4 v[%d:%d], v10, s[68:71], 0 offen sc1" % (X0, X0 + 3))
    a("buffer_store_dwordx4 v[%d:%d], v10, s[68:71], 0 offen offset:512 sc1" % (X0 + 4, X0 + 7))
    a("buffer_store_dwordx4 v[%d:%d], v13, s[68:71], 0 offen offset:1024 sc1" % (X0 + 8, X0 + 11))
    st()
    a("s_waitcnt vmcnt(0)")
    a("v_mov_b32 v16, 1")
    a("v_cmp_eq_u32 vcc, 0, v1")
    a("s_and_saveexec_b64 s[26:27], vcc")
    a("ds_add_rtn_u32 v18, v15, v16")
    a("s_waitcnt lgkmcnt(0)")
    a("v_readfirstlane_b32 s20, v18")
    a("s_nop 3")
    Lns = a.newlabel("U_nsig")
    a("s_cmp_lg_u32 s20, 3")
    a("s_cbranch_scc1 %s" % Lns)
    lds_wait(a, 18, 15, 16, 1, "U_iw", 1)
    a("ds_read_b64 v[20:21], v15 offset:16")
    a("s_lshl_b32 s20, s13, 8")
    a("s_lshl_b32 s21, s14, 3")
    a("s_add_u32 s20, s20, s21")
    a("s_waitcnt lgkmcnt(0)")
    a("buffer_store_dwordx2 v[20:21], v17, s[76:79], s20 offen sc1")
    a.label(Lns)
    a("s_mov_b64 exec, -1")
    st()

    def signal(vd, vz, soff, op="add", val="1"):
        a("v_cmp_eq_u32 vcc, 0, v1")
        a("s_and_saveexec_b64 s[30:31], vcc")
        a("v_mov_b32 v%d, %s" % (vd, val))
        a("v_mov_b32 v%d, 0" % vz)
        a("buffer_atomic_%s v%d, v%d, s[76:79], %s offen" % (op, vd, vz, soff))
        a("s_mov_b64 exec, -1")

    def chk_ge(n):
        return lambda sr: a("s_cmp_ge_u32 s%d, %d" % (sr, n))

    def wait_init(vt, vz, sdbg):
        a("s_waitcnt vmcnt(0)")

    ACCF, BRAW, ACCS, ADR, CON = 16, 64, 140, 228, 16
    ACC2, ACC3 = 180, 140
    Lp0b = a.newlabel("U_p0b")
    Lp0c = a.newlabel("U_p0c")
    Lp0d = a.newlabel("U_p0d")
    np0 = st.n
    K = lambda c, k: CON + 11 * c + k
    a("s_cmp_lg_u32 s17, 0")
    a("s_cbranch_scc1 %s" % Lp0d)
    lds_wait(a, 18, 15, 16, 1, "U_iw", 1)
    a("ds_read_b64 v[20:21], v15 offset:16")
    a("s_lshl_b32 s24, s13, 8")
    a("v_lshlrev_b32 v19, 3, v7")
    a("s_mov_b32 s31, 0x100000")
    Lq = a.newlabel("U_xq")
    Lqd = a.newlabel("U_xqd")
    a.label(Lq)
    a("buffer_load_dwordx2 v[22:23], v19, s[76:79], s24 offen sc1")
    a("s_waitcnt vmcnt(0) lgkmcnt(0)")
    a("v_cmp_eq_u64 vcc, v[20:21], v[22:23]")
    a("s_nop 3")
    a("s_cmp_eq_u64 vcc, -1")
    a("s_cbranch_scc1 %s" % Lqd)
    a("s_sleep 2")
    a("s_sub_u32 s31, s31, 1")
    a("s_cmp_lg_u32 s31, 0")
    a("s_cbranch_scc1 %s" % Lq)
    a.label(Lqd)
    a("ds_write_b32 v15, v16 offset:4")
    a.label(Lp0d)
    srd(a, 80, P_B1, P_B1 + 1, 3072)
    a("s_mul_i32 s21, s14, 192")
    a("v_lshlrev_b32 v11, 3, v6")
    for nt in range(6):
        a("buffer_load_dwordx2 v[%d:%d], v11, s[80:83], s21 offen offset:%d" % (BRAW + 2 * nt, BRAW + 2 * nt + 1, nt * 32))

    a("v_lshrrev_b32 v10, 2, v7")
    a("v_and_b32 v11, 3, v7")
    a("v_lshrrev_b32 v12, 1, v6")
    a("v_and_b32 v13, 1, v6")
    a("v_lshlrev_b32 v12, 4, v12")
    a("v_lshl_add_u32 v12, v13, 2, v12")
    a("v_add_u32 v12, v12, v10")
    a("v_lshlrev_b32 v12, 6, v12")
    a("v_lshl_add_u32 v12, v13, 5, v12")
    a("v_lshl_add_u32 v12, v11, 3, v12")
    a("v_xor_b32 v13, 32, v12")
    a("s_lshl_b32 s20, s17, 12")
    for sl in range(NS):
        a("s_add_u32 s21, s20, %d" % (sl * SLOT))
        a("v_add_u32 v%d, s21, v8" % (ADR + 6 * sl))
        a("v_add_u32 v%d, s21, v9" % (ADR + 6 * sl + 1))
        a("v_add_u32 v%d, %d, v12" % (ADR + 6 * sl + 2, sl * SLOT + 16384))
        a("v_add_u32 v%d, %d, v13" % (ADR + 6 * sl + 3, sl * SLOT + 16384))
        a("v_add_u32 v%d, %d, v8" % (ADR + 6 * sl + 4, sl * SLOT + 16384))
        a("v_add_u32 v%d, %d, v9" % (ADR + 6 * sl + 5, sl * SLOT + 16384))
    a("v_lshlrev_b32 v5, 2, v7")
    a("s_waitcnt lgkmcnt(0)")

    def nsub(s):
        return 4 if 20 <= s < 32 else 2

    def fbase(s, sset):
        if s < 20:
            return 76 + 32 * sset
        if s < 32:
            return 76 + 24 * sset
        return (16, 76)[sset]

    def reads(s, sub, sset):
        sl = s % NS
        A = ADR + 6 * sl
        b0 = fbase(s, sset)
        out = []
        if s < 10:
            b = b0
            for k, i in [("N", 0), ("T", 0), ("T", 1), ("N", 1), ("N", 2), ("N", 3), ("N", 4), ("N", 5)]:
                if k == "T":
                    out.append("ds_read_b128 v[%d:%d], v%d offset:%d" % (b + 4 * i, b + 4 * i + 3, A + sub, i * 2048))
                else:
                    o = (i >> 1) * 4096 + sub * 2048
                    r = b + 8 + 4 * i
                    out.append("ds_read_b64_tr_b16 v[%d:%d], v%d offset:%d" % (r, r + 1, A + 2 + (i & 1), o))
                    out.append("ds_read_b64_tr_b16 v[%d:%d], v%d offset:%d" % (r + 2, r + 3, A + 2 + (i & 1), o + 512))
        elif s < 20:
            b = b0
            for k, i in [("N", 0), ("T", 0), ("T", 1), ("N", 1), ("N", 2), ("N", 3), ("N", 4)]:
                if k == "T":
                    out.append("ds_read_b128 v[%d:%d], v%d offset:%d" % (b + 4 * i, b + 4 * i + 3, A + sub, i * 2048))
                else:
                    out.append("ds_read_b128 v[%d:%d], v%d offset:%d" % (b + 8 + 4 * i, b + 11 + 4 * i, A + 4 + sub, i * 2048))
        else:
            steps = [(sub >> 1, sub & 1, b0)] if s < 32 else [(sub, 0, b0), (sub, 1, b0 + 24)]
            for (sb, ks, b) in steps:
                so = sb * SUB
                for k, i in [("D", 0), ("T", 0), ("D", 1), ("D", 2), ("D", 3), ("D", 4)]:
                    if k == "T":
                        if s < 32:
                            out.append("ds_read_b128 v[%d:%d], v%d offset:%d" % (b, b + 3, A + ks, so))
                        else:
                            out.append("ds_read_b64_tr_b16 v[%d:%d], v%d offset:%d" % (b, b + 1, A + 2, so + ks * 4096))
                            out.append("ds_read_b64_tr_b16 v[%d:%d], v%d offset:%d" % (b + 2, b + 3, A + 2, so + ks * 4096 + 512))
                    else:
                        out.append("ds_read_b128 v[%d:%d], v%d offset:%d" % (b + 4 + 4 * i, b + 7 + 4 * i, A + 4 + ks, so + i * 2048))
        return out

    def mf(d, av, bv, first):
        return "v_mfma_f32_16x16x32_bf16 v[%d:%d], v[%d:%d], v[%d:%d], %s" % (
            d, d + 3, av, av + 3, bv, bv + 3, "0" if first else "v[%d:%d]" % (d, d + 3))

    def mfmas(s, sub, sset):
        out = []
        b = fbase(s, sset)
        if s < 10:
            for nt in range(6):
                for j in range(2):
                    out.append(mf(ACCF + (j * 6 + nt) * 4, b + 8 + 4 * nt, b + 4 * j, s == 0 and sub == 0))
        elif s < 20:
            for c in range(5):
                for j in range(2):
                    out.append(mf(ACCS + (c * 2 + j) * 4, b + 4 * j, b + 8 + 4 * c, s == 10 and sub == 0))
        elif s < 32:
            for dt in range(5):
                out.append(mf(ACC2 + dt * 4, b + 4 + 4 * dt, b, s == 20 and sub == 0))
        else:
            for ks in range(2):
                for dt in range(5):
                    out.append(mf(ACC3 + dt * 4, b + 24 * ks + 4 + 4 * dt, b + 24 * ks, s == 32 and sub == 0 and ks == 0))
        return out

    class BG:
        def __init__(self):
            self.q = []
            self.cur = None

        def __call__(self, line):
            Asm()(line)
            if self.cur is not None:
                self.cur.append("    " + line)
            else:
                self.q.append(["    " + line])

        def label(self, name):
            self.cur.append(name + ":")

        def newlabel(self, p):
            return a.newlabel(p)

        def begin(self):
            self.cur = []

        def end(self):
            self.q.append(self.cur)
            self.cur = None

        def bar(self, n=1):
            self.q.append(("BAR", n))

        def at(self, s):
            self.q.append(("AT", s))

        def emit(self, budget, s):
            while self.q and budget > 0:
                h = self.q[0]
                if isinstance(h, tuple):
                    if h[0] == "AT" and s >= h[1]:
                        self.q.pop(0)
                        continue
                    return
                a.lines += h
                budget -= len(h)
                self.q.pop(0)

        def barrier_passed(self):
            if self.q and isinstance(self.q[0], tuple) and self.q[0][0] == "BAR":
                n = self.q[0][1] - 1
                self.q.pop(0)
                if n > 0:
                    self.q.insert(0, ("BAR", n))
    b = BG()

    def bsignal(vd, vz, soff, op="add", val="1"):
        b("v_cmp_eq_u32 vcc, 0, v1")
        b("s_and_saveexec_b64 s[30:31], vcc")
        b("v_mov_b32 v%d, %s" % (vd, val))
        b("v_mov_b32 v%d, 0" % vz)
        b("buffer_atomic_%s v%d, v%d, s[76:79], %s offen" % (op, vd, vz, soff))
        b("s_mov_b64 exec, -1")
        b("s_nop 3")

    b.at(10)
    b("s_waitcnt vmcnt(0)")
    b("s_lshl_b32 s24, s13, 1")
    b("s_add_u32 s24, s24, s19")
    b("s_lshl_b32 s29, s24, 8")
    b("s_add_u32 s29, s29, %d" % F_H1)
    b("s_mul_i32 s24, s24, 196608")
    b("s_mul_i32 s25, s14, 12288")
    b("s_add_u32 s24, s24, s25")
    b("s_lshl_b32 s25, s18, 11")
    b("s_add_u32 s24, s24, s25")
    b("s_add_u32 s24, s24, %d" % WS_H1)
    b.begin()
    srd_off(b, 20, 10, 11, "s24", 12288)
    b.end()
    b("v_lshrrev_b32 v10, 2, v7")
    b("v_and_b32 v11, 3, v7")
    b("v_lshl_add_u32 v10, v10, 3, v11")
    b("v_lshlrev_b32 v10, 6, v10")
    b("v_lshl_add_u32 v10, v6, 4, v10")
    b("s_mov_b32 s24, 0xffff0000")
    b("s_mov_b32 s25, 0x00003f80")
    b("s_mov_b32 s26, %s" % fh(-2 * math.sqrt(2 / math.pi) * LOG2E * 0.044715))
    b("s_mov_b32 s27, s26")
    b("s_mov_b32 s28, 0x3f800000")
    b("v_mov_b32 v12, %s" % fh(-2 * math.sqrt(2 / math.pi) * LOG2E))
    b("v_mov_b32 v13, v12")
    BF, DST, TMP = 180, 188, 212
    for aa in range(3):
        for i in range(4):
            b("v_lshlrev_b32 v%d, 16, v%d" % (BF + 2 * i, BRAW + 4 * aa + i))
            b("v_and_b32 v%d, s24, v%d" % (BF + 2 * i + 1, BRAW + 4 * aa + i))
        d0 = DST + 8 * aa
        units = [(ACCF + (j * 6 + 2 * aa) * 4, ACCF + (j * 6 + 2 * aa + 1) * 4, BF, d0 + 4 * j) for j in range(2)]
        gelu_units(b, units, TMP, 12, 26, 25, 28, 24)
        b("s_mov_b32 s88, %d" % (aa * 4096))
        for j in range(2):
            b("buffer_store_dwordx4 v[%d:%d], v10, s[20:23], s88 offen offset:%d sc1" % (d0 + 4 * j, d0 + 4 * j + 3, j * 256))
    b("v_mul_u32_u24 v14, 48, v7")
    b("v_add_u32 v14, %d, v14" % (MISC + 2048))
    b("s_mul_i32 s20, s17, 2560")
    b("s_add_u32 s20, s20, %d" % (MISC + 6144))
    b("v_lshl_add_u32 v13, v1, 3, s20")
    for c in range(5):
        for k in range(8):
            b("ds_read_b32 v%d, v14 offset:%d" % (K(c, k), c * 768 + k * 4))
        b("ds_read_b32 v%d, v13 offset:%d" % (K(c, 8), c * 512))
        b("ds_read_b32 v%d, v13 offset:%d" % (K(c, 9), c * 512 + 4))
    b.bar(BARH1)
    b.begin()
    b("s_waitcnt vmcnt(0)")
    bsignal(10, 11, "s29")
    b.end()
    b.bar(1)
    EB = MISC + 6144
    b("s_mul_i32 s20, s17, 1280")
    b("s_add_u32 s20, s20, %d" % EB)
    b("v_lshl_add_u32 v13, v1, 2, s20")
    b("v_mov_b32 v12, 0")
    for i in range(5):
        b("ds_write_b32 v13, v12 offset:%d" % (i * 256))

    b.at(20)
    G = lambda c, i: ACCS + c * 8 + i
    EQ = lambda c, q: 200 + 4 * c + q
    EWL = list(range(124, 140)) + list(range(220, 224))
    EW = lambda c, q: EWL[4 * c + q]
    TM = 71
    for i in range(8):
        for c in range(5):
            b("v_mul_f32 v%d, v%d, v%d" % (TM + c, K(c, 2), G(c, i)))
        for c in range(5):
            b("v_fmac_f32_dpp v%d, v%d, v%d %s" % (TM + c, G(c, i), K(c, 3), DPP8))
        if i == 0:
            for c in range(5):
                b("v_mov_b32 v%d, v%d" % (G(c, 0), TM + c))
        else:
            for c in range(5):
                b("v_fma_f32 v%d, v%d, v%d, v%d" % (G(c, i), K(c, 0), G(c, i - 1), TM + c))
            for c in range(5):
                b("v_fmac_f32_dpp v%d, v%d, v%d %s" % (G(c, i), G(c, i - 1), K(c, 1), DPP8))
    for q in range(4):
        b("v_add_u32 v%d, %d, v5" % (10 + q, q * 64))
    for q in range(4):
        for c in range(5):
            b("ds_bpermute_b32 v%d, v%d, v%d" % (EQ(c, q), 10 + q, G(c, 7)))
    b("s_waitcnt lgkmcnt(0)")
    cmul_add(b, [(EW(c, 1), K(c, 4), K(c, 5), EQ(c, 0), EQ(c, 1)) for c in range(5)])
    for q in range(2, 4):
        cmul_add(b, [(EW(c, q), K(c, 4), K(c, 5), EW(c, q - 1), EQ(c, q)) for c in range(5)])
    b("s_mul_i32 s20, s17, 320")
    b("s_add_u32 s20, s20, %d" % (MISC + 256))
    b("v_add_u32 v%d, s20, v5" % TM)
    for c in range(5):
        b("ds_write_b32 v%d, v%d offset:%d" % (TM, EW(c, 3), c * 64))
    b.bar(1)
    if L2T:
        b("s_lshr_b32 s20, s2, 6")
        b("s_lshl_b32 s20, s20, 2")
        b("s_add_u32 s20, s20, s17")
        b("s_mul_i32 s20, s20, 12288")
        b("s_mul_i32 s21, s15, 196608")
        b("s_add_u32 s20, s20, s21")
        b("s_add_u32 s20, s20, %d" % WS_H1)
        b.begin()
        srd_off(b, 64, 10, 11, "s20", 12288)
        b.end()
        b("v_lshlrev_b32 v224, 7, v1")
        b("s_movk_i32 s21, 8192")
        b("buffer_load_dword v225, v224, s[64:67], 0 offen sc1")
        b("buffer_load_dword v226, v224, s[64:67], s21 offen sc1")
        b("s_lshr_b32 s20, s2, 3")
        b("s_and_b32 s20, s20, 7")
        b("s_lshl_b32 s20, s20, 2")
        b("s_add_u32 s20, s20, s17")
        b("s_mul_i32 s22, s20, 7680")
        b("s_mul_i32 s21, s16, 245760")
        b("s_add_u32 s22, s22, s21")
        b("s_add_u32 s22, s22, %d" % WS_W2T)
        b.begin()
        srd_off(b, 64, 10, 11, "s22", 7680)
        b.end()
        b("buffer_load_dword v227, v224, s[64:67], 0 offen sc1")
    b("v_add_u32 v%d, %d, v5" % (TM, MISC + 256))
    for w in range(4):
        for c in range(5):
            b("ds_read_b32 v%d, v%d offset:%d" % (EW(c, w), TM, w * 320 + c * 64))
    b("s_mul_i32 s20, s14, 5120")
    b("s_add_u32 s20, s20, %d" % WS_ET)
    b.begin()
    srd_off(b, 68, 10, 11, "s20", 5120)
    b.end()
    b("s_waitcnt lgkmcnt(0)")
    for w in range(1, 4):
        cmul_add(b, [(EW(c, w), K(c, 6), K(c, 7), EW(c, w - 1), EW(c, w)) for c in range(5)])
    b.begin()
    Lnp = a.newlabel("U_nopub")
    b("s_cmp_lg_u32 s17, 0")
    b("s_cbranch_scc1 %s" % Lnp)
    b("s_mul_i32 s20, s13, 320")
    b("v_cmp_gt_u32 vcc, 16, v1")
    b("s_and_saveexec_b64 s[30:31], vcc")
    for c in range(5):
        b("buffer_store_dword v%d, v5, s[68:71], s20 offen offset:%d sc1" % (EW(c, 3), c * 64))
    b("s_mov_b64 exec, -1")
    b("s_nop 3")
    b.label(Lnp)
    b.end()
    for w in range(1, 4):
        b.begin()
        b("s_cmp_eq_u32 s17, %d" % w)
        b("s_cselect_b64 s[%d:%d], -1, 0" % (80 + 2 * w, 81 + 2 * w))
        b.end()
    for c in range(5):
        b("v_cndmask_b32 v%d, 0, v%d, s[82:83]" % (K(c, 10), EW(c, 0)))
    for c in range(5):
        b("v_cndmask_b32 v%d, v%d, v%d, s[84:85]" % (K(c, 10), K(c, 10), EW(c, 1)))
    for c in range(5):
        b("v_cndmask_b32 v%d, v%d, v%d, s[86:87]" % (K(c, 10), K(c, 10), EW(c, 2)))
    cmul_add(b, [(EW(c, 0), K(c, 4), K(c, 5), K(c, 10), EQ(c, 0)) for c in range(5)])
    for q in range(1, 3):
        cmul_add(b, [(EW(c, q), K(c, 4), K(c, 5), EW(c, q - 1), EQ(c, q)) for c in range(5)])
    b.begin()
    Lnp = a.newlabel("U_nosig")
    b("s_cmp_lg_u32 s17, 0")
    b("s_cbranch_scc1 %s" % Lnp)
    b("s_waitcnt vmcnt(0)")
    b("s_lshl_b32 s20, 1, s13")
    b("s_lshl_b32 s21, s14, 8")
    b("s_add_u32 s21, s21, %d" % F_E)
    bsignal(TM, TM + 1, "s21", "or", "s20")
    b.label(Lnp)
    b.end()
    b("v_cmp_eq_u32 s[82:83], 1, v6")
    b("v_cmp_eq_u32 s[84:85], 2, v6")
    b("v_cmp_eq_u32 s[86:87], 3, v6")
    b("s_nop 1")
    for q in range(3):
        for c in range(5):
            b("v_cndmask_b32 v%d, v%d, v%d, s[%d:%d]" % (K(c, 10), K(c, 10), EW(c, q), 82 + 2 * q, 83 + 2 * q))
    for c in range(5):
        for k in range(4):
            b("ds_read_b32 v%d, v14 offset:%d" % (K(c, 4 + k), c * 768 + 32 + k * 4))
    b("s_lshl_b32 s20, s13, 1")
    b("s_add_u32 s20, s20, s19")
    b("s_lshl_b32 s29, s20, 8")
    b("s_add_u32 s29, s29, %d" % F_HT)
    b("s_mul_i32 s20, s20, 163840")
    b("s_mul_i32 s21, s18, 81920")
    b("s_add_u32 s20, s20, s21")
    b("s_add_u32 s20, s20, %d" % WS_HT)
    b.begin()
    srd_off(b, 72, 10, 11, "s20", 81920)
    b.end()
    b("v_lshrrev_b32 v%d, 3, v7" % TM)
    b("v_mul_u32_u24 v%d, 640, v%d" % (TM + 1, TM))
    b("v_add_u32 v%d, v%d, v3" % (TM + 1, TM + 1))
    b("v_lshlrev_b32 v%d, 6, v%d" % (TM + 1, TM + 1))
    b("v_lshl_add_u32 v%d, v6, 4, v%d" % (TM + 1, TM + 1))
    b("v_mul_u32_u24 v%d, 0x8000, v%d" % (TM, TM))
    b("v_lshl_add_u32 v%d, v%d, 16, v%d" % (TM, TM, TM))
    b("s_mul_i32 s20, s14, 2560")
    b("v_lshl_add_u32 v%d, v6, 2, s13" % (TM + 2))
    b("v_mul_u32_u24 v%d, 320, v%d" % (TM + 2, TM + 2))
    b("v_add_u32 v%d, v%d, v5" % (TM + 2, TM + 2))
    b("v_add_u32 v%d, %d, v%d" % (TM + 2, EB, TM + 2))
    b.at(ESTAGE + 0.5)
    for e in range(4):
        for c in range(5):
            b("ds_read_b32 v%d, v%d offset:%d" % (EW(c, e), TM + 2, e * 320 + c * 64))
    b("s_waitcnt lgkmcnt(0)")
    for e in range(1, 4):
        cmul_add(b, [(EW(c, e), K(c, 4), K(c, 5), EW(c, e - 1), EW(c, e)) for c in range(5)])
    b("s_nop 0")
    for c in range(5):
        for q in range(4):
            b("ds_bpermute_b32 v%d, v%d, v%d" % (EQ(c, q), 10 + q, EW(c, 3)))
    b("s_waitcnt lgkmcnt(0)")
    for q in range(1, 4):
        cmul_add(b, [(EQ(c, q), K(c, 6), K(c, 7), EQ(c, q - 1), EQ(c, q)) for c in range(5)])
    cmul_add(b, [(K(c, 10), K(c, 8), K(c, 9), EQ(c, 3), K(c, 10)) for c in range(5)])
    CC = lambda c, i: 124 + 2 * c + i
    for i in range(8):
        cmul_add(b, [(CC(c, i & 1), K(c, 0), K(c, 1), K(c, 10) if i == 0 else CC(c, (i - 1) & 1), None) for c in range(5)])
        if i & 1:
            for c in range(5):
                u = G(c, i - 1)
                b("v_pk_add_f32 v[%d:%d], v[%d:%d], v[%d:%d]" % (u, u + 1, u, u + 1, CC(c, 0), CC(c, 1)))
    for c in range(5):
        for j in range(4):
            b("v_cvt_pk_bf16_f32 v%d, v%d, v%d" % (EQ(c, j), G(c, 2 * j), G(c, 2 * j + 1)))
    for c in range(5):
        for j in range(4):
            b("v_xor_b32 v%d, v%d, v%d" % (EQ(c, j), TM, EQ(c, j)))
        b("buffer_store_dwordx4 v[%d:%d], v%d, s[72:75], s20 offen offset:%d sc1" % (EQ(c, 0), EQ(c, 3), TM + 1, c * 512))
    b("s_lshl_b32 s21, s15, 6")
    b("s_lshl_b32 s22, s17, 4")
    b("s_add_u32 s21, s21, s22")
    b("s_mul_i32 s22, s21, 1280")
    b("s_mul_i32 s23, s16, 160")
    b("s_add_u32 s22, s22, s23")
    b.begin()
    srd(b, 80, P_OUT, P_OUT + 1, 2048 * 2560)
    b.end()
    b("v_mul_u32_u24 v15, 2560, v7")
    b("v_lshl_add_u32 v15, v6, 4, v15")
    b("s_lshl_b32 s27, s22, 1")
    b("s_mov_b32 s20, 0xffff0000")
    b("s_mov_b32 s21, 0x00003f80")
    b("s_mov_b32 s26, 0x3f800000")
    b("s_mov_b32 s88, %s" % fh(-LOG2E))
    b("s_mov_b32 s89, s88")
    b("v_lshlrev_b32 v14, 3, v6")
    b("v_add_u32 v14, %d, v14" % (MISC + 1536))
    b("s_mul_i32 s22, s17, 2560")
    b("s_add_u32 s22, s22, %d" % (2 * SLOT))
    b("v_mul_u32_u24 v10, 160, v7")
    b("v_lshl_add_u32 v10, v6, 3, v10")
    b("v_add_u32 v10, s22, v10")
    b.bar(BARHT)
    b.begin()
    b("s_waitcnt vmcnt(0)")
    bsignal(12, 13, "s29")
    b.end()
    if L2T:
        b("s_lshr_b32 s22, s2, 3")
        b("s_and_b32 s22, s22, 7")
        b("s_lshl_b32 s22, s22, 1")
        b("s_add_u32 s22, s22, s18")
        b("s_mul_i32 s22, s22, 6400")
        b("s_mul_i32 s23, s16, 102400")
        b("s_add_u32 s22, s22, s23")
        b.begin()
        b("s_cmp_eq_u32 s19, 0")
        b("s_cselect_b32 s24, s%d, s%d" % (P_CRE, P_CIM))
        b("s_cselect_b32 s25, s%d, s%d" % (P_CRE + 1, P_CIM + 1))
        srd_off(b, 64, 24, 25, "s22", 6400)
        b.end()
        b("buffer_load_dword v225, v224, s[64:67], 0 offen")
    T0, T1, PK = 160, 200, 64
    DFL = list(range(124, 140)) + list(range(220, 224))
    b.at(32.5)
    for dt in range(5):
        b("ds_read_b64 v[%d:%d], v14 offset:%d" % (PK + 2 * dt, PK + 2 * dt + 1, dt * 32))
        b("ds_read_b64 v[%d:%d], v14 offset:%d" % (T0 + 2 * dt, T0 + 2 * dt + 1, 256 + dt * 32))
    b("s_waitcnt lgkmcnt(0)")
    for i in range(10):
        b("v_lshlrev_b32 v%d, 16, v%d" % (T1 + 2 * i, PK + i))
        b("v_and_b32 v%d, s20, v%d" % (T1 + 2 * i + 1, PK + i))
        b("v_lshlrev_b32 v%d, 16, v%d" % (DFL[2 * i], T0 + i))
        b("v_and_b32 v%d, s20, v%d" % (DFL[2 * i + 1], T0 + i))
    for i in range(10):
        b("v_cvt_pk_bf16_f32 v%d, v%d, v%d" % (PK + i, ACC2 + 2 * i, ACC2 + 2 * i + 1))
    for i in range(10):
        b("v_dot2_f32_bf16 v%d, v%d, s21, v%d" % (ACC2 + 2 * i, PK + i, T1 + 2 * i))
        b("v_dot2_f32_bf16 v%d, v%d, s26, v%d" % (ACC2 + 2 * i + 1, PK + i, T1 + 2 * i + 1))
    b("s_nop 1")
    for i in range(10):
        b("v_cvt_pk_bf16_f32 v%d, v%d, v%d" % (PK + i, ACC2 + 2 * i, ACC2 + 2 * i + 1))
    for i in range(10):
        b("v_lshlrev_b32 v%d, 16, v%d" % (ACC2 + 2 * i, PK + i))
        b("v_and_b32 v%d, s20, v%d" % (ACC2 + 2 * i + 1, PK + i))
    for i in range(10):
        b("v_pk_mul_f32 v[%d:%d], v[%d:%d], s[88:89]" % (T0 + 2 * i, T0 + 2 * i + 1, ACC2 + 2 * i, ACC2 + 2 * i + 1))
    for i in range(20):
        b("v_exp_f32 v%d, v%d" % (T0 + i, T0 + i))
    b("s_nop 0")
    for i in range(10):
        b("v_pk_add_f32 v[%d:%d], v[%d:%d], 1.0" % (T0 + 2 * i, T0 + 2 * i + 1, T0 + 2 * i, T0 + 2 * i + 1))
    for i in range(20):
        b("v_rcp_f32 v%d, v%d" % (T0 + i, T0 + i))
    b("s_nop 0")
    for i in range(10):
        b("v_pk_mul_f32 v[%d:%d], v[%d:%d], v[%d:%d]" % (ACC2 + 2 * i, ACC2 + 2 * i + 1, ACC2 + 2 * i, ACC2 + 2 * i + 1, T0 + 2 * i, T0 + 2 * i + 1))
    for i in range(10):
        b("v_cvt_pk_bf16_f32 v%d, v%d, v%d" % (PK + i, ACC2 + 2 * i, ACC2 + 2 * i + 1))
    for i in range(10):
        b("v_lshlrev_b32 v%d, 16, v%d" % (T0 + 2 * i, PK + i))
        b("v_and_b32 v%d, s20, v%d" % (T0 + 2 * i + 1, PK + i))
    b.at(41.5)
    RX, RN = 200, 64
    for dt in range(5):
        b("ds_read_b64 v[%d:%d], v10 offset:%d" % (RN + 2 * dt, RN + 2 * dt + 1, 10240 + dt * 32))
    for dt in range(5):
        b("ds_read_b64 v[%d:%d], v10 offset:%d" % (RX + 2 * dt, RX + 2 * dt + 1, dt * 32))
    b("s_waitcnt lgkmcnt(0)")
    for i in range(10):
        b("v_lshlrev_b32 v%d, 16, v%d" % (ACC2 + 2 * i, RN + i))
        b("v_and_b32 v%d, s20, v%d" % (ACC2 + 2 * i + 1, RN + i))
    for i in range(10):
        b("v_pk_mul_f32 v[%d:%d], v[%d:%d], v[%d:%d]" % (ACC2 + 2 * i, ACC2 + 2 * i + 1, ACC2 + 2 * i, ACC2 + 2 * i + 1, DFL[2 * i], DFL[2 * i + 1]))
    for i in range(10):
        b("v_cvt_pk_bf16_f32 v%d, v%d, v%d" % (RN + i, ACC2 + 2 * i, ACC2 + 2 * i + 1))
    for i in range(10):
        b("v_lshlrev_b32 v%d, 16, v%d" % (ACC2 + 2 * i, RN + i))
        b("v_and_b32 v%d, s20, v%d" % (ACC2 + 2 * i + 1, RN + i))
    for i in reversed(range(10)):
        b("v_and_b32 v%d, s20, v%d" % (T1 + 2 * i + 1, RX + i))
        b("v_lshlrev_b32 v%d, 16, v%d" % (T1 + 2 * i, RX + i))

    def p23_addr():
        t0, t1, t2 = 10, 11, 12
        a("v_lshrrev_b32 v%d, 2, v7" % t0)
        a("v_and_b32 v%d, 3, v7" % t1)
        a("v_lshl_add_u32 v%d, v6, 3, v%d" % (t2, t0))
        a("v_lshlrev_b32 v%d, 7, v%d" % (t2, t2))
        a("v_lshl_add_u32 v%d, v%d, 3, v%d" % (t2, t1, t2))
        a("v_lshrrev_b32 v%d, 1, v%d" % (t0, t0))
        a("v_and_b32 v%d, 1, v6" % t1)
        a("v_lshl_add_u32 v%d, v%d, 1, v%d" % (t0, t1, t0))
        a("v_xor_b32 v%d, s17, v%d" % (t0, t0))
        a("v_lshl_add_u32 v%d, v%d, 5, v%d" % (t2, t0, t2))
        a("s_lshl_b32 s20, s17, 11")
        for sl in range(NS):
            a("s_add_u32 s21, s20, %d" % (sl * SLOT))
            a("v_add_u32 v%d, s21, v8" % (ADR + 6 * sl))
            a("v_add_u32 v%d, s21, v9" % (ADR + 6 * sl + 1))
            a("v_add_u32 v%d, %d, v%d" % (ADR + 6 * sl + 2, sl * SLOT, t2))
            a("v_add_u32 v%d, %d, v8" % (ADR + 6 * sl + 4, sl * SLOT + 8192))
            a("v_add_u32 v%d, %d, v9" % (ADR + 6 * sl + 5, sl * SLOT + 8192))

    def rate(s):
        if s < 20:
            return RATE1
        if s < 32:
            return RATE2
        return RATE3

    def run(s0, s1):
        st()
        a("s_waitcnt lgkmcnt(0)")
        a("s_barrier")
        b.barrier_passed()
        st()
        for r in reads(s0, 0, 0):
            a(r)
        for s in range(s0, s1):
            n = nsub(s)
            for sub in range(n):
                cur = sub & 1
                pos = s
                a("s_waitcnt lgkmcnt(0)")
                if sub == n - 1:
                    a("s_barrier")
                    b.barrier_passed()
                    pos = s + 0.5
                    if s == 31:
                        assert b.q[0] == ("AT", 32.5), b.q[0]
                    if os.environ.get("BGDBG"):
                        print("after B_%d: queue len %d head %s" % (s, len(b.q), b.q[0] if b.q else None))
                    if STAMP and s % 2 == 1:
                        st()
                    rs = reads(s + 1, 0, 1 - cur) if s + 1 < s1 else []
                else:
                    rs = reads(s, sub + 1, 1 - cur)
                per, burst = rate(s)
                ms = mfmas(s, sub, cur)
                ri = 0
                step = max(1, -(-len(rs) // len(ms)))
                for m in ms:
                    a(m)
                    for r in rs[ri:ri + step]:
                        a(r)
                    ri += step
                    b.emit(per, pos)
                for r in rs[ri:]:
                    a(r)
                b.emit(burst, pos)
    if CPRIO:
        a("s_setprio %d" % CPRIO)
    run(0, 20)
    b.emit(10000, 19.9)
    assert isinstance(b.q[0], tuple) and b.q[0] == ("AT", 20), b.q[0]
    p23_addr()
    a("s_nop 4")
    b.emit(PRE20, 20)
    run(20, 42)
    b.emit(10000, 42)
    assert not b.q, b.q[0]
    st()
    a("s_nop 7")
    for i in range(10):
        r = ACC3 + 2 * i
        a("v_pk_fma_f32 v[%d:%d], v[%d:%d], 2.0, v[%d:%d]" % (r, r + 1, r, r + 1, ACC2 + 2 * i, ACC2 + 2 * i + 1))
    for i in range(10):
        r = ACC3 + 2 * i
        a("v_pk_mul_f32 v[%d:%d], v[%d:%d], v[%d:%d]" % (r, r + 1, r, r + 1, T0 + 2 * i, T0 + 2 * i + 1))
    for i in range(10):
        r = ACC3 + 2 * i
        a("v_pk_add_f32 v[%d:%d], v[%d:%d], v[%d:%d]" % (r, r + 1, r, r + 1, T1 + 2 * i, T1 + 2 * i + 1))
    for dt in range(5):
        a("buffer_store_dwordx4 v[%d:%d], v15, s[80:83], s27 offen offset:%d %s" % (ACC3 + 4 * dt, ACC3 + 4 * dt + 3, dt * 64, OUTFLAG))
    st.flush()
    a("s_endpgm")

    a.label(Lld)
    st.n = n0
    vm = VM(a)
    lds_clear()
    a("s_cmp_lg_u32 s17, 0")
    a("s_cbranch_scc1 U_lp0a")
    Lni = a.newlabel("U_noinit")
    a("s_cmp_lg_u32 s2, 0")
    a("s_cbranch_scc1 %s" % Lni)
    a("v_lshlrev_b32 v18, 8, v1")
    a("v_add_u32 v18, 4096, v18")
    a("s_movk_i32 s24, 16384")
    a("buffer_store_dword v17, v18, s[76:79], 0 offen sc1")
    a("buffer_store_dword v17, v18, s[76:79], s24 offen sc1")
    a("s_waitcnt vmcnt(0)")
    a("v_mov_b32 v18, 1")
    a("buffer_store_dword v18, v17, s[92:95], 0 offen offset:8 sc1")
    a.label(Lni)
    a("s_sleep 12")
    Lq = a.newlabel("U_nq")
    Lqd = a.newlabel("U_nqd")
    a("s_mov_b32 s31, 0x100000")
    a.label(Lq)
    a("buffer_load_dwordx2 v[20:21], v17, s[92:95], 0 offen sc1")
    a("s_waitcnt vmcnt(0)")
    a("v_readfirstlane_b32 s30, v20")
    a("s_nop 3")
    a("s_cmp_lg_u32 s30, 0")
    a("s_cbranch_scc1 %s" % Lqd)
    a("s_sleep 5")
    a("s_sub_u32 s31, s31, 1")
    a("s_cmp_lg_u32 s31, 0")
    a("s_cbranch_scc1 %s" % Lq)
    a.label(Lqd)
    a("ds_write_b64 v15, v[20:21] offset:16")
    lds_wait(a, 18, 15, 0, 4, "U_ln", 2)
    a("s_sleep 8")
    a("s_movk_i32 s24, 8")
    poll(a, 18, 17, 92, "s24", chk_ge(1), "U_ini", 8)
    a("s_branch U_lp0d")
    a.label("U_lp0a")
    if TLBPF:
        Lnt = a.newlabel("U_ntlb")
        a("s_cmp_lg_u32 s17, 1")
        a("s_cbranch_scc1 %s" % Lnt)
        srd(a, 64, 10, 11, 0x2600000)
        srd(a, 68, P_OUT, P_OUT + 1, 2048 * 2560)
        a("v_lshlrev_b32 v18, 20, v1")
        a("buffer_load_dword v19, v18, s[64:67], 0 offen")
        a("buffer_load_dword v20, v18, s[68:71], 0 offen")
        a.label(Lnt)
    a("s_cmp_lt_u32 s17, 2")
    a("s_cbranch_scc1 U_lp0d")
    a("s_cmp_eq_u32 s17, 3")
    a("s_cbranch_scc1 U_lp0c")
    a("s_cmp_ge_u32 s2, 240")
    a("s_cbranch_scc1 U_lp0d")
    if TRLATE:
        lds_wait(a, 18, 15, 0, 4, "U_ln", 2)
    a("s_mul_hi_u32 s28, s2, 0x%x" % ((1 << 32) // 24 + 1))
    a("s_mul_i32 s29, s28, 24")
    a("s_sub_u32 s29, s2, s29")
    a("s_mul_i32 s22, s29, %d" % (64 * 1280))
    a("s_lshl_b32 s23, s28, 7")
    a("s_add_u32 s22, s22, s23")
    a("v_lshrrev_b32 v18, 2, v3")
    a("v_and_b32 v19, 3, v3")
    a("v_lshlrev_b32 v18, 5, v18")
    a("v_lshl_add_u32 v18, v19, 2, v18")
    a("v_mul_u32_u24 v18, 1280, v18")
    a("v_lshl_add_u32 v18, v2, 4, v18")
    srd(a, 72, P_W2, P_W2 + 1, 1536 * 1280)
    for j in range(8):
        a("s_add_u32 s24, s22, %d" % ((j if j < 4 else 12 + j) * 1280))
        a("buffer_load_dwordx4 v[%d:%d], v18, s[72:75], s24 offen" % (180 + 4 * j, 183 + 4 * j))
    a("v_mul_u32_u24 v11, %d, v2" % (8 * 3072))
    a("v_lshl_add_u32 v11, v3, 4, v11")
    a("s_mul_i32 s23, s28, %d" % (64 * 3072))
    a("s_lshl_b32 s24, s29, 7")
    a("s_add_u32 s23, s23, s24")
    srd_off(a, 68, 10, 11, WS_W2T, 640 * 3072)
    a("s_mov_b32 s26, 0x05040100")
    a("s_mov_b32 s27, 0x07060302")
    a("s_waitcnt vmcnt(0)")
    for i in range(8):
        for m in range(4):
            a("v_perm_b32 v%d, v%d, v%d, s%d" % (212 + 4 * i + m, 180 + 4 * (2 * m + 1) + (i >> 1), 180 + 4 * (2 * m) + (i >> 1), 26 + (i & 1)))
    for i in range(8):
        a("s_add_u32 s24, s23, %d" % (i * 3072))
        a("buffer_store_dwordx4 v[%d:%d], v11, s[68:71], s24 offen sc1" % (212 + 4 * i, 215 + 4 * i))
    a("s_branch U_lp0d")
    a.label("U_lp0c")
    srd(a, 64, P_LRE, P_LRE + 1, 1280)
    srd(a, 68, P_LIM, P_LIM + 1, 1280)
    srd(a, 72, P_LDT, P_LDT + 1, 1280)
    a("s_mul_i32 s20, s14, 80")
    a("v_lshlrev_b32 v18, 1, v3")
    for c in range(5):
        a("buffer_load_ushort v%d, v18, s[64:67], s20 offen offset:%d" % (160 + 3 * c, c * 16))
        a("buffer_load_ushort v%d, v18, s[68:71], s20 offen offset:%d" % (160 + 3 * c + 1, c * 16))
        a("buffer_load_ushort v%d, v18, s[72:75], s20 offen offset:%d" % (160 + 3 * c + 2, c * 16))
    T = 160
    a("v_and_b32 v12, 8, v7")
    a("v_lshlrev_b32 v12, 28, v12")
    a("v_xor_b32 v12, 0x80000000, v12")
    a("v_lshlrev_b32 v13, 3, v6")
    a("v_cvt_f32_u32 v13, v13")
    a("v_mul_u32_u24 v10, 48, v7")
    a("v_add_u32 v10, %d, v10" % (MISC + 2048))
    a("v_lshlrev_b32 v11, 3, v1")
    a("v_add_u32 v11, %d, v11" % (MISC + 6144))
    a("s_waitcnt vmcnt(0)")
    ZR, ZI, W0 = 96, 101, 108
    CT = lambda c, k: 180 + 12 * c + k

    def cpow_all(n, dst):
        ns = n if isinstance(n, str) else fh(n)
        for c in range(5):
            t = W0 + 4 * c
            a("v_mul_f32 v%d, %s, v%d" % (t, ns, ZR + c))
            a("v_mul_f32 v%d, %s, v%d" % (t + 1, ns, ZI + c))
            a("v_exp_f32 v%d, v%d" % (t, t))
            a("v_fract_f32 v%d, v%d" % (t + 1, t + 1))
            a("v_cos_f32 v%d, v%d" % (t + 2, t + 1))
            a("v_sin_f32 v%d, v%d" % (t + 3, t + 1))
        a("s_nop 0")
        for c in range(5):
            t = W0 + 4 * c
            a("v_mul_f32 v%d, v%d, v%d" % (dst(c), t, t + 2))
            a("v_mul_f32 v%d, v%d, v%d" % (dst(c) + 1, t, t + 3))
    for c in range(5):
        lre, lim, ldt = T + 3 * c, T + 3 * c + 1, T + 3 * c + 2
        a("v_lshlrev_b32 v%d, 16, v%d" % (lre, lre))
        a("v_lshlrev_b32 v%d, 16, v%d" % (lim, lim))
        a("v_lshlrev_b32 v%d, 16, v%d" % (ldt, ldt))
        a("v_mul_f32 v%d, %s, v%d" % (ldt, fh(LOG2E), ldt))
        a("v_exp_f32 v%d, v%d" % (ldt, ldt))
        a("s_nop 0")
        a("v_cvt_pk_bf16_f32 v%d, v%d, v%d" % (ldt, ldt, ldt))
        a("v_and_b32 v%d, 0xffff0000, v%d" % (ldt, ldt))
        a("v_mul_f32 v%d, v%d, v%d" % (ZR + c, ldt, lre))
        a("v_mul_f32 v%d, v%d, v%d" % (ZI + c, ldt, lim))
        a("v_mul_f32 v%d, %s, v%d" % (ZR + c, fh(LOG2E), ZR + c))
        a("v_mul_f32 v%d, 0.15915494, v%d" % (ZI + c, ZI + c))
    cpow_all(1.0, lambda c: CT(c, 0))
    for c in range(5):
        lre, lim = T + 3 * c, T + 3 * c + 1
        t = W0 + 4 * c
        a("v_add_f32 v%d, -1.0, v%d" % (t, CT(c, 0)))
        a("v_mul_f32 v%d, v%d, v%d" % (t + 1, lre, lre))
        a("v_fmac_f32 v%d, v%d, v%d" % (t + 1, lim, lim))
        a("v_rcp_f32 v%d, v%d" % (t + 2, t + 1))
        a("s_nop 0")
        a("v_fma_f32 v%d, -v%d, v%d, 1.0" % (t + 3, t + 1, t + 2))
        a("v_fma_f32 v%d, v%d, v%d, v%d" % (t + 2, t + 3, t + 2, t + 2))
        a("v_mul_f32 v%d, v%d, v%d" % (CT(c, 2), t, lre))
        a("v_fmac_f32 v%d, v%d, v%d" % (CT(c, 2), CT(c, 1), lim))
        a("v_mul_f32 v%d, v%d, v%d" % (CT(c, 3), CT(c, 1), lre))
        a("v_fma_f32 v%d, -v%d, v%d, v%d" % (CT(c, 3), t, lim, CT(c, 3)))
        a("v_mul_f32 v%d, v%d, v%d" % (CT(c, 2), CT(c, 2), t + 2))
        a("v_mul_f32 v%d, v%d, v%d" % (CT(c, 3), CT(c, 3), t + 2))
    for n, k in ((8.0, 4), (32.0, 6), (128.0, 8), (512.0, 10)):
        cpow_all(n, lambda c: CT(c, k))
    for c in range(5):
        for k in (1, 3, 5, 7, 9, 11):
            a("v_xor_b32 v%d, v12, v%d" % (CT(c, k), CT(c, k)))
        for k in range(3):
            a("ds_write_b128 v10, v[%d:%d] offset:%d" % (CT(c, 4 * k), CT(c, 4 * k + 3), c * 768 + k * 16))
    for w in range(4):
        AT = lambda c: 130 + 10 * (w & 1) + 2 * c
        cpow_all("v13", AT)
        for c in range(5):
            a("v_xor_b32 v%d, v12, v%d" % (AT(c) + 1, AT(c) + 1))
            a("ds_write_b64 v11, v[%d:%d] offset:%d" % (AT(c), AT(c) + 1, w * 2560 + c * 512))
        if w < 3:
            a("v_add_f32 v13, 0x42000000, v13")
    a.label("U_lp0d")
    a("s_mul_i32 s24, s14, 192")
    srd_off(a, 68, P_W1, P_W1 + 1, "s24", 640 * 3072 - 15 * 192)
    a("v_lshrrev_b32 v10, 2, v1")
    a("v_and_b32 v11, 3, v10")
    a("v_lshrrev_b32 v12, 2, v10")
    a("v_and_b32 v12, 1, v12")
    a("v_lshrrev_b32 v13, 3, v10")
    a("v_lshl_add_u32 v11, v12, 3, v11")
    a("v_lshl_add_u32 v11, v13, 2, v11")
    a("v_mul_u32_u24 v22, 3072, v11")
    a("v_lshrrev_b32 v13, 1, v1")
    a("v_and_b32 v13, 1, v13")
    a("v_xor_b32 v13, v13, v12")
    a("v_lshl_add_u32 v22, v13, 5, v22")
    a("v_and_b32 v13, 1, v1")
    a("v_lshl_add_u32 v22, v13, 4, v22")
    a("s_mul_i32 s3, s17, %d" % (16 * 3072))
    a("s_lshl_b32 s4, s17, 10")

    def kidx(s):
        return s if s < 10 else (s - 4 if s < 14 else s - 14)

    def free_part(s):
        sl = s % NS
        if s < 10:
            for p in range(3):
                a("s_add_u32 m0, s4, %d" % (sl * SLOT + 16384 + p * 4096))
                a("s_add_u32 s6, s3, %d" % (s * 64 * 3072 + p * 64))
                a("buffer_load_dwordx4 v22, s[68:71], s6 offen lds")
            n = 3
        elif s < 20:
            for i in range(3):
                a("s_add_u32 m0, s4, %d" % (sl * SLOT + 16384 + i * 4096))
                a("s_add_u32 s6, s5, %d" % (i * 20480 + kidx(s) * 128))
                a("buffer_load_dwordx4 v5, s[72:75], s6 offen lds")
            n = 3
        else:
            for i in range(5):
                a("s_add_u32 m0, s46, %d" % (sl * SLOT + 8192 + i * 2048))
                if s < 32:
                    a("s_add_u32 s6, s7, %d" % (i * 16 * 3072 + (s - 20) * 256))
                    a("buffer_load_dwordx4 v16, s[84:87], s6 offen sc1 lds")
                else:
                    s3 = s - 32
                    sr = 92 if s3 < 5 else 96
                    a("s_add_u32 s6, s8, %d" % (i * 16 * 1280 + (s3 % 5) * 256))
                    a("buffer_load_dwordx4 v5, s[%d:%d], s6 offen lds" % (sr, sr + 3))
            n = 5
        vm.issue(("F", s), n)

    def dep_part(s):
        sl = s % NS
        if 10 <= s < 14:
            vm.issue(("D", s), 0)
            return
        for i in range(4):
            if s < 20:
                a("s_add_u32 m0, s4, %d" % (sl * SLOT + i * 4096))
                a("s_add_u32 s6, s47, %d" % (i * 40960 + kidx(s) * 128))
                a("buffer_load_dwordx4 v5, s[64:67], s6 offen sc1 lds")
            elif s < 32:
                a("s_add_u32 m0, s46, %d" % (sl * SLOT + i * 2048))
                a("s_add_u32 s6, s50, %d" % (i * 1024 + (s - 20) * 16384))
                a("buffer_load_dwordx4 v21, s[80:83], s6 offen sc1 lds")
            else:
                a("s_add_u32 m0, s46, %d" % (sl * SLOT + i * 2048))
                a("s_add_u32 s6, s9, %d" % (i * 1024 + (s - 32) * 8192))
                a("buffer_load_dwordx4 v10, s[88:91], s6 offen sc1 lds")
        vm.issue(("D", s), 4)
    a("s_mul_i32 s24, s13, %d" % (128 * 1280))
    a("s_add_u32 s24, s24, %d" % WS_XN)
    srd_off(a, 64, 10, 11, "s24", 128 * 1280)
    a("s_cmp_eq_u32 s18, 0")
    a("s_cselect_b32 s24, s%d, s%d" % (P_BRE, P_BIM))
    a("s_cselect_b32 s25, s%d, s%d" % (P_BRE + 1, P_BIM + 1))
    a("s_mul_i32 s26, s14, %d" % (40 * 1280))
    srd_off(a, 72, 24, 25, "s26", 40 * 1280)
    a("s_mul_i32 s24, s15, 196608")
    a("s_add_u32 s24, s24, %d" % WS_H1)
    srd_off(a, 80, 10, 11, "s24", 196608)
    a("s_mul_i32 s24, s16, %d" % (80 * 3072))
    a("s_add_u32 s24, s24, %d" % WS_W2T)
    srd_off(a, 84, 10, 11, "s24", 80 * 3072)
    a("s_mul_i32 s24, s15, 163840")
    a("s_add_u32 s24, s24, %d" % WS_HT)
    srd_off(a, 88, 10, 11, "s24", 163840)
    a("s_lshr_b32 s24, s2, 3")
    Lpfd = a.newlabel("U_pfd")

    def job(j):
        a("s_and_b32 s25, s2, 7")
        a("v_lshlrev_b32 v18, 7, v1")
        if j == "B":
            a("s_lshr_b32 s25, s25, 1")
            a("s_mul_i32 s25, s25, 204800")
            a("s_mul_i32 s26, s24, 6400")
            a("s_add_u32 s25, s25, s26")
            srd_off(a, 92, P_BRE, P_BRE + 1, "s25", 6400)
            srd_off(a, 96, P_BIM, P_BIM + 1, "s25", 6400)
            a("buffer_load_dword v19, v18, s[92:95], 0 offen")
            a("buffer_load_dword v20, v18, s[96:99], 0 offen")
        elif j in ("Cr", "Ci"):
            p = P_CRE if j == "Cr" else P_CIM
            a("s_lshr_b32 s25, s25, 2")
            a("s_mul_i32 s25, s25, 409600")
            a("s_mul_i32 s26, s24, 12800")
            a("s_add_u32 s25, s25, s26")
            srd_off(a, 92, p, p + 1, "s25", 12800)
            a("s_movk_i32 s26, 8192")
            a("buffer_load_dword v19, v18, s[92:95], 0 offen")
            a("buffer_load_dword v20, v18, s[92:95], s26 offen")
        else:
            a("s_lshr_b32 s25, s25, 1")
            a("s_mul_i32 s25, s25, 768")
            a("s_mul_i32 s26, s24, %d" % (20 * 3072))
            a("s_add_u32 s25, s25, s26")
            srd_off(a, 92, P_W1, P_W1 + 1, "s25", 20 * 3072 - 2304)
            a("v_mul_u32_u24 v19, 43, v1")
            a("v_lshrrev_b32 v19, 8, v19")
            a("v_mul_u32_u24 v20, 6, v19")
            a("v_sub_u32 v20, v1, v20")
            a("v_mul_u32_u24 v19, 3072, v19")
            a("v_lshl_add_u32 v18, v20, 7, v19")
            a("s_movk_i32 s26, %d" % (10 * 3072))
            a("buffer_load_dword v23, v18, s[92:95], 0 offen")
            a("buffer_load_dword v24, v18, s[92:95], s26 offen")
    for lw in range(4):
        Ln = a.newlabel("U_pfn")
        a("s_cmp_lg_u32 s17, %d" % lw)
        a("s_cbranch_scc1 %s" % Ln)
        for j in PFMAP[lw]:
            job(j)
        a("s_branch %s" % Lpfd)
        a.label(Ln)
    a.label(Lpfd)
    a("s_cmp_eq_u32 s18, 0")
    a("s_cselect_b32 s24, s%d, s%d" % (P_B2, P_DSK))
    a("s_cselect_b32 s25, s%d, s%d" % (P_B2 + 1, P_DSK + 1))
    a("s_mul_i32 s26, s16, 160")
    srd_off(a, 92, 24, 25, "s26", 160)
    a("v_lshlrev_b32 v18, 4, v1")
    a("v_cmp_gt_u32 vcc, 16, v1")
    a("s_and_saveexec_b64 s[26:27], vcc")
    a("s_lshl_b32 s24, s18, 8")
    a("s_add_u32 m0, s24, %d" % (MISC + 1536))
    a("s_nop 0")
    a("buffer_load_dwordx4 v18, s[92:95], 0 offen lds")
    a("s_mov_b64 exec, -1")
    vm.issue("bd", 1)
    a("s_mul_i32 s24, s16, %d" % (80 * 1280))
    srd_off(a, 92, P_CRE, P_CRE + 1, "s24", 80 * 1280)
    srd_off(a, 96, P_CIM, P_CIM + 1, "s24", 80 * 1280)
    a("v_mul_u32_u24 v5, 1280, v2")
    a("v_lshl_add_u32 v5, v4, 4, v5")
    a("v_mul_u32_u24 v16, 3072, v2")
    a("v_lshl_add_u32 v16, v4, 4, v16")
    a("v_and_b32 v10, 1, v6")
    a("s_lshl_b32 s24, s18, 1")
    a("v_or_b32 v10, s24, v10")
    a("v_lshrrev_b32 v11, 1, v3")
    a("v_xor_b32 v11, v10, v11")
    a("v_lshrrev_b32 v10, 1, v11")
    a("v_mul_u32_u24 v10, 81920, v10")
    a("v_lshl_add_u32 v10, v2, 6, v10")
    a("v_and_b32 v11, 1, v11")
    a("v_lshl_add_u32 v10, v11, 5, v10")
    a("v_and_b32 v11, 1, v1")
    a("v_lshl_add_u32 v10, v11, 4, v10")
    a("v_lshrrev_b32 v21, 2, v4")
    a("v_lshlrev_b32 v21, 12, v21")
    a("v_lshl_add_u32 v21, v2, 6, v21")
    a("v_and_b32 v11, 3, v4")
    a("v_lshl_add_u32 v21, v11, 4, v21")
    a("s_mul_i32 s47, s17, 10240")
    a("s_mul_i32 s5, s19, 10240")
    a("s_lshl_b32 s50, s19, 13")
    a("s_lshl_b32 s24, s18, 9")
    a("s_add_u32 s50, s50, s24")
    a("s_lshl_b32 s9, s19, 12")
    a("s_add_u32 s9, s9, s24")
    a("s_mul_i32 s7, s18, %d" % (8 * 3072))
    a("s_lshl_b32 s24, s19, 7")
    a("s_add_u32 s7, s7, s24")
    a("s_mul_i32 s8, s18, %d" % (8 * 1280))
    a("s_add_u32 s8, s8, s24")
    a("s_mul_i32 s46, s19, %d" % SUB)
    a("s_lshl_b32 s24, s18, 10")
    a("s_add_u32 s46, s46, s24")

    def gate(soff_code, target, word, first=False):
        Lnp = a.newlabel("U_gnp")
        Lgo = a.newlabel("U_ggo")
        a("s_cmp_lg_u32 s17, 0")
        a("s_cbranch_scc1 %s" % Lnp)
        a("v_mov_b32 v23, 1")
        soff_code()
        poll(a, 18, 17, 76, "s24", chk_ge(target), "U_g", 3)
        a("ds_write_b32 v15, v23 offset:%d" % word)
        a("s_branch %s" % Lgo)
        a.label(Lnp)
        lds_wait(a, 18, 15, word, 1, "U_gw", 1)
        a.label(Lgo)

    st()
    for k in range(PREF):
        free_part(k)
    lds_wait(a, 18, 15, 4, 1, "U_gx", 1)
    if LPRIO:
        a("s_setprio %d" % LPRIO)
    st()

    def phase(s0, s1, nxt_free_to):
        for k in range(2):
            if s0 == 0 and k >= PREF:
                free_part(s0 + k)
            dep_part(s0 + k)
        vm.wait(("D", s0))
        st()
        a("s_barrier")
        for k in range(2, 4):
            if s0 == 0:
                free_part(s0 + k)
            dep_part(s0 + k)
        for s in range(s0, s1):
            if s + 1 < s1:
                vm.wait(("D", s + 1))
            if s == ESTAGE:
                vm.wait("Emark")
            if s == 41:
                vm.drain()
            a("s_barrier")
            if STAMP and s % 2 == 1:
                st()
            n = s + NS
            if s == 1:
                Lsk = a.newlabel("U_w2s")
                a("s_cmp_lg_u32 s17, 2")
                a("s_cbranch_scc1 %s" % Lsk)
                a("s_cmp_ge_u32 s2, 240")
                a("s_cbranch_scc1 %s" % Lsk)
                a("s_lshl_b32 s24, s28, 8")
                a("s_add_u32 s24, s24, %d" % F_W2)
                signal(18, 19, "s24")
                a.label(Lsk)
            if s == ESTAGE - 3:
                a("s_lshl_b32 s26, 1, s13")
                a("s_sub_u32 s26, s26, 1")
                a("s_lshl_b32 s27, s14, 8")
                a("s_add_u32 s27, s27, %d" % F_E)
                a("buffer_load_dword v20, v17, s[76:79], s27 offen sc1")
                vm.issue("pollE", 1)
            if s == ESTAGE - 2:
                def chkE(sr):
                    a("s_and_b32 s%d, s%d, s26" % (sr, sr))
                    a("s_cmp_eq_u32 s%d, s26" % sr)
                vm.wait("pollE")
                Lok = a.newlabel("U_eok")
                a("v_readfirstlane_b32 s30, v20")
                a("s_nop 3")
                chkE(30)
                a("s_cbranch_scc1 %s" % Lok)
                poll(a, 20, 17, 76, "s27", chkE, "U_e", 2)
                a.label(Lok)
                a("s_mul_i32 s24, s14, 5120")
                a("s_add_u32 s24, s24, %d" % WS_ET)
                srd_off(a, 64, 10, 11, "s24", 5120)
                a("v_lshlrev_b32 v18, 4, v1")
                a("s_add_u32 m0, s4, %d" % (MISC + 6144 + 5120))
                a("s_nop 0")
                a("buffer_load_dwordx4 v18, s[64:67], s4 offen sc1 lds")
                Lsk = a.newlabel("U_e5")
                a("s_cmp_lg_u32 s17, 0")
                a("s_cbranch_scc1 %s" % Lsk)
                a("s_mov_b32 m0, %d" % (MISC + 6144 + 5120 + 4096))
                a("s_movk_i32 s24, 4096")
                a("buffer_load_dwordx4 v18, s[64:67], s24 offen sc1 lds")
                a.label(Lsk)
                vm.issue("E", 1)
                vm.issue("Emark", 0)
            if s == 38:
                a("s_lshl_b32 s24, s15, 6")
                a("s_mul_i32 s24, s24, 1280")
                a("s_mul_i32 s25, s16, 160")
                a("s_add_u32 s24, s24, s25")
                srd_off(a, 64, P_X, P_X + 1, "s24", 64 * 1280 - 1120)
                a("s_add_u32 s24, s24, %d" % WS_XN)
                srd_off(a, 68, 10, 11, "s24", 64 * 1280 - 1120)
                a("s_lshl_b32 s24, s17, 6")
                for i in range(3):
                    a("v_add_u32 v18, s24, v1")
                    if i:
                        a("v_add_u32 v18, %d, v18" % (256 * i))
                    a("v_mul_u32_u24 v19, 6554, v18")
                    a("v_lshrrev_b32 v19, 16, v19")
                    a("v_mul_u32_u24 v20, 10, v19")
                    a("v_sub_u32 v20, v18, v20")
                    a("v_mul_u32_u24 v23, 1280, v19")
                    a("v_lshl_add_u32 v23, v20, 4, v23")
                    a("v_and_b32 v24, 0xffe3, v19")
                    a("v_lshrrev_b32 v25, 2, v19")
                    a("v_and_b32 v25, 1, v25")
                    a("v_lshl_add_u32 v24, v25, 4, v24")
                    a("v_lshrrev_b32 v25, 3, v19")
                    a("v_and_b32 v25, 3, v25")
                    a("v_lshl_add_u32 v24, v25, 2, v24")
                    a("v_mul_u32_u24 v24, 1280, v24")
                    a("v_lshl_add_u32 v24, v20, 4, v24")
                    if i < 2:
                        a("s_add_u32 m0, s4, %d" % (2 * SLOT + i * 4096))
                        a("s_nop 0")
                        a("buffer_load_dwordx4 v23, s[64:67], 0 offen lds")
                        a("s_add_u32 m0, s4, %d" % (2 * SLOT + 10240 + i * 4096))
                        a("s_nop 0")
                        a("buffer_load_dwordx4 v24, s[68:71], 0 offen sc1 lds")
                    else:
                        Lsk = a.newlabel("U_x3")
                        a("s_cmp_ge_u32 s17, 2")
                        a("s_cbranch_scc1 %s" % Lsk)
                        a("s_add_u32 m0, s4, %d" % (2 * SLOT + i * 4096))
                        a("s_nop 0")
                        a("buffer_load_dwordx4 v23, s[64:67], 0 offen lds")
                        a("s_add_u32 m0, s4, %d" % (2 * SLOT + 10240 + i * 4096))
                        a("s_nop 0")
                        a("buffer_load_dwordx4 v24, s[68:71], 0 offen sc1 lds")
                        a.label(Lsk)
                vm.issue("X", 4)
            if n < s1:
                if n == 31:
                    a("s_lshl_b32 s25, s15, 8")
                    a("s_add_u32 s25, s25, %d" % F_HT)
                    a("buffer_load_dword v19, v17, s[76:79], s25 offen sc1")
                    vm.issue("pollHT", 1)
                if n == 19:
                    a("s_mul_i32 s25, s16, 80")
                    a("s_add_u32 s26, s25, 79")
                    a("s_lshr_b32 s25, s25, 6")
                    a("s_lshr_b32 s26, s26, 6")
                    a("s_lshl_b32 s25, s25, 8")
                    a("s_lshl_b32 s26, s26, 8")
                    a("s_add_u32 s25, s25, %d" % F_W2)
                    a("s_add_u32 s26, s26, %d" % F_W2)
                    a("buffer_load_dword v19, v17, s[76:79], s25 offen sc1")
                    a("buffer_load_dword v20, v17, s[76:79], s26 offen sc1")
                    vm.issue("pollW2", 2)
                free_part(n)
                if n == 32:
                    vm.wait("pollHT")
                    Lok = a.newlabel("U_htok")
                    a("v_readfirstlane_b32 s30, v19")
                    a("s_nop 3")
                    a("s_cmp_ge_u32 s30, 32")
                    a("s_cbranch_scc1 %s" % Lok)
                    poll(a, 19, 17, 76, "s25", chk_ge(32), "U_ht")
                    a.label(Lok)
                dep_part(n)
            elif n < nxt_free_to:
                if n == 20:
                    vm.wait("pollW2")
                    Lok = a.newlabel("U_w2ok")
                    a("v_min_u32 v19, v19, v20")
                    a("s_nop 0")
                    a("v_readfirstlane_b32 s30, v19")
                    a("s_nop 3")
                    a("s_cmp_ge_u32 s30, 24")
                    a("s_cbranch_scc1 %s" % Lok)
                    poll(a, 19, 17, 76, "s25", chk_ge(24), "U_w2")
                    poll(a, 19, 17, 76, "s26", chk_ge(24), "U_w2")
                    a.label(Lok)
                free_part(n)
    phase(0, 20, 24)
    st()

    def h1off():
        a("s_lshl_b32 s24, s15, 8")
        a("s_add_u32 s24, s24, %d" % F_H1)
    gate(h1off, 32, 12)
    st()
    phase(20, 42, 42)
    st.flush()
    a.label(Lend)
    a("s_endpgm")
    a.label("U_code_end")
    return name, 256


if __name__ == "__main__":
    a = Asm()
    nm, vg = gen_uni(a)
    hdr = open("cdna_kernels/%s.s.ref" % NAME).read().split("\n")
    hdr = [l for l in hdr if l.startswith(";") and "@launch" not in l]
    out = "\n".join(hdr) + "\n; @launch grid=(256,1,1) block=(512,1,1) lds=163840\n"
    out += '.amdgcn_target "amdgcn-amd-amdhsa--gfx950"\n.text\n' + a.text()
    out += '.section .rodata,"a"\n.p2align 6\n' + kernel_desc(nm, vg)
    open(sys.argv[1] if len(sys.argv) > 1 else "cdna_kernels/%s.s" % NAME, "w").write(out)
```
